```python
import torch

def _softmax(x, axis=-1):
    return torch.softmax(x, dim=axis)
def _gelu(x):
    return torch.nn.functional.gelu(x, approximate="tanh")
def _silu(x):
    return torch.nn.functional.silu(x)
def _sigmoid(x):
    return torch.sigmoid(x)
def _layernorm(x, axis=-1, eps=1e-5):
    m = x.mean(dim=axis, keepdim=True)
    v = x.var(dim=axis, keepdim=True, unbiased=False)
    return (x - m) / torch.sqrt(v + eps)
def _scatter_add(tgt, idx, src, axis=0):
    return tgt.clone().index_add_(axis, idx, src)
def _segment_sum(src, seg, n):
    out = torch.zeros((n,) + src.shape[1:], dtype=src.dtype)
    return out.index_add_(0, seg, src)
def _pad(x, pw):
    flat = tuple(v for pair in reversed(pw) for v in pair)
    return torch.nn.functional.pad(x, flat)

kernel_name = 'parallel_sum__sliding_block__dense_activation_gelu__prompt'

def setup_inputs():

    _w = (lambda a: (lambda t: t.to(torch.bfloat16) if t.is_floating_point() else t)(torch.as_tensor(a)))
    def _A_setup():
        B, S, D = 1, 2048, 448
        return {
            "x": _w((lambda *s: torch.randn(*s, dtype=torch.bfloat16) * 0.05)(B, S, D)),
            "wqkv": _w((lambda *s: torch.randn(*s, dtype=torch.bfloat16) * 0.05)(D, 3 * D)),
            "wo": _w((lambda *s: torch.randn(*s, dtype=torch.bfloat16) * 0.05)(D, D)),
        }
    _A_in = _A_setup()

    def _B_setup():
        B, S, D, F = 1, 2048, 448, 1792
        return {
            "x": _w((lambda *s: torch.randn(*s, dtype=torch.bfloat16) * 0.05)(B, S, D)),
            "w1": _w((lambda *s: torch.randn(*s, dtype=torch.bfloat16) * 0.8)(D, F) * (D ** -0.5)),
            "b1": _w((lambda *s: torch.randn(*s, dtype=torch.bfloat16) * 0.8)(F) * 0.01),
            "w2": _w((lambda *s: torch.randn(*s, dtype=torch.bfloat16) * 0.8)(F, D) * (F ** -0.5)),
            "b2": _w((lambda *s: torch.randn(*s, dtype=torch.bfloat16) * 0.8)(D) * 0.01),
        }
    _B_in = _B_setup()

    return {
        "A_x": _A_in["x"],
        "A_wqkv": _A_in["wqkv"],
        "A_wo": _A_in["wo"],
        "B_x": _B_in["x"],
        "B_w1": _B_in["w1"],
        "B_b1": _B_in["b1"],
        "B_w2": _B_in["w2"],
        "B_b2": _B_in["b2"],
    }

def reference(A_x, A_wqkv, A_wo, B_x, B_w1, B_b1, B_w2, B_b2):
    def _A_ref(x, wqkv, wo):
        B, S, D = x.shape
        H = 16; Dh = D // H; W = 256
        qkv = (lambda x, *d: x.permute(*d))((x @ wqkv).reshape(B, S, 3, H, Dh), 2, 0, 3, 1, 4)
        q, k, v = qkv[0], qkv[1], qkv[2]
        scores = torch.einsum("bhqd,bhkd->bhqk", q, k) * (Dh ** -0.5)
        idx = torch.arange(S)
        mask = (idx[:, None] - idx[None, :] >= 0) & (idx[:, None] - idx[None, :] < W)
        scores = torch.where(mask[None, None], scores, -1e9)
        p = _softmax(scores, axis=-1)
        o = torch.einsum("bhqk,bhkd->bhqd", p, v)
        return (lambda x, *d: x.permute(*d))(o, 0, 2, 1, 3).reshape(B, S, D) @ wo

    def _B_ref(x, w1, b1, w2, b2):
        h = torch.einsum("bsd,df->bsf", x, w1) + b1
        h = _gelu(h)
        return torch.einsum("bsf,fd->bsd", h, w2) + b2

    x = A_x
    xn = _layernorm(x, axis=-1)
    return x + _A_ref(xn, A_wqkv, A_wo) + _B_ref(xn, B_w1, B_b1, B_w2, B_b2)
```

```python
import struct
import sys

NAME = "parallel_sum__sliding_block__dense_activation_gelu__prompt"

RT = 28672
OFF_Q = 0
OFF_K = 64 * RT
OFF_V = 2 * 64 * RT
OFF_ACT = 3 * 64 * RT
ACT_RT = 144 * 1024
WS_BYTES = OFF_ACT + 64 * ACT_RT

X_BYTES = 2048 * 896
WQKV_BYTES = 448 * 2688
W1_BYTES = 448 * 3584
W2_BYTES = 1792 * 896
WO_BYTES = 448 * 896


def f32(x):
    return "0x%08x" % struct.unpack("<I", struct.pack("<f", x))[0]


class Asm:
    def __init__(self):
        self.o = []

    def __call__(self, *lines):
        for s in lines:
            self.o.append("    " + s)

    def label(self, s):
        self.o.append(s + ":")

    def raw(self, s):
        self.o.append(s)

    def text(self):
        return "\n".join(self.o) + "\n"


def vr(b, n):
    return f"v[{b}:{b + n - 1}]"


def sr(b, n):
    return f"s[{b}:{b + n - 1}]"


def mfma(d, a, b, c):
    cs = c if isinstance(c, str) else vr(c, 16)
    return f"v_mfma_f32_32x32x16_bf16 {vr(d, 16)}, {vr(a, 4)}, {vr(b, 4)}, {cs}"


def srd(a, d, lo, hi, nbytes):
    a(f"s_mov_b32 s{d}, s{lo}", f"s_mov_b32 s{d + 1}, s{hi}",
      f"s_mov_b32 s{d + 2}, {nbytes}", f"s_mov_b32 s{d + 3}, 0x20000")


def kernel_head(a, name):
    a.raw(f".globl {name}")
    a.raw(".p2align 8")
    a.raw(f".type {name},@function")
    a.label(name)


def kernel_desc(a, name, vgpr, sgpr):
    a.raw(".p2align 6")
    a.raw(f".amdhsa_kernel {name}")
    a.raw(f"  .amdhsa_next_free_vgpr {vgpr}")
    a.raw(f"  .amdhsa_next_free_sgpr {sgpr}")
    a.raw(f"  .amdhsa_accum_offset {(vgpr + 3) // 4 * 4}")
    a.raw("  .amdhsa_group_segment_fixed_size 0")
    a.raw("  .amdhsa_kernarg_size 88")
    a.raw("  .amdhsa_user_sgpr_count 2")
    a.raw("  .amdhsa_user_sgpr_kernarg_segment_ptr 1")
    a.raw("  .amdhsa_system_sgpr_workgroup_id_x 1")
    a.raw(".end_amdhsa_kernel")


def spread(slots, items, first, last):
    w = [2 if (s.startswith("v_exp") or s.startswith("v_rcp")) else 1 for s in items]
    tot = sum(w)
    n = last - first + 1
    acc = 0
    for s, wi in zip(items, w):
        k = min(n - 1, int((acc + wi * 0.5) * n / tot))
        slots[first + k].append(s)
        acc += wi


K1_SLOT = 28672
K1_BIAS = 143360
K1_RSCR = 143872
K1_LDS = 144384


def gen_k1(a):
    name = "k1_kernel"
    kernel_head(a, name)
    X, ACA, ACB, WR, T, P = 128, 64, 80, 96, 16, 48
    AB, BB = 240, 244
    SX, SW, SWS, SBI = 16, 20, 24, 28
    a("s_cmp_ge_u32 s2, 256", "s_cbranch_scc1 K1_END")
    a("s_load_dwordx4 s[4:7], s[0:1], 0", "s_load_dwordx4 s[8:11], s[0:1], 32",
      "s_load_dwordx2 s[12:13], s[0:1], 80")
    a("v_lshrrev_b32 v2, 6, v0", "v_and_b32 v1, 63, v0", "v_readfirstlane_b32 s32, v2")
    a("s_and_b32 s41, s2, 7", "s_lshr_b32 s42, s2, 3",
      "s_lshr_b32 s33, s41, 2", "s_lshl_b32 s33, s33, 3", "s_lshr_b32 s43, s42, 2", "s_add_u32 s33, s33, s43",
      "s_and_b32 s34, s41, 3", "s_lshl_b32 s34, s34, 2", "s_and_b32 s43, s42, 3", "s_add_u32 s34, s34, s43")
    a("s_cmp_lt_u32 s34, 6", "s_cbranch_scc0 K1_DEC_FFN")
    a("s_lshr_b32 s35, s34, 1", "s_and_b32 s39, s34, 1",
      "s_mov_b32 s36, 7", "s_mul_i32 s37, s35, 7", "s_add_u32 s38, s37, 3",
      "s_lshl_b32 s43, s39, 2", "s_add_u32 s37, s37, s43",
      "s_lshl_b32 s44, s39, 3",
      "s_add_u32 s45, s39, 6",
      "s_movk_i32 s40, 2688", "s_branch K1_DEC_DONE")
    a.label("K1_DEC_FFN")
    a("s_mov_b32 s35, 3", "s_mov_b32 s39, 0", "s_sub_u32 s43, s34, 6",
      "s_mul_i32 s37, s43, 3", "s_mov_b32 s36, 6",
      "s_cmp_eq_u32 s43, 9", "s_cselect_b32 s37, 26, s37",
      "s_cmp_ge_u32 s43, 8", "s_cselect_b32 s36, 4, s36",
      "s_mov_b32 s38, 0", "s_lshl_b32 s44, s37, 1", "s_mov_b32 s45, 0", "s_movk_i32 s40, 3584")
    a.label("K1_DEC_DONE")
    a("s_lshl_b32 s37, s37, 7", "s_lshl_b32 s38, s38, 7")
    a("s_cmp_eq_u32 s32, 4", "s_cbranch_scc1 K1_LOADER")

    a("v_lshrrev_b32 v2, 3, v1", "v_and_b32 v3, 7, v1", "v_lshrrev_b32 v4, 4, v1",
      "v_xor_b32 v3, v3, v4", "v_mul_u32_u24 v4, 896, v2", "v_lshl_add_u32 v4, v3, 4, v4",
      "v_xor_b32 v5, 64, v4", "v_add_u32 v6, 12288, v4", "v_add_u32 v7, 18432, v5", "v_add_u32 v5, 6144, v5")
    a("s_lshl_b32 s46, s33, 2", "s_add_u32 s46, s46, s32",
      f"s_mul_i32 s47, s46, {RT}", f"s_mul_i32 s48, s32, {K1_SLOT}")
    a("s_waitcnt lgkmcnt(0)")
    srd(a, SX, 4, 5, X_BYTES)
    for g in range(7):
        a(f"s_add_u32 m0, s48, {g * 4096}", f"s_add_u32 s49, s47, {g * 128}")
        for i in range(4):
            a(f"buffer_load_dwordx4 v{4 + i}, {sr(SX, 4)}, s49 offen offset:{i * 1024} lds")
    srd(a, SWS, 12, 13, WS_BYTES)
    a("v_and_b32 v2, 31, v1", "v_lshrrev_b32 v3, 5, v1", "v_bfe_u32 v4, v1, 1, 3", "v_xor_b32 v4, v4, v3",
      "v_lshlrev_b32 v4, 4, v4", "v_lshl_add_u32 v4, v2, 7, v4", "v_add_u32 v8, s48, v4",
      "v_xor_b32 v9, 32, v8", "v_xor_b32 v10, 64, v8", "v_xor_b32 v11, 96, v8")
    a("v_bfe_u32 v4, v1, 2, 1",
      "v_bfe_u32 v5, v1, 3, 1",
      "v_bfe_u32 v6, v1, 1, 1", "v_lshl_add_u32 v5, v5, 1, v6",
      "v_bfe_u32 v6, v1, 4, 1", "v_lshl_add_u32 v5, v6, 2, v5",
      "v_xor_b32 v4, v4, v3", "v_lshl_add_u32 v5, v4, 3, v5",
      "v_and_b32 v6, 1, v1", "v_lshlrev_b32 v6, 4, v6", "v_mov_b32 v7, 0x3f80", "v_lshlrev_b32 v6, v6, v7")
    for k in range(8):
        a(f"v_cmp_eq_u32 {sr(52 + 2 * k, 2)}, {k}, v5")
    for k in range(8):
        a(f"v_cndmask_b32 v{WR + k}, 0, v6, {sr(52 + 2 * k, 2)}")
    a("v_and_b32 v4, 3, v1", "v_bfe_u32 v5, v1, 4, 1",
      "v_and_b32 v6, 1, v1", "v_bfe_u32 v7, v1, 1, 1", "v_lshl_add_u32 v6, v6, 1, v7",
      "s_cmp_eq_u32 s35, 3", "s_cselect_b64 vcc, -1, 0",
      "v_cndmask_b32 v4, v4, v6, vcc", "v_lshl_add_u32 v4, v5, 2, v4",
      "v_bfe_u32 v5, v1, 2, 2", "v_lshlrev_b32 v5, 6, v5", "v_lshl_add_u32 v4, v4, 3, v5",
      "v_lshl_add_u32 v12, v3, 10, v4")
    a("v_mov_b32 v14, 0", "v_mov_b32 v15, 0", "s_mov_b32 s50, 0x3f803f80")

    def stats(g):
        for r in range(X + 16 * g, X + 16 * g + 16):
            a(f"v_dot2c_f32_bf16 v14, s50, v{r}", f"v_dot2c_f32_bf16 v15, v{r}, v{r}")

    for g in range(7):
        a(f"s_waitcnt vmcnt({24 - 4 * g})")
        for q in range(4):
            a(f"ds_read_b128 {vr(X + 16 * g + 4 * q, 4)}, v{8 + q} offset:{g * 4096}")
        if g:
            a("s_waitcnt lgkmcnt(4)")
            stats(g - 1)
    a("s_waitcnt lgkmcnt(0)", "s_barrier")
    stats(6)
    a("s_nop 2", "v_mov_b32 v4, v14", "v_mov_b32 v5, v15", "s_nop 1",
      "v_permlane32_swap_b32 v4, v14", "v_permlane32_swap_b32 v5, v15",
      "v_add_f32 v14, v4, v14", "v_add_f32 v15, v5, v15",
      f"v_mul_f32 v14, {f32(1 / 448)}, v14", f"v_mul_f32 v15, {f32(1 / 448)}, v15",
      "v_cvt_pk_bf16_f32 v4, v14, v14", "v_fma_f32 v15, -v14, v14, v15",
      "v_lshlrev_b32 v4, 16, v4", "v_max_f32 v15, 0, v15", "v_xor_b32 v4, 0x80000000, v4")
    for i in range(16):
        a(f"v_mov_b32 v{T + i}, v4")
    a("s_nop 1")
    fin = ["v_cvt_pk_bf16_f32 v15, v15, v15", "v_lshlrev_b32 v15, 16, v15", f"v_add_f32 v15, {f32(1e-5)}, v15",
           "v_cvt_pk_bf16_f32 v15, v15, v15", "v_lshlrev_b32 v15, 16, v15", "v_sqrt_f32 v15, v15", "s_nop 0",
           "v_cvt_pk_bf16_f32 v5, v15, v15", "v_lshlrev_b32 v15, 16, v5", "v_rcp_f32 v14, v15",
           "v_and_b32 v5, 0xffff, v5", "s_nop 0", "s_nop 0"]
    for p in range(15):
        d = (ACA, ACB)[p & 1]
        dp = (ACA, ACB)[(p - 1) & 1]
        cv = []
        if p:
            for k in range(8):
                cv.append(f"v_cvt_pk_bf16_f32 v{X + 8 * (p - 1) + k}, v{dp + 2 * k}, v{dp + 2 * k + 1}")
        if p < 14:
            a(mfma(d, WR, X + 8 * p, T))
            a(mfma(d, WR + 4, X + 8 * p + 4, d))
            if p == 0:
                a(*fin)
            elif p == 1:
                a(*cv)
            else:
                a("s_nop 1")
                a(*cv)
        else:
            a("s_nop 3")
            a(*cv)
    a("s_mov_b32 s52, %d" % (224 | 225 << 8 | 56 << 16 | 57 << 24),
      "s_lshl_b32 s43, s39, 16", "s_add_u32 s53, s43, %d" % (168 | 169 << 8),
      "s_mov_b32 s54, %d" % (0 | 1 << 8 | 112 << 16 | 113 << 24),
      "s_add_u32 s55, s43, %d" % (224 | 225 << 8 | 56 << 16))
    a("s_and_b32 s43, s52, 0xff", "s_lshr_b64 s[52:53], s[52:53], 8", "v_lshl_add_u32 v8, s43, 9, v12")
    a("s_mov_b32 s56, 0", "s_mov_b32 s57, 0x7ff00000")
    a("s_cmp_eq_u32 s35, 3", "s_cbranch_scc1 K1_FFN", "s_cmp_eq_u32 s35, 2", "s_cbranch_scc1 K1_V")

    PD = 4

    def ring(j):
        return WR + 4 * (j % 7)

    def rd(j):
        jj = j % 28
        base = "v8" if jj < 14 else "v9"
        r = ring(j)
        return [f"ds_read_b64_tr_b16 {vr(r, 2)}, {base} offset:{(jj % 14) * 2048}",
                f"ds_read_b64_tr_b16 {vr(r + 2, 2)}, {base} offset:{(jj % 14) * 2048 + 256}"]

    def body(tag, kind, epi, stride):
        a("s_barrier")
        if kind == "ffn":
            a(f"ds_read_u16 v{AB}, v10")
        for j in range(PD):
            a(*rd(j))
        a.label(f"K1_{tag}_LOOP")
        slots = [[] for _ in range(28)]
        spread(slots, epi, 3, 26)
        slots[0] += ["s_and_b32 s43, s54, 0xff", "s_lshr_b64 s[54:55], s[54:55], 8",
                     "v_lshl_add_u32 v9, s43, 9, v12"]
        slots[12] += ["s_and_b32 s43, s52, 0xff", "s_lshr_b64 s[52:53], s[52:53], 8",
                      "v_lshl_add_u32 v8, s43, 9, v12"]
        for j in range(28):
            extra = 1 if (kind == "ffn" and 24 <= j) else 0
            a(f"s_waitcnt lgkmcnt({2 * (PD - 1) + extra})")
            if j == 0 and kind == "ffn":
                a(mfma(ACA, AB, BB, "0"))
                a("v_add_u32 v10, 64, v10")
            d = ACB if j == 27 else ACA
            c = "0" if (j == 0 and kind != "ffn") else ACA
            if kind == "v":
                a(mfma(d, X + 4 * j, ring(j), c))
            else:
                a(mfma(d, ring(j), X + 4 * j, c))
            if j == 23 and kind == "ffn":
                a(*rd(j + PD))
                a(f"ds_read_u16 v{AB}, v10")
            else:
                a(*rd(j + PD))
            a(*slots[j])
        a("s_cmp_eq_u32 s56, 6", "s_cselect_b32 s57, s59, s58", f"s_add_u32 s58, s58, {stride}",
          "s_add_u32 s56, s56, 1", "s_barrier", "s_cmp_lt_u32 s56, s36", f"s_cbranch_scc1 K1_{tag}_LOOP")
        a("s_nop 7")
        a(*epi)
        a("s_endpgm")

    a(f"s_mul_i32 s43, s35, {64 * RT}", "s_add_u32 s43, s43, s47",
      "s_lshl_b32 s58, s44, 11", "s_add_u32 s58, s58, s43", "s_lshl_b32 s59, s45, 11", "s_add_u32 s59, s59, s43",
      "s_cmp_eq_u32 s35, 0", f"s_cselect_b32 s43, {f32(28 ** -0.5 * 1.4426950408889634)}, 1.0",
      "v_mul_f32 v14, s43, v14", "v_lshlrev_b32 v13, 3, v1")
    epi = []
    for g in range(4):
        for k in range(4):
            epi.append(f"v_mul_f32 v{T + 4 * g + k}, v14, v{ACB + 4 * g + k}")
        epi.append(f"v_cvt_pk_bf16_f32 v{P + 2 * g}, v{T + 4 * g}, v{T + 4 * g + 1}")
        epi.append(f"v_cvt_pk_bf16_f32 v{P + 2 * g + 1}, v{T + 4 * g + 2}, v{T + 4 * g + 3}")
        epi.append(f"buffer_store_dwordx2 {vr(P + 2 * g, 2)}, v13, {sr(SWS, 4)}, s57 offen offset:{g * 512}")
    body("QK", "qk", epi, 2048)

    a.label("K1_V")
    a(f"s_lshl_b32 s43, s32, 7", f"s_add_u32 s43, s43, {K1_RSCR}",
      "v_lshl_add_u32 v4, v2, 2, s43", "v_lshl_add_u32 v5, v3, 4, s43",
      "ds_write_b32 v4, v14", "s_waitcnt lgkmcnt(0)")
    for g in range(4):
        a(f"ds_read_b128 {vr(240 + 4 * g, 4)}, v5 offset:{g * 32}")
    a(f"s_add_u32 s60, s47, {OFF_V}",
      "s_lshl_b32 s58, s44, 9", "s_add_u32 s58, s58, s60", "s_lshl_b32 s59, s45, 9", "s_add_u32 s59, s59, s60",
      "v_mul_u32_u24 v4, 448, v3", "v_lshl_add_u32 v11, v2, 4, v4", "s_movk_i32 s61, 1344",
      "s_waitcnt lgkmcnt(0)")
    epi = ["s_sub_u32 s62, s57, s60", "s_lshr_b32 s62, s62, 4", "v_add_u32 v13, s62, v2",
           "v_mul_u32_u24 v13, 2341, v13", "v_lshrrev_b32 v13, 16, v13", "v_mad_u32_u24 v13, v13, s61, v11"]
    for s in range(2):
        for k in range(8):
            epi.append(f"v_mul_f32 v{T + 8 * s + k}, v{240 + 8 * s + k}, v{ACB + 8 * s + k}")
        for k in range(4):
            epi.append(f"v_cvt_pk_bf16_f32 v{P + 4 * s + k}, v{T + 8 * s + 2 * k}, v{T + 8 * s + 2 * k + 1}")
        epi.append(f"buffer_store_dwordx4 {vr(P + 4 * s, 4)}, v13, {sr(SWS, 4)}, s57 offen offset:{s * 896}")
    body("V", "v", epi, 512)

    a.label("K1_FFN")
    c0 = -2.0 * 0.7978845608028654 * 1.4426950408889634
    c1 = c0 * 0.044715
    a(f"s_mul_i32 s43, s46, {ACT_RT}", f"s_add_u32 s43, s43, {OFF_ACT}",
      "s_lshl_b32 s58, s44, 11", "s_add_u32 s58, s58, s43", "s_mov_b32 s59, s58",
      f"v_mul_f32 v6, {f32(c0)}, v14", "v_mul_f32 v7, v14, v14", "v_mul_f32 v7, v7, v14",
      f"v_mul_f32 v7, {f32(c1)}, v7", "v_lshlrev_b32 v13, 4, v1",
      "v_cmp_eq_u32 vcc, 0, v3",
      f"v_mov_b32 v{AB + 1}, 0", f"v_mov_b32 v{AB + 2}, 0", f"v_mov_b32 v{AB + 3}, 0",
      f"v_cndmask_b32 v{BB}, 0, v5, vcc",
      f"v_mov_b32 v{BB + 1}, 0", f"v_mov_b32 v{BB + 2}, 0", f"v_mov_b32 v{BB + 3}, 0",
      "v_and_b32 v4, 19, v1", "v_bfe_u32 v10, v1, 2, 1", "v_lshl_add_u32 v4, v10, 3, v4",
      "v_bfe_u32 v10, v1, 3, 1", "v_lshl_add_u32 v4, v10, 2, v4",
      "v_lshlrev_b32 v4, 1, v4", f"v_add_u32 v10, {K1_BIAS}, v4")
    epi = []
    for g in range(4):
        t = [T + 4 * (g & 1) + k for k in range(4)]
        s = [ACB + 4 * g + k for k in range(4)]
        epi += [f"v_mul_f32 v{t[k]}, v{s[k]}, v{s[k]}" for k in range(4)]
        epi += [f"v_fma_f32 v{t[k]}, v{t[k]}, v7, v6" for k in range(4)]
        epi += [f"v_mul_f32 v{t[k]}, v{s[k]}, v{t[k]}" for k in range(4)]
        epi += [f"v_exp_f32 v{t[k]}, v{t[k]}" for k in range(4)]
        epi += [f"v_fma_f32 v{t[k]}, v{t[k]}, v15, v15" for k in range(4)]
        epi += [f"v_rcp_f32 v{t[k]}, v{t[k]}" for k in range(4)]
        epi += [f"v_mul_f32 v{t[k]}, v{s[k]}, v{t[k]}" for k in range(4)]
        epi += [f"v_cvt_pk_bf16_f32 v{P + 2 * g}, v{t[0]}, v{t[1]}",
                f"v_cvt_pk_bf16_f32 v{P + 2 * g + 1}, v{t[2]}, v{t[3]}"]
        if g & 1:
            epi.append(f"buffer_store_dwordx4 {vr(P + 2 * g - 2, 4)}, v13, {sr(SWS, 4)}, s57 offen "
                       f"offset:{(g >> 1) * 1024}")
    body("FFN", "ffn", epi, 2048)

    a.label("K1_LOADER")
    a("v_bfe_u32 v2, v1, 2, 3", "v_mul_lo_u32 v4, v2, s40", "v_lshrrev_b32 v3, 5, v1",
      "v_lshl_add_u32 v4, v3, 6, v4", "v_and_b32 v3, 3, v1", "v_lshl_add_u32 v4, v3, 4, v4",
      "s_lshl_b32 s43, s40, 3", "s_sub_u32 s43, s43, 1024",
      "v_add_u32 v5, s43, v4", "v_add_u32 v6, s43, v5", "v_add_u32 v7, s43, v6",
      "s_lshl_b32 s46, s40, 5", "s_mul_i32 s47, s40, 224", "v_lshlrev_b32 v8, 2, v1")
    a("s_waitcnt lgkmcnt(0)")
    a("s_cmp_eq_u32 s35, 3", f"s_cselect_b32 s{SW}, s8, s6", f"s_cselect_b32 s{SW + 1}, s9, s7",
      f"s_mov_b32 s43, {WQKV_BYTES}", f"s_cselect_b32 s{SW + 2}, {W1_BYTES}, s43", f"s_mov_b32 s{SW + 3}, 0x20000")
    srd(a, SBI, 10, 11, 3584)

    def stage(st):
        i, kh = st >> 1, st & 1
        if i < 3:
            a(f"s_add_u32 s48, s37, {i * 128}")
        else:
            a("s_mov_b32 s48, s38")
        if kh:
            a("s_add_u32 s48, s48, s47")
        a(f"s_mov_b32 s49, {((st + 4) % 5) * K1_SLOT}", "s_mov_b32 s50, 0")
        a.label(f"K1_ST{st}")
        a("s_mov_b32 m0, s49", "s_add_u32 s49, s49, 4096")
        for k in range(4):
            a(f"buffer_load_dwordx4 v{4 + k}, {sr(SW, 4)}, s48 offen offset:{k * 1024} lds")
        a("s_add_u32 s48, s48, s46", "s_add_u32 s50, s50, 1", "s_cmp_lt_u32 s50, 7", f"s_cbranch_scc1 K1_ST{st}")

    stage(0)
    a(f"s_mov_b32 m0, {K1_BIAS}", "s_nop 0",
      f"buffer_load_dword v8, {sr(SBI, 4)}, s37 offen lds",
      f"buffer_load_dword v8, {sr(SBI, 4)}, s37 offen offset:256 lds")
    a("s_barrier")
    stage(1)
    stage(2)
    stage(3)
    a("s_waitcnt vmcnt(56)", "s_barrier")
    a("s_cmp_eq_u32 s36, 4", "s_cbranch_scc1 K1_LD_REST0")
    stage(4)
    a("s_waitcnt vmcnt(56)", "s_barrier", "s_waitcnt vmcnt(28)", "s_barrier")
    stage(5)
    a("s_waitcnt vmcnt(28)", "s_barrier")
    a("s_mov_b32 s56, 3", "s_cmp_eq_u32 s36, 6", "s_cbranch_scc1 K1_LD_REST")
    stage(6)
    a("s_waitcnt vmcnt(28)", "s_barrier")
    stage(7)
    a("s_waitcnt vmcnt(28)", "s_barrier", "s_mov_b32 s56, 5", "s_branch K1_LD_REST")
    a.label("K1_LD_REST0")
    a("s_mov_b32 s56, 0")
    a.label("K1_LD_REST")
    a("s_waitcnt vmcnt(0)", "s_barrier", "s_add_u32 s56, s56, 1", "s_cmp_lt_u32 s56, s36",
      "s_cbranch_scc1 K1_LD_REST")
    a.label("K1_END")
    a("s_endpgm")
    return name, 256, 72


K2_LDS = 49152


def gen_k2(a):
    name = "k2_kernel"
    kernel_head(a, name)
    KF, QF, S0, S1, OA, CN, CD, CO, PF, VF = 128, 200, 64, 80, 96, 112, 208, 224, 48, 32
    SWS = 24
    MS = 40
    a("s_cmp_ge_u32 s2, 256", "s_cbranch_scc1 K2_END")
    a("s_load_dwordx2 s[12:13], s[0:1], 80")
    a("v_lshrrev_b32 v2, 6, v0", "v_and_b32 v1, 63, v0", "v_readfirstlane_b32 s32, v2")
    a("s_and_b32 s33, s2, 7", "s_lshl_b32 s33, s33, 1", "s_lshr_b32 s34, s2, 3", "s_and_b32 s35, s34, 1",
      "s_add_u32 s33, s33, s35", "s_lshr_b32 s34, s34, 1")
    a("s_lshl_b32 s35, s33, 2", "s_add_u32 s36, s35, s32",
      "s_add_u32 s37, s36, 1", "s_min_u32 s37, s37, 9",
      "s_mul_i32 s38, s34, 1792",
      "s_mul_i32 s39, s32, 3", "s_add_u32 s72, s35, s39", "s_sub_u32 s72, s72, 8",
      "s_lshl_b32 s73, s39, 12",
      "v_lshlrev_b32 v4, 4, v1", "v_lshlrev_b32 v5, 3, v1")
    a("s_waitcnt lgkmcnt(0)")
    srd(a, SWS, 12, 13, WS_BYTES)
    a(f"s_mul_i32 s74, s36, {RT}", "s_add_u32 s74, s74, s38")
    for g in range(4):
        a(f"buffer_load_dwordx2 {vr(QF + 2 * g, 2)}, v5, {sr(SWS, 4)}, s74 offen offset:{g * 512}")
    for i in range(3):
        a("s_cmp_lt_i32 s72, 0", f"s_cbranch_scc1 K2_SKIP{i}")
        a(f"s_mul_i32 s74, s72, {RT}", "s_add_u32 s74, s74, s38", f"s_add_u32 s75, s74, {OFF_V - 2048}",
          f"s_add_u32 s74, s74, {OFF_K}", "s_mov_b32 m0, s73", "s_nop 0",
          f"buffer_load_dwordx4 v4, {sr(SWS, 4)}, s74 offen lds",
          f"buffer_load_dwordx4 v4, {sr(SWS, 4)}, s74 offen offset:1024 lds",
          f"buffer_load_dwordx4 v4, {sr(SWS, 4)}, s75 offen offset:2048 lds",
          "s_mov_b32 exec_hi, 0xffff",
          f"buffer_load_dwordx4 v4, {sr(SWS, 4)}, s75 offen offset:3072 lds",
          "s_mov_b32 exec_hi, -1")
        a.label(f"K2_SKIP{i}")
        a("s_add_u32 s72, s72, 1", "s_add_u32 s73, s73, 4096")
    a("v_mov_b32 v8, 0x3f803f80", "v_mov_b32 v9, 0x3f803f80", "v_mov_b32 v10, 0x3f803f80",
      "v_mov_b32 v11, 0x3f803f80", "s_lshl_b32 s73, s39, 12", "v_min_u32 v6, 2, v1",
      "v_lshl_add_u32 v6, v6, 12, s73", "ds_write_b128 v6, v[8:11] offset:3840")
    a("v_and_b32 v2, 31, v1", "v_lshrrev_b32 v3, 5, v1", "v_lshlrev_b32 v6, 2, v3", "v_sub_u32 v6, v2, v6",
      f"v_mov_b32 v7, {f32(-1e30)}")
    for i in range(16):
        a(f"v_cmp_le_i32 {sr(MS + 2 * i, 2)}, {(i & 3) + 8 * (i >> 2)}, v6")
    for i in range(16):
        a(f"v_cndmask_b32 v{CD + i}, v7, 0, {sr(MS + 2 * i, 2)}",
          f"v_cndmask_b32 v{CO + i}, 0, v7, {sr(MS + 2 * i, 2)}")
    a("s_lshl_b32 s73, s32, 12", "v_add_u32 v12, s73, v5",
      "v_and_b32 v8, 19, v1", "v_bfe_u32 v9, v1, 2, 1", "v_lshl_add_u32 v8, v9, 3, v8",
      "v_bfe_u32 v9, v1, 3, 1", "v_lshl_add_u32 v8, v9, 2, v8",
      "v_mul_u32_u24 v9, 448, v3", "v_lshl_add_u32 v8, v8, 4, v9", "v_add_u32 v9, 896, v8",
      "v_cmp_gt_u32 vcc, 28, v2", "v_mov_b32 v10, 1792", "s_add_u32 s73, s73, 2048",
      "v_cndmask_b32 v8, v10, v8, vcc", "v_cndmask_b32 v9, v10, v9, vcc",
      "v_add_u32 v13, s73, v8", "v_add_u32 v14, s73, v9",
      "v_cmp_eq_u32 vcc, 0, v3", "v_mov_b32 v15, v7")
    a("s_waitcnt vmcnt(0) lgkmcnt(0)", "s_barrier")
    a(f"v_cndmask_b32 v{QF + 6}, 0, v{QF + 6}, vcc", f"v_cndmask_b32 v{QF + 7}, 0, v{QF + 7}, vcc")

    def kread(i):
        return [f"ds_read_b64 {vr(KF + 8 * i + 2 * g, 2)}, v12 offset:{(8 - i) * 4096 + g * 512}" for g in range(4)]

    def smm(i, c):
        s = (S0, S1)[i & 1]
        return [mfma(s, KF + 8 * i, QF, c), mfma(s, KF + 8 * i + 4, QF + 4, s)]

    def smax(i):
        s = (S0, S1)[i & 1]
        return [f"v_max3_f32 v15, v{s + 2 * k}, v{s + 2 * k + 1}, v15" for k in range(8)]

    a(*kread(0), *kread(1), *kread(2))
    for i in range(9):
        nout = min(8, i + 2) - i
        a(f"s_waitcnt lgkmcnt({4 * nout})")
        a(*smm(i, CD if i == 0 else (CO if i == 8 else "0")))
        if i + 3 <= 8:
            a(*kread(i + 3))
        if i:
            if i + 3 > 8:
                a("s_nop 3")
            a(*smax(i - 1))
        else:
            a("s_nop 7")
        if i < 8:
            a(f"s_cmp_eq_u32 s37, {i + 1}", f"s_cbranch_scc1 K2_P1F{i & 1}")
    a.label("K2_P1F0")
    a("s_nop 7", *smax(0), "s_branch K2_P1E")
    a.label("K2_P1F1")
    a("s_nop 7", *smax(1))
    a.label("K2_P1E")

    def vread(i):
        b = VF + 8 * (i & 1)
        return [f"ds_read_b128 {vr(b, 4)}, v13 offset:{(8 - i) * 4096}",
                f"ds_read_b128 {vr(b + 4, 4)}, v14 offset:{(8 - i) * 4096}"]

    a("s_waitcnt lgkmcnt(0)", *vread(0))
    a("v_mov_b32 v8, v15", "s_nop 1", "v_permlane32_swap_b32 v8, v15", "v_max_f32 v15, v8, v15",
      "v_xor_b32 v15, 0x80000000, v15")
    for i in range(16):
        a(f"v_cndmask_b32 v{CD + i}, v7, v15, {sr(MS + 2 * i, 2)}")
    a("s_nop 1", *smm(0, CD))
    for i in range(16):
        a(f"v_mov_b32 v{CN + i}, v15", f"v_cndmask_b32 v{CO + i}, v15, v7, {sr(MS + 2 * i, 2)}")

    def pexp(i):
        s = (S0, S1)[i & 1]
        p = PF + 8 * (i & 1)
        o = []
        for h in range(2):
            o += [f"v_exp_f32 v{s + 8 * h + k}, v{s + 8 * h + k}" for k in range(8)]
            o += [f"v_cvt_pk_bf16_f32 v{p + 4 * h + k}, v{s + 8 * h + 2 * k}, v{s + 8 * h + 2 * k + 1}"
                  for k in range(4)]
        return o

    def pv(i):
        p = PF + 8 * (i & 1)
        b = VF + 8 * (i & 1)
        return [mfma(OA, b, p, "0" if i == 0 else OA), mfma(OA, b + 4, p + 4, OA)]

    for i in range(9):
        if i < 8:
            a(f"s_cmp_eq_u32 s37, {i + 1}", f"s_cbranch_scc1 K2_P2S{i}")
            a(*smm(i + 1, CO if i + 1 == 8 else CN))
            a(*vread(i + 1))
            a.label(f"K2_P2S{i}")
        a(*pexp(i))
        a("s_waitcnt lgkmcnt(0)" if i == 8 else "s_waitcnt lgkmcnt(2)", "s_nop 0")
        if i < 8:
            a(f"s_cbranch_scc0 K2_P2G{i}", "s_waitcnt lgkmcnt(0)")
            a.label(f"K2_P2G{i}")
        a(*pv(i))
        if i < 8:
            a("s_cbranch_scc1 K2_P2E")
    a.label("K2_P2E")
    a(f"s_mul_i32 s74, s36, {ACT_RT}", "s_lshl_b32 s75, s34, 11", "s_add_u32 s74, s74, s75",
      f"s_add_u32 s74, s74, {OFF_ACT + 112 * 1024}", "s_nop 7", "s_nop 3")
    a(f"v_mov_b32 v8, v{OA + 12}", f"v_mov_b32 v9, v{OA + 12}", "s_nop 1", "v_permlane32_swap_b32 v8, v9",
      "v_rcp_f32 v9, v9", "s_nop 0")
    for i in range(16):
        a(f"v_mul_f32 v{OA + i}, v9, v{OA + i}")
    for k in range(8):
        a(f"v_cvt_pk_bf16_f32 v{PF + k}, v{OA + 2 * k}, v{OA + 2 * k + 1}")
    a(f"v_cndmask_b32 v{PF + 6}, 0, v{PF + 6}, vcc", f"v_cndmask_b32 v{PF + 7}, 0, v{PF + 7}, vcc")
    a(f"buffer_store_dwordx4 {vr(PF, 4)}, v4, {sr(SWS, 4)}, s74 offen",
      f"buffer_store_dwordx4 {vr(PF + 4, 4)}, v4, {sr(SWS, 4)}, s74 offen offset:1024")
    a.label("K2_END")
    a("s_endpgm")
    return name, 240, 80


K3_R = 6
K3_LDS = 49152


def gen_k3(a):
    name = "k3_kernel"
    kernel_head(a, name)
    R = K3_R
    AC, AR, WF, XR = 64, 128, 32, 16
    SX, SW2, SWS, SWO, SB2, SO = 16, 20, 24, 28, 36, 40
    a("s_cmp_ge_u32 s2, 224", "s_cbranch_scc1 K3_END")
    a("s_load_dwordx2 s[4:5], s[0:1], 0", "s_load_dwordx2 s[6:7], s[0:1], 16",
      "s_load_dwordx4 s[8:11], s[0:1], 48", "s_load_dwordx2 s[14:15], s[0:1], 64",
      "s_load_dwordx2 s[12:13], s[0:1], 80")
    a("v_lshrrev_b32 v2, 6, v0", "v_and_b32 v1, 63, v0", "v_readfirstlane_b32 s32, v2")
    a("s_and_b32 s33, s2, 7", "s_lshl_b32 s33, s33, 2", "s_lshr_b32 s34, s2, 3", "s_and_b32 s35, s34, 3",
      "s_add_u32 s33, s33, s35", "s_lshr_b32 s34, s34, 2")
    a("s_and_b32 s46, s32, 1", "s_lshr_b32 s47, s32, 1", "s_lshl_b32 s35, s33, 1",
      "s_add_u32 s48, s35, s46", "s_xor_b32 s49, s48, 1",
      f"s_mul_i32 s44, s48, {ACT_RT}", f"s_mul_i32 s45, s49, {ACT_RT}",
      f"s_mul_i32 s50, s32, {28 * 1024}", f"s_add_u32 s50, s50, {OFF_ACT}",
      "s_lshl_b32 s51, s32, 13", f"s_add_u32 s51, s51, {OFF_ACT + 112 * 1024}",
      "s_add_u32 s52, s44, s51", "s_add_u32 s53, s45, s51",
      "s_add_u32 s44, s44, s50", "s_add_u32 s45, s45, s50",
      "s_lshl_b32 s54, s34, 7", f"s_mul_i32 s55, s32, {448 * 896}", "s_add_u32 s55, s55, s54",
      f"s_mul_i32 s56, s32, {112 * 896}", "s_add_u32 s56, s56, s54",
      f"s_mul_i32 s57, s32, {R * 2048}")
    a("v_lshlrev_b32 v4, 4, v1",
      "v_bfe_u32 v2, v1, 2, 3", "v_mul_u32_u24 v5, 896, v2", "v_lshrrev_b32 v3, 5, v1",
      "v_lshl_add_u32 v5, v3, 6, v5", "v_and_b32 v2, 3, v1", "v_lshl_add_u32 v5, v2, 4, v5",
      f"v_add_u32 v6, {8 * 896 - 1024}, v5")
    a("s_waitcnt lgkmcnt(0)")
    srd(a, SWS, 12, 13, WS_BYTES)
    srd(a, SW2, 8, 9, W2_BYTES)
    srd(a, SWO, 6, 7, WO_BYTES)

    def issue(k):
        r = AR + 8 * (k % R)
        o = [f"s_add_u32 m0, s57, {(k % R) * 2048}"]
        if k < 28:
            o += [f"s_add_u32 s58, s55, {k * 16 * 896}", f"s_add_u32 s59, s44, {k * 1024}",
                  f"s_add_u32 s60, s45, {k * 1024}"]
            w = SW2
        else:
            kk = k - 28
            o += [f"s_add_u32 s58, s56, {((kk >> 1) * 28 + (kk & 1) * 16) * 896}",
                  f"s_add_u32 s59, s52, {kk * 1024}", f"s_add_u32 s60, s53, {kk * 1024}"]
            w = SWO
        o += [f"buffer_load_dwordx4 v5, {sr(w, 4)}, s58 offen lds",
              f"buffer_load_dwordx4 v6, {sr(w, 4)}, s58 offen offset:1024 lds",
              f"buffer_load_dwordx4 {vr(r, 4)}, v4, {sr(SWS, 4)}, s59 offen",
              f"buffer_load_dwordx4 {vr(r + 4, 4)}, v4, {sr(SWS, 4)}, s60 offen"]
        return o

    for k in range(R):
        a(*issue(k))
    srd(a, SX, 4, 5, X_BYTES)
    srd(a, SB2, 10, 11, 896)
    srd(a, SO, 14, 15, X_BYTES)
    a("v_and_b32 v7, 1, v1", "v_bfe_u32 v8, v1, 1, 1", "v_lshl_add_u32 v7, v7, 1, v8",
      "v_bfe_u32 v8, v1, 4, 1", "v_lshl_add_u32 v7, v8, 2, v7",
      "v_bfe_u32 v8, v1, 2, 2", "v_lshlrev_b32 v8, 6, v8", "v_lshl_add_u32 v7, v7, 3, v8",
      "v_lshl_add_u32 v7, v3, 10, v7", "s_lshl_b32 s35, s47, 9", "s_add_u32 s35, s35, s57",
      "v_add_u32 v8, s35, v7", "v_xor_b32 v9, 512, v8")
    a("v_and_b32 v2, 31, v1", "v_lshlrev_b32 v11, 4, v3", "v_mul_u32_u24 v10, 896, v2", "v_add_u32 v10, v10, v11",
      "s_lshl_b32 s61, s47, 6", "s_add_u32 s61, s61, s54",
      f"s_mul_i32 s62, s48, {RT}", "s_add_u32 s62, s62, s61")
    NK = 36
    XK = 24
    for k in range(NK):
        rem = min(R - 1, NK - 1 - k)
        extra = 4 if XK < k <= XK + R - 1 else 0
        a(f"s_waitcnt vmcnt({4 * rem + extra})")
        w = WF + 8 * (k & 1)
        off = (k % R) * 2048
        a(f"ds_read_b64_tr_b16 {vr(w, 2)}, v8 offset:{off}", f"ds_read_b64_tr_b16 {vr(w + 2, 2)}, v8 offset:{off + 256}",
          f"ds_read_b64_tr_b16 {vr(w + 4, 2)}, v9 offset:{off}",
          f"ds_read_b64_tr_b16 {vr(w + 6, 2)}, v9 offset:{off + 256}")
        r = AR + 8 * (k % R)
        c = (lambda t: "0") if k == 0 else (lambda t: AC + 16 * t)
        a("s_waitcnt lgkmcnt(2)", mfma(AC, w, r, c(0)), mfma(AC + 16, w, r + 4, c(1)),
          "s_waitcnt lgkmcnt(0)", mfma(AC + 32, w + 4, r, c(2)), mfma(AC + 48, w + 4, r + 4, c(3)))
        if k == XK:
            a(f"buffer_load_dwordx4 {vr(XR, 4)}, v10, {sr(SX, 4)}, s62 offen",
              f"buffer_load_dwordx4 {vr(XR + 4, 4)}, v10, {sr(SX, 4)}, s62 offen offset:32",
              f"buffer_load_dwordx4 {vr(XR + 8, 4)}, v11, {sr(SB2, 4)}, s61 offen",
              f"buffer_load_dwordx4 {vr(XR + 12, 4)}, v11, {sr(SB2, 4)}, s61 offen offset:32")
        if k + R < NK:
            a(*issue(k + R))
    for k in range(8):
        a(f"v_lshlrev_b32 v{AR + 2 * k}, 16, v{XR + k}", f"v_and_b32 v{AR + 2 * k + 1}, 0xffff0000, v{XR + k}",
          f"v_lshlrev_b32 v{AR + 16 + 2 * k}, 16, v{XR + 8 + k}",
          f"v_and_b32 v{AR + 17 + 2 * k}, 0xffff0000, v{XR + 8 + k}")
    for i in range(16):
        a(f"v_add_f32 v{AR + i}, v{AR + i}, v{AR + 16 + i}")
    a("s_barrier")
    for t in range(1, 4):
        a(f"s_xor_b32 s35, s32, {t}", "s_mul_i32 s35, s35, 12288", f"v_add_u32 v12, s35, v4")
        for q in range(4):
            a(f"ds_write_b128 v12, {vr(AC + 16 * t + 4 * q, 4)} offset:{(t - 1) * 4096 + q * 1024}")
    a("s_mul_i32 s35, s32, 12288", "v_add_u32 v12, s35, v4")
    for i in range(16):
        a(f"v_add_f32 v{AC + i}, v{AR + i}, v{AC + i}")
    a("s_waitcnt lgkmcnt(0)", "s_barrier")
    for t in range(3):
        for q in range(4):
            a(f"ds_read_b128 {vr(AC + 16 + 16 * t + 4 * q, 4)}, v12 offset:{t * 4096 + q * 1024}")
    for t in range(3):
        a(f"s_waitcnt lgkmcnt({8 - 4 * t})")
        for i in range(16):
            a(f"v_add_f32 v{AC + i}, v{AC + 16 + 16 * t + i}, v{AC + i}")
    for k in range(8):
        a(f"v_cvt_pk_bf16_f32 v{XR + k}, v{AC + 2 * k}, v{AC + 2 * k + 1}")
    a(f"buffer_store_dwordx4 {vr(XR, 4)}, v10, {sr(SO, 4)}, s62 offen",
      f"buffer_store_dwordx4 {vr(XR + 4, 4)}, v10, {sr(SO, 4)}, s62 offen offset:32")
    a.label("K3_END")
    a("s_endpgm")
    return name, AR + 8 * R, 72


def main(out):
    a = Asm()
    a.raw(f"; @launch kernel=k1_kernel grid=(256,1,1) block=(320,1,1) lds={K1_LDS}")
    a.raw(f"; @launch kernel=k2_kernel grid=(256,1,1) block=(256,1,1) lds={K2_LDS}")
    a.raw(f"; @launch kernel=k3_kernel grid=(224,1,1) block=(256,1,1) lds={K3_LDS}")
    a.raw('.amdgcn_target "amdgcn-amd-amdhsa--gfx950"')
    a.raw(".text")
    ks = [gen_k1(a), gen_k2(a), gen_k3(a)]
    a.raw('.section .rodata,"a"')
    for k in ks:
        kernel_desc(a, *k)
    open(out, "w").write(a.text())


if __name__ == "__main__":
    main(sys.argv[1] if len(sys.argv) > 1 else f"cdna_kernels/{NAME}.s")
```

```python
import struct
import sys

NAME = "parallel_sum__sliding_block__dense_activation_gelu__prompt"

RT = 28672
OFF_Q = 0
OFF_K = 64 * RT
OFF_V = 2 * 64 * RT
OFF_ACT = 3 * 64 * RT
ACT_RT = 144 * 1024
OFF_FLG = OFF_ACT + 64 * ACT_RT
FLG_RT = 66 * 128
OFF_EPOCH = OFF_FLG + 64 * FLG_RT
WS_BYTES = OFF_EPOCH + 128
NATIVE_K = True

X_BYTES = 2048 * 896
WQKV_BYTES = 448 * 2688
W1_BYTES = 448 * 3584
W2_BYTES = 1792 * 896
WO_BYTES = 448 * 896

SLOT = 28672
L_E0 = 0
L_E1 = 16384
L_S1 = 32768
L_S2 = L_S1 + SLOT
L_S3 = L_S2 + SLOT
L_S0 = 163840 - SLOT
L_BIAS = 118784
L_STAT = L_BIAS + 768
L_CNT = L_STAT + 1024
L_ATT = L_S2
L_RA = 16384
L_RB = 122880
LDS_BYTES = 163840
SPIN_MAX = 1 << 16

STAMP = False
OFF_STAMP = 32 << 20


def f32(x):
    return "0x%08x" % struct.unpack("<I", struct.pack("<f", x))[0]


class Asm:
    def __init__(self):
        self.o = []

    def __call__(self, *lines):
        for s in lines:
            self.o.append("    " + s)

    def label(self, s):
        self.o.append(s + ":")

    def raw(self, s):
        self.o.append(s)

    def text(self):
        return "\n".join(self.o) + "\n"


def vr(b, n):
    return f"v[{b}:{b + n - 1}]"


def sr(b, n):
    return f"s[{b}:{b + n - 1}]"


def mfma(d, a, b, c):
    cs = c if isinstance(c, str) else vr(c, 16)
    return f"v_mfma_f32_32x32x16_bf16 {vr(d, 16)}, {vr(a, 4)}, {vr(b, 4)}, {cs}"


def srd(a, d, lo, nbytes):
    a(f"s_mov_b32 s{d}, s{lo}", f"s_mov_b32 s{d + 1}, s{lo + 1}",
      f"s_mov_b32 s{d + 2}, {nbytes}", f"s_mov_b32 s{d + 3}, 0x20000")


def stamp(a, i, rt=False):
    if not STAMP:
        return
    a(f"s_mem{'real' if rt else ''}time s[98:99]", "s_waitcnt lgkmcnt(0)",
      f"v_writelane_b32 v63, s98, {i}")


def lstamp(a, ureg, k):
    if not STAMP:
        return
    a("s_memtime s[98:99]", f"s_lshl_b32 s97, {ureg}, 2", f"s_add_u32 m0, s97, {16 + k}", "s_waitcnt lgkmcnt(0)",
      "v_writelane_b32 v63, s98, m0")


def stamp_out(a):
    if not STAMP:
        return
    stamp(a, 14)
    stamp(a, 15, rt=True)
    a("s_mov_b32 s92, s24", "s_mov_b32 s93, s25", f"s_mov_b32 s94, {64 << 20}", "s_mov_b32 s95, 0x20000",
      "s_lshl_b32 s96, s2, 3", "s_add_u32 s96, s96, s3", "s_lshl_b32 s96, s96, 8",
      f"s_add_u32 s96, s96, {OFF_STAMP}", "s_mov_b64 exec, -1", "v_lshlrev_b32 v62, 2, v1",
      "buffer_store_dword v63, v62, s[92:95], s96 offen")


P_X, P_WQKV, P_WO, P_W1, P_B1, P_W2, P_B2, P_OUT, P_DBG, P_WS = 4, 6, 8, 12, 14, 16, 18, 20, 22, 24
SWS, SA, SB, SC, SD = 28, 32, 36, 40, 84


def gen(a):
    name = NAME + "_kernel"
    a.raw(f".globl {name}")
    a.raw(".p2align 8")
    a.raw(f".type {name},@function")
    a.label(name)
    a("s_cmp_ge_u32 s2, 256", "s_cbranch_scc1 L_END")
    a("s_load_dwordx16 s[4:19], s[0:1], 0", "s_load_dwordx4 s[20:23], s[0:1], 64",
      "s_load_dwordx2 s[24:25], s[0:1], 80")
    a("v_lshrrev_b32 v2, 6, v0", "v_and_b32 v1, 63, v0", "v_readfirstlane_b32 s3, v2")
    a("s_and_b32 s52, s2, 7", "s_lshr_b32 s53, s2, 3",
      "s_lshr_b32 s55, s53, 2", "s_and_b32 s56, s53, 3",
      "s_and_b32 s27, s53, 1", "s_add_u32 s27, s27, 6", "s_bfe_u32 s57, s53, 0x20001",
      "s_cmp_ge_u32 s53, 24", "s_cselect_b32 s55, s27, s55", "s_cselect_b32 s56, s57, s56",
      "s_and_b32 s57, s52, 3", "s_lshl_b32 s27, s57, 1", "s_add_u32 s55, s55, s27", "s_add_u32 s55, s55, 2",
      "s_and_b32 s55, s55, 7", "s_lshr_b32 s48, s52, 2", "s_lshl_b32 s48, s48, 3", "s_add_u32 s48, s48, s55",
      "s_lshl_b32 s49, s57, 2", "s_add_u32 s49, s49, s56",
      "s_and_b32 s51, s56, 1", "s_cmp_ge_u32 s53, 28", "s_cselect_b32 s50, 7, 6", "s_cselect_b32 s51, s51, 0",
      "s_and_b32 s26, s3, 3")
    a("s_cmp_ge_u32 s49, 14", "s_cselect_b32 s54, 5, 0",
      "s_cmp_lt_u32 s49, 5", "s_cselect_b32 s27, 5, 10", "s_lshl_b32 s27, s27, 4", "s_or_b32 s54, s54, s27",
      "s_or_b32 s54, s54, 0xaa00")
    a("s_lshl_b32 s58, s48, 2", "s_add_u32 s58, s58, s26")
    a("v_and_b32 v2, 31, v1", "v_lshrrev_b32 v3, 5, v1")
    a("s_cmp_ge_u32 s3, 4", "s_cbranch_scc1 L_AUX")
    gen_main(a)
    gen_attn(a)
    a.label("L_AUX")
    gen_aux(a)
    gen_gemm(a)
    a.label("L_END")
    a("s_endpgm")
    a.label("L_CODE_END")
    return name


QF = 48


def att_stage_qk(a, tag):
    for g in range(4):
        a(f"buffer_load_dwordx2 {vr(QF + 2 * g, 2)}, v59, {sr(SWS, 4)}, s74 offen offset:{g * 512} sc1")
    a("v_lshlrev_b32 v58, 1, v59")
    for i in range(3):
        a(f"s_add_u32 m0, s73, {i * 4096}", f"s_add_u32 s27, s{75 + i}, {OFF_K}",
          f"buffer_load_dwordx4 v58, {sr(SWS, 4)}, s27 offen sc1 lds", "s_mov_b32 exec_hi, 0xffff",
          f"buffer_load_dwordx4 v58, {sr(SWS, 4)}, s27 offen offset:1024 sc1 lds", "s_mov_b32 exec_hi, -1")


def gen_main(a):
    X, ACA, ACB, WR, T = 128, 64, 80, 96, 16
    AB, BB = 240, 244
    a("v_lshrrev_b32 v8, 3, v1", "v_and_b32 v9, 7, v1", "v_lshrrev_b32 v4, 4, v1",
      "v_xor_b32 v9, v9, v4", "v_mul_u32_u24 v8, 896, v8", "v_lshl_add_u32 v8, v9, 4, v8", "v_xor_b32 v9, 64, v8")
    for k in range(4):
        a(f"s_add_u32 s27, s56, {k}", "s_and_b32 s27, s27, 3", "s_mulk_i32 s27, 7168",
          f"s_add_u32 s27, s27, {4096 - 1024 * k}", f"v_add_u32 v{4 + k}, s27, v{8 + (k & 1)}")
    a(f"s_mul_i32 s59, s58, {RT}", f"s_mul_i32 s60, s3, {SLOT}")
    a("s_waitcnt lgkmcnt(0)")
    stamp(a, 0, rt=True)
    stamp(a, 1)
    a(f"s_sub_u32 s{SA}, s{P_X}, 4096", f"s_subb_u32 s{SA + 1}, s{P_X + 1}, 0",
      f"s_mov_b32 s{SA + 2}, {X_BYTES + 4096}", f"s_mov_b32 s{SA + 3}, 0x20000")
    for g in range(7):
        a(f"s_add_u32 m0, s60, {g * 4096}", f"s_add_u32 s61, s59, {g * 128}",
          f"buffer_load_dwordx4 v4, {sr(SA, 4)}, s61 offen lds")
    pre = []
    pre += ["s_lshl_b32 s27, s56, 3", "v_subrev_u32 v9, s27, v2", "v_and_b32 v9, 31, v9",
            "v_bfe_u32 v8, v9, 1, 3", "v_xor_b32 v8, v8, v3",
            "v_lshlrev_b32 v8, 4, v8", "v_lshl_add_u32 v8, v9, 7, v8", "v_add_u32 v8, s60, v8",
            "v_xor_b32 v9, 32, v8", "v_xor_b32 v10, 64, v8", "v_xor_b32 v11, 96, v8"]
    pre += ["v_bfe_u32 v12, v1, 2, 1", "v_bfe_u32 v13, v1, 3, 1",
            "v_bfe_u32 v14, v1, 1, 1", "v_lshl_add_u32 v13, v13, 1, v14",
            "v_bfe_u32 v14, v1, 4, 1", "v_lshl_add_u32 v13, v14, 2, v13",
            "v_xor_b32 v12, v12, v3", "v_lshl_add_u32 v13, v12, 3, v13",
            "v_and_b32 v14, 1, v1", "v_lshlrev_b32 v14, 4, v14", "v_mov_b32 v15, 0x3f80",
            "v_lshlrev_b32 v14, v14, v15"]
    pre += [f"v_cmp_eq_u32 {sr(64 + 2 * k, 2)}, {k}, v13" for k in range(8)]
    pre += [f"v_cndmask_b32 v{WR + k}, 0, v14, {sr(64 + 2 * k, 2)}" for k in range(8)]
    pre += ["v_and_b32 v13, 3, v1", "v_bfe_u32 v14, v1, 4, 1", "v_lshl_add_u32 v13, v14, 2, v13",
            "v_bfe_u32 v14, v1, 2, 2", "v_lshlrev_b32 v14, 6, v14", "v_lshl_add_u32 v13, v13, 3, v14",
            "v_lshl_add_u32 v12, v3, 10, v13", f"v_add_u32 v12, {L_S1}, v12"]
    pre += ["s_lshl_b32 s70, s52, 1", "s_and_b32 s27, s53, 1", "s_add_u32 s70, s70, s27",
            "s_lshr_b32 s27, s53, 1", "s_lshl_b32 s27, s27, 2", "s_add_u32 s71, s27, s3",
            "s_mul_i32 s73, s3, 3", "s_add_u32 s72, s27, s73", "s_sub_u32 s72, s72, 8",
            "s_lshl_b32 s73, s73, 12", f"s_add_u32 s73, s73, {L_ATT}", "s_mul_i32 s78, s70, 1792",
            f"s_mul_i32 s74, s71, {RT}", "s_add_u32 s74, s74, s78"]
    for i in range(3):
        pre += [f"s_add_u32 s27, s72, {i}", f"s_mul_i32 s{75 + i}, s27, {RT}", f"s_add_u32 s{75 + i}, s{75 + i}, s78",
                "s_cmp_lt_i32 s27, 0", f"s_cselect_b32 s{75 + i}, 0x40000000, s{75 + i}"]
    pre += ["s_mul_i32 s27, s70, 28", "s_lshr_b32 s79, s27, 6", "s_add_u32 s27, s27, 27", "s_lshr_b32 s27, s27, 6",
            "s_sub_u32 s27, s27, s79",
            "v_and_b32 v13, 1, v1", "v_mul_u32_u24 v13, s27, v13", "v_add_u32 v13, s79, v13",
            "v_lshrrev_b32 v14, 1, v1", "v_add_u32 v14, s72, v14", "v_max_i32 v14, 0, v14",
            "v_mul_u32_u24 v14, 66, v14", "v_add_u32 v14, 7, v14", "s_mul_i32 s27, s71, 66",
            "v_cmp_gt_u32 vcc, 6, v1", "v_mov_b32 v15, s27", "v_lshlrev_b32 v59, 3, v1",
            "v_cndmask_b32 v14, v15, v14, vcc", "v_add_u32 v13, v13, v14", "v_lshlrev_b32 v13, 7, v13",
            f"v_add_u32 v57, {OFF_FLG}, v13", f"v_add_u32 v56, {OFF_FLG + 7 * 128}, v13"]
    pre += ["s_lshl_b32 s80, s53, 2", "s_add_u32 s80, s80, s3", "s_lshl_b32 s80, s80, 10", "s_mov_b32 s81, s80",
            "v_lshlrev_b32 v13, 4, v1",
            f"s_mov_b32 s{SB}, s{P_W2}", f"s_mov_b32 s{SB + 1}, s{P_W2 + 1}", f"s_mov_b32 s{SB + 2}, {W2_BYTES}",
            f"s_mov_b32 s{SB + 3}, 0x20000",
            f"s_mov_b32 s{SWS}, s{P_WS}", f"s_mov_b32 s{SWS + 1}, s{P_WS + 1}", f"s_mov_b32 s{SWS + 2}, {WS_BYTES}",
            f"s_mov_b32 s{SWS + 3}, 0x20000",
            "v_mov_b32 v14, 0", "v_mov_b32 v15, 0", "s_mov_b32 s62, 0x3f803f80", "s_mov_b32 s82, 0"]
    npre = (len(pre) + 5) // 6
    pos = 0
    for g in range(7):
        a(f"s_add_u32 m0, s60, {g * 4096}", f"s_add_u32 s61, s59, {g * 128}")
        for i in range(1, 4):
            a(f"buffer_load_dwordx4 v{4 + i}, {sr(SA, 4)}, s61 offen offset:{i * 1024} lds")
        if g:
            end = min(len(pre), g * npre)
            while end < len(pre) and pre[end].startswith("s_cselect"):
                end += 1
            a(*pre[pos:end])
            pos = end
    assert pos == len(pre)
    stamp(a, 2)

    def stats(g):
        for r in range(X + 16 * g, X + 16 * g + 16):
            a(f"v_dot2c_f32_bf16 v14, s62, v{r}", f"v_dot2c_f32_bf16 v15, v{r}, v{r}")

    for g in range(7):
        a(f"s_waitcnt vmcnt({18 - 3 * g})")
        for q in range(4):
            a(f"ds_read_b128 {vr(X + 16 * g + 4 * q, 4)}, v{8 + q} offset:{g * 4096}")
        if g:
            a("s_waitcnt lgkmcnt(4)")
            stats(g - 1)
    a("s_waitcnt lgkmcnt(0)")
    stamp(a, 3)
    a("s_barrier")
    stats(6)
    a("s_nop 2", "v_mov_b32 v4, v14", "v_mov_b32 v5, v15", "s_nop 1",
      "v_permlane32_swap_b32 v4, v14", "v_permlane32_swap_b32 v5, v15",
      "v_add_f32 v14, v4, v14", "v_add_f32 v15, v5, v15",
      f"v_mul_f32 v14, {f32(1 / 448)}, v14", f"v_mul_f32 v15, {f32(1 / 448)}, v15",
      "v_cvt_pk_bf16_f32 v4, v14, v14", "v_fma_f32 v15, -v14, v14, v15",
      "v_lshlrev_b32 v4, 16, v4", "v_max_f32 v15, 0, v15", "v_xor_b32 v4, 0x80000000, v4")
    for i in range(16):
        a(f"v_mov_b32 v{T + i}, v4")
    a("s_nop 1")
    t0 = [200, 201, 56, 57, 200, 201, 56, 0]
    t1 = [0, 1, 112, 113, 0, 1, 112, 0]
    pk = lambda b: b[0] | b[1] << 8 | b[2] << 16 | b[3] << 24
    fin = ["v_cvt_pk_bf16_f32 v15, v15, v15", "v_lshlrev_b32 v15, 16, v15", f"v_add_f32 v15, {f32(1e-5)}, v15",
           "v_cvt_pk_bf16_f32 v15, v15, v15", "v_lshlrev_b32 v15, 16, v15", "v_sqrt_f32 v15, v15",
           "s_lshl_b32 s27, s3, 8",
           "v_cvt_pk_bf16_f32 v5, v15, v15", "v_lshlrev_b32 v15, 16, v5", "v_rcp_f32 v14, v15",
           "v_and_b32 v5, 0xffff, v5", "v_cmp_eq_u32 vcc, 0, v3", f"s_add_u32 s27, s27, {L_STAT}",
           "v_lshl_add_u32 v4, v1, 2, s27", "v_cndmask_b32 v6, v15, v14, vcc", f"v_cndmask_b32 v{BB}, 0, v5, vcc",
           "ds_write_b32 v4, v6",
           f"v_mov_b32 v{AB + 1}, 0", f"v_mov_b32 v{AB + 2}, 0", f"v_mov_b32 v{AB + 3}, 0",
           f"v_mov_b32 v{BB + 1}, 0", f"v_mov_b32 v{BB + 2}, 0", f"v_mov_b32 v{BB + 3}, 0",
           "v_lshlrev_b32 v10, 1, v2", f"v_add_u32 v10, {L_BIAS}, v10",
           "s_lshl_b32 s83, s3, 12", f"v_add_u32 v8, {t0[0] * 512}, v12", "s_mov_b32 s68, 0"]
    assert len(fin) == 28
    late = [f"s_mov_b32 s64, {pk(t0[1:5])}", "s_lshl_b32 s27, s51, 8", f"s_add_u32 s65, s27, {pk(t0[5:8] + [0])}",
            f"s_mov_b32 s66, {pk(t1[0:4])}", "s_lshl_b32 s27, s51, 16", f"s_add_u32 s67, s27, {pk(t1[4:8])}",
            "s_mov_b32 s69, s54"]
    CB = (ACA, ACB, 32)

    def cv(p, h):
        d = CB[p % 3]
        return [f"v_cvt_pk_bf16_f32 v{X + 8 * p + k}, v{d + 2 * k}, v{d + 2 * k + 1}" for k in range(4 * h, 4 * h + 4)]

    for p in range(16):
        d = CB[p % 3]
        if p < 14:
            a(mfma(d, WR, X + 8 * p, T))
        a(*(cv(p - 2, 0) if p >= 2 else fin[14 * p:14 * p + 7]))
        if p < 14:
            a(mfma(d, WR + 4, X + 8 * p + 4, d))
        a(*(cv(p - 2, 1) if p >= 2 else fin[14 * p + 7:14 * p + 14]))
        if 2 <= p < 9:
            a(late[p - 2])
        if p == 14:
            a("s_nop 1")

    PD = 4

    def ring(j):
        return WR + 4 * (j % 7)

    def rd(j):
        jj = j % 28
        base = "v8" if jj < 14 else "v9"
        r = ring(j)
        return [f"ds_read_b64_tr_b16 {vr(r, 2)}, {base} offset:{(jj % 14) * 2048}",
                f"ds_read_b64_tr_b16 {vr(r + 2, 2)}, {base} offset:{(jj % 14) * 2048 + 256}"]

    accw = [f"ds_write_addtid_b32 v{ACB + k} offset:{k * 256}" for k in range(16)]
    stamp(a, 4)
    a("s_waitcnt lgkmcnt(0)", "s_barrier")
    stamp(a, 5)
    for j in range(PD):
        a(*rd(j))
    a.label("M_TILE")
    a("s_mov_b32 m0, s83", "s_bitcmp1_b32 s69, 0", "s_cbranch_scc1 M_V")
    WPOS = {1: (0, 3), 2: (3, 6), 3: (6, 9), 4: (9, 12), 5: (12, 14), 6: (14, 16)}

    def body(tag):
        q = [f for f in range(PD) for _ in range(2)]
        for j in range(28):
            if j % 2 == 0:
                q = q[max(i for i, f in enumerate(q) if f == j + 1) + 1:][-15:]
                a(f"s_waitcnt lgkmcnt({len(q)})")
            d = ACB if j == 27 else ACA
            ops = (X + 4 * j, ring(j)) if tag == "V" else (ring(j), X + 4 * j)
            if j == 0 and tag == "N":
                a("s_bitcmp1_b32 s69, 1", "s_cbranch_scc0 M_NOB", mfma(ACA, AB, BB, "0"),
                  mfma(ACA, *ops, ACA), "s_branch M_NOB2")
                a.label("M_NOB")
                a(mfma(ACA, *ops, "0"))
                a.label("M_NOB2")
            else:
                a(mfma(d, *ops, "0" if j == 0 else ACA))
            if j + PD == 14:
                assert "w" not in q
                a("s_barrier")
            if j in WPOS:
                a(*accw[WPOS[j][0]:WPOS[j][1]])
                q += ["w"] * (WPOS[j][1] - WPOS[j][0])
            a(*rd(j + PD))
            q += [j + PD] * 2
            if j == 0:
                a("s_and_b32 s27, s66, 0xff", "s_lshr_b64 s[66:67], s[66:67], 8",
                  "v_lshl_add_u32 v9, s27, 9, v12", "v_add_u32 v10, 64, v10")
            if j == 12:
                a("s_and_b32 s27, s64, 0xff", "s_lshr_b64 s[64:65], s[64:65], 8",
                  "v_lshl_add_u32 v8, s27, 9, v12", f"s_xor_b32 s83, s83, {L_E1}")
            if j in (11, 14, 17, 20, 23):
                a(f"buffer_load_dwordx4 v[32:35], v13, {sr(SB, 4)}, s81 offen", "s_add_u32 s81, s81, 0x20000")
            if j + PD == 27:
                a(f"ds_read_u16 v{AB}, v10")
                q += ["b"]
            if tag == "N" and j == 13:
                a("s_cmp_lt_u32 s68, 4", "s_cbranch_scc0 M_EARLY")
                a.label("M_EARLY_R")
        a("s_cmp_eq_u32 s68, 2", f"s_cbranch_scc0 M_NX{tag}",
          f"s_mov_b32 s{SB}, s{P_WO}", f"s_mov_b32 s{SB + 1}, s{P_WO + 1}", f"s_mov_b32 s{SB + 2}, {WO_BYTES}",
          "s_mov_b32 s81, s80")
        a.label(f"M_NX{tag}")
        a("s_lshr_b32 s69, s69, 2", "s_add_u32 s68, s68, 1", "s_cmp_lt_u32 s68, s50", "s_cbranch_scc1 M_TILE")

    body("N")
    a("s_branch M_DONE")
    a.label("M_EARLY")
    a("s_cmp_eq_u32 s68, 4", "s_cbranch_scc0 M_EARLY5", f"v_mov_b32 v61, {L_CNT + 64}", "ds_read_b32 v61, v61",
      "s_mov_b64 exec, 0xff",
      f"buffer_load_dword v60, v57, {sr(SWS, 4)}, 0 offen sc1", "s_mov_b64 exec, -1", "s_branch M_EARLY_R")
    a.label("M_EARLY5")
    a("v_readfirstlane_b32 s47, v61", "s_cmp_eq_u32 s50, 6", "s_cbranch_scc0 M_EARLY_R", "s_waitcnt vmcnt(5)",
      "v_cmp_ne_u32 s[88:89], s47, v60", "s_nop 0", "s_and_b32 s88, s88, 0xff", "s_cbranch_scc1 M_EARLY_R")
    att_stage_qk(a, "E")
    a("s_mov_b32 s82, 1", "s_branch M_EARLY_R")
    a.label("M_V")
    body("V")
    a.label("M_DONE")
    stamp(a, 6)
    a("s_mov_b32 m0, s83", "s_mov_b64 exec, 0x3f", f"buffer_load_dword v61, v56, {sr(SWS, 4)}, 0 offen sc1",
      "s_mov_b64 exec, -1", "s_nop 3", *accw, "s_waitcnt lgkmcnt(0)", "s_barrier")


def lds_arrive(a, idx, vaddr, vtmp):
    a(f"v_mov_b32 v{vaddr}, {L_CNT + 4 * idx}", f"v_mov_b32 v{vtmp}, 1", "s_mov_b64 exec, 1",
      f"ds_add_u32 v{vaddr}, v{vtmp}", "s_mov_b64 exec, -1")


def lds_wait(a, tag, vaddr, vtmp):
    a(f"s_mov_b32 s27, {SPIN_MAX}")
    a.label(tag)
    a(f"ds_read_b32 v{vtmp}, v{vaddr}", "s_waitcnt lgkmcnt(0)", f"v_readfirstlane_b32 s88, v{vtmp}",
      "s_sub_u32 s27, s27, 1", f"s_cbranch_scc1 {tag}_X", "s_cmp_lt_u32 s88, 4", f"s_cbranch_scc1 {tag}")
    a.label(tag + "_X")


def poll(a, tag, vaddr, nl, vtmp=60):
    a(f"s_mov_b32 s27, {SPIN_MAX}", f"s_mov_b64 exec, {(1 << nl) - 1}", f"s_branch {tag}_L")
    a.label(tag)
    a("s_sleep 3")
    a.label(tag + "_L")
    a(f"buffer_load_dword v{vtmp}, v{vaddr}, {sr(SWS, 4)}, 0 offen sc1", "s_waitcnt vmcnt(0)",
      f"v_cmp_ne_u32 s[88:89], s47, v{vtmp}", "s_sub_u32 s27, s27, 1", f"s_cbranch_scc1 {tag}_X",
      "s_cmp_lg_u64 s[88:89], 0", f"s_cbranch_scc1 {tag}")
    a.label(tag + "_X")
    a("s_mov_b64 exec, -1")


def epoch_issue(a, vz, vtmp):
    srd(a, SC, P_DBG, 256)
    a(f"v_mov_b32 v{vz}, 0", f"buffer_load_dword v{vtmp}, v{vz}, {sr(SC, 4)}, 0 offen sc1")


def epoch_wait(a, tag, vz, vtmp):
    a(f"s_mov_b32 s27, {SPIN_MAX}", f"s_branch {tag}_L")
    a.label(tag)
    a("s_sleep 3", f"buffer_load_dword v{vtmp}, v{vz}, {sr(SC, 4)}, 0 offen sc1")
    a.label(tag + "_L")
    a("s_waitcnt vmcnt(0)", f"v_readfirstlane_b32 s47, v{vtmp}", "s_sub_u32 s27, s27, 1", f"s_cbranch_scc1 {tag}_X",
      "s_cmp_eq_u32 s47, 0", f"s_cbranch_scc1 {tag}")
    a.label(tag + "_X")


def gen_attn(a):
    KF, OA, CN, CD, CO, VF = 128, 112, 200, 216, 232, 16
    SB3 = (64, 80, 96)
    PFR = (32, 40, 248)
    MS = 4
    ms = lambda i: sr(4 + 2 * i, 2) if i < 10 else sr(32 + 2 * (i - 10), 2)
    a("v_mov_b32 v8, 0x3f803f80", "v_mov_b32 v9, 0x3f803f80", "v_mov_b32 v10, 0x3f803f80",
      "v_mov_b32 v11, 0x3f803f80", "v_min_u32 v7, 2, v1",
      "v_lshl_add_u32 v7, v7, 12, s73", "ds_write_b128 v7, v[8:11] offset:3840",
      "v_lshl_add_u32 v7, v1, 2, s73", "v_and_b32 v6, 1, v1", "v_cmp_eq_u32 vcc, 0, v6")
    for i in range(3):
        a(f"s_cmp_lt_u32 s{75 + i}, 0x40000000", "s_cselect_b32 s27, 0, 0xf149", "v_mov_b32 v6, s27",
          f"v_cndmask_b32 v{8 + i}, 0, v6, vcc", f"ds_write_b32 v7, v{8 + i} offset:{1792 + 4096 * i}")
    a("s_cmp_eq_u32 s82, 1", "s_cbranch_scc1 A_QKD")
    poll(a, "A_PQ", 57, 8)
    att_stage_qk(a, "L")
    a.label("A_QKD")
    stamp(a, 7)
    a("v_lshlrev_b32 v4, 4, v1", "v_lshlrev_b32 v6, 2, v3", "v_sub_u32 v6, v2, v6", f"v_mov_b32 v7, {f32(-1e30)}")
    for i in range(16):
        a(f"v_cmp_le_i32 {ms(i)}, {(i & 3) + 8 * (i >> 2)}, v6")
    for i in range(16):
        a(f"v_cndmask_b32 v{CD + i}, v7, 0, {ms(i)}", f"v_cndmask_b32 v{CO + i}, 0, v7, {ms(i)}")
    a("s_lshl_b32 s44, s3, 12", f"s_add_u32 s44, s44, {L_ATT}", "v_add_u32 v12, s44, v59",
      "v_mul_u32_u24 v9, 448, v3", "v_lshl_add_u32 v8, v2, 4, v9", "v_add_u32 v9, 896, v8",
      "v_cmp_gt_u32 vcc, 28, v2", "v_mov_b32 v10, 1792", "s_add_u32 s44, s44, 2048",
      "v_cndmask_b32 v8, v10, v8, vcc", "v_cndmask_b32 v9, v10, v9, vcc",
      "v_add_u32 v13, s44, v8", "v_add_u32 v14, s44, v9",
      "v_cmp_eq_u32 vcc, 0, v3", "v_mov_b32 v15, v7", "v_mov_b32 v5, 0x3f80")
    a("s_waitcnt vmcnt(0) lgkmcnt(0)")
    stamp(a, 8)
    lds_arrive(a, 0, 8, 9)

    vstage = []
    for i in range(3):
        vstage += [f"s_add_u32 m0, s73, {i * 4096 + 2048}", f"s_add_u32 s27, s{75 + i}, {OFF_V}",
                   f"buffer_load_dwordx4 v4, {sr(SWS, 4)}, s27 offen sc1 lds", "s_mov_b32 exec_hi, 0xffff",
                   f"buffer_load_dwordx4 v4, {sr(SWS, 4)}, s27 offen offset:1024 sc1 lds", "s_mov_b32 exec_hi, -1"]
    a("v_cmp_ne_u32 s[88:89], s47, v61", "s_mov_b32 s82, 0", "s_and_b32 s88, s88, 0x3f", "s_cbranch_scc1 A_VL",
      *vstage, "s_mov_b32 s82, 1")
    a.label("A_VL")
    a(f"v_cndmask_b32 v{QF + 6}, v5, v{QF + 6}, vcc", f"v_cndmask_b32 v{QF + 7}, 0, v{QF + 7}, vcc")
    lds_wait(a, "A_LB0", 8, 9)
    stamp(a, 9)

    def kread(i):
        return [f"ds_read_b64 {vr(KF + 8 * i + 2 * g, 2)}, v12 offset:{(8 - i) * 4096 + g * 512}" for g in range(4)]

    def smm(i, c):
        s = SB3[i % 3]
        return [mfma(s, KF + 8 * i, QF, c), mfma(s, KF + 8 * i + 4, QF + 4, s)]

    def smax(i):
        s = SB3[i % 3]
        return [f"v_max3_f32 v15, v{s + 2 * k}, v{s + 2 * k + 1}, v15" for k in range(8)]

    a(*kread(0), *kread(1), *kread(2))
    for i in range(11):
        mx = smax(i - 2) if i >= 2 else ["s_nop 1"] * 4
        h = len(mx) // 2
        if i < 9:
            mm = smm(i, CD if i == 0 else (CO if i == 8 else "0"))
            a(f"s_waitcnt lgkmcnt({4 * (min(8, i + 2) - i)})", mm[0])
            if i + 3 <= 8:
                a(*kread(i + 3))
            a(*mx[:h], mm[1], *mx[h:])
        else:
            if i == 10:
                a("s_nop 1")
            a(*mx)
    stamp(a, 10)
    a("v_mov_b32 v8, v15", "s_cmp_eq_u32 s82, 1", "s_nop 0", "v_permlane32_swap_b32 v8, v15", "v_max_f32 v15, v8, v15",
      "v_xor_b32 v15, 0x80000000, v15")
    for i in range(16):
        a(f"v_cndmask_b32 v{CD + i}, v7, v15, {ms(i)}")
    mm = smm(0, CD)
    a("s_nop 1", mm[0])
    for i in range(16):
        a(f"v_mov_b32 v{CN + i}, v15")
        if i == 5:
            a(mm[1])
    a("s_cbranch_scc1 A_VD")
    poll(a, "A_PV", 56, 6)
    a(*vstage)
    a.label("A_VD")
    a("s_nop 0")

    def vread(i):
        b = VF + 8 * (i & 1)
        return [f"ds_read_b128 {vr(b, 4)}, v13 offset:{(8 - i) * 4096}",
                f"ds_read_b128 {vr(b + 4, 4)}, v14 offset:{(8 - i) * 4096}"]

    def pexp(i):
        s = SB3[i % 3]
        p = PFR[i % 3]
        o = []
        for h in range(2):
            o += [f"v_exp_f32 v{s + 8 * h + k}, v{s + 8 * h + k}" for k in range(8)]
            o += [f"v_cvt_pk_bf16_f32 v{p + 4 * h + k}, v{s + 8 * h + 2 * k}, v{s + 8 * h + 2 * k + 1}"
                  for k in range(4)]
        return o

    def pv(i):
        p = PFR[i % 3]
        b = VF + 8 * (i & 1)
        return [mfma(OA, b, p, "0" if i == 0 else OA), mfma(OA, b + 4, p + 4, OA)]

    for i in range(9):
        ex = pexp(i)
        if i == 0:
            ex = ex + [f"v_cndmask_b32 v{CO + k}, v15, v7, {ms(k)}" for k in range(16)]
        ins = {}
        if i < 8:
            mm = smm(i + 1, CO if i + 1 == 8 else CN)
            ins[0] = [mm[0]]
            ins[5] = [mm[1]]
        if i == 2:
            a("s_waitcnt vmcnt(0)")
            lds_arrive(a, 1, 8, 9)
            lds_wait(a, "A_LB1", 8, 9)
            a(*vread(0), *vread(1))
        if 2 <= i < 8:
            pp = pv(i - 2)
            ins[12] = ["s_waitcnt lgkmcnt(2)", pp[0]]
            ins[17] = [pp[1]] + vread(i)
        if i == 8:
            p6, p7 = pv(6), pv(7)
            ins[0] = ["s_waitcnt lgkmcnt(2)", p6[0]]
            ins[5] = [p6[1]] + vread(8)
            ins[10] = ["s_waitcnt lgkmcnt(2)", p7[0]]
            ins[15] = [p7[1]]
            ins[20] = ["s_waitcnt lgkmcnt(0)", pv(8)[0]]
        for k, e in enumerate(ex):
            a(*ins.get(k, []))
            a(e)
    a("s_nop 1", pv(8)[1])
    stamp(a, 11)
    PF = 32
    a(f"s_mul_i32 s41, s71, {ACT_RT}", "s_lshl_b32 s42, s70, 11", "s_add_u32 s41, s41, s42",
      f"s_add_u32 s41, s41, {OFF_ACT + 112 * 1024}", f"s_mul_i32 s42, s71, {FLG_RT}", "s_lshl_b32 s27, s70, 7",
      "s_add_u32 s42, s42, s27", f"s_add_u32 s42, s42, {OFF_FLG + 50 * 128}",
      "v_mov_b32 v10, s47", "v_mov_b32 v11, 0", "s_nop 1")
    a(f"v_mov_b32 v8, v{OA + 12}", f"v_mov_b32 v9, v{OA + 12}", "s_nop 1", "v_permlane32_swap_b32 v8, v9",
      "v_rcp_f32 v9, v9", "s_nop 0")
    for h in range(2):
        for i in range(8 * h, 8 * h + 8):
            a(f"v_mul_f32 v{OA + i}, v9, v{OA + i}")
        for k in range(4 * h, 4 * h + 4):
            a(f"v_cvt_pk_bf16_f32 v{PF + k}, v{OA + 2 * k}, v{OA + 2 * k + 1}")
        if h:
            a(f"v_cndmask_b32 v{PF + 6}, 0, v{PF + 6}, vcc", f"v_cndmask_b32 v{PF + 7}, 0, v{PF + 7}, vcc")
        a(f"buffer_store_dwordx4 {vr(PF + 4 * h, 4)}, v4, {sr(SWS, 4)}, s41 offen offset:{1024 * h} sc1")
    a("s_waitcnt vmcnt(0)", "s_mov_b64 exec, 1",
      f"buffer_store_dword v10, v11, {sr(SWS, 4)}, s42 offen sc1", "s_mov_b64 exec, -1")
    stamp_out(a)
    a("s_endpgm")


def gen_aux(a):
    AC, T, P, RV = 64, 16, 48, 240
    SWQ, SW1 = SA, SB
    a("v_bfe_u32 v12, v1, 2, 3", "v_lshlrev_b32 v13, 6, v3", "v_and_b32 v14, 3, v1", "v_lshl_add_u32 v13, v14, 4, v13",
      "v_mul_u32_u24 v4, 2688, v12", "v_add_u32 v4, v4, v13", "v_mul_u32_u24 v8, 3584, v12", "v_add_u32 v8, v8, v13")
    for k in range(1, 4):
        a(f"v_add_u32 v{4 + k}, {k * (8 * 2688 - 1024)}, v4", f"v_add_u32 v{8 + k}, {k * (8 * 3584 - 1024)}, v8")
    a("s_mov_b32 s59, s49", "s_add_u32 s60, s49, 16", "s_sub_u32 s27, s49, 5",
      "s_cmp_lt_u32 s49, 5", "s_cselect_b32 s60, s60, s27", "s_add_u32 s61, s49, 11")
    a(f"s_mul_i32 s27, s58, {FLG_RT}", f"s_add_u32 s27, s27, {OFF_FLG}",
      "s_lshl_b32 s62, s49, 7", "s_add_u32 s62, s62, s27", "s_add_u32 s63, s62, 2048", "s_add_u32 s64, s62, 4096",
      "s_add_u32 s65, s51, 48", "s_lshl_b32 s65, s65, 7", "s_add_u32 s65, s65, s27")
    a(f"s_mul_i32 s66, s26, {56 * 2688}", f"s_mul_i32 s67, s26, {56 * 3584}", "s_mul_i32 s68, s26, 7168",
      "v_lshlrev_b32 v12, 2, v1", "v_lshlrev_b32 v13, 4, v1", "v_lshlrev_b32 v14, 3, v1")
    a("s_waitcnt lgkmcnt(0)")
    stamp(a, 0, rt=True)
    stamp(a, 1)
    srd(a, SWQ, P_WQKV, WQKV_BYTES)
    srd(a, SWS, P_WS, WS_BYTES)
    srd(a, SW1, P_W1, W1_BYTES)

    def dma(ffn, src, slot):
        vb, pitch, w, wo = (8, 3584, SW1, 67) if ffn else (4, 2688, SWQ, 66)
        o = [f"s_add_u32 m0, s68, {slot}", f"s_add_u32 s27, {src}, s{wo}"]
        o += [f"buffer_load_dwordx4 v{vb + k}, {sr(w, 4)}, s27 offen offset:{k * 1024} lds" for k in range(4)]
        o += ["s_add_u32 m0, m0, 4096", f"s_add_u32 s27, s27, {32 * pitch}"]
        o += [f"buffer_load_dwordx4 v{vb + k}, {sr(w, 4)}, s27 offen offset:{k * 1024} lds" for k in range(3)]
        return o

    a("s_lshl_b32 s27, s2, 3", "s_add_u32 s27, s27, s3", "s_cmp_eq_u32 s27, 7", "s_cbranch_scc0 X_NOEP")
    srd(a, SC, P_DBG, 256)
    a(f"v_mov_b32 v16, {OFF_EPOCH}", "v_mov_b32 v18, 0", "s_mov_b64 exec, 1",
      f"buffer_load_dword v17, v16, {sr(SWS, 4)}, 0 offen sc1", "s_waitcnt vmcnt(0)",
      "v_add_u32 v17, 1, v17", "v_max_u32 v17, 1, v17",
      f"buffer_store_dword v17, v18, {sr(SC, 4)}, 0 offen sc1",
      f"buffer_store_dword v17, v16, {sr(SWS, 4)}, 0 offen sc1", "s_mov_b64 exec, -1")
    a.label("X_NOEP")
    a("s_cmp_eq_u32 s26, 3", "s_cbranch_scc1 X_WC")
    a("s_cmp_eq_u32 s26, 0", "s_cselect_b32 s69, s59, s60", "s_cmp_eq_u32 s26, 2", "s_cselect_b32 s69, s61, s69",
      "s_lshl_b32 s69, s69, 7", "s_lshl_b32 s27, s26, 2", "s_lshr_b32 s27, s54, s27", "s_bitcmp1_b32 s27, 1",
      "s_cbranch_scc1 X_WF")
    for ffn in (False, True):
        vb, pitch, w = (8, 3584, SW1) if ffn else (4, 2688, SWQ)
        a(f"s_mul_i32 s27, s55, {56 * pitch}", "s_add_u32 s27, s27, s69")
        a(*[f"buffer_load_dwordx4 v[16:19], v{vb + k}, {sr(w, 4)}, s27 offen offset:{k * 1024}" for k in range(4)])
        a(f"s_add_u32 s27, s27, {32 * pitch}")
        a(*[f"buffer_load_dwordx4 v[16:19], v{vb + k}, {sr(w, 4)}, s27 offen offset:{k * 1024}" for k in range(3)])
        a("s_branch X_WD")
        if not ffn:
            a.label("X_WF")
    a.label("X_WC")
    a(f"s_getpc_b64 {sr(SC, 2)}")
    a.label("X_PC")
    a(f"s_sub_u32 s{SC}, s{SC}, X_PC-{NAME}_kernel", f"s_subb_u32 s{SC + 1}, s{SC + 1}, 0",
      f"s_mov_b32 s{SC + 2}, L_CODE_END-{NAME}_kernel", f"s_mov_b32 s{SC + 3}, 0x20000", "s_lshl_b32 s27, s53, 10",
      f"buffer_load_dwordx4 v[16:19], v13, {sr(SC, 4)}, s27 offen")
    a.label("X_WD")
    a("s_lshl_b32 s69, s59, 7", *dma(False, "s69", L_S0))
    a("s_cmp_eq_u32 s3, 5", "s_cbranch_scc0 X_PRE")
    srd(a, SC, P_B1, 3584)
    a("s_mov_b32 exec_hi, 0", f"s_mov_b32 m0, {L_BIAS + 128}", "s_lshl_b32 s27, s60, 7",
      f"buffer_load_dword v12, {sr(SC, 4)}, s27 offen lds",
      f"s_mov_b32 m0, {L_BIAS + 256}", "s_lshl_b32 s27, s61, 7",
      f"buffer_load_dword v12, {sr(SC, 4)}, s27 offen lds",
      f"s_mov_b32 m0, {L_BIAS + 384}", "s_lshl_b32 s27, s51, 6", f"s_add_u32 s27, s27, {27 * 128}",
      f"buffer_load_dword v12, {sr(SC, 4)}, s27 offen lds", "s_mov_b32 exec_hi, -1",
      f"v_add_u32 v20, {L_CNT}, v12", "v_mov_b32 v21, 0", "ds_write_b32 v20, v21")
    a.label("X_PRE")
    a(f"s_mul_i32 s76, s58, {RT}", f"s_mul_i32 s77, s58, {ACT_RT}", f"s_add_u32 s77, s77, {OFF_ACT}",
      f"s_add_u32 s78, s76, {OFF_V}",
      "s_lshl_b32 s72, s49, 12", f"s_add_u32 s27, s72, {OFF_K - 7 * 4096}", "s_cmp_ge_u32 s49, 7",
      "s_cselect_b32 s72, s27, s72", "s_add_u32 s72, s72, s76",
      "s_sub_u32 s27, s49, 14", "s_lshl_b32 s27, s27, 10", "s_add_u32 s27, s27, s78",
      "s_cmp_ge_u32 s49, 14", "s_cselect_b32 s72, s27, s72",
      "s_add_u32 s27, s49, 2", "s_lshl_b32 s27, s27, 10", "s_add_u32 s27, s27, s78",
      "s_lshl_b32 s73, s60, 12", "s_add_u32 s73, s73, s77", "s_cmp_lt_u32 s49, 5", "s_cselect_b32 s73, s27, s73",
      "s_lshl_b32 s74, s61, 12", "s_add_u32 s74, s74, s77",
      "s_lshl_b32 s75, s51, 11", "s_add_u32 s75, s75, s77", f"s_add_u32 s75, s75, {27 * 4096}",
      "v_mul_u32_u24 v15, 448, v3", "v_lshl_add_u32 v15, v2, 4, v15", "s_movk_i32 s79, 1344",
      "s_lshl_b32 s27, s26, 12", "v_add_u32 v56, s27, v12", f"v_add_u32 v56, {L_E1}, v56",
      "v_mov_b32 v59, 0", "s_waitcnt lgkmcnt(0)")
    stamp(a, 2)
    a("s_barrier")
    stamp(a, 3)
    a(f"s_add_u32 s69, s69, {224 * 2688}", *dma(False, "s69", L_S1))
    a("s_lshl_b32 s69, s60, 7", "s_cmp_lt_u32 s49, 5", "s_cbranch_scc0 X_R1F")
    a(*dma(False, "s69", L_S2), f"s_add_u32 s69, s69, {224 * 2688}", *dma(False, "s69", L_S3), "s_branch X_R1D")
    a.label("X_R1F")
    a(*dma(True, "s69", L_S2), f"s_add_u32 s69, s69, {224 * 3584}", *dma(True, "s69", L_S3))
    a.label("X_R1D")
    a("s_waitcnt vmcnt(21)")
    stamp(a, 4)
    a("s_barrier")
    c0 = -2.0 * 0.7978845608028654 * 1.4426950408889634
    c1 = c0 * 0.044715
    a("s_lshl_b32 s27, s26, 8", f"s_add_u32 s27, s27, {L_STAT}", "v_lshl_add_u32 v16, v2, 2, s27",
      "v_lshl_add_u32 v17, v3, 4, s27", "ds_read_b32 v40, v16", "ds_read_b32 v41, v16 offset:128",
      f"v_mov_b32 v18, {L_CNT + 64}")
    for g in range(4):
        a(f"ds_read_b128 {vr(RV + 4 * g, 4)}, v17 offset:{g * 32}")
    a("s_cmp_lt_u32 s49, 7", f"s_cselect_b32 s27, {f32(28 ** -0.5 * 1.4426950408889634)}, 1.0",
      "s_waitcnt lgkmcnt(0)",
      f"v_mul_f32 v42, {f32(c0)}, v40", "v_mul_f32 v43, v40, v40", "v_mul_f32 v43, v43, v40",
      f"v_mul_f32 v43, {f32(c1)}, v43", "v_mul_f32 v40, s27, v40")
    a("s_waitcnt vmcnt(14)", "s_barrier")
    epoch_issue(a, 59, 58)
    gemm_setup(a)
    epoch_wait(a, "X_EP", 59, 58)
    a("ds_write_b32 v18, v58")
    gemm_setup2(a)
    a("s_mov_b32 s80, 0", "s_mov_b32 s85, 0", "s_mov_b32 s81, s54", "s_lshl_b32 s82, s61, 7", f"s_mov_b32 s83, {L_S0}",
      "s_sub_u32 s84, s50, 5", "s_lshl_b32 s84, s84, 1", "s_waitcnt lgkmcnt(0)")
    a.label("X_TILE")
    a("s_barrier")
    lstamp(a, "s80", 0)
    for q in range(8):
        a(f"ds_read2st64_b32 {vr(AC + 2 * q, 2)}, v56 offset0:{2 * q} offset1:{2 * q + 1}")
    a(f"v_xor_b32 v56, {L_E1}, v56", "s_waitcnt lgkmcnt(0)")
    a("s_cmp_eq_u32 s84, 0", "s_cselect_b64 vcc, 0, -1", "s_cbranch_scc1 X_NOD")
    a(*dma(True, "s82", "s83"))
    a("s_sub_u32 s84, s84, 1", f"s_add_u32 s82, s82, {224 * 3584}", "s_cmp_eq_u32 s80, 1",
      f"s_cselect_b32 s82, {27 * 128}, s82", f"s_add_u32 s83, s83, {SLOT}", f"s_cmp_eq_u32 s80, 0",
      f"s_cselect_b32 s83, {L_S1}, s83")
    a.label("X_NOD")
    lstamp(a, "s80", 1)
    pub = ["s_mov_b64 exec, 1", f"buffer_store_dword v58, v59, {sr(SWS, 4)}, s62 offen sc1", "s_mov_b64 exec, -1",
           "s_mov_b32 s62, s63", "s_mov_b32 s63, s64", "s_mov_b32 s64, s65", "s_mov_b32 s85, 0"]
    a("s_cmp_eq_u32 s85, 1", "s_cbranch_scc0 X_NOE", "s_waitcnt vmcnt(7)", "s_cbranch_vccnz X_E2", "s_waitcnt vmcnt(0)")
    a.label("X_E2")
    a(*pub)
    a.label("X_NOE")
    a("s_bitcmp1_b32 s81, 1", "s_cbranch_scc1 X_FFN", "s_bitcmp1_b32 s81, 0", "s_cbranch_scc1 X_V")

    def tail(n, stride):
        lstamp(a, "s80", 2)
        a(f"s_add_u32 s72, s72, {stride}", "s_cbranch_vccz X_W%d" % n + "A", f"s_waitcnt vmcnt({n + 7})",
          "s_branch X_NEXT")

    for g in range(4):
        for k in range(4):
            a(f"v_mul_f32 v{T + 4 * g + k}, v40, v{AC + 4 * g + k}")
        a(f"v_cvt_pk_bf16_f32 v{P + 2 * g}, v{T + 4 * g}, v{T + 4 * g + 1}",
          f"v_cvt_pk_bf16_f32 v{P + 2 * g + 1}, v{T + 4 * g + 2}, v{T + 4 * g + 3}",
          f"buffer_store_dwordx2 {vr(P + 2 * g, 2)}, v14, {sr(SWS, 4)}, s72 offen offset:{g * 512} sc1")
    tail(4, 2048)
    a.label("X_W4A")
    a("s_waitcnt vmcnt(4)", "s_branch X_NEXT")
    a.label("X_V")
    a("s_sub_u32 s27, s72, s78", "s_lshr_b32 s27, s27, 4", "v_add_u32 v57, s27, v2",
      "v_mul_u32_u24 v57, 2341, v57", "v_lshrrev_b32 v57, 16, v57", "v_mad_u32_u24 v57, v57, s79, v15")
    for s in range(2):
        for k in range(8):
            a(f"v_mul_f32 v{T + 8 * s + k}, v{RV + 8 * s + k}, v{AC + 8 * s + k}")
        for k in range(4):
            a(f"v_cvt_pk_bf16_f32 v{P + 4 * s + k}, v{T + 8 * s + 2 * k}, v{T + 8 * s + 2 * k + 1}")
        a(f"buffer_store_dwordx4 {vr(P + 4 * s, 4)}, v57, {sr(SWS, 4)}, s72 offen offset:{s * 896} sc1")
    tail(2, 512)
    a.label("X_FFN")
    for g in range(4):
        t = [T + 4 * (g & 1) + k for k in range(4)]
        s = [AC + 4 * g + k for k in range(4)]
        a(*[f"v_mul_f32 v{t[k]}, v{s[k]}, v{s[k]}" for k in range(4)])
        a(*[f"v_fma_f32 v{t[k]}, v{t[k]}, v43, v42" for k in range(4)])
        a(*[f"v_mul_f32 v{t[k]}, v{s[k]}, v{t[k]}" for k in range(4)])
        a(*[f"v_exp_f32 v{t[k]}, v{t[k]}" for k in range(4)])
        a(*[f"v_fma_f32 v{t[k]}, v{t[k]}, v41, v41" for k in range(4)])
        a(*[f"v_rcp_f32 v{t[k]}, v{t[k]}" for k in range(4)])
        a(*[f"v_mul_f32 v{t[k]}, v{s[k]}, v{t[k]}" for k in range(4)])
        a(f"v_cvt_pk_bf16_f32 v{P + 2 * g}, v{t[0]}, v{t[1]}", f"v_cvt_pk_bf16_f32 v{P + 2 * g + 1}, v{t[2]}, v{t[3]}")
        if g & 1:
            a(f"buffer_store_dwordx4 {vr(P + 2 * g - 2, 4)}, v13, {sr(SWS, 4)}, s72 offen offset:{(g >> 1) * 1024} sc1")
    tail(2, 2048)
    a.label("X_W2A")
    a("s_waitcnt vmcnt(2)")
    a.label("X_NEXT")
    lstamp(a, "s80", 3)
    a("s_bitcmp1_b32 s80, 0", "s_cbranch_scc1 X_ODD", "s_cmp_eq_u32 s85, 0", "s_cbranch_scc1 X_ADV", *pub,
      "s_branch X_ADV")
    a.label("X_ODD")
    a("s_mov_b32 s72, s73", "s_mov_b32 s73, s74", "s_mov_b32 s74, s75",
      "s_bitcmp1_b32 s81, 1", "s_cselect_b32 s85, 2, 1")
    a.label("X_ADV")
    a("s_lshr_b32 s81, s81, 2", "s_add_u32 s80, s80, 1", "s_cmp_lt_u32 s80, s50", "s_cbranch_scc1 X_TILE")
    stamp(a, 5)


G_R = 10
G_RES = 192
GX, GWO, GW2, GOUT = 4, 8, 16, 20


def gemm_setup(a):
    R = G_R
    XR = 80
    srd(a, SA, P_B2, 896)
    a(f"s_mov_b32 s{GX + 2}, {X_BYTES}", f"s_mov_b32 s{GX + 3}, 0x20000",
      "s_lshl_b32 s88, s52, 2", "s_and_b32 s27, s53, 3", "s_add_u32 s88, s88, s27", "s_lshr_b32 s89, s53, 2",
      "s_and_b32 s90, s26, 1", "s_lshr_b32 s91, s26, 1", "s_lshl_b32 s27, s88, 1",
      "s_add_u32 s44, s27, s90", "s_xor_b32 s45, s44, 1", "s_lshl_b32 s89, s89, 7",
      "s_lshl_b32 s27, s91, 6", "s_add_u32 s27, s27, s89", f"s_mul_i32 s87, s44, {RT}", "s_add_u32 s87, s87, s27",
      "v_lshlrev_b32 v45, 4, v3", "v_mul_u32_u24 v44, 896, v2", "v_add_u32 v44, v44, v45",
      f"buffer_load_dwordx4 {vr(XR, 4)}, v44, {sr(GX, 4)}, s87 offen",
      f"buffer_load_dwordx4 {vr(XR + 4, 4)}, v44, {sr(GX, 4)}, s87 offen offset:32",
      f"buffer_load_dwordx4 {vr(XR + 8, 4)}, v45, {sr(SA, 4)}, s27 offen",
      f"buffer_load_dwordx4 {vr(XR + 12, 4)}, v45, {sr(SA, 4)}, s27 offen offset:32")
    a(f"s_mov_b32 s{GWO + 2}, {WO_BYTES}", f"s_mov_b32 s{GWO + 3}, 0x20000",
      f"s_mov_b32 s{GW2 + 2}, {W2_BYTES}", f"s_mov_b32 s{GW2 + 3}, 0x20000",
      f"s_mov_b32 s{GOUT + 2}, {X_BYTES}", f"s_mov_b32 s{GOUT + 3}, 0x20000")
    a("v_bfe_u32 v46, v1, 2, 2", "v_bfe_u32 v47, v1, 4, 1", "v_lshl_add_u32 v46, v47, 3, v46",
      "v_mul_u32_u24 v32, 896, v46", "v_lshl_add_u32 v32, v3, 6, v32", "v_and_b32 v46, 3, v1",
      "v_lshl_add_u32 v32, v46, 4, v32", f"v_add_u32 v33, {4 * 896 - 1024}, v32")
    a(f"s_mul_i32 s88, s88, {2 * FLG_RT}", f"s_add_u32 s88, s88, {OFF_FLG}",
      "v_bfe_u32 v46, v1, 1, 3", "v_lshlrev_b32 v47, 2, v46", "v_add_u32 v47, s26, v47", "v_add_u32 v47, 21, v47",
      "s_add_u32 s27, s26, 21", "s_cmp_eq_u32 s26, 3", "s_cselect_b32 s27, 49, s27", "v_mov_b32 v45, s27",
      "v_cmp_eq_u32 vcc, 7, v46", "v_and_b32 v46, 1, v1", "v_mul_u32_u24 v46, 66, v46",
      "v_cndmask_b32 v47, v47, v45, vcc", "v_add_u32 v47, v47, v46", "v_lshlrev_b32 v47, 7, v47",
      "v_add_u32 v36, s88, v47", "v_bfe_u32 v47, v1, 1, 2", "v_add_u32 v46, v46, v47",
      "s_lshl_b32 s27, s26, 2", "s_add_u32 s27, s27, 50", "v_add_u32 v46, s27, v46", "v_lshlrev_b32 v46, 7, v46",
      "v_add_u32 v37, s88, v46")


def gemm_setup2(a):
    R = G_R
    XR, RES = 80, G_RES
    a(f"s_mul_i32 s32, s26, {64 * 896}", "s_add_u32 s32, s32, s89",
      f"s_mul_i32 s33, s26, {112 * 896}", "s_add_u32 s33, s33, s89",
      f"s_mul_i32 s34, s90, {R * 2048}", f"s_mul_i32 s27, s91, {L_RB - L_RA}", "s_add_u32 s34, s34, s27",
      f"s_add_u32 s34, s34, {L_RA}", "s_mov_b32 s35, s87",
      f"s_mul_i32 s44, s44, {ACT_RT}", f"s_mul_i32 s45, s45, {ACT_RT}",
      "s_lshl_b32 s27, s26, 13", f"s_add_u32 s27, s27, {OFF_ACT + 112 * 1024}",
      "s_add_u32 s46, s44, s27", "s_add_u32 s86, s45, s27",
      "s_lshl_b32 s27, s26, 12", f"s_add_u32 s27, s27, {OFF_ACT}", "s_add_u32 s44, s44, s27", "s_add_u32 s45, s45, s27")
    a("v_and_b32 v46, 1, v1", "v_bfe_u32 v47, v1, 1, 1", "v_lshl_add_u32 v46, v46, 1, v47",
      "v_bfe_u32 v47, v1, 4, 1", "v_lshl_add_u32 v46, v47, 2, v46",
      "v_bfe_u32 v47, v1, 2, 2", "v_lshlrev_b32 v47, 6, v47", "v_lshl_add_u32 v46, v46, 3, v47",
      "v_lshl_add_u32 v46, v3, 10, v46", "s_lshl_b32 s27, s91, 9", "s_add_u32 s27, s27, s34",
      "v_add_u32 v34, s27, v46", "v_xor_b32 v35, 512, v34")
    a("v_add_u32 v38, s34, v13", "s_lshl_b32 s27, s90, 1", "s_sub_u32 s27, 1, s27", f"s_mul_i32 s88, s27, {R * 2048}",
      "s_lshl_b32 s27, s91, 1", "s_sub_u32 s27, 1, s27", f"s_mul_i32 s89, s27, {L_RB - L_RA}",
      "v_add_u32 v45, s88, v38", "v_add_u32 v46, s89, v38", "v_add_u32 v47, s88, v46")
    for k in range(8):
        a(f"v_lshlrev_b32 v{RES + 2 * k}, 16, v{XR + k}", f"v_and_b32 v{RES + 2 * k + 1}, 0xffff0000, v{XR + k}",
          f"v_lshlrev_b32 v{RES + 16 + 2 * k}, 16, v{XR + 8 + k}",
          f"v_and_b32 v{RES + 17 + 2 * k}, 0xffff0000, v{XR + 8 + k}")
    for i in range(16):
        a(f"v_add_f32 v{RES + i}, v{RES + i}, v{RES + 16 + i}")


def gen_gemm(a):
    R = G_R
    AC, OR, XR, RES = 64, 192, 16, G_RES
    WFR = (4, 48)
    areg = lambda k: (128 + 8 * (k % R)) if (k % R) < 8 else (16 + 8 * (k % R - 8))
    pub = ["s_mov_b64 exec, 1", f"buffer_store_dword v58, v59, {sr(SWS, 4)}, s62 offen sc1", "s_mov_b64 exec, -1"]
    a("s_cmp_lt_u32 s53, 28", "s_cbranch_scc1 G_GO", "s_waitcnt vmcnt(0)", *pub)
    stamp_out(a)
    a("s_endpgm")
    a.label("G_GO")

    def req(v, nl, dst=60):
        return [f"s_mov_b64 exec, {(1 << nl) - 1}", f"buffer_load_dword v{dst}, v{v}, {sr(SWS, 4)}, 0 offen sc1",
                "s_mov_b64 exec, -1"]

    def chk(mask, target, src=60):
        return [f"v_cmp_ne_u32 s[88:89], s47, v{src}", "s_nop 0", f"s_and_b32 s88, s88, {mask}", f"s_cbranch_scc0 {target}"]

    def kpos(k):
        return (k >> 2) * 16 + (k & 3)

    def issue_w(k):
        o = [f"s_add_u32 m0, s34, {(k % R) * 2048}"]
        if k < 28:
            o += [f"s_add_u32 s27, s32, {kpos(k) * 16 * 896}"]
            w = GW2
        else:
            kk = k - 28
            o += [f"s_add_u32 s27, s33, {((kk >> 1) * 28 + (kk & 1) * 16) * 896}"]
            w = GWO
        return o + [f"buffer_load_dwordx4 v32, {sr(w, 4)}, s27 offen lds",
                    f"buffer_load_dwordx4 v33, {sr(w, 4)}, s27 offen offset:1024 lds"]

    def issue_a(k):
        r = areg(k)
        off = (k & 3) * 1024
        o = []
        if k & 3 == 0:
            o = [f"s_add_u32 s70, s44, {kpos(k) * 1024}", f"s_add_u32 s71, s45, {kpos(k) * 1024}"]
        return o + [f"buffer_load_dwordx4 {vr(r, 4)}, v13, {sr(SWS, 4)}, s70 offen offset:{off} sc1",
                    f"buffer_load_dwordx4 {vr(r + 4, 4)}, v13, {sr(SWS, 4)}, s71 offen offset:{off} sc1"]

    issue_o = []
    for kk in range(8):
        if kk == 4:
            issue_o += ["s_add_u32 s46, s46, 4096", "s_add_u32 s86, s86, 4096"]
        issue_o += [f"buffer_load_dwordx4 {vr(OR + 8 * kk, 4)}, v13, {sr(SWS, 4)}, s46 offen offset:{(kk & 3) * 1024} sc1",
                    f"buffer_load_dwordx4 {vr(OR + 8 * kk + 4, 4)}, v13, {sr(SWS, 4)}, s86 offen offset:{(kk & 3) * 1024} sc1"]

    NW0 = 4
    a(*req(36, 4), "s_mov_b32 s73, 0")
    q = []
    for k in range(NW0):
        a(*issue_w(k))
        q += [k, k]
    a(f"s_waitcnt vmcnt({2 * NW0})", *pub)
    q += ["f"]
    stamp(a, 6)
    a(*chk(15, "G_AOK"))
    poll(a, "G_PA", 36, 4)
    a.label("G_AOK")
    stamp(a, 7)
    for k in range(8):
        a(*issue_a(k))
        q += [k, k]
        if NW0 <= k + 2 < R:
            a(*issue_w(k + 2))
            q += [k + 2, k + 2]
        if k == BREQ:
            a(*req(36, 16))
            q += ["b"]
    NK = 36
    for k in range(NK):
        if k == 28:
            a("s_cmp_eq_u32 s73, 1", "s_cbranch_scc1 G_OD")
            poll(a, "G_PO", 37, 8)
            a(*issue_o)
            a.label("G_OD")
            stamp(a, 10)
        need = [i for i, kk in enumerate(q)
                if kk == k or (kk == "p" and k in OCHK.values()) or (kk == "b" and k == BCHK)]
        q = q[max(need) + 1:] if need else q
        a(f"s_waitcnt vmcnt({len(q) if k < 28 else 0})")
        if k in (12, 28):
            stamp(a, {12: 9, 28: 11}[k])
        w = WFR[k & 1]
        off = (k % R) * 2048
        a(f"ds_read_b64_tr_b16 {vr(w, 2)}, v34 offset:{off}", f"ds_read_b64_tr_b16 {vr(w + 2, 2)}, v34 offset:{off + 256}",
          f"ds_read_b64_tr_b16 {vr(w + 4, 2)}, v35 offset:{off}",
          f"ds_read_b64_tr_b16 {vr(w + 6, 2)}, v35 offset:{off + 256}")
        if k == BCHK:
            a(*chk(0xffff, "G_BOK"))
            poll(a, "G_PB", 36, 16)
            a.label("G_BOK")
            stamp(a, 8)
            for kk in range(8, R + k):
                a(*issue_a(kk))
                q += [kk, kk]
        if k in OCHK.values():
            a("s_cmp_eq_u32 s73, 1", f"s_cbranch_scc1 G_OS{k}", "v_cmp_ne_u32 s[88:89], s47, v60", "s_nop 0",
              "s_and_b32 s88, s88, 0xff", f"s_cbranch_scc1 G_OS{k}", *issue_o, "s_mov_b32 s73, 1")
            a.label(f"G_OS{k}")
        r = areg(k) if k < 28 else OR + 8 * (k - 28)
        c = (lambda t: RES if t == 0 else "0") if k == 0 else (lambda t: AC + 16 * t)
        a("s_waitcnt lgkmcnt(2)", mfma(AC, w, r, c(0)), mfma(AC + 16, w, r + 4, c(1)),
          "s_waitcnt lgkmcnt(0)", mfma(AC + 32, w + 4, r, c(2)), mfma(AC + 48, w + 4, r + 4, c(3)))
        n = k + R
        if k in OCHK:
            a(*req(37, 8))
            q += ["p"]
        if n < NK:
            a(*issue_w(n))
            q += [n, n]
            if n < 28 and k >= BCHK:
                a(*issue_a(n))
                q += [n, n]
    stamp(a, 12)
    a("s_nop 7", "s_nop 1")
    for t in range(1, 4):
        for qq in range(4):
            a(f"ds_write_b128 v38, {vr(AC + 16 * t + 4 * qq, 4)} offset:{(t - 1) * 4096 + qq * 1024}")
    a("s_waitcnt lgkmcnt(0)", "s_barrier")
    stamp(a, 13)
    for t in range(3):
        for qq in range(4):
            a(f"ds_read_b128 {vr(AC + 16 + 16 * t + 4 * qq, 4)}, v{45 + t} offset:{t * 4096 + qq * 1024}")
    a("s_waitcnt lgkmcnt(4)")
    for i in range(16):
        a(f"v_add_f32 v{AC + 16 + i}, v{AC + 16 + i}, v{AC + 32 + i}")
    for h in range(2):
        a(f"s_waitcnt lgkmcnt({2 - 2 * h})")
        for i in range(8 * h, 8 * h + 8):
            a(f"v_add_f32 v{AC + i}, v{AC + 48 + i}, v{AC + i}")
        for i in range(8 * h, 8 * h + 8):
            a(f"v_add_f32 v{AC + i}, v{AC + 16 + i}, v{AC + i}")
        for k in range(4 * h, 4 * h + 4):
            a(f"v_cvt_pk_bf16_f32 v{XR + k}, v{AC + 2 * k}, v{AC + 2 * k + 1}")
        a(f"buffer_store_dwordx4 {vr(XR + 4 * h, 4)}, v44, {sr(GOUT, 4)}, s35 offen offset:{32 * h}")
    stamp_out(a)


BREQ, BCHK = 2, 2
OCHK = {8: 14, 14: 20}


def main(out):
    a = Asm()
    a.raw(f"; @launch grid=(256,1,1) block=(512,1,1) lds={LDS_BYTES}")
    a.raw('.amdgcn_target "amdgcn-amd-amdhsa--gfx950"')
    a.raw(".text")
    name = gen(a)
    a.raw('.section .rodata,"a"')
    a.raw(".p2align 6")
    a.raw(f".amdhsa_kernel {name}")
    a.raw("  .amdhsa_next_free_vgpr 256")
    a.raw("  .amdhsa_next_free_sgpr 102")
    a.raw("  .amdhsa_accum_offset 256")
    a.raw("  .amdhsa_group_segment_fixed_size 0")
    a.raw("  .amdhsa_kernarg_size 88")
    a.raw("  .amdhsa_user_sgpr_count 2")
    a.raw("  .amdhsa_user_sgpr_kernarg_segment_ptr 1")
    a.raw("  .amdhsa_system_sgpr_workgroup_id_x 1")
    a.raw(".end_amdhsa_kernel")
    open(out, "w").write(a.text())


if __name__ == "__main__":
    if "--stamp" in sys.argv:
        sys.argv.remove("--stamp")
        STAMP = True
    main(sys.argv[1] if len(sys.argv) > 1 else f"cdna_kernels/{NAME}.s")
```

```python
import struct
import sys

NAME = "parallel_sum__sliding_block__dense_activation_gelu__prompt"

RT = 28672
OFF_Q = 0
OFF_K = 64 * RT
OFF_V = 2 * 64 * RT
OFF_ACT = 3 * 64 * RT
ACT_RT = 144 * 1024
OFF_FLG = OFF_ACT + 64 * ACT_RT
FLG_RT = 66 * 128
OFF_EPOCH = OFF_FLG + 64 * FLG_RT
WS_BYTES = OFF_EPOCH + 128
NATIVE_K = True

X_BYTES = 2048 * 896
WQKV_BYTES = 448 * 2688
W1_BYTES = 448 * 3584
W2_BYTES = 1792 * 896
WO_BYTES = 448 * 896

SLOT = 28672
L_E0 = 0
L_E1 = 16384
L_S1 = 32768
L_S2 = L_S1 + SLOT
L_S3 = L_S2 + SLOT
L_S0 = 163840 - SLOT
L_BIAS = 118784
L_STAT = L_BIAS + 768
L_CNT = L_STAT + 1024
L_ATT = L_S2
L_RA = 16384
L_RB = 122880
LDS_BYTES = 163840
SPIN_MAX = 1 << 16

STAMP = False
OFF_STAMP = 32 << 20


def f32(x):
    return "0x%08x" % struct.unpack("<I", struct.pack("<f", x))[0]


class Asm:
    def __init__(self):
        self.o = []

    def __call__(self, *lines):
        for s in lines:
            self.o.append("    " + s)

    def label(self, s):
        self.o.append(s + ":")

    def raw(self, s):
        self.o.append(s)

    def text(self):
        return "\n".join(self.o) + "\n"


def vr(b, n):
    return f"v[{b}:{b + n - 1}]"


def sr(b, n):
    return f"s[{b}:{b + n - 1}]"


def mfma(d, a, b, c):
    cs = c if isinstance(c, str) else vr(c, 16)
    return f"v_mfma_f32_32x32x16_bf16 {vr(d, 16)}, {vr(a, 4)}, {vr(b, 4)}, {cs}"


def srd(a, d, lo, nbytes):
    a(f"s_mov_b32 s{d}, s{lo}", f"s_mov_b32 s{d + 1}, s{lo + 1}",
      f"s_mov_b32 s{d + 2}, {nbytes}", f"s_mov_b32 s{d + 3}, 0x20000")


DBG = False
ROLE = ["main"]
DBG_MAP = {"main": {0: 2, 3: 3, 5: 4, 6: 5, 9: 6, 15: 7}, "aux": {5: 8, 6: 9, 8: 10, 11: 11, 15: 12}}


def stamp(a, i, rt=False):
    if DBG:
        w = DBG_MAP[ROLE[0]].get(i)
        if w is not None:
            a("s_memrealtime s[98:99]", "s_waitcnt lgkmcnt(0)", f"v_writelane_b32 v63, s98, {w}")
            inv = {2: 1, 4: 13, 5: 14, 12: 15}.get(w)
            if inv:
                a("s_not_b32 s98, s98", f"v_writelane_b32 v63, s98, {inv}")
        return
    if not STAMP:
        return
    a(f"s_mem{'real' if rt else ''}time s[98:99]", "s_waitcnt lgkmcnt(0)",
      f"v_writelane_b32 v63, s98, {i}")


def lstamp(a, ureg, k):
    if not STAMP:
        return
    a("s_memtime s[98:99]", f"s_lshl_b32 s97, {ureg}, 2", f"s_add_u32 m0, s97, {16 + k}", "s_waitcnt lgkmcnt(0)",
      "v_writelane_b32 v63, s98, m0")


def stamp_out(a):
    if DBG:
        stamp(a, 15)
        a("s_load_dwordx2 s[92:93], s[0:1], 72", "s_waitcnt lgkmcnt(0)", "s_mov_b32 s94, 256", "s_mov_b32 s95, 0x20000",
          "s_mov_b64 exec, 0xfffe", "v_lshlrev_b32 v62, 2, v1", "buffer_atomic_umax v63, v62, s[92:95], 0 offen sc1")
        return
    if not STAMP:
        return
    stamp(a, 14)
    stamp(a, 15, rt=True)
    a("s_mov_b32 s92, s24", "s_mov_b32 s93, s25", f"s_mov_b32 s94, {64 << 20}", "s_mov_b32 s95, 0x20000",
      "s_lshl_b32 s96, s2, 3", "s_add_u32 s96, s96, s3", "s_lshl_b32 s96, s96, 8",
      f"s_add_u32 s96, s96, {OFF_STAMP}", "s_mov_b64 exec, -1", "v_lshlrev_b32 v62, 2, v1",
      "buffer_store_dword v63, v62, s[92:95], s96 offen")


P_X, P_WQKV, P_WO, P_W1, P_B1, P_W2, P_B2, P_OUT, P_DBG, P_WS = 4, 6, 8, 12, 14, 16, 18, 20, 22, 24
SWS, SA, SB, SC, SD = 28, 32, 36, 40, 84


def gen(a):
    name = NAME + "_kernel"
    a.raw(f".globl {name}")
    a.raw(".p2align 8")
    a.raw(f".type {name},@function")
    a.label(name)
    a("s_cmp_ge_u32 s2, 256", "s_cbranch_scc1 L_END")
    a("s_load_dwordx16 s[4:19], s[0:1], 0", "s_load_dwordx4 s[20:23], s[0:1], 64",
      "s_load_dwordx2 s[24:25], s[0:1], 80")
    a("v_lshrrev_b32 v2, 6, v0", "v_and_b32 v1, 63, v0", "v_readfirstlane_b32 s3, v2")
    a("s_and_b32 s52, s2, 7", "s_lshr_b32 s53, s2, 3",
      "s_lshr_b32 s55, s53, 2", "s_and_b32 s56, s53, 3",
      "s_and_b32 s27, s53, 1", "s_add_u32 s27, s27, 6", "s_bfe_u32 s57, s53, 0x20001",
      "s_cmp_ge_u32 s53, 24", "s_cselect_b32 s55, s27, s55", "s_cselect_b32 s56, s57, s56",
      "s_and_b32 s57, s52, 3", "s_lshl_b32 s27, s57, 1", "s_add_u32 s55, s55, s27", "s_add_u32 s55, s55, 2",
      "s_and_b32 s55, s55, 7", "s_lshr_b32 s48, s52, 2", "s_lshl_b32 s48, s48, 3", "s_add_u32 s48, s48, s55",
      "s_lshl_b32 s49, s57, 2", "s_add_u32 s49, s49, s56",
      "s_and_b32 s51, s56, 1", "s_cmp_ge_u32 s53, 28", "s_cselect_b32 s50, 7, 6", "s_cselect_b32 s51, s51, 0",
      "s_and_b32 s26, s3, 3")
    a("s_cmp_ge_u32 s49, 14", "s_cselect_b32 s54, 5, 0",
      "s_cmp_lt_u32 s49, 5", "s_cselect_b32 s27, 5, 10", "s_lshl_b32 s27, s27, 4", "s_or_b32 s54, s54, s27",
      "s_or_b32 s54, s54, 0xaa00")
    a("s_lshl_b32 s58, s48, 2", "s_add_u32 s58, s58, s26")
    a("v_and_b32 v2, 31, v1", "v_lshrrev_b32 v3, 5, v1")
    if DBG:
        a("v_mov_b32 v63, 0")
    a("s_cmp_ge_u32 s3, 4", "s_cbranch_scc1 L_AUX")
    gen_main(a)
    gen_attn(a)
    a.label("L_AUX")
    ROLE[0] = "aux"
    gen_aux(a)
    gen_gemm(a)
    a.label("L_END")
    a("s_endpgm")
    a.label("L_CODE_END")
    return name


QF = 48


def att_stage_qk(a, tag):
    for g in range(4):
        a(f"buffer_load_dwordx2 {vr(QF + 2 * g, 2)}, v59, {sr(SWS, 4)}, s74 offen offset:{g * 512} sc1")
    a("v_lshlrev_b32 v58, 1, v59")
    for i in range(3):
        a(f"s_add_u32 m0, s73, {i * 4096}", f"s_add_u32 s27, s{75 + i}, {OFF_K}",
          f"buffer_load_dwordx4 v58, {sr(SWS, 4)}, s27 offen sc1 lds", "s_mov_b32 exec_hi, 0xffff",
          f"buffer_load_dwordx4 v58, {sr(SWS, 4)}, s27 offen offset:1024 sc1 lds", "s_mov_b32 exec_hi, -1")


def gen_main(a):
    X, ACA, ACB, WR, T = 128, 64, 80, 96, 16
    AB, BB = 240, 244
    a("v_lshrrev_b32 v8, 3, v1", "v_and_b32 v9, 7, v1", "v_lshrrev_b32 v4, 4, v1",
      "v_xor_b32 v9, v9, v4", "v_mul_u32_u24 v8, 896, v8", "v_lshl_add_u32 v8, v9, 4, v8", "v_xor_b32 v9, 64, v8")
    for k in range(4):
        a(f"s_add_u32 s27, s56, {k}", "s_and_b32 s27, s27, 3", "s_mulk_i32 s27, 7168",
          f"s_add_u32 s27, s27, {4096 - 1024 * k}", f"v_add_u32 v{4 + k}, s27, v{8 + (k & 1)}")
    a(f"s_mul_i32 s59, s58, {RT}", f"s_mul_i32 s60, s3, {SLOT}")
    a("s_waitcnt lgkmcnt(0)")
    stamp(a, 0, rt=True)
    stamp(a, 1)
    a(f"s_sub_u32 s{SA}, s{P_X}, 4096", f"s_subb_u32 s{SA + 1}, s{P_X + 1}, 0",
      f"s_mov_b32 s{SA + 2}, {X_BYTES + 4096}", f"s_mov_b32 s{SA + 3}, 0x20000")
    for g in range(7):
        a(f"s_add_u32 m0, s60, {g * 4096}", f"s_add_u32 s61, s59, {g * 128}",
          f"buffer_load_dwordx4 v4, {sr(SA, 4)}, s61 offen lds")
    pre = []
    pre += ["s_lshl_b32 s27, s56, 3", "v_subrev_u32 v9, s27, v2", "v_and_b32 v9, 31, v9",
            "v_bfe_u32 v8, v9, 1, 3", "v_xor_b32 v8, v8, v3",
            "v_lshlrev_b32 v8, 4, v8", "v_lshl_add_u32 v8, v9, 7, v8", "v_add_u32 v8, s60, v8",
            "v_xor_b32 v9, 32, v8", "v_xor_b32 v10, 64, v8", "v_xor_b32 v11, 96, v8"]
    pre += ["v_bfe_u32 v12, v1, 2, 1", "v_bfe_u32 v13, v1, 3, 1",
            "v_bfe_u32 v14, v1, 1, 1", "v_lshl_add_u32 v13, v13, 1, v14",
            "v_bfe_u32 v14, v1, 4, 1", "v_lshl_add_u32 v13, v14, 2, v13",
            "v_xor_b32 v12, v12, v3", "v_lshl_add_u32 v13, v12, 3, v13",
            "v_and_b32 v14, 1, v1", "v_lshlrev_b32 v14, 4, v14", "v_mov_b32 v15, 0x3f80",
            "v_lshlrev_b32 v14, v14, v15"]
    pre += [f"v_cmp_eq_u32 {sr(64 + 2 * k, 2)}, {k}, v13" for k in range(8)]
    pre += [f"v_cndmask_b32 v{WR + k}, 0, v14, {sr(64 + 2 * k, 2)}" for k in range(8)]
    pre += ["v_and_b32 v13, 3, v1", "v_bfe_u32 v14, v1, 4, 1", "v_lshl_add_u32 v13, v14, 2, v13",
            "v_bfe_u32 v14, v1, 2, 2", "v_lshlrev_b32 v14, 6, v14", "v_lshl_add_u32 v13, v13, 3, v14",
            "v_lshl_add_u32 v12, v3, 10, v13", f"v_add_u32 v12, {L_S1}, v12"]
    pre += ["s_lshl_b32 s70, s52, 1", "s_and_b32 s27, s53, 1", "s_add_u32 s70, s70, s27",
            "s_lshr_b32 s27, s53, 1", "s_lshl_b32 s27, s27, 2", "s_add_u32 s71, s27, s3",
            "s_mul_i32 s73, s3, 3", "s_add_u32 s72, s27, s73", "s_sub_u32 s72, s72, 8",
            "s_lshl_b32 s73, s73, 12", f"s_add_u32 s73, s73, {L_ATT}", "s_mul_i32 s78, s70, 1792",
            f"s_mul_i32 s74, s71, {RT}", "s_add_u32 s74, s74, s78"]
    for i in range(3):
        pre += [f"s_add_u32 s27, s72, {i}", f"s_mul_i32 s{75 + i}, s27, {RT}", f"s_add_u32 s{75 + i}, s{75 + i}, s78",
                "s_cmp_lt_i32 s27, 0", f"s_cselect_b32 s{75 + i}, 0x40000000, s{75 + i}"]
    pre += ["s_mul_i32 s27, s70, 28", "s_lshr_b32 s79, s27, 6", "s_add_u32 s27, s27, 27", "s_lshr_b32 s27, s27, 6",
            "s_sub_u32 s27, s27, s79",
            "v_and_b32 v13, 1, v1", "v_mul_u32_u24 v13, s27, v13", "v_add_u32 v13, s79, v13",
            "v_lshrrev_b32 v14, 1, v1", "v_add_u32 v14, s72, v14", "v_max_i32 v14, 0, v14",
            "v_mul_u32_u24 v14, 66, v14", "v_add_u32 v14, 7, v14", "s_mul_i32 s27, s71, 66",
            "v_cmp_gt_u32 vcc, 6, v1", "v_mov_b32 v15, s27", "v_lshlrev_b32 v59, 3, v1",
            "v_cndmask_b32 v14, v15, v14, vcc", "v_add_u32 v13, v13, v14", "v_lshlrev_b32 v13, 7, v13",
            f"v_add_u32 v57, {OFF_FLG}, v13", f"v_add_u32 v56, {OFF_FLG + 7 * 128}, v13"]
    pre += ["s_lshl_b32 s80, s53, 2", "s_add_u32 s80, s80, s3", "s_lshl_b32 s80, s80, 10", "s_mov_b32 s81, s80",
            "v_lshlrev_b32 v13, 4, v1",
            f"s_mov_b32 s{SB}, s{P_W2}", f"s_mov_b32 s{SB + 1}, s{P_W2 + 1}", f"s_mov_b32 s{SB + 2}, {W2_BYTES}",
            f"s_mov_b32 s{SB + 3}, 0x20000",
            f"s_mov_b32 s{SWS}, s{P_WS}", f"s_mov_b32 s{SWS + 1}, s{P_WS + 1}", f"s_mov_b32 s{SWS + 2}, {WS_BYTES}",
            f"s_mov_b32 s{SWS + 3}, 0x20000",
            "v_mov_b32 v14, 0", "v_mov_b32 v15, 0", "s_mov_b32 s62, 0x3f803f80", "s_mov_b32 s82, 0"]
    npre = (len(pre) + 5) // 6
    pos = 0
    for g in range(7):
        a(f"s_add_u32 m0, s60, {g * 4096}", f"s_add_u32 s61, s59, {g * 128}")
        for i in range(1, 4):
            a(f"buffer_load_dwordx4 v{4 + i}, {sr(SA, 4)}, s61 offen offset:{i * 1024} lds")
        if g:
            end = min(len(pre), g * npre)
            while end < len(pre) and pre[end].startswith("s_cselect"):
                end += 1
            a(*pre[pos:end])
            pos = end
    assert pos == len(pre)
    stamp(a, 2)

    def stats(g):
        for r in range(X + 16 * g, X + 16 * g + 16):
            a(f"v_dot2c_f32_bf16 v14, s62, v{r}", f"v_dot2c_f32_bf16 v15, v{r}, v{r}")

    for g in range(7):
        a(f"s_waitcnt vmcnt({18 - 3 * g})")
        for q in range(4):
            a(f"ds_read_b128 {vr(X + 16 * g + 4 * q, 4)}, v{8 + q} offset:{g * 4096}")
        if g:
            a("s_waitcnt lgkmcnt(4)")
            stats(g - 1)
    a("s_waitcnt lgkmcnt(0)")
    stamp(a, 3)
    a("s_barrier")
    stats(6)
    a("s_nop 2", "v_mov_b32 v4, v14", "v_mov_b32 v5, v15", "s_nop 1",
      "v_permlane32_swap_b32 v4, v14", "v_permlane32_swap_b32 v5, v15",
      "v_add_f32 v14, v4, v14", "v_add_f32 v15, v5, v15",
      f"v_mul_f32 v14, {f32(1 / 448)}, v14", f"v_mul_f32 v15, {f32(1 / 448)}, v15",
      "v_cvt_pk_bf16_f32 v4, v14, v14", "v_fma_f32 v15, -v14, v14, v15",
      "v_lshlrev_b32 v4, 16, v4", "v_max_f32 v15, 0, v15", "v_xor_b32 v4, 0x80000000, v4")
    for i in range(16):
        a(f"v_mov_b32 v{T + i}, v4")
    a("s_nop 1")
    t0 = [200, 201, 56, 57, 200, 201, 56, 0]
    t1 = [0, 1, 112, 113, 0, 1, 112, 0]
    pk = lambda b: b[0] | b[1] << 8 | b[2] << 16 | b[3] << 24
    fin = ["v_cvt_pk_bf16_f32 v15, v15, v15", "v_lshlrev_b32 v15, 16, v15", f"v_add_f32 v15, {f32(1e-5)}, v15",
           "v_cvt_pk_bf16_f32 v15, v15, v15", "v_lshlrev_b32 v15, 16, v15", "v_sqrt_f32 v15, v15",
           "s_lshl_b32 s27, s3, 8",
           "v_cvt_pk_bf16_f32 v5, v15, v15", "v_lshlrev_b32 v15, 16, v5", "v_rcp_f32 v14, v15",
           "v_and_b32 v5, 0xffff, v5", "v_cmp_eq_u32 vcc, 0, v3", f"s_add_u32 s27, s27, {L_STAT}",
           "v_lshl_add_u32 v4, v1, 2, s27", "v_cndmask_b32 v6, v15, v14, vcc", f"v_cndmask_b32 v{BB}, 0, v5, vcc",
           "ds_write_b32 v4, v6",
           f"v_mov_b32 v{AB + 1}, 0", f"v_mov_b32 v{AB + 2}, 0", f"v_mov_b32 v{AB + 3}, 0",
           f"v_mov_b32 v{BB + 1}, 0", f"v_mov_b32 v{BB + 2}, 0", f"v_mov_b32 v{BB + 3}, 0",
           "v_lshlrev_b32 v10, 1, v2", f"v_add_u32 v10, {L_BIAS}, v10",
           "s_lshl_b32 s83, s3, 12", f"v_add_u32 v8, {t0[0] * 512}, v12", "s_mov_b32 s68, 0"]
    assert len(fin) == 28
    late = [f"s_mov_b32 s64, {pk(t0[1:5])}", "s_lshl_b32 s27, s51, 8", f"s_add_u32 s65, s27, {pk(t0[5:8] + [0])}",
            f"s_mov_b32 s66, {pk(t1[0:4])}", "s_lshl_b32 s27, s51, 16", f"s_add_u32 s67, s27, {pk(t1[4:8])}",
            "s_mov_b32 s69, s54"]
    CB = (ACA, ACB, 32)

    def cv(p, h):
        d = CB[p % 3]
        return [f"v_cvt_pk_bf16_f32 v{X + 8 * p + k}, v{d + 2 * k}, v{d + 2 * k + 1}" for k in range(4 * h, 4 * h + 4)]

    for p in range(16):
        d = CB[p % 3]
        if p < 14:
            a(mfma(d, WR, X + 8 * p, T))
        a(*(cv(p - 2, 0) if p >= 2 else fin[14 * p:14 * p + 7]))
        if p < 14:
            a(mfma(d, WR + 4, X + 8 * p + 4, d))
        a(*(cv(p - 2, 1) if p >= 2 else fin[14 * p + 7:14 * p + 14]))
        if 2 <= p < 9:
            a(late[p - 2])
        if p == 14:
            a("s_nop 1")

    PD = 4

    def ring(j):
        return WR + 4 * (j % 7)

    def rd(j):
        jj = j % 28
        base = "v8" if jj < 14 else "v9"
        r = ring(j)
        return [f"ds_read_b64_tr_b16 {vr(r, 2)}, {base} offset:{(jj % 14) * 2048}",
                f"ds_read_b64_tr_b16 {vr(r + 2, 2)}, {base} offset:{(jj % 14) * 2048 + 256}"]

    accw = [f"ds_write_addtid_b32 v{ACB + k} offset:{k * 256}" for k in range(16)]
    stamp(a, 4)
    a("s_waitcnt lgkmcnt(0)", "s_barrier")
    stamp(a, 5)
    for j in range(PD):
        a(*rd(j))
    a.label("M_TILE")
    a("s_mov_b32 m0, s83", "s_bitcmp1_b32 s69, 0", "s_cbranch_scc1 M_V")
    WPOS = {1: (0, 3), 2: (3, 6), 3: (6, 9), 4: (9, 12), 5: (12, 14), 6: (14, 16)}

    def body(tag):
        q = [f for f in range(PD) for _ in range(2)]
        for j in range(28):
            if j % 2 == 0:
                q = q[max(i for i, f in enumerate(q) if f == j + 1) + 1:][-15:]
                a(f"s_waitcnt lgkmcnt({len(q)})")
            d = ACB if j == 27 else ACA
            ops = (X + 4 * j, ring(j)) if tag == "V" else (ring(j), X + 4 * j)
            if j == 0 and tag == "N":
                a("s_bitcmp1_b32 s69, 1", "s_cbranch_scc0 M_NOB", mfma(ACA, AB, BB, "0"),
                  mfma(ACA, *ops, ACA), "s_branch M_NOB2")
                a.label("M_NOB")
                a(mfma(ACA, *ops, "0"))
                a.label("M_NOB2")
            else:
                a(mfma(d, *ops, "0" if j == 0 else ACA))
            if j + PD == 14:
                assert "w" not in q
                a("s_barrier")
            if j in WPOS:
                a(*accw[WPOS[j][0]:WPOS[j][1]])
                q += ["w"] * (WPOS[j][1] - WPOS[j][0])
            a(*rd(j + PD))
            q += [j + PD] * 2
            if j == 0:
                a("s_and_b32 s27, s66, 0xff", "s_lshr_b64 s[66:67], s[66:67], 8",
                  "v_lshl_add_u32 v9, s27, 9, v12", "v_add_u32 v10, 64, v10")
            if j == 12:
                a("s_and_b32 s27, s64, 0xff", "s_lshr_b64 s[64:65], s[64:65], 8",
                  "v_lshl_add_u32 v8, s27, 9, v12", f"s_xor_b32 s83, s83, {L_E1}")
            if j in (11, 14, 17, 20, 23):
                a(f"buffer_load_dwordx4 v[32:35], v13, {sr(SB, 4)}, s81 offen", "s_add_u32 s81, s81, 0x20000")
            if j + PD == 27:
                a(f"ds_read_u16 v{AB}, v10")
                q += ["b"]
            if tag == "N" and j == 13:
                a("s_cmp_lt_u32 s68, 4", "s_cbranch_scc0 M_EARLY")
                a.label("M_EARLY_R")
        a("s_cmp_eq_u32 s68, 2", f"s_cbranch_scc0 M_NX{tag}",
          f"s_mov_b32 s{SB}, s{P_WO}", f"s_mov_b32 s{SB + 1}, s{P_WO + 1}", f"s_mov_b32 s{SB + 2}, {WO_BYTES}",
          "s_mov_b32 s81, s80")
        a.label(f"M_NX{tag}")
        a("s_lshr_b32 s69, s69, 2", "s_add_u32 s68, s68, 1", "s_cmp_lt_u32 s68, s50", "s_cbranch_scc1 M_TILE")

    body("N")
    a("s_branch M_DONE")
    a.label("M_EARLY")
    a("s_cmp_eq_u32 s68, 4", "s_cbranch_scc0 M_EARLY5", f"v_mov_b32 v61, {L_CNT + 64}", "ds_read_b32 v61, v61",
      "s_mov_b64 exec, 0xff",
      f"buffer_load_dword v60, v57, {sr(SWS, 4)}, 0 offen sc1", "s_mov_b64 exec, -1", "s_branch M_EARLY_R")
    a.label("M_EARLY5")
    a("v_readfirstlane_b32 s47, v61", "s_cmp_eq_u32 s50, 6", "s_cbranch_scc0 M_EARLY_R", "s_waitcnt vmcnt(5)",
      "v_cmp_ne_u32 s[88:89], s47, v60", "s_nop 0", "s_and_b32 s88, s88, 0xff", "s_cbranch_scc1 M_EARLY_R")
    att_stage_qk(a, "E")
    a("s_mov_b32 s82, 1", "s_branch M_EARLY_R")
    a.label("M_V")
    body("V")
    a.label("M_DONE")
    stamp(a, 6)
    a("s_mov_b32 m0, s83", "s_mov_b64 exec, 0x3f", f"buffer_load_dword v61, v56, {sr(SWS, 4)}, 0 offen sc1",
      "s_mov_b64 exec, -1", "s_nop 3", *accw, "s_waitcnt lgkmcnt(0)", "s_barrier")


def lds_arrive(a, idx, vaddr, vtmp):
    a(f"v_mov_b32 v{vaddr}, {L_CNT + 4 * idx}", f"v_mov_b32 v{vtmp}, 1", "s_mov_b64 exec, 1",
      f"ds_add_u32 v{vaddr}, v{vtmp}", "s_mov_b64 exec, -1")


def lds_wait(a, tag, vaddr, vtmp):
    a(f"s_mov_b32 s27, {SPIN_MAX}")
    a.label(tag)
    a(f"ds_read_b32 v{vtmp}, v{vaddr}", "s_waitcnt lgkmcnt(0)", f"v_readfirstlane_b32 s88, v{vtmp}",
      "s_sub_u32 s27, s27, 1", f"s_cbranch_scc1 {tag}_X", "s_cmp_lt_u32 s88, 4", f"s_cbranch_scc1 {tag}")
    a.label(tag + "_X")


def poll(a, tag, vaddr, nl, vtmp=60):
    a(f"s_mov_b32 s27, {SPIN_MAX}", f"s_mov_b64 exec, {(1 << nl) - 1}", f"s_branch {tag}_L")
    a.label(tag)
    a("s_sleep 3")
    a.label(tag + "_L")
    a(f"buffer_load_dword v{vtmp}, v{vaddr}, {sr(SWS, 4)}, 0 offen sc1", "s_waitcnt vmcnt(0)",
      f"v_cmp_ne_u32 s[88:89], s47, v{vtmp}", "s_sub_u32 s27, s27, 1", f"s_cbranch_scc1 {tag}_X",
      "s_cmp_lg_u64 s[88:89], 0", f"s_cbranch_scc1 {tag}")
    a.label(tag + "_X")
    a("s_mov_b64 exec, -1")


def epoch_issue(a, vz, vtmp):
    srd(a, SC, P_DBG, 256)
    a(f"v_mov_b32 v{vz}, 0", f"buffer_load_dword v{vtmp}, v{vz}, {sr(SC, 4)}, 0 offen sc1")


def epoch_wait(a, tag, vz, vtmp):
    a(f"s_mov_b32 s27, {SPIN_MAX}", f"s_branch {tag}_L")
    a.label(tag)
    a("s_sleep 3", f"buffer_load_dword v{vtmp}, v{vz}, {sr(SC, 4)}, 0 offen sc1")
    a.label(tag + "_L")
    a("s_waitcnt vmcnt(0)", f"v_readfirstlane_b32 s47, v{vtmp}", "s_sub_u32 s27, s27, 1", f"s_cbranch_scc1 {tag}_X",
      "s_cmp_eq_u32 s47, 0", f"s_cbranch_scc1 {tag}")
    a.label(tag + "_X")


def gen_attn(a):
    KF, OA, CN, CD, CO, VF = 128, 112, 200, 216, 232, 16
    SB3 = (64, 80, 96)
    PFR = (32, 40, 248)
    MS = 4
    ms = lambda i: sr(4 + 2 * i, 2) if i < 10 else sr(32 + 2 * (i - 10), 2)
    a("v_mov_b32 v8, 0x3f803f80", "v_mov_b32 v9, 0x3f803f80", "v_mov_b32 v10, 0x3f803f80",
      "v_mov_b32 v11, 0x3f803f80", "v_min_u32 v7, 2, v1",
      "v_lshl_add_u32 v7, v7, 12, s73", "ds_write_b128 v7, v[8:11] offset:3840",
      "v_lshl_add_u32 v7, v1, 2, s73", "v_and_b32 v6, 1, v1", "v_cmp_eq_u32 vcc, 0, v6")
    for i in range(3):
        a(f"s_cmp_lt_u32 s{75 + i}, 0x40000000", "s_cselect_b32 s27, 0, 0xf149", "v_mov_b32 v6, s27",
          f"v_cndmask_b32 v{8 + i}, 0, v6, vcc", f"ds_write_b32 v7, v{8 + i} offset:{1792 + 4096 * i}")
    a("s_cmp_eq_u32 s82, 1", "s_cbranch_scc1 A_QKD")
    poll(a, "A_PQ", 57, 8)
    att_stage_qk(a, "L")
    a.label("A_QKD")
    stamp(a, 7)
    a("v_lshlrev_b32 v4, 4, v1", "v_lshlrev_b32 v6, 2, v3", "v_sub_u32 v6, v2, v6", f"v_mov_b32 v7, {f32(-1e30)}")
    for i in range(16):
        a(f"v_cmp_le_i32 {ms(i)}, {(i & 3) + 8 * (i >> 2)}, v6")
    for i in range(16):
        a(f"v_cndmask_b32 v{CD + i}, v7, 0, {ms(i)}", f"v_cndmask_b32 v{CO + i}, 0, v7, {ms(i)}")
    a("s_lshl_b32 s44, s3, 12", f"s_add_u32 s44, s44, {L_ATT}", "v_add_u32 v12, s44, v59",
      "v_mul_u32_u24 v9, 448, v3", "v_lshl_add_u32 v8, v2, 4, v9", "v_add_u32 v9, 896, v8",
      "v_cmp_gt_u32 vcc, 28, v2", "v_mov_b32 v10, 1792", "s_add_u32 s44, s44, 2048",
      "v_cndmask_b32 v8, v10, v8, vcc", "v_cndmask_b32 v9, v10, v9, vcc",
      "v_add_u32 v13, s44, v8", "v_add_u32 v14, s44, v9",
      "v_cmp_eq_u32 vcc, 0, v3", "v_mov_b32 v15, v7", "v_mov_b32 v5, 0x3f80")
    a("s_waitcnt vmcnt(0) lgkmcnt(0)")
    stamp(a, 8)
    lds_arrive(a, 0, 8, 9)

    vstage = []
    for i in range(3):
        vstage += [f"s_add_u32 m0, s73, {i * 4096 + 2048}", f"s_add_u32 s27, s{75 + i}, {OFF_V}",
                   f"buffer_load_dwordx4 v4, {sr(SWS, 4)}, s27 offen sc1 lds", "s_mov_b32 exec_hi, 0xffff",
                   f"buffer_load_dwordx4 v4, {sr(SWS, 4)}, s27 offen offset:1024 sc1 lds", "s_mov_b32 exec_hi, -1"]
    a("v_cmp_ne_u32 s[88:89], s47, v61", "s_mov_b32 s82, 0", "s_and_b32 s88, s88, 0x3f", "s_cbranch_scc1 A_VL",
      *vstage, "s_mov_b32 s82, 1")
    a.label("A_VL")
    a(f"v_cndmask_b32 v{QF + 6}, v5, v{QF + 6}, vcc", f"v_cndmask_b32 v{QF + 7}, 0, v{QF + 7}, vcc")
    lds_wait(a, "A_LB0", 8, 9)
    stamp(a, 9)

    def kread(i):
        return [f"ds_read_b64 {vr(KF + 8 * i + 2 * g, 2)}, v12 offset:{(8 - i) * 4096 + g * 512}" for g in range(4)]

    def smm(i, c):
        s = SB3[i % 3]
        return [mfma(s, KF + 8 * i, QF, c), mfma(s, KF + 8 * i + 4, QF + 4, s)]

    def smax(i):
        s = SB3[i % 3]
        return [f"v_max3_f32 v15, v{s + 2 * k}, v{s + 2 * k + 1}, v15" for k in range(8)]

    a(*kread(0), *kread(1), *kread(2))
    for i in range(11):
        mx = smax(i - 2) if i >= 2 else ["s_nop 1"] * 4
        h = len(mx) // 2
        if i < 9:
            mm = smm(i, CD if i == 0 else (CO if i == 8 else "0"))
            a(f"s_waitcnt lgkmcnt({4 * (min(8, i + 2) - i)})", mm[0])
            if i + 3 <= 8:
                a(*kread(i + 3))
            a(*mx[:h], mm[1], *mx[h:])
        else:
            if i == 10:
                a("s_nop 1")
            a(*mx)
    stamp(a, 10)
    a("v_mov_b32 v8, v15", "s_cmp_eq_u32 s82, 1", "s_nop 0", "v_permlane32_swap_b32 v8, v15", "v_max_f32 v15, v8, v15",
      "v_xor_b32 v15, 0x80000000, v15")
    for i in range(16):
        a(f"v_cndmask_b32 v{CD + i}, v7, v15, {ms(i)}")
    mm = smm(0, CD)
    a("s_nop 1", mm[0])
    for i in range(16):
        a(f"v_mov_b32 v{CN + i}, v15")
        if i == 5:
            a(mm[1])
    a("s_cbranch_scc1 A_VD")
    poll(a, "A_PV", 56, 6)
    a(*vstage)
    a.label("A_VD")
    a("s_nop 0")

    def vread(i):
        b = VF + 8 * (i & 1)
        return [f"ds_read_b128 {vr(b, 4)}, v13 offset:{(8 - i) * 4096}",
                f"ds_read_b128 {vr(b + 4, 4)}, v14 offset:{(8 - i) * 4096}"]

    def pexp(i):
        s = SB3[i % 3]
        p = PFR[i % 3]
        o = []
        for h in range(2):
            o += [f"v_exp_f32 v{s + 8 * h + k}, v{s + 8 * h + k}" for k in range(8)]
            o += [f"v_cvt_pk_bf16_f32 v{p + 4 * h + k}, v{s + 8 * h + 2 * k}, v{s + 8 * h + 2 * k + 1}"
                  for k in range(4)]
        return o

    def pv(i):
        p = PFR[i % 3]
        b = VF + 8 * (i & 1)
        return [mfma(OA, b, p, "0" if i == 0 else OA), mfma(OA, b + 4, p + 4, OA)]

    for i in range(9):
        ex = pexp(i)
        if i == 0:
            ex = ex + [f"v_cndmask_b32 v{CO + k}, v15, v7, {ms(k)}" for k in range(16)]
        ins = {}
        if i < 8:
            mm = smm(i + 1, CO if i + 1 == 8 else CN)
            ins[0] = [mm[0]]
            ins[5] = [mm[1]]
        if i == 2:
            a("s_waitcnt vmcnt(0)")
            lds_arrive(a, 1, 8, 9)
            lds_wait(a, "A_LB1", 8, 9)
            a(*vread(0), *vread(1))
        if 2 <= i < 8:
            pp = pv(i - 2)
            ins[12] = ["s_waitcnt lgkmcnt(2)", pp[0]]
            ins[17] = [pp[1]] + vread(i)
        if i == 8:
            p6, p7 = pv(6), pv(7)
            ins[0] = ["s_waitcnt lgkmcnt(2)", p6[0]]
            ins[5] = [p6[1]] + vread(8)
            ins[10] = ["s_waitcnt lgkmcnt(2)", p7[0]]
            ins[15] = [p7[1]]
            ins[20] = ["s_waitcnt lgkmcnt(0)", pv(8)[0]]
        for k, e in enumerate(ex):
            a(*ins.get(k, []))
            a(e)
    a("s_nop 1", pv(8)[1])
    stamp(a, 11)
    PF = 32
    a(f"s_mul_i32 s41, s71, {ACT_RT}", "s_lshl_b32 s42, s70, 11", "s_add_u32 s41, s41, s42",
      f"s_add_u32 s41, s41, {OFF_ACT + 112 * 1024}", f"s_mul_i32 s42, s71, {FLG_RT}", "s_lshl_b32 s27, s70, 7",
      "s_add_u32 s42, s42, s27", f"s_add_u32 s42, s42, {OFF_FLG + 50 * 128}",
      "v_mov_b32 v10, s47", "v_mov_b32 v11, 0", "s_nop 1")
    a(f"v_mov_b32 v8, v{OA + 12}", f"v_mov_b32 v9, v{OA + 12}", "s_nop 1", "v_permlane32_swap_b32 v8, v9",
      "v_rcp_f32 v9, v9", "s_nop 0")
    for h in range(2):
        for i in range(8 * h, 8 * h + 8):
            a(f"v_mul_f32 v{OA + i}, v9, v{OA + i}")
        for k in range(4 * h, 4 * h + 4):
            a(f"v_cvt_pk_bf16_f32 v{PF + k}, v{OA + 2 * k}, v{OA + 2 * k + 1}")
        if h:
            a(f"v_cndmask_b32 v{PF + 6}, 0, v{PF + 6}, vcc", f"v_cndmask_b32 v{PF + 7}, 0, v{PF + 7}, vcc")
        a(f"buffer_store_dwordx4 {vr(PF + 4 * h, 4)}, v4, {sr(SWS, 4)}, s41 offen offset:{1024 * h} sc1")
    a("s_waitcnt vmcnt(0)", "s_mov_b64 exec, 1",
      f"buffer_store_dword v10, v11, {sr(SWS, 4)}, s42 offen sc1", "s_mov_b64 exec, -1")
    stamp_out(a)
    a("s_endpgm")


def gen_aux(a):
    AC, T, P, RV = 64, 16, 48, 240
    SWQ, SW1 = SA, SB
    a("v_bfe_u32 v12, v1, 2, 3", "v_lshlrev_b32 v13, 6, v3", "v_and_b32 v14, 3, v1", "v_lshl_add_u32 v13, v14, 4, v13",
      "v_mul_u32_u24 v4, 2688, v12", "v_add_u32 v4, v4, v13", "v_mul_u32_u24 v8, 3584, v12", "v_add_u32 v8, v8, v13")
    for k in range(1, 4):
        a(f"v_add_u32 v{4 + k}, {k * (8 * 2688 - 1024)}, v4", f"v_add_u32 v{8 + k}, {k * (8 * 3584 - 1024)}, v8")
    a("s_mov_b32 s59, s49", "s_add_u32 s60, s49, 16", "s_sub_u32 s27, s49, 5",
      "s_cmp_lt_u32 s49, 5", "s_cselect_b32 s60, s60, s27", "s_add_u32 s61, s49, 11")
    a(f"s_mul_i32 s27, s58, {FLG_RT}", f"s_add_u32 s27, s27, {OFF_FLG}",
      "s_lshl_b32 s62, s49, 7", "s_add_u32 s62, s62, s27", "s_add_u32 s63, s62, 2048", "s_add_u32 s64, s62, 4096",
      "s_add_u32 s65, s51, 48", "s_lshl_b32 s65, s65, 7", "s_add_u32 s65, s65, s27")
    a(f"s_mul_i32 s66, s26, {56 * 2688}", f"s_mul_i32 s67, s26, {56 * 3584}", "s_mul_i32 s68, s26, 7168",
      "v_lshlrev_b32 v12, 2, v1", "v_lshlrev_b32 v13, 4, v1", "v_lshlrev_b32 v14, 3, v1")
    a("s_waitcnt lgkmcnt(0)")
    stamp(a, 0, rt=True)
    stamp(a, 1)
    srd(a, SWQ, P_WQKV, WQKV_BYTES)
    srd(a, SWS, P_WS, WS_BYTES)
    srd(a, SW1, P_W1, W1_BYTES)

    def dma(ffn, src, slot):
        vb, pitch, w, wo = (8, 3584, SW1, 67) if ffn else (4, 2688, SWQ, 66)
        o = [f"s_add_u32 m0, s68, {slot}", f"s_add_u32 s27, {src}, s{wo}"]
        o += [f"buffer_load_dwordx4 v{vb + k}, {sr(w, 4)}, s27 offen offset:{k * 1024} lds" for k in range(4)]
        o += ["s_add_u32 m0, m0, 4096", f"s_add_u32 s27, s27, {32 * pitch}"]
        o += [f"buffer_load_dwordx4 v{vb + k}, {sr(w, 4)}, s27 offen offset:{k * 1024} lds" for k in range(3)]
        return o

    a("s_lshl_b32 s27, s2, 3", "s_add_u32 s27, s27, s3", "s_cmp_eq_u32 s27, 7", "s_cbranch_scc0 X_NOEP")
    srd(a, SC, P_DBG, 256)
    a(f"v_mov_b32 v16, {OFF_EPOCH}", "v_mov_b32 v18, 0", "s_mov_b64 exec, 1",
      f"buffer_load_dword v17, v16, {sr(SWS, 4)}, 0 offen sc1", "s_waitcnt vmcnt(0)",
      "v_add_u32 v17, 1, v17", "v_max_u32 v17, 1, v17",
      f"buffer_store_dword v17, v18, {sr(SC, 4)}, 0 offen sc1",
      f"buffer_store_dword v17, v16, {sr(SWS, 4)}, 0 offen sc1", "s_mov_b64 exec, -1")
    a.label("X_NOEP")
    a("s_cmp_eq_u32 s26, 3", "s_cbranch_scc1 X_WC")
    a("s_cmp_eq_u32 s26, 0", "s_cselect_b32 s69, s59, s60", "s_cmp_eq_u32 s26, 2", "s_cselect_b32 s69, s61, s69",
      "s_lshl_b32 s69, s69, 7", "s_lshl_b32 s27, s26, 2", "s_lshr_b32 s27, s54, s27", "s_bitcmp1_b32 s27, 1",
      "s_cbranch_scc1 X_WF")
    for ffn in (False, True):
        vb, pitch, w = (8, 3584, SW1) if ffn else (4, 2688, SWQ)
        a(f"s_mul_i32 s27, s55, {56 * pitch}", "s_add_u32 s27, s27, s69")
        a(*[f"buffer_load_dwordx4 v[16:19], v{vb + k}, {sr(w, 4)}, s27 offen offset:{k * 1024}" for k in range(4)])
        a(f"s_add_u32 s27, s27, {32 * pitch}")
        a(*[f"buffer_load_dwordx4 v[16:19], v{vb + k}, {sr(w, 4)}, s27 offen offset:{k * 1024}" for k in range(3)])
        a("s_branch X_WD")
        if not ffn:
            a.label("X_WF")
    a.label("X_WC")
    a(f"s_getpc_b64 {sr(SC, 2)}")
    a.label("X_PC")
    a(f"s_sub_u32 s{SC}, s{SC}, X_PC-{NAME}_kernel", f"s_subb_u32 s{SC + 1}, s{SC + 1}, 0",
      f"s_mov_b32 s{SC + 2}, L_CODE_END-{NAME}_kernel", f"s_mov_b32 s{SC + 3}, 0x20000", "s_lshl_b32 s27, s53, 10",
      f"buffer_load_dwordx4 v[16:19], v13, {sr(SC, 4)}, s27 offen")
    a.label("X_WD")
    a("s_lshl_b32 s69, s59, 7", *dma(False, "s69", L_S0))
    a("s_cmp_eq_u32 s3, 5", "s_cbranch_scc0 X_PRE")
    srd(a, SC, P_B1, 3584)
    a("s_mov_b32 exec_hi, 0", f"s_mov_b32 m0, {L_BIAS + 128}", "s_lshl_b32 s27, s60, 7",
      f"buffer_load_dword v12, {sr(SC, 4)}, s27 offen lds",
      f"s_mov_b32 m0, {L_BIAS + 256}", "s_lshl_b32 s27, s61, 7",
      f"buffer_load_dword v12, {sr(SC, 4)}, s27 offen lds",
      f"s_mov_b32 m0, {L_BIAS + 384}", "s_lshl_b32 s27, s51, 6", f"s_add_u32 s27, s27, {27 * 128}",
      f"buffer_load_dword v12, {sr(SC, 4)}, s27 offen lds", "s_mov_b32 exec_hi, -1",
      f"v_add_u32 v20, {L_CNT}, v12", "v_mov_b32 v21, 0", "ds_write_b32 v20, v21")
    a.label("X_PRE")
    a(f"s_mul_i32 s76, s58, {RT}", f"s_mul_i32 s77, s58, {ACT_RT}", f"s_add_u32 s77, s77, {OFF_ACT}",
      f"s_add_u32 s78, s76, {OFF_V}",
      "s_lshl_b32 s72, s49, 12", f"s_add_u32 s27, s72, {OFF_K - 7 * 4096}", "s_cmp_ge_u32 s49, 7",
      "s_cselect_b32 s72, s27, s72", "s_add_u32 s72, s72, s76",
      "s_sub_u32 s27, s49, 14", "s_lshl_b32 s27, s27, 10", "s_add_u32 s27, s27, s78",
      "s_cmp_ge_u32 s49, 14", "s_cselect_b32 s72, s27, s72",
      "s_add_u32 s27, s49, 2", "s_lshl_b32 s27, s27, 10", "s_add_u32 s27, s27, s78",
      "s_lshl_b32 s73, s60, 12", "s_add_u32 s73, s73, s77", "s_cmp_lt_u32 s49, 5", "s_cselect_b32 s73, s27, s73",
      "s_lshl_b32 s74, s61, 12", "s_add_u32 s74, s74, s77",
      "s_lshl_b32 s75, s51, 11", "s_add_u32 s75, s75, s77", f"s_add_u32 s75, s75, {27 * 4096}",
      "v_mul_u32_u24 v15, 448, v3", "v_lshl_add_u32 v15, v2, 4, v15", "s_movk_i32 s79, 1344",
      "s_lshl_b32 s27, s26, 12", "v_add_u32 v56, s27, v12", f"v_add_u32 v56, {L_E1}, v56",
      "v_mov_b32 v59, 0", "s_waitcnt lgkmcnt(0)")
    stamp(a, 2)
    a("s_barrier")
    stamp(a, 3)
    a(f"s_add_u32 s69, s69, {224 * 2688}", *dma(False, "s69", L_S1))
    a("s_lshl_b32 s69, s60, 7", "s_cmp_lt_u32 s49, 5", "s_cbranch_scc0 X_R1F")
    a(*dma(False, "s69", L_S2), f"s_add_u32 s69, s69, {224 * 2688}", *dma(False, "s69", L_S3), "s_branch X_R1D")
    a.label("X_R1F")
    a(*dma(True, "s69", L_S2), f"s_add_u32 s69, s69, {224 * 3584}", *dma(True, "s69", L_S3))
    a.label("X_R1D")
    a("s_waitcnt vmcnt(21)")
    stamp(a, 4)
    a("s_barrier")
    c0 = -2.0 * 0.7978845608028654 * 1.4426950408889634
    c1 = c0 * 0.044715
    a("s_lshl_b32 s27, s26, 8", f"s_add_u32 s27, s27, {L_STAT}", "v_lshl_add_u32 v16, v2, 2, s27",
      "v_lshl_add_u32 v17, v3, 4, s27", "ds_read_b32 v40, v16", "ds_read_b32 v41, v16 offset:128",
      f"v_mov_b32 v18, {L_CNT + 64}")
    for g in range(4):
        a(f"ds_read_b128 {vr(RV + 4 * g, 4)}, v17 offset:{g * 32}")
    a("s_cmp_lt_u32 s49, 7", f"s_cselect_b32 s27, {f32(28 ** -0.5 * 1.4426950408889634)}, 1.0",
      "s_waitcnt lgkmcnt(0)",
      f"v_mul_f32 v42, {f32(c0)}, v40", "v_mul_f32 v43, v40, v40", "v_mul_f32 v43, v43, v40",
      f"v_mul_f32 v43, {f32(c1)}, v43", "v_mul_f32 v40, s27, v40")
    a("s_waitcnt vmcnt(14)", "s_barrier")
    epoch_issue(a, 59, 58)
    gemm_setup(a)
    epoch_wait(a, "X_EP", 59, 58)
    a("ds_write_b32 v18, v58")
    gemm_setup2(a)
    a("s_mov_b32 s80, 0", "s_mov_b32 s85, 0", "s_mov_b32 s81, s54", "s_lshl_b32 s82, s61, 7", f"s_mov_b32 s83, {L_S0}",
      "s_sub_u32 s84, s50, 5", "s_lshl_b32 s84, s84, 1", "s_waitcnt lgkmcnt(0)")
    a.label("X_TILE")
    a("s_barrier")
    lstamp(a, "s80", 0)
    for q in range(8):
        a(f"ds_read2st64_b32 {vr(AC + 2 * q, 2)}, v56 offset0:{2 * q} offset1:{2 * q + 1}")
    a(f"v_xor_b32 v56, {L_E1}, v56", "s_waitcnt lgkmcnt(0)")
    a("s_cmp_eq_u32 s84, 0", "s_cselect_b64 vcc, 0, -1", "s_cbranch_scc1 X_NOD")
    a(*dma(True, "s82", "s83"))
    a("s_sub_u32 s84, s84, 1", f"s_add_u32 s82, s82, {224 * 3584}", "s_cmp_eq_u32 s80, 1",
      f"s_cselect_b32 s82, {27 * 128}, s82", f"s_add_u32 s83, s83, {SLOT}", f"s_cmp_eq_u32 s80, 0",
      f"s_cselect_b32 s83, {L_S1}, s83")
    a.label("X_NOD")
    lstamp(a, "s80", 1)
    pub = ["s_mov_b64 exec, 1", f"buffer_store_dword v58, v59, {sr(SWS, 4)}, s62 offen sc1", "s_mov_b64 exec, -1",
           "s_mov_b32 s62, s63", "s_mov_b32 s63, s64", "s_mov_b32 s64, s65", "s_mov_b32 s85, 0"]
    a("s_cmp_eq_u32 s85, 1", "s_cbranch_scc0 X_NOE", "s_waitcnt vmcnt(7)", "s_cbranch_vccnz X_E2", "s_waitcnt vmcnt(0)")
    a.label("X_E2")
    a(*pub)
    a.label("X_NOE")
    a("s_bitcmp1_b32 s81, 1", "s_cbranch_scc1 X_FFN", "s_bitcmp1_b32 s81, 0", "s_cbranch_scc1 X_V")

    def tail(n, stride):
        lstamp(a, "s80", 2)
        a(f"s_add_u32 s72, s72, {stride}", "s_cbranch_vccz X_W%d" % n + "A", f"s_waitcnt vmcnt({n + 7})",
          "s_branch X_NEXT")

    for g in range(4):
        for k in range(4):
            a(f"v_mul_f32 v{T + 4 * g + k}, v40, v{AC + 4 * g + k}")
        a(f"v_cvt_pk_bf16_f32 v{P + 2 * g}, v{T + 4 * g}, v{T + 4 * g + 1}",
          f"v_cvt_pk_bf16_f32 v{P + 2 * g + 1}, v{T + 4 * g + 2}, v{T + 4 * g + 3}",
          f"buffer_store_dwordx2 {vr(P + 2 * g, 2)}, v14, {sr(SWS, 4)}, s72 offen offset:{g * 512} sc1")
    tail(4, 2048)
    a.label("X_W4A")
    a("s_waitcnt vmcnt(4)", "s_branch X_NEXT")
    a.label("X_V")
    a("s_sub_u32 s27, s72, s78", "s_lshr_b32 s27, s27, 4", "v_add_u32 v57, s27, v2",
      "v_mul_u32_u24 v57, 2341, v57", "v_lshrrev_b32 v57, 16, v57", "v_mad_u32_u24 v57, v57, s79, v15")
    for s in range(2):
        for k in range(8):
            a(f"v_mul_f32 v{T + 8 * s + k}, v{RV + 8 * s + k}, v{AC + 8 * s + k}")
        for k in range(4):
            a(f"v_cvt_pk_bf16_f32 v{P + 4 * s + k}, v{T + 8 * s + 2 * k}, v{T + 8 * s + 2 * k + 1}")
        a(f"buffer_store_dwordx4 {vr(P + 4 * s, 4)}, v57, {sr(SWS, 4)}, s72 offen offset:{s * 896} sc1")
    tail(2, 512)
    a.label("X_FFN")
    for g in range(4):
        t = [T + 4 * (g & 1) + k for k in range(4)]
        s = [AC + 4 * g + k for k in range(4)]
        a(*[f"v_mul_f32 v{t[k]}, v{s[k]}, v{s[k]}" for k in range(4)])
        a(*[f"v_fma_f32 v{t[k]}, v{t[k]}, v43, v42" for k in range(4)])
        a(*[f"v_mul_f32 v{t[k]}, v{s[k]}, v{t[k]}" for k in range(4)])
        a(*[f"v_exp_f32 v{t[k]}, v{t[k]}" for k in range(4)])
        a(*[f"v_fma_f32 v{t[k]}, v{t[k]}, v41, v41" for k in range(4)])
        a(*[f"v_rcp_f32 v{t[k]}, v{t[k]}" for k in range(4)])
        a(*[f"v_mul_f32 v{t[k]}, v{s[k]}, v{t[k]}" for k in range(4)])
        a(f"v_cvt_pk_bf16_f32 v{P + 2 * g}, v{t[0]}, v{t[1]}", f"v_cvt_pk_bf16_f32 v{P + 2 * g + 1}, v{t[2]}, v{t[3]}")
        if g & 1:
            a(f"buffer_store_dwordx4 {vr(P + 2 * g - 2, 4)}, v13, {sr(SWS, 4)}, s72 offen offset:{(g >> 1) * 1024} sc1")
    tail(2, 2048)
    a.label("X_W2A")
    a("s_waitcnt vmcnt(2)")
    a.label("X_NEXT")
    lstamp(a, "s80", 3)
    a("s_bitcmp1_b32 s80, 0", "s_cbranch_scc1 X_ODD", "s_cmp_eq_u32 s85, 0", "s_cbranch_scc1 X_ADV", *pub,
      "s_branch X_ADV")
    a.label("X_ODD")
    a("s_mov_b32 s72, s73", "s_mov_b32 s73, s74", "s_mov_b32 s74, s75",
      "s_bitcmp1_b32 s81, 1", "s_cselect_b32 s85, 2, 1")
    a.label("X_ADV")
    a("s_lshr_b32 s81, s81, 2", "s_add_u32 s80, s80, 1", "s_cmp_lt_u32 s80, s50", "s_cbranch_scc1 X_TILE")
    stamp(a, 5)


G_R = 10
G_RES = 192
GX, GWO, GW2, GOUT = 4, 8, 16, 20


def gemm_setup(a):
    R = G_R
    XR = 80
    srd(a, SA, P_B2, 896)
    a(f"s_mov_b32 s{GX + 2}, {X_BYTES}", f"s_mov_b32 s{GX + 3}, 0x20000",
      "s_lshl_b32 s88, s52, 2", "s_and_b32 s27, s53, 3", "s_add_u32 s88, s88, s27", "s_lshr_b32 s89, s53, 2",
      "s_and_b32 s90, s26, 1", "s_lshr_b32 s91, s26, 1", "s_lshl_b32 s27, s88, 1",
      "s_add_u32 s44, s27, s90", "s_xor_b32 s45, s44, 1", "s_lshl_b32 s89, s89, 7",
      "s_lshl_b32 s27, s91, 6", "s_add_u32 s27, s27, s89", f"s_mul_i32 s87, s44, {RT}", "s_add_u32 s87, s87, s27",
      "v_lshlrev_b32 v45, 4, v3", "v_mul_u32_u24 v44, 896, v2", "v_add_u32 v44, v44, v45",
      f"buffer_load_dwordx4 {vr(XR, 4)}, v44, {sr(GX, 4)}, s87 offen",
      f"buffer_load_dwordx4 {vr(XR + 4, 4)}, v44, {sr(GX, 4)}, s87 offen offset:32",
      f"buffer_load_dwordx4 {vr(XR + 8, 4)}, v45, {sr(SA, 4)}, s27 offen",
      f"buffer_load_dwordx4 {vr(XR + 12, 4)}, v45, {sr(SA, 4)}, s27 offen offset:32")
    a(f"s_mov_b32 s{GWO + 2}, {WO_BYTES}", f"s_mov_b32 s{GWO + 3}, 0x20000",
      f"s_mov_b32 s{GW2 + 2}, {W2_BYTES}", f"s_mov_b32 s{GW2 + 3}, 0x20000",
      f"s_mov_b32 s{GOUT + 2}, {X_BYTES}", f"s_mov_b32 s{GOUT + 3}, 0x20000")
    a("v_bfe_u32 v46, v1, 2, 2", "v_bfe_u32 v47, v1, 4, 1", "v_lshl_add_u32 v46, v47, 3, v46",
      "v_mul_u32_u24 v32, 896, v46", "v_lshl_add_u32 v32, v3, 6, v32", "v_and_b32 v46, 3, v1",
      "v_lshl_add_u32 v32, v46, 4, v32", f"v_add_u32 v33, {4 * 896 - 1024}, v32")
    a(f"s_mul_i32 s88, s88, {2 * FLG_RT}", f"s_add_u32 s88, s88, {OFF_FLG}",
      "v_bfe_u32 v46, v1, 1, 3", "v_lshlrev_b32 v47, 2, v46", "v_add_u32 v47, s26, v47", "v_add_u32 v47, 21, v47",
      "s_add_u32 s27, s26, 21", "s_cmp_eq_u32 s26, 3", "s_cselect_b32 s27, 49, s27", "v_mov_b32 v45, s27",
      "v_cmp_eq_u32 vcc, 7, v46", "v_and_b32 v46, 1, v1", "v_mul_u32_u24 v46, 66, v46",
      "v_cndmask_b32 v47, v47, v45, vcc", "v_add_u32 v47, v47, v46", "v_lshlrev_b32 v47, 7, v47",
      "v_add_u32 v36, s88, v47", "v_bfe_u32 v47, v1, 1, 2", "v_add_u32 v46, v46, v47",
      "s_lshl_b32 s27, s26, 2", "s_add_u32 s27, s27, 50", "v_add_u32 v46, s27, v46", "v_lshlrev_b32 v46, 7, v46",
      "v_add_u32 v37, s88, v46")


def gemm_setup2(a):
    R = G_R
    XR, RES = 80, G_RES
    a(f"s_mul_i32 s32, s26, {64 * 896}", "s_add_u32 s32, s32, s89",
      f"s_mul_i32 s33, s26, {112 * 896}", "s_add_u32 s33, s33, s89",
      f"s_mul_i32 s34, s90, {R * 2048}", f"s_mul_i32 s27, s91, {L_RB - L_RA}", "s_add_u32 s34, s34, s27",
      f"s_add_u32 s34, s34, {L_RA}", "s_mov_b32 s35, s87",
      f"s_mul_i32 s44, s44, {ACT_RT}", f"s_mul_i32 s45, s45, {ACT_RT}",
      "s_lshl_b32 s27, s26, 13", f"s_add_u32 s27, s27, {OFF_ACT + 112 * 1024}",
      "s_add_u32 s46, s44, s27", "s_add_u32 s86, s45, s27",
      "s_lshl_b32 s27, s26, 12", f"s_add_u32 s27, s27, {OFF_ACT}", "s_add_u32 s44, s44, s27", "s_add_u32 s45, s45, s27")
    a("v_and_b32 v46, 1, v1", "v_bfe_u32 v47, v1, 1, 1", "v_lshl_add_u32 v46, v46, 1, v47",
      "v_bfe_u32 v47, v1, 4, 1", "v_lshl_add_u32 v46, v47, 2, v46",
      "v_bfe_u32 v47, v1, 2, 2", "v_lshlrev_b32 v47, 6, v47", "v_lshl_add_u32 v46, v46, 3, v47",
      "v_lshl_add_u32 v46, v3, 10, v46", "s_lshl_b32 s27, s91, 9", "s_add_u32 s27, s27, s34",
      "v_add_u32 v34, s27, v46", "v_xor_b32 v35, 512, v34")
    a("v_add_u32 v38, s34, v13", "s_lshl_b32 s27, s90, 1", "s_sub_u32 s27, 1, s27", f"s_mul_i32 s88, s27, {R * 2048}",
      "s_lshl_b32 s27, s91, 1", "s_sub_u32 s27, 1, s27", f"s_mul_i32 s89, s27, {L_RB - L_RA}",
      "v_add_u32 v45, s88, v38", "v_add_u32 v46, s89, v38", "v_add_u32 v47, s88, v46")
    for k in range(8):
        a(f"v_lshlrev_b32 v{RES + 2 * k}, 16, v{XR + k}", f"v_and_b32 v{RES + 2 * k + 1}, 0xffff0000, v{XR + k}",
          f"v_lshlrev_b32 v{RES + 16 + 2 * k}, 16, v{XR + 8 + k}",
          f"v_and_b32 v{RES + 17 + 2 * k}, 0xffff0000, v{XR + 8 + k}")
    for i in range(16):
        a(f"v_add_f32 v{RES + i}, v{RES + i}, v{RES + 16 + i}")


def gen_gemm(a):
    R = G_R
    AC, OR, XR, RES = 64, 192, 16, G_RES
    WFR = (4, 48)
    areg = lambda k: (128 + 8 * (k % R)) if (k % R) < 8 else (16 + 8 * (k % R - 8))
    pub = ["s_mov_b64 exec, 1", f"buffer_store_dword v58, v59, {sr(SWS, 4)}, s62 offen sc1", "s_mov_b64 exec, -1"]
    a("s_cmp_lt_u32 s53, 28", "s_cbranch_scc1 G_GO", "s_waitcnt vmcnt(0)", *pub)
    stamp_out(a)
    a("s_endpgm")
    a.label("G_GO")

    def req(v, nl, dst=60):
        return [f"s_mov_b64 exec, {(1 << nl) - 1}", f"buffer_load_dword v{dst}, v{v}, {sr(SWS, 4)}, 0 offen sc1",
                "s_mov_b64 exec, -1"]

    def chk(mask, target, src=60):
        return [f"v_cmp_ne_u32 s[88:89], s47, v{src}", "s_nop 0", f"s_and_b32 s88, s88, {mask}", f"s_cbranch_scc0 {target}"]

    def kpos(k):
        return (k >> 2) * 16 + (k & 3)

    def issue_w(k):
        o = [f"s_add_u32 m0, s34, {(k % R) * 2048}"]
        if k < 28:
            o += [f"s_add_u32 s27, s32, {kpos(k) * 16 * 896}"]
            w = GW2
        else:
            kk = k - 28
            o += [f"s_add_u32 s27, s33, {((kk >> 1) * 28 + (kk & 1) * 16) * 896}"]
            w = GWO
        return o + [f"buffer_load_dwordx4 v32, {sr(w, 4)}, s27 offen lds",
                    f"buffer_load_dwordx4 v33, {sr(w, 4)}, s27 offen offset:1024 lds"]

    def issue_a(k):
        r = areg(k)
        off = (k & 3) * 1024
        o = []
        if k & 3 == 0:
            o = [f"s_add_u32 s70, s44, {kpos(k) * 1024}", f"s_add_u32 s71, s45, {kpos(k) * 1024}"]
        return o + [f"buffer_load_dwordx4 {vr(r, 4)}, v13, {sr(SWS, 4)}, s70 offen offset:{off} sc1",
                    f"buffer_load_dwordx4 {vr(r + 4, 4)}, v13, {sr(SWS, 4)}, s71 offen offset:{off} sc1"]

    issue_o = []
    for kk in range(8):
        if kk == 4:
            issue_o += ["s_add_u32 s46, s46, 4096", "s_add_u32 s86, s86, 4096"]
        issue_o += [f"buffer_load_dwordx4 {vr(OR + 8 * kk, 4)}, v13, {sr(SWS, 4)}, s46 offen offset:{(kk & 3) * 1024} sc1",
                    f"buffer_load_dwordx4 {vr(OR + 8 * kk + 4, 4)}, v13, {sr(SWS, 4)}, s86 offen offset:{(kk & 3) * 1024} sc1"]

    NW0 = 4
    a(*req(36, 4), "s_mov_b32 s73, 0")
    q = []
    for k in range(NW0):
        a(*issue_w(k))
        q += [k, k]
    a(f"s_waitcnt vmcnt({2 * NW0})", *pub)
    q += ["f"]
    stamp(a, 6)
    a(*chk(15, "G_AOK"))
    poll(a, "G_PA", 36, 4)
    a.label("G_AOK")
    stamp(a, 7)
    for k in range(8):
        a(*issue_a(k))
        q += [k, k]
        if NW0 <= k + 2 < R:
            a(*issue_w(k + 2))
            q += [k + 2, k + 2]
        if k == BREQ:
            a(*req(36, 16))
            q += ["b"]
    NK = 36
    for k in range(NK):
        if k == 28:
            a("s_cmp_eq_u32 s73, 1", "s_cbranch_scc1 G_OD")
            poll(a, "G_PO", 37, 8)
            a(*issue_o)
            a.label("G_OD")
            stamp(a, 10)
        need = [i for i, kk in enumerate(q)
                if kk == k or (kk == "p" and k in OCHK.values()) or (kk == "b" and k == BCHK)]
        q = q[max(need) + 1:] if need else q
        a(f"s_waitcnt vmcnt({len(q) if k < 28 else 0})")
        if k in (12, 28):
            stamp(a, {12: 9, 28: 11}[k])
        w = WFR[k & 1]
        off = (k % R) * 2048
        a(f"ds_read_b64_tr_b16 {vr(w, 2)}, v34 offset:{off}", f"ds_read_b64_tr_b16 {vr(w + 2, 2)}, v34 offset:{off + 256}",
          f"ds_read_b64_tr_b16 {vr(w + 4, 2)}, v35 offset:{off}",
          f"ds_read_b64_tr_b16 {vr(w + 6, 2)}, v35 offset:{off + 256}")
        if k == BCHK:
            a(*chk(0xffff, "G_BOK"))
            poll(a, "G_PB", 36, 16)
            a.label("G_BOK")
            stamp(a, 8)
            for kk in range(8, R + k):
                a(*issue_a(kk))
                q += [kk, kk]
        if k in OCHK.values():
            a("s_cmp_eq_u32 s73, 1", f"s_cbranch_scc1 G_OS{k}", "v_cmp_ne_u32 s[88:89], s47, v60", "s_nop 0",
              "s_and_b32 s88, s88, 0xff", f"s_cbranch_scc1 G_OS{k}", *issue_o, "s_mov_b32 s73, 1")
            a.label(f"G_OS{k}")
        r = areg(k) if k < 28 else OR + 8 * (k - 28)
        c = (lambda t: RES if t == 0 else "0") if k == 0 else (lambda t: AC + 16 * t)
        a("s_waitcnt lgkmcnt(2)", mfma(AC, w, r, c(0)), mfma(AC + 16, w, r + 4, c(1)),
          "s_waitcnt lgkmcnt(0)", mfma(AC + 32, w + 4, r, c(2)), mfma(AC + 48, w + 4, r + 4, c(3)))
        n = k + R
        if k in OCHK:
            a(*req(37, 8))
            q += ["p"]
        if n < NK:
            a(*issue_w(n))
            q += [n, n]
            if n < 28 and k >= BCHK:
                a(*issue_a(n))
                q += [n, n]
    stamp(a, 12)
    a("s_nop 7", "s_nop 1")
    for t in range(1, 4):
        for qq in range(4):
            a(f"ds_write_b128 v38, {vr(AC + 16 * t + 4 * qq, 4)} offset:{(t - 1) * 4096 + qq * 1024}")
    a("s_waitcnt lgkmcnt(0)", "s_barrier")
    stamp(a, 13)
    for t in range(3):
        for qq in range(4):
            a(f"ds_read_b128 {vr(AC + 16 + 16 * t + 4 * qq, 4)}, v{45 + t} offset:{t * 4096 + qq * 1024}")
    a("s_waitcnt lgkmcnt(4)")
    for i in range(16):
        a(f"v_add_f32 v{AC + 16 + i}, v{AC + 16 + i}, v{AC + 32 + i}")
    for h in range(2):
        a(f"s_waitcnt lgkmcnt({2 - 2 * h})")
        for i in range(8 * h, 8 * h + 8):
            a(f"v_add_f32 v{AC + i}, v{AC + 48 + i}, v{AC + i}")
        for i in range(8 * h, 8 * h + 8):
            a(f"v_add_f32 v{AC + i}, v{AC + 16 + i}, v{AC + i}")
        for k in range(4 * h, 4 * h + 4):
            a(f"v_cvt_pk_bf16_f32 v{XR + k}, v{AC + 2 * k}, v{AC + 2 * k + 1}")
        a(f"buffer_store_dwordx4 {vr(XR + 4 * h, 4)}, v44, {sr(GOUT, 4)}, s35 offen offset:{32 * h}")
    stamp_out(a)


BREQ, BCHK = 2, 2
OCHK = {8: 14, 14: 20}


def main(out):
    a = Asm()
    a.raw(f"; @launch grid=(256,1,1) block=(512,1,1) lds={LDS_BYTES}")
    a.raw('.amdgcn_target "amdgcn-amd-amdhsa--gfx950"')
    a.raw(".text")
    name = gen(a)
    a.raw('.section .rodata,"a"')
    a.raw(".p2align 6")
    a.raw(f".amdhsa_kernel {name}")
    a.raw("  .amdhsa_next_free_vgpr 256")
    a.raw("  .amdhsa_next_free_sgpr 102")
    a.raw("  .amdhsa_accum_offset 256")
    a.raw("  .amdhsa_group_segment_fixed_size 0")
    a.raw("  .amdhsa_kernarg_size 88")
    a.raw("  .amdhsa_user_sgpr_count 2")
    a.raw("  .amdhsa_user_sgpr_kernarg_segment_ptr 1")
    a.raw("  .amdhsa_system_sgpr_workgroup_id_x 1")
    a.raw(".end_amdhsa_kernel")
    open(out, "w").write(a.text())


if __name__ == "__main__":
    if "--stamp" in sys.argv:
        sys.argv.remove("--stamp")
        STAMP = True
    if "--dbg" in sys.argv:
        sys.argv.remove("--dbg")
        DBG = True
    main(sys.argv[1] if len(sys.argv) > 1 else f"cdna_kernels/{NAME}.s")
```

```python
import os
import struct
import sys

EXP = set(os.environ.get('EXP', '').split(','))

NAME = "parallel_sum__sliding_block__dense_activation_gelu__prompt"

RT = 28672
OFF_Q = 0
OFF_K = 64 * RT
OFF_V = 2 * 64 * RT
OFF_ACT = 3 * 64 * RT
ACT_RT = 144 * 1024
OFF_FLG = OFF_ACT + 64 * ACT_RT
FLG_N = 93
FLG_RT = FLG_N * 128
OFF_EPOCH = OFF_FLG + 64 * FLG_RT
WS_BYTES = OFF_EPOCH + 128
NATIVE_K = True

X_BYTES = 2048 * 896
WQKV_BYTES = 448 * 2688
W1_BYTES = 448 * 3584
W2_BYTES = 1792 * 896
WO_BYTES = 448 * 896

SLOT = 28672
L_S2 = 32768
L_S3 = L_S2 + SLOT
L_S1 = L_S3 + SLOT
L_S0 = L_S1 + SLOT
L_BIAS = 159744
L_STAT = L_BIAS + 768
L_CNT = L_STAT + 1024
L_ATT = L_S2
L_RING = L_ATT + 49152
LDS_BYTES = 163840
SPIN_MAX = 1 << 16

STAMP = False
OFF_STAMP = 32 << 20


def f32(x):
    return "0x%08x" % struct.unpack("<I", struct.pack("<f", x))[0]


class Asm:
    def __init__(self):
        self.o = []

    def __call__(self, *lines):
        for s in lines:
            self.o.append("    " + s)

    def label(self, s):
        self.o.append(s + ":")

    def raw(self, s):
        self.o.append(s)

    def text(self):
        return "\n".join(self.o) + "\n"


def vr(b, n):
    return f"v[{b}:{b + n - 1}]"


def sr(b, n):
    return f"s[{b}:{b + n - 1}]"


def mfma(d, a, b, c):
    cs = c if isinstance(c, str) else vr(c, 16)
    return f"v_mfma_f32_32x32x16_bf16 {vr(d, 16)}, {vr(a, 4)}, {vr(b, 4)}, {cs}"


def srd(a, d, lo, nbytes):
    a(f"s_mov_b32 s{d}, s{lo}", f"s_mov_b32 s{d + 1}, s{lo + 1}",
      f"s_mov_b32 s{d + 2}, {nbytes}", f"s_mov_b32 s{d + 3}, 0x20000")


DBG = False
LST = (0,)
ROLE = ["main"]
DBG_MAP = {"main": {0: 2, 3: 3, 5: 4, 6: 5, 9: 6, 15: 7}, "aux": {5: 8, 6: 9, 8: 10, 11: 11, 15: 12}}


def stamp(a, i, rt=False):
    if DBG:
        w = DBG_MAP[ROLE[0]].get(i)
        if w is not None:
            a("s_memrealtime s[98:99]", "s_waitcnt lgkmcnt(0)", f"v_writelane_b32 v63, s98, {w}")
            inv = {2: 1, 4: 13, 5: 14, 12: 15}.get(w)
            if inv:
                a("s_not_b32 s98, s98", f"v_writelane_b32 v63, s98, {inv}")
        return
    if not STAMP:
        return
    a(f"s_mem{'real' if rt else ''}time s[98:99]", "s_waitcnt lgkmcnt(0)",
      f"v_writelane_b32 v63, s98, {i}")


def lstamp(a, ureg, k):
    if not STAMP or k not in LST:
        return
    a("s_memtime s[98:99]", f"s_lshl_b32 s97, {ureg}, 2", f"s_add_u32 m0, s97, {16 + k}", "s_waitcnt lgkmcnt(0)",
      "v_writelane_b32 v63, s98, m0")


def stamp_out(a):
    if DBG:
        stamp(a, 15)
        a("s_load_dwordx2 s[92:93], s[0:1], 72", "s_waitcnt lgkmcnt(0)", "s_mov_b32 s94, 256", "s_mov_b32 s95, 0x20000",
          "s_mov_b64 exec, 0xfffe", "v_lshlrev_b32 v62, 2, v1", "buffer_atomic_umax v63, v62, s[92:95], 0 offen sc1")
        return
    if not STAMP:
        return
    stamp(a, 14)
    stamp(a, 15, rt=True)
    a("s_mov_b32 s92, s24", "s_mov_b32 s93, s25", f"s_mov_b32 s94, {64 << 20}", "s_mov_b32 s95, 0x20000",
      "s_lshl_b32 s96, s2, 3", "s_add_u32 s96, s96, s3", "s_lshl_b32 s96, s96, 8",
      f"s_add_u32 s96, s96, {OFF_STAMP}", "s_mov_b64 exec, -1", "v_lshlrev_b32 v62, 2, v1",
      "buffer_store_dword v63, v62, s[92:95], s96 offen")


P_X, P_WQKV, P_WO, P_W1, P_B1, P_W2, P_B2, P_OUT, P_DBG, P_WS = 4, 6, 8, 12, 14, 16, 18, 20, 22, 24
SWS, SA, SB, SC, SD = 28, 32, 36, 40, 84


def gen(a):
    name = NAME + "_kernel"
    a.raw(f".globl {name}")
    a.raw(".p2align 8")
    a.raw(f".type {name},@function")
    a.label(name)
    a("s_cmp_ge_u32 s2, 256", "s_cbranch_scc1 L_END")
    a("s_load_dwordx16 s[4:19], s[0:1], 0", "s_load_dwordx4 s[20:23], s[0:1], 64",
      "s_load_dwordx2 s[24:25], s[0:1], 80")
    a("v_lshrrev_b32 v2, 6, v0", "v_and_b32 v1, 63, v0", "v_readfirstlane_b32 s3, v2")
    a("s_and_b32 s52, s2, 7", "s_lshr_b32 s53, s2, 3",
      "s_lshr_b32 s55, s53, 2", "s_and_b32 s56, s53, 3",
      "s_and_b32 s27, s53, 1", "s_add_u32 s27, s27, 6", "s_bfe_u32 s57, s53, 0x20001",
      "s_cmp_ge_u32 s53, 24", "s_cselect_b32 s55, s27, s55", "s_cselect_b32 s56, s57, s56",
      "s_and_b32 s57, s52, 3", "s_lshl_b32 s27, s57, 1", "s_add_u32 s55, s55, s27", "s_add_u32 s55, s55, 2",
      "s_and_b32 s55, s55, 7", "s_lshr_b32 s48, s52, 2", "s_lshl_b32 s48, s48, 3", "s_add_u32 s48, s48, s55",
      "s_lshl_b32 s49, s57, 2", "s_add_u32 s49, s49, s56",
      "s_and_b32 s51, s56, 1", "s_cmp_ge_u32 s53, 28", "s_cselect_b32 s50, 7, 6", "s_cselect_b32 s51, s51, 0",
      "s_and_b32 s26, s3, 3")
    a("s_cmp_ge_u32 s49, 14", "s_cselect_b32 s54, 5, 0",
      "s_cmp_lt_u32 s49, 5", "s_cselect_b32 s27, 5, 10", "s_lshl_b32 s27, s27, 4", "s_or_b32 s54, s54, s27",
      "s_or_b32 s54, s54, 0xaa00")
    a("s_lshl_b32 s58, s48, 2", "s_add_u32 s58, s58, s26")
    a("v_and_b32 v2, 31, v1", "v_lshrrev_b32 v3, 5, v1")
    if DBG:
        a("v_mov_b32 v63, 0")
    a("s_cmp_ge_u32 s3, 4", "s_cbranch_scc1 L_AUX")
    gen_main(a)
    gen_attn(a)
    a.label("L_AUX")
    ROLE[0] = "aux"
    gen_aux(a)
    gen_gemm(a)
    a.label("L_END")
    a("s_endpgm")
    a.label("L_CODE_END")
    return name


QF = 48
PFF = "sc1" if "pfsc1" in EXP else ("nt" if "pfnt" in EXP else "")


def stage_kv(off, lds, vaddr, base, tiles):
    o = []
    for i in range(3):
        o += [f"s_add_u32 m0, s{base}, {i * 4096 + lds}", f"s_add_u32 s27, s{tiles + i}, {off}",
              f"buffer_load_dwordx4 v{vaddr}, {sr(SWS, 4)}, s27 offen sc1 lds", "s_mov_b32 exec_hi, 0xffff",
              f"buffer_load_dwordx4 v{vaddr}, {sr(SWS, 4)}, s27 offen offset:1024 sc1 lds", "s_mov_b32 exec_hi, -1"]
    return o


GC0 = -2.0 * 0.7978845608028654 * 1.4426950408889634
GC1 = GC0 * 0.044715


def gen_main(a):
    X, ACA, ACB, WR, T = 128, 64, 80, 96, 16
    AB, BB = 240, 244
    if "xnorot" in EXP:
        a("s_mov_b32 s56, 0")
    a("v_lshrrev_b32 v8, 3, v1", "v_and_b32 v9, 7, v1", "v_lshrrev_b32 v4, 4, v1",
      "v_xor_b32 v9, v9, v4", "v_mul_u32_u24 v8, 896, v8", "v_lshl_add_u32 v8, v9, 4, v8", "v_xor_b32 v9, 64, v8")
    for k in range(4):
        a(f"s_add_u32 s27, s56, {k}", "s_and_b32 s27, s27, 3", "s_mulk_i32 s27, 7168",
          f"s_add_u32 s27, s27, {4096 - 1024 * k}", f"v_add_u32 v{4 + k}, s27, v{8 + (k & 1)}")
    a(f"s_mul_i32 s59, s58, {RT}", f"s_mul_i32 s60, s3, {SLOT}")
    a("s_waitcnt lgkmcnt(0)")
    stamp(a, 0, rt=True)
    stamp(a, 1)
    a(f"s_sub_u32 s{SA}, s{P_X}, 4096", f"s_subb_u32 s{SA + 1}, s{P_X + 1}, 0",
      f"s_mov_b32 s{SA + 2}, {X_BYTES + 4096}", f"s_mov_b32 s{SA + 3}, 0x20000")
    for g in range(7):
        a(f"s_add_u32 m0, s60, {g * 4096}", f"s_add_u32 s61, s59, {g * 128}",
          f"buffer_load_dwordx4 v4, {sr(SA, 4)}, s61 offen lds")
    pre = []
    pre += ["s_lshl_b32 s27, s56, 3", "v_subrev_u32 v9, s27, v2", "v_and_b32 v9, 31, v9",
            "v_bfe_u32 v8, v9, 1, 3", "v_xor_b32 v8, v8, v3",
            "v_lshlrev_b32 v8, 4, v8", "v_lshl_add_u32 v8, v9, 7, v8", "v_add_u32 v8, s60, v8",
            "v_xor_b32 v9, 32, v8", "v_xor_b32 v10, 64, v8", "v_xor_b32 v11, 96, v8"]
    pre += ["v_bfe_u32 v12, v1, 2, 1", "v_bfe_u32 v13, v1, 3, 1",
            "v_bfe_u32 v14, v1, 1, 1", "v_lshl_add_u32 v13, v13, 1, v14",
            "v_bfe_u32 v14, v1, 4, 1", "v_lshl_add_u32 v13, v14, 2, v13",
            "v_xor_b32 v12, v12, v3", "v_lshl_add_u32 v13, v12, 3, v13",
            "v_and_b32 v14, 1, v1", "v_lshlrev_b32 v14, 4, v14", "v_mov_b32 v15, 0x3f80",
            "v_lshlrev_b32 v14, v14, v15"]
    pre += [f"v_cmp_eq_u32 {sr(64 + 2 * k, 2)}, {k}, v13" for k in range(8)]
    pre += [f"v_cndmask_b32 v{WR + k}, 0, v14, {sr(64 + 2 * k, 2)}" for k in range(8)]
    pre += ["v_and_b32 v13, 3, v1", "v_bfe_u32 v14, v1, 4, 1", "v_lshl_add_u32 v13, v14, 2, v13",
            "v_bfe_u32 v14, v1, 2, 2", "v_lshlrev_b32 v14, 6, v14", "v_lshl_add_u32 v13, v13, 3, v14",
            "v_lshl_add_u32 v12, v3, 10, v13", f"v_add_u32 v12, {L_S2}, v12"]
    pre += ["s_lshl_b32 s70, s52, 1", "s_and_b32 s27, s53, 1", "s_add_u32 s70, s70, s27",
            "s_lshr_b32 s27, s53, 1", "s_lshl_b32 s27, s27, 2", "s_add_u32 s71, s27, s3",
            "s_mul_i32 s73, s3, 3", "s_add_u32 s72, s27, s73", "s_sub_u32 s72, s72, 8",
            "s_lshl_b32 s73, s73, 12", f"s_add_u32 s73, s73, {L_ATT}", "s_mul_i32 s78, s70, 1792",
            f"s_mul_i32 s74, s71, {RT}", "s_add_u32 s74, s74, s78"]
    for i in range(3):
        pre += [f"s_add_u32 s27, s72, {i}", f"s_mul_i32 s{75 + i}, s27, {RT}", f"s_add_u32 s{75 + i}, s{75 + i}, s78",
                "s_cmp_lt_i32 s27, 0", f"s_cselect_b32 s{75 + i}, 0x40000000, s{75 + i}"]
    pre += ["s_mul_i32 s27, s70, 28", "s_lshr_b32 s79, s27, 6", "s_add_u32 s27, s27, 27", "s_lshr_b32 s27, s27, 6",
            "s_sub_u32 s27, s27, s79",
            "v_and_b32 v13, 1, v1", "v_mul_u32_u24 v13, s27, v13", "v_add_u32 v13, s79, v13",
            "v_lshrrev_b32 v14, 1, v1", "v_add_u32 v14, s72, v14", "v_max_i32 v14, 0, v14",
            f"v_mul_u32_u24 v14, {FLG_N}, v14", "v_add_u32 v14, 7, v14", f"s_mul_i32 s27, s71, {FLG_N}",
            "v_cmp_gt_u32 vcc, 6, v1", "v_mov_b32 v15, s27", "v_lshlrev_b32 v59, 3, v1",
            "v_cndmask_b32 v14, v15, v14, vcc", "v_add_u32 v13, v13, v14", "v_lshlrev_b32 v13, 7, v13",
            f"v_add_u32 v57, {OFF_FLG}, v13", f"v_add_u32 v56, {OFF_FLG + 7 * 128}, v13"]
    LT = next((int(e[2:]) for e in EXP if e.startswith('lt')), 3)
    LSITES = (11, 15, 19, 23)
    pre += ["s_lshl_b32 s87, s53, 2", "s_add_u32 s87, s87, s3", "s_mulk_i32 s87, 7168",
            f"s_lshl_b32 s86, {0x11 << (4 * LT) if LT < 6 else 0}, s3", "s_cmp_eq_u32 s50, 7", "s_cselect_b32 s86, 0, s86",
            f"s_mov_b32 s{P_W2 + 2}, {W2_BYTES}", f"s_mov_b32 s{P_W2 + 3}, 0x20000",
            f"s_mov_b32 s{P_WO + 2}, {WO_BYTES}", f"s_mov_b32 s{P_WO + 3}, 0x20000",
            f"s_mov_b32 s{SWS}, s{P_WS}", f"s_mov_b32 s{SWS + 1}, s{P_WS + 1}", f"s_mov_b32 s{SWS + 2}, {WS_BYTES}",
            f"s_mov_b32 s{SWS + 3}, 0x20000",
            "v_mov_b32 v14, 0", "v_mov_b32 v15, 0", "s_mov_b32 s62, 0x3f803f80", "s_mov_b32 s82, 0"]
    def xgrp(g):
        return [f"s_add_u32 m0, s60, {g * 4096}", f"s_add_u32 s61, s59, {g * 128}"] + \
               [f"buffer_load_dwordx4 v{4 + i}, {sr(SA, 4)}, s61 offen offset:{i * 1024} lds" for i in range(1, 4)]

    XA = next((int(e[2:]) for e in EXP if e.startswith('xa')), 3)
    for g in range(XA):
        a(*xgrp(g))
    a(*pre)
    a("v_lshlrev_b32 v13, 7, v1", f"s_mov_b32 s{SB + 3}, 0x20000", "s_cmp_eq_u32 s3, 0", "s_cbranch_scc0 M_T1",
      "s_sub_u32 s80, s2, 196", "s_cmp_lt_u32 s2, 196", "s_cselect_b32 s80, s2, s80",
      f"s_cselect_b32 s{SB}, s{P_W2}, s{P_WO}", f"s_cselect_b32 s{SB + 1}, s{P_W2 + 1}, s{P_WO + 1}",
      f"s_mov_b32 s{SB + 2}, {WO_BYTES}", f"s_cselect_b32 s{SB + 2}, {W2_BYTES}, s{SB + 2}",
      "s_lshl_b32 s80, s80, 13", "s_branch M_TD")
    a.label("M_T1")
    a("s_cmp_eq_u32 s3, 3", "s_cbranch_scc0 M_T2", "s_cmp_eq_u32 s50, 7", "s_cbranch_scc1 M_T3",
      f"s_getpc_b64 {sr(SB, 2)}")
    a.label("M_PC")
    a(f"s_sub_u32 s{SB}, s{SB}, M_PC-{NAME}_kernel", f"s_subb_u32 s{SB + 1}, s{SB + 1}, 0",
      f"s_mov_b32 s{SB + 2}, L_CODE_END-{NAME}_kernel", "s_and_b32 s80, s53, 3", "s_lshl_b32 s80, s80, 13",
      "s_branch M_TD")
    a.label("M_T2")
    a("s_mul_i32 s27, s55, 56", "v_min_u32 v13, 55, v1", "v_add_u32 v13, s27, v13",
      "s_add_u32 s80, s49, 11", "s_sub_u32 s27, s49, 5", "s_cmp_eq_u32 s3, 1", "s_cselect_b32 s80, s27, s80",
      "s_movk_i32 s81, 3584", f"s_mov_b32 s{SB + 2}, {W1_BYTES}", "s_add_u32 s27, s49, 16", "s_cmp_lt_i32 s80, 0",
      "s_cselect_b32 s80, s27, s80", "s_cselect_b32 s81, 2688, s81",
      f"s_cselect_b32 s{SB}, s{P_WQKV}, s{P_W1}", f"s_cselect_b32 s{SB + 1}, s{P_WQKV + 1}, s{P_W1 + 1}",
      f"s_cselect_b32 s{SB + 2}, {WQKV_BYTES}, s{SB + 2}", "s_lshl_b32 s80, s80, 7", "v_mul_u32_u24 v13, s81, v13")
    a("s_branch M_TD")
    a.label("M_T3")
    a("s_lshl_b32 s27, s52, 2", "s_and_b32 s80, s53, 3", "s_add_u32 s27, s27, s80", "s_mul_i32 s27, s27, 14",
      "v_min_u32 v13, 13, v1", "v_add_u32 v13, s27, v13", "v_mul_u32_u24 v13, 3584, v13",
      f"s_mov_b32 s{SB}, s{P_W1}", f"s_mov_b32 s{SB + 1}, s{P_W1 + 1}", f"s_mov_b32 s{SB + 2}, {W1_BYTES}",
      f"s_movk_i32 s80, {27 * 128}")
    a.label("M_TD")
    stamp(a, 2)

    def stats(g):
        for r in range(X + 16 * g, X + 16 * g + 16):
            a(f"v_dot2c_f32_bf16 v14, s62, v{r}", f"v_dot2c_f32_bf16 v15, v{r}, v{r}")

    for g in range(7):
        a(f"s_waitcnt vmcnt({3 * (min(7, g + XA) - g - 1)})")
        if g == 0 and "st1" in EXP:
            stamp(a, 2)
        for q in range(4):
            a(f"ds_read_b128 {vr(X + 16 * g + 4 * q, 4)}, v{8 + q} offset:{g * 4096}")
        if g + XA < 7:
            a(*xgrp(g + XA))
        if g:
            a("s_waitcnt lgkmcnt(4)")
            stats(g - 1)
    a("s_waitcnt lgkmcnt(0)")
    stamp(a, 3)
    a("s_barrier")
    stats(6)
    a("s_nop 2", "v_mov_b32 v4, v14", "v_mov_b32 v5, v15", "s_nop 1",
      "v_permlane32_swap_b32 v4, v14", "v_permlane32_swap_b32 v5, v15",
      "v_add_f32 v14, v4, v14", "v_add_f32 v15, v5, v15",
      f"v_mul_f32 v14, {f32(1 / 448)}, v14", f"v_mul_f32 v15, {f32(1 / 448)}, v15",
      "v_cvt_pk_bf16_f32 v4, v14, v14", "v_fma_f32 v15, -v14, v14, v15",
      "v_lshlrev_b32 v4, 16, v4", "v_max_f32 v15, 0, v15", "v_xor_b32 v4, 0x80000000, v4")
    for i in range(16):
        a(f"v_mov_b32 v{T + i}, v4")
    a("s_nop 1")
    t0 = [168, 169, 0, 1, 168, 169, 0, 0]
    t1 = [112, 113, 56, 57, 112, 113, 56, 0]
    pk = lambda b: b[0] | b[1] << 8 | b[2] << 16 | b[3] << 24
    fin = ["v_cvt_pk_bf16_f32 v15, v15, v15", "v_lshlrev_b32 v15, 16, v15", f"v_add_f32 v15, {f32(1e-5)}, v15",
           "v_cvt_pk_bf16_f32 v15, v15, v15", "v_lshlrev_b32 v15, 16, v15", "v_sqrt_f32 v15, v15",
           "s_lshl_b32 s27, s3, 8",
           "v_cvt_pk_bf16_f32 v5, v15, v15", "v_lshlrev_b32 v15, 16, v5", "v_rcp_f32 v14, v15",
           "v_and_b32 v5, 0xffff, v5", "v_cmp_eq_u32 vcc, 0, v3", f"s_add_u32 s27, s27, {L_STAT}",
           "v_lshl_add_u32 v4, v1, 2, s27", "v_cndmask_b32 v6, v15, v14, vcc", f"v_cndmask_b32 v{BB}, 0, v5, vcc",
           "ds_write_b32 v4, v6",
           f"v_mov_b32 v{AB + 1}, 0", f"v_mov_b32 v{AB + 2}, 0", f"v_mov_b32 v{AB + 3}, 0",
           f"v_mov_b32 v{BB + 1}, 0", f"v_mov_b32 v{BB + 2}, 0", f"v_mov_b32 v{BB + 3}, 0",
           "v_lshlrev_b32 v10, 1, v2", f"v_add_u32 v10, {L_BIAS}, v10",
           "s_lshl_b32 s83, s3, 13", f"v_add_u32 v8, {t0[0] * 512}, v12", "s_mov_b32 s68, 0"]
    assert len(fin) == 28
    late = [f"s_mov_b32 s64, {pk(t0[1:5])}", "s_lshl_b32 s27, s51, 8", f"s_add_u32 s65, s27, {pk(t0[5:8] + [0])}",
            f"s_mov_b32 s66, {pk(t1[0:4])}", "s_lshl_b32 s27, s51, 16", f"s_add_u32 s67, s27, {pk(t1[4:8])}",
            "s_mov_b32 s69, s54", f"v_mul_f32 v7, {f32(GC0)}, v14", "v_mul_f32 v6, v14, v14", "v_mul_f32 v6, v6, v14",
            f"v_mul_f32 v6, {f32(GC1)}, v6", "v_min_u32 v11, 55, v1", "v_lshlrev_b32 v11, 7, v11"]
    CB = (ACA, ACB, 32)

    def cv(p, h):
        d = CB[p % 3]
        return [f"v_cvt_pk_bf16_f32 v{X + 8 * p + k}, v{d + 2 * k}, v{d + 2 * k + 1}" for k in range(4 * h, 4 * h + 4)]

    for p in range(16):
        d = CB[p % 3]
        if p < 14:
            a(mfma(d, WR, X + 8 * p, T))
        a(*(cv(p - 2, 0) if p >= 2 else fin[14 * p:14 * p + 7]))
        if p < 14:
            a(mfma(d, WR + 4, X + 8 * p + 4, d))
        a(*(cv(p - 2, 1) if p >= 2 else fin[14 * p + 7:14 * p + 14]))
        if 2 <= p < 2 + len(late):
            a(late[p - 2])
        if p == 14:
            a("s_nop 1")

    PD = 4

    def ring(j):
        return WR + 4 * (j % 7)

    def rd(j):
        jj = j % 28
        base = "v8" if jj < 14 else "v9"
        r = ring(j)
        return [f"ds_read_b64_tr_b16 {vr(r, 2)}, {base} offset:{(jj % 14) * 2048}",
                f"ds_read_b64_tr_b16 {vr(r + 2, 2)}, {base} offset:{(jj % 14) * 2048 + 256}"]

    accw = [f"ds_write_addtid_b32 v{ACB + k} offset:{k * 256}" for k in range(16)]
    touch = f"buffer_load_dword v60, v13, {sr(SB, 4)}, s80 offen"
    MT = next((int(e[2:]) for e in EXP if e.startswith('mt')), 1)
    a("s_cmp_eq_u32 s3, 0", f"s_cselect_b32 s81, {MT}, 99", "s_cbranch_scc1 M_NOT", touch)
    a.label("M_NOT")
    stamp(a, 4)
    a("s_waitcnt lgkmcnt(0)", "s_barrier")
    stamp(a, 5)
    if "prio" in EXP:
        a("s_setprio 2")
    if "zero" in EXP:
        for r in range(X, X + 112):
            a(f"v_mov_b32 v{r}, 0")
    for j in range(PD):
        a(*rd(j))
    if "align" in EXP:
        a.raw(".p2align 6")
    a.label("M_TILE")
    a("s_cmp_eq_u32 s68, s81", "s_cbranch_scc0 M_NOT2", touch)
    a.label("M_NOT2")
    a("s_mov_b32 m0, s83", "s_bitcmp1_b32 s69, 0", "s_cbranch_scc1 M_V")
    WPOS = {1: (0, 3), 2: (3, 6), 3: (6, 9), 4: (9, 12), 5: (12, 14), 6: (14, 16)}

    pfs = []

    def body(tag):
        q = [f for f in range(PD) for _ in range(2)]
        for j in range(28):
            if j % 2 == 0:
                q = q[max(i for i, f in enumerate(q) if f == j + 1) + 1:][-15:]
                a(f"s_waitcnt lgkmcnt({len(q)})")
            d = ACB if j == 27 else ACA
            ops = (X + 4 * j, ring(j)) if tag == "V" else (ring(j), X + 4 * j)
            if j == 0 and tag == "N":
                a("s_bitcmp1_b32 s69, 1", "s_cbranch_scc0 M_NOB", mfma(ACA, AB, BB, "0"),
                  mfma(ACA, *ops, ACA), "s_branch M_NOB2")
                a.label("M_NOB")
                a(mfma(ACA, *ops, "0"))
                a.label("M_NOB2")
            else:
                a(mfma(d, *ops, "0" if j == 0 else ACA))
            if j + PD == 14:
                assert "w" not in q
                a("s_barrier")
            if j in WPOS and "noaccw" not in EXP:
                a(*accw[WPOS[j][0]:WPOS[j][1]])
                q += ["w"] * (WPOS[j][1] - WPOS[j][0])
            a(*rd(j + PD))
            q += [j + PD] * 2
            if j == 0:
                a("s_and_b32 s27, s66, 0xff", "s_lshr_b64 s[66:67], s[66:67], 8",
                  "v_lshl_add_u32 v9, s27, 9, v12", "v_add_u32 v10, 64, v10")
            if j == 12:
                a("s_and_b32 s27, s64, 0xff", "s_lshr_b64 s[64:65], s[64:65], 8",
                  "v_lshl_add_u32 v8, s27, 9, v12", "s_xor_b32 s83, s83, 4096")
            if j in LSITES:
                a(f"s_bitcmp1_b32 s86, {LSITES.index(j)}", f"s_cbranch_scc1 M_PF{tag}{j}")
                a.label(f"M_PR{tag}{j}")
                pfs.append(f"{tag}{j}")
            if j + PD == 27:
                a(f"ds_read_u16 v{AB}, v10")
                q += ["b"]
        a("s_lshr_b32 s86, s86, 4", "s_lshr_b32 s69, s69, 2", "s_add_u32 s68, s68, 1", "s_cmp_lt_u32 s68, s50", "s_cbranch_scc1 M_TILE")

    body("N")
    a("s_branch M_DONE")
    a.label("M_V")
    body("V")
    a("s_branch M_DONE")
    for t in pfs:
        a.label(f"M_PF{t}")
        a("s_call_b64 s[90:91], M_PFS", f"s_branch M_PR{t}")
    a.label("M_PFS")
    a(f"buffer_load_dword v60, v11, {sr(P_W2, 4)}, s87 offen", f"s_add_u32 s87, s87, {112 * 7168}",
      f"s_cmp_lt_u32 s87, {W2_BYTES}", "s_cbranch_scc1 M_PFR", f"s_sub_u32 s87, s87, {W2_BYTES}", "s_cmp_lt_u32 s87, %d" % (56 * 7168),
      "s_cbranch_scc0 M_PFR", f"buffer_load_dword v60, v11, {sr(P_WO, 4)}, s87 offen")
    a.label("M_PFR")
    a("s_setpc_b64 s[90:91]")
    a.label("M_DONE")
    stamp(a, 6)
    a("s_setprio 3", f"v_mov_b32 v61, {L_CNT + 64}", "ds_read_b32 v61, v61", "s_mov_b64 exec, 0xff",
      f"buffer_load_dword v60, v57, {sr(SWS, 4)}, 0 offen sc1", "s_mov_b64 exec, -1",
      "s_lshl_b32 s27, s49, 1", "s_add_u32 s27, s27, 23", "s_add_u32 s84, s51, 54", "s_cmp_eq_u32 s50, 7",
      "s_cselect_b32 s27, s84, s27", f"s_mul_i32 s84, s58, {ACT_RT}", "s_lshl_b32 s85, s27, 11",
      "s_add_u32 s84, s84, s85", f"s_add_u32 s84, s84, {OFF_ACT}", f"s_mul_i32 s85, s58, {FLG_N}",
      "s_add_u32 s85, s85, s27", "s_lshl_b32 s85, s85, 7", f"s_add_u32 s85, s85, {OFF_FLG + 21 * 128}",
      "v_lshlrev_b32 v4, 4, v1")
    for h in range(2):
        t = [T + 8 * h + 2 * k for k in range(4)]
        c = [ACB + 8 * h + 2 * k for k in range(4)]
        a(*[f"v_pk_mul_f32 {vr(t[k], 2)}, {vr(c[k], 2)}, {vr(c[k], 2)}" for k in range(4)])
        a(*[f"v_pk_fma_f32 {vr(t[k], 2)}, {vr(t[k], 2)}, v[6:7], v[6:7] op_sel:[0,0,1] op_sel_hi:[1,0,1]" for k in range(4)])
        a(*[f"v_pk_mul_f32 {vr(t[k], 2)}, {vr(c[k], 2)}, {vr(t[k], 2)}" for k in range(4)])
        a(*[f"v_exp_f32 v{t[0] + k}, v{t[0] + k}" for k in range(8)])
        a(*[f"v_pk_fma_f32 {vr(t[k], 2)}, {vr(t[k], 2)}, v[14:15], v[14:15] op_sel:[0,1,1] op_sel_hi:[1,1,1]" for k in range(4)])
        a(*[f"v_rcp_f32 v{t[0] + k}, v{t[0] + k}" for k in range(8)])
        a(*[f"v_pk_mul_f32 {vr(t[k], 2)}, {vr(c[k], 2)}, {vr(t[k], 2)}" for k in range(4)])
        a(*[f"v_cvt_pk_bf16_f32 v{32 + 4 * h + k}, v{t[k]}, v{t[k] + 1}" for k in range(4)])
        a(f"buffer_store_dwordx4 {vr(32 + 4 * h, 4)}, v4, {sr(SWS, 4)}, s84 offen offset:{1024 * h} sc1")
    a("s_waitcnt lgkmcnt(0)", "v_readfirstlane_b32 s47, v61", "s_setprio 0")


def lds_arrive(a, idx, vaddr, vtmp, val="1"):
    a(f"v_mov_b32 v{vaddr}, {L_CNT + 4 * idx}", f"v_mov_b32 v{vtmp}, {val}", "s_mov_b64 exec, 1",
      f"ds_add_u32 v{vaddr}, v{vtmp}", "s_mov_b64 exec, -1")


def lds_wait(a, tag, vaddr, vtmp, n=4):
    a(f"s_mov_b32 s27, {SPIN_MAX}")
    a.label(tag)
    a(f"ds_read_b32 v{vtmp}, v{vaddr}", "s_waitcnt lgkmcnt(0)", f"v_readfirstlane_b32 s88, v{vtmp}",
      "s_sub_u32 s27, s27, 1", f"s_cbranch_scc1 {tag}_X", f"s_cmp_lt_u32 s88, {n}", f"s_cbranch_scc1 {tag}")
    a.label(tag + "_X")


def poll(a, tag, vaddr, nl, vtmp=60):
    a(f"s_mov_b32 s27, {SPIN_MAX}", f"s_mov_b64 exec, {(1 << nl) - 1}", f"s_branch {tag}_L")
    a.label(tag)
    a("s_sleep 3")
    a.label(tag + "_L")
    a(f"buffer_load_dword v{vtmp}, v{vaddr}, {sr(SWS, 4)}, 0 offen sc1", "s_waitcnt vmcnt(0)",
      f"v_cmp_ne_u32 s[88:89], s47, v{vtmp}", "s_sub_u32 s27, s27, 1", f"s_cbranch_scc1 {tag}_X",
      "s_cmp_lg_u64 s[88:89], 0", f"s_cbranch_scc1 {tag}")
    a.label(tag + "_X")
    a("s_mov_b64 exec, -1")


def epoch_issue(a, vz, vtmp):
    srd(a, SC, P_DBG, 256)
    a(f"v_mov_b32 v{vz}, 0", f"buffer_load_dword v{vtmp}, v{vz}, {sr(SC, 4)}, 0 offen sc1")


def epoch_wait(a, tag, vz, vtmp, n0):
    a(f"s_mov_b32 s27, {SPIN_MAX}", f"s_waitcnt vmcnt({n0})", f"s_branch {tag}_L")
    a.label(tag)
    a("s_sleep 3", f"buffer_load_dword v{vtmp}, v{vz}, {sr(SC, 4)}, 0 offen sc1", "s_waitcnt vmcnt(0)")
    a.label(tag + "_L")
    a(f"v_readfirstlane_b32 s47, v{vtmp}", "s_sub_u32 s27, s27, 1", f"s_cbranch_scc1 {tag}_X",
      "s_cmp_eq_u32 s47, 0", f"s_cbranch_scc1 {tag}")
    a.label(tag + "_X")


def gen_attn(a):
    KF, OA, CN, CD, CO, VF = 128, 112, 200, 216, 232, 16
    SB3 = (64, 80, 96)
    PFR = (32, 40, 248)
    MS = 4
    ms = lambda i: sr(4 + 2 * i, 2) if i < 10 else sr(32 + 2 * (i - 10), 2)
    a("v_lshlrev_b32 v6, 2, v3", "v_sub_u32 v6, v2, v6", f"v_mov_b32 v7, {f32(-1e30)}")
    for i in range(16):
        a(f"v_cmp_le_i32 {ms(i)}, {(i & 3) + 8 * (i >> 2)}, v6")
    qld = [f"buffer_load_dwordx2 {vr(QF + 2 * g, 2)}, v59, {sr(SWS, 4)}, s74 offen offset:{g * 512} sc1" for g in range(4)]
    pubm = ["v_mov_b32 v10, s47", "v_mov_b32 v11, 0", "s_mov_b64 exec, 1",
            f"buffer_store_dword v10, v11, {sr(SWS, 4)}, s85 offen sc1", "s_mov_b64 exec, -1"]
    a("s_waitcnt vmcnt(2)", "v_cmp_ne_u32 s[88:89], s47, v60", "s_nop 0",
      "s_and_b32 s88, s88, 0xff", "s_cbranch_scc0 A_QOK", "s_waitcnt vmcnt(0)", *pubm)
    poll(a, "A_PQ", 57, 8)
    a.label("A_QOK")
    a(*qld)
    for i in range(16):
        a(f"v_cndmask_b32 v{CD + i}, v7, 0, {ms(i)}", f"v_cndmask_b32 v{CO + i}, 0, v7, {ms(i)}")
    a("s_lshl_b32 s44, s3, 12", f"s_add_u32 s44, s44, {L_ATT}", "v_add_u32 v12, s44, v59",
      "v_mul_u32_u24 v9, 448, v3", "v_lshl_add_u32 v8, v2, 4, v9", "v_add_u32 v9, 896, v8",
      "v_cmp_gt_u32 vcc, 28, v2", "v_mov_b32 v10, 1792", "s_add_u32 s44, s44, 2048",
      "v_cndmask_b32 v8, v10, v8, vcc", "v_cndmask_b32 v9, v10, v9, vcc",
      "v_add_u32 v13, s44, v8", "v_add_u32 v14, s44, v9", "v_mov_b32 v15, v7")
    a("s_waitcnt vmcnt(4)", *pubm)
    stamp(a, 7)
    a("s_barrier")
    a("s_lshl_b32 s27, s3, 2", f"s_add_u32 s27, s27, {L_CNT + 80}", "v_mov_b32 v5, s27", "ds_read_b32 v5, v5")
    a("v_mov_b32 v8, 0x3f803f80", "v_mov_b32 v9, 0x3f803f80", "v_mov_b32 v10, 0x3f803f80",
      "v_mov_b32 v11, 0x3f803f80", "v_min_u32 v16, 2, v1",
      "v_lshl_add_u32 v16, v16, 12, s73", "ds_write_b128 v16, v[8:11] offset:3840",
      "v_lshl_add_u32 v16, v1, 2, s73", "v_and_b32 v6, 1, v1", "v_cmp_eq_u32 vcc, 0, v6")
    for i in range(3):
        a(f"s_cmp_lt_u32 s{75 + i}, 0x40000000", "s_cselect_b32 s27, 0, 0xf149", "v_mov_b32 v6, s27",
          f"v_cndmask_b32 v{17 + i}, 0, v6, vcc", f"ds_write_b32 v16, v{17 + i} offset:{1792 + 4096 * i}")
    a("s_waitcnt lgkmcnt(4)", "v_readfirstlane_b32 s82, v5", "v_cmp_eq_u32 vcc, 0, v3", "v_mov_b32 v5, 0x3f80",
      "s_bitcmp1_b32 s82, 1", "s_cbranch_scc1 A_NVQ",
      "s_mov_b64 exec, 0x3f", f"buffer_load_dword v61, v56, {sr(SWS, 4)}, 0 offen sc1", "s_mov_b64 exec, -1")
    a.label("A_NVQ")
    a("s_bitcmp1_b32 s82, 0", "s_cselect_b32 s84, 1, 2", "s_cbranch_scc1 A_KD", *stage_kv(OFF_K, 0, 4, 73, 75))
    a.label("A_KD")
    a("s_waitcnt vmcnt(0) lgkmcnt(0)")
    stamp(a, 8)
    lds_arrive(a, 0, 8, 9, "s84")
    vstage = stage_kv(OFF_V, 2048, 4, 73, 75)
    a("s_bitcmp1_b32 s82, 1", "s_cselect_b32 s84, 0, 1", "s_cselect_b32 s83, 1, 0", "s_cbranch_scc1 A_VL",
      "v_cmp_ne_u32 s[88:89], s47, v61", "s_nop 0", "s_and_b32 s88, s88, 0x3f", "s_cbranch_scc1 A_VL",
      *vstage, "s_mov_b32 s83, 1")
    a.label("A_VL")
    a(f"v_cndmask_b32 v{QF + 6}, v5, v{QF + 6}, vcc", f"v_cndmask_b32 v{QF + 7}, 0, v{QF + 7}, vcc")
    lds_wait(a, "A_LB0", 8, 9, 8)
    stamp(a, 9)

    def kread(i):
        return [f"ds_read_b64 {vr(KF + 8 * i + 2 * g, 2)}, v12 offset:{(8 - i) * 4096 + g * 512}" for g in range(4)]

    def smm(i, c):
        s = SB3[i % 3]
        return [mfma(s, KF + 8 * i, QF, c), mfma(s, KF + 8 * i + 4, QF + 4, s)]

    def smax(i):
        s = SB3[i % 3]
        return [f"v_max3_f32 v15, v{s + 2 * k}, v{s + 2 * k + 1}, v15" for k in range(8)]

    a(*kread(0), *kread(1), *kread(2))
    for i in range(11):
        mx = smax(i - 2) if i >= 2 else ["s_nop 1"] * 4
        h = len(mx) // 2
        if i < 9:
            mm = smm(i, CD if i == 0 else (CO if i == 8 else "0"))
            a(f"s_waitcnt lgkmcnt({4 * (min(8, i + 2) - i)})", mm[0])
            if i + 3 <= 8:
                a(*kread(i + 3))
            a(*mx[:h], mm[1], *mx[h:])
        else:
            if i == 10:
                a("s_nop 1")
            a(*mx)
    stamp(a, 10)
    a("v_mov_b32 v8, v15", "s_cmp_eq_u32 s83, 1", "s_nop 0", "v_permlane32_swap_b32 v8, v15", "v_max_f32 v15, v8, v15",
      "v_xor_b32 v15, 0x80000000, v15")
    for i in range(16):
        a(f"v_cndmask_b32 v{CD + i}, v7, v15, {ms(i)}")
    mm = smm(0, CD)
    a("s_nop 1", mm[0])
    for i in range(16):
        a(f"v_mov_b32 v{CN + i}, v15")
        if i == 5:
            a(mm[1])
    a("s_cbranch_scc1 A_VD")
    poll(a, "A_PV", 56, 6)
    a(*vstage)
    a.label("A_VD")
    a("s_nop 0")

    def vread(i):
        b = VF + 8 * (i & 1)
        return [f"ds_read_b128 {vr(b, 4)}, v13 offset:{(8 - i) * 4096}",
                f"ds_read_b128 {vr(b + 4, 4)}, v14 offset:{(8 - i) * 4096}"]

    def pexp(i):
        s = SB3[i % 3]
        p = PFR[i % 3]
        o = []
        for h in range(2):
            o += [f"v_exp_f32 v{s + 8 * h + k}, v{s + 8 * h + k}" for k in range(8)]
            o += [f"v_cvt_pk_bf16_f32 v{p + 4 * h + k}, v{s + 8 * h + 2 * k}, v{s + 8 * h + 2 * k + 1}"
                  for k in range(4)]
        return o

    def pv(i):
        p = PFR[i % 3]
        b = VF + 8 * (i & 1)
        return [mfma(OA, b, p, "0" if i == 0 else OA), mfma(OA, b + 4, p + 4, OA)]

    for i in range(9):
        ex = pexp(i)
        if i == 0:
            ex = ex + [f"v_cndmask_b32 v{CO + k}, v15, v7, {ms(k)}" for k in range(16)]
        ins = {}
        if i < 8:
            mm = smm(i + 1, CO if i + 1 == 8 else CN)
            ins[0] = [mm[0]]
            ins[5] = [mm[1]]
        if i == 2:
            a("s_waitcnt vmcnt(0)")
            lds_arrive(a, 1, 8, 9, "s84")
            lds_wait(a, "A_LB1", 8, 9)
            a(*vread(0), *vread(1))
        if 2 <= i < 8:
            pp = pv(i - 2)
            ins[12] = ["s_waitcnt lgkmcnt(2)", pp[0]]
            ins[17] = [pp[1]] + vread(i)
        if i == 8:
            p6, p7 = pv(6), pv(7)
            ins[0] = ["s_waitcnt lgkmcnt(2)", p6[0]]
            ins[5] = [p6[1]] + vread(8)
            ins[10] = ["s_waitcnt lgkmcnt(2)", p7[0]]
            ins[15] = [p7[1]]
            ins[20] = ["s_waitcnt lgkmcnt(0)", pv(8)[0]]
        for k, e in enumerate(ex):
            a(*ins.get(k, []))
            a(e)
    a("s_nop 1", pv(8)[1])
    a.label("A_FIN")
    stamp(a, 11)
    PF = 32
    a(f"s_mul_i32 s41, s71, {ACT_RT}", "s_lshl_b32 s42, s70, 11", "s_add_u32 s41, s41, s42",
      f"s_add_u32 s41, s41, {OFF_ACT + 112 * 1024}", f"s_mul_i32 s42, s71, {FLG_RT}", "s_lshl_b32 s27, s70, 7",
      "s_add_u32 s42, s42, s27", f"s_add_u32 s42, s42, {OFF_FLG + 77 * 128}",
      "v_mov_b32 v10, s47", "v_mov_b32 v11, 0", "s_nop 1")
    a(f"v_mov_b32 v8, v{OA + 12}", f"v_mov_b32 v9, v{OA + 12}", "s_nop 1", "v_permlane32_swap_b32 v8, v9",
      "v_rcp_f32 v9, v9", "s_nop 0")
    for h in range(2):
        for i in range(8 * h, 8 * h + 8):
            a(f"v_mul_f32 v{OA + i}, v9, v{OA + i}")
        for k in range(4 * h, 4 * h + 4):
            a(f"v_cvt_pk_bf16_f32 v{PF + k}, v{OA + 2 * k}, v{OA + 2 * k + 1}")
        if h:
            a(f"v_cndmask_b32 v{PF + 6}, 0, v{PF + 6}, vcc", f"v_cndmask_b32 v{PF + 7}, 0, v{PF + 7}, vcc")
        a(f"buffer_store_dwordx4 {vr(PF + 4 * h, 4)}, v4, {sr(SWS, 4)}, s41 offen offset:{1024 * h} sc1")
    a("s_waitcnt vmcnt(0)", "s_mov_b64 exec, 1",
      f"buffer_store_dword v10, v11, {sr(SWS, 4)}, s42 offen sc1", "s_mov_b64 exec, -1")
    stamp_out(a)
    a("s_endpgm")


G_R = 10
G_RW = 13
G_RES = 192
G_P1 = 3
HLEAD = 3
G_MW = 9
GX, GWO, GW2, GOUT = 4, 8, 16, 20
PUB = ["s_and_b32 exec_lo, s65, 3", "s_mov_b32 exec_hi, 0", f"buffer_store_dword v58, v62, {sr(SWS, 4)}, s62 offen sc1",
       "s_mov_b64 exec, -1"]
HCHK = {8: 24, 14: 28}
OCHK = {12: 17, 17: 22}


def gen_aux(a):
    AC, T, P, RV = 64, 16, 48, 240
    SWQ, SW1 = SA, SB
    a("s_setprio 3", "s_mov_b32 s59, s49", "s_lshl_b32 s69, s49, 7", "s_mul_i32 s27, s55, 56",
      "v_min_u32 v16, 55, v1", "v_add_u32 v16, s27, v16", "v_mul_u32_u24 v17, 2688, v16",
      "s_add_u32 s60, s49, 16", "s_sub_u32 s27, s49, 5",
      "s_cmp_lt_u32 s49, 5", "s_cselect_b32 s60, s60, s27", "s_add_u32 s61, s49, 11", "v_lshlrev_b32 v12, 2, v1")
    a("s_waitcnt lgkmcnt(0)")
    stamp(a, 0, rt=True)
    stamp(a, 1)
    srd(a, SWQ, P_WQKV, WQKV_BYTES)
    if "notouch0" not in EXP:
        a("s_cmp_eq_u32 s26, 0", "s_cbranch_scc0 X_WD", f"buffer_load_dword v17, v17, {sr(SWQ, 4)}, s69 offen")
    a.label("X_WD")
    srd(a, SW1, P_W1, W1_BYTES)
    srd(a, SWS, P_WS, WS_BYTES)
    a("s_lshl_b32 s27, s2, 3", "s_add_u32 s27, s27, s3", "s_cmp_eq_u32 s27, 7", "s_cbranch_scc0 X_NOEP")
    srd(a, SC, P_DBG, 256)
    a(f"v_mov_b32 v20, {OFF_EPOCH}", "v_mov_b32 v22, 0", "s_mov_b64 exec, 1",
      f"buffer_load_dword v21, v20, {sr(SWS, 4)}, 0 offen sc1", "s_waitcnt vmcnt(0)",
      "v_add_u32 v21, 1, v21", "v_max_u32 v21, 1, v21",
      f"buffer_store_dword v21, v22, {sr(SC, 4)}, 0 offen sc1",
      f"buffer_store_dword v21, v20, {sr(SWS, 4)}, 0 offen sc1", "s_mov_b64 exec, -1")
    a.label("X_NOEP")
    a("s_cmp_eq_u32 s3, 5", "s_cbranch_scc0 X_PRE")
    srd(a, SC, P_B1, 3584)
    a("s_mov_b32 exec_hi, 0", f"s_mov_b32 m0, {L_BIAS + 128}", "s_lshl_b32 s27, s60, 7",
      f"buffer_load_dword v12, {sr(SC, 4)}, s27 offen lds",
      f"s_mov_b32 m0, {L_BIAS + 256}", "s_lshl_b32 s27, s61, 7",
      f"buffer_load_dword v12, {sr(SC, 4)}, s27 offen lds",
      f"s_mov_b32 m0, {L_BIAS + 384}", "s_lshl_b32 s27, s51, 6", f"s_add_u32 s27, s27, {27 * 128}",
      f"buffer_load_dword v12, {sr(SC, 4)}, s27 offen lds", "s_mov_b32 exec_hi, -1",
      f"v_add_u32 v20, {L_CNT}, v12", "v_mov_b32 v21, 0", "ds_write_b32 v20, v21")
    a.label("X_PRE")
    a(f"s_setprio {1 if 'auxprio' in EXP else 0}")
    a("v_bfe_u32 v15, v1, 2, 3", "v_lshlrev_b32 v13, 6, v3", "v_and_b32 v14, 3, v1", "v_lshl_add_u32 v13, v14, 4, v13",
      "v_mul_u32_u24 v4, 2688, v15", "v_add_u32 v4, v4, v13", "v_mul_u32_u24 v8, 3584, v15", "v_add_u32 v8, v8, v13")
    for k in range(1, 4):
        a(f"v_add_u32 v{4 + k}, {k * (8 * 2688 - 1024)}, v4", f"v_add_u32 v{8 + k}, {k * (8 * 3584 - 1024)}, v8")
    a(f"s_mul_i32 s27, s58, {FLG_RT}", f"s_add_u32 s27, s27, {OFF_FLG}",
      "s_lshl_b32 s62, s49, 7", "s_add_u32 s62, s62, s27", "s_lshl_b32 s64, s49, 8", "s_add_u32 s64, s64, s27",
      f"s_add_u32 s63, s64, {11 * 128}", f"s_add_u32 s64, s64, {43 * 128}", "s_add_u32 s27, s62, 2048",
      "s_cmp_lt_u32 s49, 5", "s_cselect_b32 s63, s27, s63", "s_cselect_b32 s65, 5, 13",
      "s_cmp_eq_u32 s50, 7", "s_cselect_b32 s27, 48, 16", "s_or_b32 s65, s65, s27")
    a(f"s_mul_i32 s66, s26, {56 * 2688}", f"s_mul_i32 s67, s26, {56 * 3584}", "s_mul_i32 s68, s26, 7168",
      "v_lshlrev_b32 v13, 4, v1", "v_lshlrev_b32 v14, 3, v1")
    a(f"s_mul_i32 s76, s58, {RT}", f"s_mul_i32 s77, s58, {ACT_RT}", f"s_add_u32 s77, s77, {OFF_ACT}",
      f"s_add_u32 s78, s76, {OFF_V}",
      "s_lshl_b32 s72, s49, 12", f"s_add_u32 s27, s72, {OFF_K - 7 * 4096}", "s_cmp_ge_u32 s49, 7",
      "s_cselect_b32 s72, s27, s72", "s_add_u32 s72, s72, s76",
      "s_sub_u32 s27, s49, 14", "s_lshl_b32 s27, s27, 10", "s_add_u32 s27, s27, s78",
      "s_cmp_ge_u32 s49, 14", "s_cselect_b32 s72, s27, s72",
      "s_add_u32 s27, s49, 2", "s_lshl_b32 s27, s27, 10", "s_add_u32 s27, s27, s78",
      "s_lshl_b32 s73, s60, 12", "s_add_u32 s73, s73, s77", "s_cmp_lt_u32 s49, 5", "s_cselect_b32 s73, s27, s73",
      "s_lshl_b32 s74, s61, 12", "s_add_u32 s74, s74, s77",
      "v_mul_u32_u24 v15, 448, v3", "v_lshl_add_u32 v15, v2, 4, v15", "s_movk_i32 s79, 1344",
      "s_lshl_b32 s27, s26, 13", "v_add_u32 v56, s27, v12", "v_add_u32 v56, 4096, v56", "v_mov_b32 v59, 0",
      "v_lshlrev_b32 v62, 7, v1")
    gemm_setup(a)

    def dma(ffn, src, slot):
        vb, pitch, w, wo = (8, 3584, SW1, 67) if ffn else (4, 2688, SWQ, 66)
        o = [f"s_add_u32 m0, s68, {slot}", f"s_add_u32 s27, {src}, s{wo}"]
        o += [f"buffer_load_dwordx4 v{vb + k}, {sr(w, 4)}, s27 offen offset:{k * 1024} lds" for k in range(4)]
        o += ["s_add_u32 m0, m0, 4096", f"s_add_u32 s27, s27, {32 * pitch}"]
        o += [f"buffer_load_dwordx4 v{vb + k}, {sr(w, 4)}, s27 offen offset:{k * 1024} lds" for k in range(3)]
        return o

    a("s_lshl_b32 s69, s59, 7", f"s_add_u32 s70, s69, {224 * 2688}", "s_lshl_b32 s71, s60, 7", "s_waitcnt lgkmcnt(0)")
    if "st0early" in EXP:
        a(*dma(False, "s69", L_S0))
    stamp(a, 2)
    a("s_barrier")
    stamp(a, 3)
    if "st0early" not in EXP:
        a(*dma(False, "s69", L_S0))
    a(*dma(False, "s70", L_S1))
    a("s_cmp_lt_u32 s49, 5", "s_cbranch_scc0 X_R1F", *dma(False, "s71", L_S2), "s_branch X_R1D")
    a.label("X_R1F")
    a(*dma(True, "s71", L_S2))
    a.label("X_R1D")
    a(f"buffer_load_dword v58, v59, {sr(SC, 4)}, 0 offen sc1", "s_waitcnt vmcnt(15)")
    stamp(a, 4)
    a("s_barrier")
    c0, c1 = GC0, GC1
    a("s_lshl_b32 s27, s26, 8", f"s_add_u32 s27, s27, {L_STAT}", "v_lshl_add_u32 v16, v2, 2, s27",
      "v_lshl_add_u32 v17, v3, 4, s27", "ds_read_b32 v40, v16", "ds_read_b32 v41, v16 offset:128",
      f"v_mov_b32 v18, {L_CNT + 64}")
    for g in range(4):
        a(f"ds_read_b128 {vr(RV + 4 * g, 4)}, v17 offset:{g * 32}")
    a("s_waitcnt vmcnt(8)", "s_barrier")
    a("s_cmp_lt_u32 s49, 5", "s_cbranch_scc0 X_R3F", f"s_add_u32 s71, s71, {224 * 2688}",
      *dma(False, "s71", L_S3), "s_branch X_R3D")
    a.label("X_R3F")
    a(f"s_add_u32 s71, s71, {224 * 3584}", *dma(True, "s71", L_S3))
    a.label("X_R3D")
    XR = 80
    if "noxres" in EXP:
        a("s_mov_b32 s6, 0")
    a(f"buffer_load_dwordx4 {vr(XR, 4)}, v44, {sr(GX, 4)}, s15 offen",
      f"buffer_load_dwordx4 {vr(XR + 4, 4)}, v44, {sr(GX, 4)}, s15 offen offset:32",
      f"buffer_load_dwordx4 {vr(XR + 8, 4)}, v39, {sr(SD, 4)}, s101 offen",
      f"buffer_load_dwordx4 {vr(XR + 12, 4)}, v39, {sr(SD, 4)}, s101 offen offset:32")
    a("s_cmp_lt_u32 s49, 7", f"s_cselect_b32 s27, {f32(28 ** -0.5 * 1.4426950408889634)}, 1.0",
      "s_waitcnt lgkmcnt(0)",
      f"v_mul_f32 v42, {f32(c0)}, v40", "v_mul_f32 v43, v40, v40", "v_mul_f32 v43, v43, v40",
      f"v_mul_f32 v43, {f32(c1)}, v43", "v_mul_f32 v40, s27, v40")
    a("s_lshl_b32 s88, s52, 1", "s_and_b32 s27, s53, 1", "s_add_u32 s88, s88, s27",
      "s_lshr_b32 s27, s53, 1", "s_lshl_b32 s27, s27, 2", "s_mul_i32 s32, s26, 3", "s_add_u32 s89, s27, s32",
      "s_sub_u32 s89, s89, 8", "s_lshl_b32 s32, s32, 12", f"s_add_u32 s32, s32, {L_ATT}", "s_mul_i32 s90, s88, 1792")
    for i in range(3):
        a(f"s_add_u32 s27, s89, {i}", f"s_mul_i32 s{33 + i}, s27, {RT}", f"s_add_u32 s{33 + i}, s{33 + i}, s90",
          "s_cmp_lt_i32 s27, 0", f"s_cselect_b32 s{33 + i}, 0x40000000, s{33 + i}")
    a("s_mul_i32 s27, s88, 28", "s_lshr_b32 s90, s27, 6", "s_add_u32 s27, s27, 27", "s_lshr_b32 s27, s27, 6",
      "s_sub_u32 s27, s27, s90", "v_and_b32 v16, 1, v1", "v_mul_u32_u24 v16, s27, v16", "v_add_u32 v16, s90, v16",
      "v_bfe_u32 v17, v1, 1, 2", "v_add_u32 v17, s89, v17", "v_max_i32 v17, 0, v17",
      f"v_mul_u32_u24 v17, {FLG_N}, v17", "v_add_u32 v16, v16, v17", "v_bfe_u32 v17, v1, 3, 1",
      "v_mul_u32_u24 v17, 7, v17", "v_add_u32 v16, v16, v17", "v_lshlrev_b32 v16, 7, v16",
      f"v_add_u32 v39, {OFF_FLG + 7 * 128}, v16")
    epoch_wait(a, "X_EP", 59, 58, 11)
    a("ds_write_b32 v18, v58")
    a("s_mov_b32 s80, 0", "s_mov_b32 s85, 0", "s_mov_b32 s81, s54", "s_lshl_b32 s82, s61, 7",
      f"s_mov_b32 s83, {168 | 112 << 8 | 0 << 16 | 56 << 24}",
      "s_sub_u32 s84, s50, 5", "s_lshl_b32 s84, s84, 1", "s_sub_u32 s86, s50, 1",
      "s_waitcnt lgkmcnt(0)")
    a.label("X_TILE")
    a("s_barrier")
    lstamp(a, "s80", 0)
    for q in range(8):
        a(f"ds_read2st64_b32 {vr(AC + 2 * q, 2)}, v56 offset0:{2 * q} offset1:{2 * q + 1}")
    pub = PUB + ["s_mov_b32 s62, s63", "s_mov_b32 s63, s64", "s_lshr_b32 s65, s65, 2", "s_mov_b32 s85, 0"]
    a("v_xor_b32 v56, 4096, v56", "s_cmp_eq_u32 s85, 1", "s_cbranch_scc0 X_NOE",
      "s_waitcnt vmcnt(7)", "s_cbranch_vccnz X_E2", "s_waitcnt vmcnt(0)")
    a.label("X_E2")
    a(*pub)
    a.label("X_NOE")
    a("s_bitcmp1_b32 s81, 1", "s_cbranch_scc0 X_QKV")
    for g in range(4):
        t = [T + 4 * (g & 1) + k for k in range(4)]
        s = [AC + 4 * g + k for k in range(4)]
        a(f"s_waitcnt lgkmcnt({6 - 2 * g})")
        a(*[f"v_mul_f32 v{t[k]}, v{s[k]}, v{s[k]}" for k in range(4)])
        a(*[f"v_fma_f32 v{t[k]}, v{t[k]}, v43, v42" for k in range(4)])
        a(*[f"v_mul_f32 v{t[k]}, v{s[k]}, v{t[k]}" for k in range(4)])
        a(*[f"v_exp_f32 v{t[k]}, v{t[k]}" for k in range(4)])
        a(*[f"v_fma_f32 v{t[k]}, v{t[k]}, v41, v41" for k in range(4)])
        a(*[f"v_rcp_f32 v{t[k]}, v{t[k]}" for k in range(4)])
        a(*[f"v_mul_f32 v{t[k]}, v{s[k]}, v{t[k]}" for k in range(4)])
        a(f"v_cvt_pk_bf16_f32 v{P + 2 * g}, v{t[0]}, v{t[1]}", f"v_cvt_pk_bf16_f32 v{P + 2 * g + 1}, v{t[2]}, v{t[3]}")
        if g & 1:
            a(f"buffer_store_dwordx4 {vr(P + 2 * g - 2, 4)}, v13, {sr(SWS, 4)}, s72 offen offset:{(g >> 1) * 1024} sc1")
        if g == 2:
            a("s_cmp_eq_u32 s80, 4", "s_cbranch_scc1 X_MID")
            a.label("X_MIDR")
    a("s_add_u32 s72, s72, 2048", "s_cmp_eq_u32 s84, 0", "s_cbranch_scc0 X_W2", "s_cbranch_vccz X_NEXT")
    a.label("X_W2")
    a("s_waitcnt vmcnt(2)")
    a.label("X_NEXT")
    a("s_bitcmp1_b32 s80, 0", "s_cbranch_scc1 X_ODD")
    a.label("X_ADV")
    a("s_cmp_eq_u32 s84, 0", "s_cselect_b64 vcc, 0, -1", "s_cbranch_scc0 X_DMA")
    a.label("X_ADV2")
    a("s_lshr_b32 s81, s81, 2", "s_add_u32 s80, s80, 1", "s_cmp_lt_u32 s80, s86", "s_cbranch_scc1 X_TILE",
      "s_branch X_DONE")
    a.label("X_MID")
    a("s_cmp_eq_u32 s85, 2", "s_cbranch_scc0 X_MID2", "s_waitcnt vmcnt(1)", *pub)
    a.label("X_MID2")
    a("s_mov_b64 exec, 0x3f3f", f"buffer_load_dword v61, v39, {sr(SWS, 4)}, 0 offen sc1", "s_mov_b64 exec, -1",
      "s_branch X_MIDR")
    a.label("X_ODD")
    a("s_mov_b32 s72, s73", "s_mov_b32 s73, s74",
      "s_bitcmp1_b32 s81, 1", "s_cselect_b32 s85, 2, 1", "s_branch X_ADV")
    a.label("X_DMA")
    a("s_and_b32 s69, s83, 0xff", "s_lshl_b32 s69, s69, 9", f"s_add_u32 s69, s69, {L_S2}", "s_lshr_b32 s83, s83, 8",
      *dma(True, "s82", "s69"),
      "s_sub_u32 s84, s84, 1", f"s_add_u32 s82, s82, {224 * 3584}", "s_cmp_eq_u32 s80, 1",
      f"s_cselect_b32 s82, {27 * 128}, s82", "s_branch X_ADV2")
    a.label("X_QKV")
    a("s_bitcmp1_b32 s81, 0", "s_cbranch_scc1 X_V")
    for g in range(4):
        a(f"s_waitcnt lgkmcnt({6 - 2 * g})")
        for k in range(4):
            a(f"v_mul_f32 v{T + 4 * g + k}, v40, v{AC + 4 * g + k}")
        a(f"v_cvt_pk_bf16_f32 v{P + 2 * g}, v{T + 4 * g}, v{T + 4 * g + 1}",
          f"v_cvt_pk_bf16_f32 v{P + 2 * g + 1}, v{T + 4 * g + 2}, v{T + 4 * g + 3}",
          f"buffer_store_dwordx2 {vr(P + 2 * g, 2)}, v14, {sr(SWS, 4)}, s72 offen offset:{g * 512} sc1")
    a("s_add_u32 s72, s72, 2048", "s_waitcnt vmcnt(4)", "s_branch X_NEXT")
    a.label("X_V")
    a("s_sub_u32 s27, s72, s78", "s_lshr_b32 s27, s27, 4", "v_add_u32 v57, s27, v2",
      "v_mul_u32_u24 v57, 2341, v57", "v_lshrrev_b32 v57, 16, v57", "v_mad_u32_u24 v57, v57, s79, v15")
    for s in range(2):
        a(f"s_waitcnt lgkmcnt({4 - 4 * s})")
        for k in range(8):
            a(f"v_mul_f32 v{T + 8 * s + k}, v{RV + 8 * s + k}, v{AC + 8 * s + k}")
        for k in range(4):
            a(f"v_cvt_pk_bf16_f32 v{P + 4 * s + k}, v{T + 8 * s + 2 * k}, v{T + 8 * s + 2 * k + 1}")
        a(f"buffer_store_dwordx4 {vr(P + 4 * s, 4)}, v57, {sr(SWS, 4)}, s72 offen offset:{s * 896} sc1")
    a("s_add_u32 s72, s72, 512", "s_waitcnt vmcnt(2)", "s_branch X_NEXT")
    a.label("X_DONE")
    stamp(a, 5)


def gemm_setup(a):
    srd(a, SD, P_B2, 896)
    srd(a, SC, P_DBG, 256)
    a(f"s_mov_b32 s{GX + 2}, {X_BYTES}", f"s_mov_b32 s{GX + 3}, 0x20000",
      "s_lshl_b32 s88, s52, 2", "s_and_b32 s27, s53, 3", "s_add_u32 s88, s88, s27", "s_lshr_b32 s89, s53, 2",
      "s_and_b32 s90, s26, 1", "s_lshr_b32 s91, s26, 1", "s_lshl_b32 s27, s88, 1",
      "s_add_u32 s44, s27, s90", "s_xor_b32 s45, s44, 1", "s_lshl_b32 s89, s89, 7",
      "s_lshl_b32 s101, s91, 6", "s_add_u32 s101, s101, s89", f"s_mul_i32 s15, s44, {RT}", "s_add_u32 s15, s15, s101",
      "v_lshlrev_b32 v39, 4, v3", "v_mul_u32_u24 v44, 896, v2", "v_add_u32 v44, v44, v39",
      f"s_mov_b32 s{GWO + 2}, {WO_BYTES}", f"s_mov_b32 s{GWO + 3}, 0x20000",
      f"s_mov_b32 s{GW2 + 2}, {W2_BYTES}", f"s_mov_b32 s{GW2 + 3}, 0x20000",
      f"s_mov_b32 s{GOUT + 2}, {X_BYTES}", f"s_mov_b32 s{GOUT + 3}, 0x20000")
    a("v_bfe_u32 v46, v1, 2, 2", "v_bfe_u32 v47, v1, 4, 1", "v_lshl_add_u32 v46, v47, 3, v46",
      "v_mul_u32_u24 v32, 896, v46", "v_lshl_add_u32 v32, v3, 6, v32", "v_and_b32 v46, 3, v1",
      "v_lshl_add_u32 v32, v46, 4, v32", f"v_add_u32 v33, {4 * 896 - 1024}, v32")
    a(f"s_mul_i32 s88, s88, {2 * FLG_RT}", f"s_add_u32 s88, s88, {OFF_FLG}",
      "v_and_b32 v46, 1, v1", f"v_mul_u32_u24 v46, {FLG_N}, v46", "v_bfe_u32 v47, v1, 2, 3", "v_lshlrev_b32 v47, 3, v47",
      "v_bfe_u32 v45, v1, 1, 1", "v_add3_u32 v47, v47, v45, v46", "s_lshl_b32 s27, s26, 1", "s_add_u32 s27, s27, 21",
      "v_add_u32 v47, s27, v47", "v_lshlrev_b32 v47, 7, v47", "v_add_u32 v36, s88, v47",
      "v_bfe_u32 v47, v1, 1, 2", "v_add_u32 v46, v46, v47",
      "s_lshl_b32 s27, s26, 2", "s_add_u32 s27, s27, 77", "v_add_u32 v46, s27, v46", "v_lshlrev_b32 v46, 7, v46",
      "v_add_u32 v37, s88, v46")
    a(f"s_mul_i32 s12, s26, {64 * 896}", "s_add_u32 s12, s12, s89",
      f"s_mul_i32 s13, s26, {112 * 896}", "s_add_u32 s13, s13, s89",
      "s_mul_i32 s14, s26, 18432", f"s_add_u32 s14, s14, {L_RING}",
      f"s_mul_i32 s44, s44, {ACT_RT}", f"s_mul_i32 s45, s45, {ACT_RT}",
      "s_lshl_b32 s27, s26, 13", f"s_add_u32 s27, s27, {OFF_ACT + 112 * 1024}",
      "s_add_u32 s46, s44, s27", "s_add_u32 s100, s45, s27",
      "s_lshl_b32 s27, s26, 12", f"s_add_u32 s27, s27, {OFF_ACT}", "s_add_u32 s44, s44, s27", "s_add_u32 s45, s45, s27")
    a("v_and_b32 v46, 1, v1", "v_bfe_u32 v47, v1, 1, 1", "v_lshl_add_u32 v46, v46, 1, v47",
      "v_bfe_u32 v47, v1, 4, 1", "v_lshl_add_u32 v46, v47, 2, v46",
      "v_bfe_u32 v47, v1, 2, 2", "v_lshlrev_b32 v47, 6, v47", "v_lshl_add_u32 v46, v46, 3, v47",
      "v_lshl_add_u32 v46, v3, 10, v46", "s_lshl_b32 s27, s91, 9", "s_add_u32 s27, s27, s14",
      "v_add_u32 v34, s27, v46", "v_xor_b32 v35, 512, v34")
    a("v_add_u32 v38, s14, v13")
    for t in range(1, 4):
        a(f"s_xor_b32 s27, s26, {t}", "s_mul_i32 s27, s27, 18432", f"s_add_u32 s27, s27, {L_RING}",
          f"v_add_u32 v{44 + t}, s27, v13")


def gemm_res(a):
    XR, RES, TM = 80, 64, 16
    for k in range(8):
        a(f"v_lshlrev_b32 v{RES + 2 * k}, 16, v{XR + k}", f"v_and_b32 v{RES + 2 * k + 1}, 0xffff0000, v{XR + k}",
          f"v_lshlrev_b32 v{TM + 2 * k}, 16, v{XR + 8 + k}", f"v_and_b32 v{TM + 1 + 2 * k}, 0xffff0000, v{XR + 8 + k}")
    for i in range(16):
        a(f"v_add_f32 v{RES + i}, v{RES + i}, v{TM + i}")


def gen_gemm(a):
    R, RW = G_R, G_RW
    AC, OR, XR = 64, 192, 16
    WFR = (4, 48)
    NK = 36
    PK0, PK1 = RW, RW + 16
    areg = lambda k: (128 + 8 * (k % R)) if (k % R) < 8 else (16 + 8 * (k % R - 8))
    preg = lambda k: OR + 8 * ((k - PK0) % 8)
    pub = PUB
    a("s_cmp_lt_u32 s53, 28", "s_cbranch_scc1 G_GO", "s_waitcnt vmcnt(0)", *pub, "s_barrier")
    stamp_out(a)
    a("s_endpgm")
    a.label("G_GO")

    def req(v, nl, dst=60):
        return [f"s_mov_b64 exec, {(1 << nl) - 1}", f"buffer_load_dword v{dst}, v{v}, {sr(SWS, 4)}, 0 offen sc1",
                "s_mov_b64 exec, -1"]

    def chk(mask, target, src=60):
        return [f"v_cmp_ne_u32 s[88:89], s47, v{src}", "s_nop 0", f"s_and_b32 s88, s88, {mask}", f"s_cbranch_scc0 {target}"]

    def kpos(k):
        return (k >> 2) * 16 + (k & 3)

    def issue_w(k):
        sl = k % RW
        park = PK0 <= k < PK1
        o = [] if park else [f"s_add_u32 m0, s14, {(sl - 4) * 2048}" if sl >= 4 else f"s_add_u32 m0, s72, {sl * 2048}"]
        if k < 28:
            o += [f"s_add_u32 s27, s12, {kpos(k) * 16 * 896}"]
            w = GW2
        else:
            kk = k - 28
            o += [f"s_add_u32 s27, s13, {((kk >> 1) * 28 + (kk & 1) * 16) * 896}"]
            w = GWO
        if park:
            return o + [f"buffer_load_dwordx4 {vr(preg(k), 4)}, v32, {sr(w, 4)}, s27 offen",
                        f"buffer_load_dwordx4 {vr(preg(k) + 4, 4)}, v33, {sr(w, 4)}, s27 offen offset:1024"]
        return o + [f"buffer_load_dwordx4 v32, {sr(w, 4)}, s27 offen lds",
                    f"buffer_load_dwordx4 v33, {sr(w, 4)}, s27 offen offset:1024 lds"]

    def dump(k):
        sl = k % RW
        va, off = (38, (sl - 4) * 2048) if sl >= 4 else (43, sl * 2048)
        return [f"ds_write_b128 v{va}, {vr(preg(k), 4)} offset:{off}",
                f"ds_write_b128 v{va}, {vr(preg(k) + 4, 4)} offset:{off + 1024}"]

    def issue_a(k):
        r = areg(k)
        off = (k & 3) * 1024
        o = []
        if k & 3 == 0:
            o = [f"s_add_u32 s70, s44, {kpos(k) * 1024}", f"s_add_u32 s71, s45, {kpos(k) * 1024}"]
        return o + [f"buffer_load_dwordx4 {vr(r, 4)}, v13, {sr(SWS, 4)}, s70 offen offset:{off} sc1",
                    f"buffer_load_dwordx4 {vr(r + 4, 4)}, v13, {sr(SWS, 4)}, s71 offen offset:{off} sc1"]

    issue_o = []
    for kk in range(8):
        if kk == 4:
            issue_o += ["s_add_u32 s46, s46, 4096", "s_add_u32 s100, s100, 4096"]
        issue_o += [f"buffer_load_dwordx4 {vr(OR + 8 * kk, 4)}, v13, {sr(SWS, 4)}, s46 offen offset:{(kk & 3) * 1024} sc1",
                    f"buffer_load_dwordx4 {vr(OR + 8 * kk + 4, 4)}, v13, {sr(SWS, 4)}, s100 offen offset:{(kk & 3) * 1024} sc1"]

    def wread(k):
        w = WFR[k & 1]
        sl = k % RW
        va, off = (34, (sl - 4) * 2048) if sl >= 4 else (40, sl * 2048)
        return [f"ds_read_b64_tr_b16 {vr(w, 2)}, v{va} offset:{off}",
                f"ds_read_b64_tr_b16 {vr(w + 2, 2)}, v{va} offset:{off + 256}",
                f"ds_read_b64_tr_b16 {vr(w + 4, 2)}, v{va + 1} offset:{off}",
                f"ds_read_b64_tr_b16 {vr(w + 6, 2)}, v{va + 1} offset:{off + 256}"]

    q = []

    def emit_w(k):
        nonlocal q
        a(*issue_w(k))
        q += [("w", k)] * 2

    def upto(tags):
        nonlocal q
        need = [i for i, kk in enumerate(q) if kk in tags]
        q = q[max(need) + 1:] if need else q
        assert len(q) <= 63
        return f"s_waitcnt vmcnt({len(q)})"

    a("s_mov_b32 s73, 0", "s_lshl_b32 s72, s26, 13")
    for k in list(range(4)) + list(range(PK0, PK0 + G_P1)):
        emit_w(k)
    a(f"s_waitcnt vmcnt({len(q)})", *pub)
    stamp(a, 6)
    a("v_cmp_ne_u32 s[88:89], s47, v61", "s_mov_b32 s74, 0", "s_and_b32 s27, s88, 0x3f", "s_cbranch_scc1 G_NK",
      *stage_kv(OFF_K, 0, 13, 32, 33), "s_mov_b32 s74, 1")
    a.label("G_NK")
    a("s_and_b32 s27, s88, 0x3f00", "s_cbranch_scc1 G_NV", *stage_kv(OFF_V, 2048, 13, 32, 33), "s_or_b32 s74, s74, 2")
    a.label("G_NV")
    a("s_lshl_b32 s27, s26, 2", f"s_add_u32 s27, s27, {L_CNT + 80}", "v_mov_b32 v42, s27", "v_mov_b32 v43, s74",
      "ds_write_b32 v42, v43", *req(36, 8))
    q = ["b"]
    gemm_res(a)
    a("s_sub_u32 s27, s72, s14", "v_add_u32 v40, s27, v34", "v_add_u32 v41, s27, v35", "v_add_u32 v43, s72, v13",
      "s_waitcnt lgkmcnt(0)", "s_barrier")
    for k in range(4, 9):
        emit_w(k)
    a(upto({"b"}), *wread(0))
    a("s_and_b32 s27, s74, 1", "s_lshr_b32 s74, s74, 1", f"v_mov_b32 v42, {L_CNT}", "v_mov_b32 v56, s27",
      "v_mov_b32 v57, s74", "s_mov_b64 exec, 1", "ds_add_u32 v42, v56", "ds_add_u32 v42, v57 offset:4",
      "s_mov_b64 exec, -1")
    a(*chk(0xff, "G_OK0"))
    poll(a, "G_P0", 36, 8)
    a.label("G_OK0")
    stamp(a, 7)
    rest = list(range(9, RW)) + list(range(PK0 + G_P1, PK0 + 8))
    for k in range(8):
        a(*issue_a(k))
        q += [("a", k)] * 2
    for k in rest:
        emit_w(k)
    anext = 8
    alim = 8
    hreq = {c - HLEAD for c in HCHK}

    def split(ops):
        out, cur = [], []
        for o in ops:
            if o == "s_mov_b64 exec, -1":
                out[-1].append(o)
                continue
            cur.append(o)
            if o.startswith("buffer_") or o.startswith("ds_"):
                out.append(cur)
                cur = []
        assert not cur
        return out

    for k in range(NK):
        if k == 28:
            a("s_cmp_eq_u32 s73, 1", "s_cbranch_scc1 G_OD")
            poll(a, "G_PO", 37, 8, 61)
            a(*issue_o)
            a.label("G_OD")
            stamp(a, 10)
        if k in HCHK:
            nl = HCHK[k]
            a(upto({"b"}), *chk((1 << nl) - 1, f"G_OK{k}"))
            poll(a, f"G_P{k}", 36, nl)
            a.label(f"G_OK{k}")
            if k == min(HCHK):
                stamp(a, 8)
            alim = nl
            while anext < min(alim, k + R):
                a(*issue_a(anext))
                q += [("a", anext)] * 2
                anext += 1
        kd = k + RW
        tags = {("a", k), ("w", k + 1)} | ({"p"} if k in OCHK.values() else set())
        if PK0 <= kd < PK1:
            tags |= {("w", kd)}
        wt = upto(tags)
        if k <= 28:
            a(wt if k < 28 else "s_waitcnt vmcnt(0)")
        if k in (12, 28):
            stamp(a, {12: 9, 28: 11}[k])
        nx = 4 if k < NK - 1 else 0
        if nx:
            a(*wread(k + 1))
        a(f"s_waitcnt lgkmcnt({nx})")
        if k in OCHK.values():
            assert k > PK1 - RW
            a("s_cmp_eq_u32 s73, 1", f"s_cbranch_scc1 G_OS{k}", "v_cmp_ne_u32 s[88:89], s47, v61", "s_nop 0",
              "s_and_b32 s88, s88, 0xff", f"s_cbranch_scc1 G_OS{k}", *issue_o, "s_mov_b32 s73, 1")
            a.label(f"G_OS{k}")
        w = WFR[k & 1]
        r = areg(k) if k < 28 else OR + 8 * (k - 28)
        c = (lambda t: AC if t == 0 else "0") if k == 0 else (lambda t: AC + 16 * t)
        vm = []
        if PK0 <= kd < PK1:
            vm += dump(kd)
        if k in OCHK:
            vm += req(37, 8, 61)
            q += ["p"]
        if k in hreq:
            vm += req(36, 28)
            q += ["b"]
        while anext < min(alim, k + R):
            vm += issue_a(anext)
            q += [("a", anext)] * 2
            anext += 1
        kp = kd + 7
        if k >= 1 and kp < PK1:
            vm += issue_w(kp)
            q += [("w", kp)] * 2
        if PK1 <= kd < NK:
            vm += issue_w(kd)
            q += [("w", kd)] * 2
        pieces = split(vm)
        mm = [mfma(AC, w, r, c(0)), mfma(AC + 16, w, r + 4, c(1)), mfma(AC + 32, w + 4, r, c(2)),
              mfma(AC + 48, w + 4, r + 4, c(3))]
        per = (len(pieces) + 3) // 4
        for t in range(4):
            a(mm[t])
            for p in pieces[t * per:(t + 1) * per]:
                a(*p)
    assert anext == 28
    stamp(a, 12)
    a("s_nop 7", "s_nop 1")
    for t in range(1, 4):
        for qq in range(4):
            a(f"ds_write_b128 v38, {vr(AC + 16 * t + 4 * qq, 4)} offset:{(t - 1) * 4096 + qq * 1024}")
    a("s_waitcnt lgkmcnt(0)", "s_barrier")
    stamp(a, 13)
    for t in range(3):
        for qq in range(4):
            a(f"ds_read_b128 {vr(AC + 16 + 16 * t + 4 * qq, 4)}, v{45 + t} offset:{t * 4096 + qq * 1024}")
    a("s_waitcnt lgkmcnt(4)")
    for i in range(16):
        a(f"v_add_f32 v{AC + 16 + i}, v{AC + 16 + i}, v{AC + 32 + i}")
    for h in range(2):
        a(f"s_waitcnt lgkmcnt({2 - 2 * h})")
        for i in range(8 * h, 8 * h + 8):
            a(f"v_add_f32 v{AC + i}, v{AC + 48 + i}, v{AC + i}")
        for i in range(8 * h, 8 * h + 8):
            a(f"v_add_f32 v{AC + i}, v{AC + 16 + i}, v{AC + i}")
        for k in range(4 * h, 4 * h + 4):
            a(f"v_cvt_pk_bf16_f32 v{XR + k}, v{AC + 2 * k}, v{AC + 2 * k + 1}")
        a(f"buffer_store_dwordx4 {vr(XR + 4 * h, 4)}, v44, {sr(GOUT, 4)}, s15 offen offset:{32 * h}")
    stamp_out(a)


def post(t):
    lines = t.split("\n")
    g = next(i for i, l in enumerate(lines) if l.startswith("G_GO"))
    o = lines[:g]
    for l in lines[g:]:
        if "plainact" in EXP and "buffer_load_dwordx4 v[" in l:
            l = l.replace(" sc1", "")
        if "gnomfma" in EXP and "v_mfma" in l:
            continue
        if "gnoa" in EXP and "buffer_load_dwordx4 v[" in l:
            l = l.replace("v13,", "v59,")
        if "gnow" in EXP and " lds" in l:
            l = l.replace("v32,", "v59,").replace("v33,", "v59,")
        o.append(l)
    return "\n".join(o)


def main(out):
    a = Asm()
    a.raw(f"; @launch grid=(256,1,1) block=(512,1,1) lds={LDS_BYTES}")
    a.raw('.amdgcn_target "amdgcn-amd-amdhsa--gfx950"')
    a.raw(".text")
    name = gen(a)
    a.raw('.section .rodata,"a"')
    a.raw(".p2align 6")
    a.raw(f".amdhsa_kernel {name}")
    a.raw("  .amdhsa_next_free_vgpr 256")
    a.raw("  .amdhsa_next_free_sgpr 102")
    a.raw("  .amdhsa_accum_offset 256")
    a.raw("  .amdhsa_group_segment_fixed_size 0")
    a.raw("  .amdhsa_kernarg_size 88")
    a.raw("  .amdhsa_user_sgpr_count 2")
    a.raw("  .amdhsa_user_sgpr_kernarg_segment_ptr 1")
    a.raw("  .amdhsa_system_sgpr_workgroup_id_x 1")
    a.raw(".end_amdhsa_kernel")
    open(out, "w").write(post(a.text()))


if __name__ == "__main__":
    if "--stamp" in sys.argv:
        sys.argv.remove("--stamp")
        STAMP = True
    if "--dbg" in sys.argv:
        sys.argv.remove("--dbg")
        DBG = True
    main(sys.argv[1] if len(sys.argv) > 1 else f"cdna_kernels/{NAME}.s")
```

```python
import os
import struct
import sys

EXP = set(os.environ.get('EXP', '').split(','))

NAME = "parallel_sum__sliding_block__dense_activation_gelu__prompt"

RT = 28672
OFF_Q = 0
OFF_K = 64 * RT
OFF_V = 2 * 64 * RT
OFF_ACT = 3 * 64 * RT
ACT_RT = 144 * 1024
OFF_FLG = OFF_ACT + 64 * ACT_RT
FLG_N = 114
FLG_RT = FLG_N * 128
OFF_EPOCH = OFF_FLG + 64 * FLG_RT
WS_BYTES = OFF_EPOCH + 128
NATIVE_K = True

X_BYTES = 2048 * 896
WQKV_BYTES = 448 * 2688
W1_BYTES = 448 * 3584
W2_BYTES = 1792 * 896
WO_BYTES = 448 * 896

SLOT = 28672
L_S2 = 32768
L_S3 = L_S2 + SLOT
L_S1 = L_S3 + SLOT
L_S0 = L_S1 + SLOT
L_BIAS = 159744
L_STAT = L_BIAS + 768
L_CNT = L_STAT + 1024
L_ATT = L_S2
L_RING = L_ATT + 49152
LDS_BYTES = 163840
SPIN_MAX = 1 << 16

STAMP = False
OFF_STAMP = 32 << 20


def f32(x):
    return "0x%08x" % struct.unpack("<I", struct.pack("<f", x))[0]


class Asm:
    def __init__(self):
        self.o = []

    def __call__(self, *lines):
        for s in lines:
            self.o.append("    " + s)

    def label(self, s):
        self.o.append(s + ":")

    def raw(self, s):
        self.o.append(s)

    def text(self):
        return "\n".join(self.o) + "\n"


def vr(b, n):
    return f"v[{b}:{b + n - 1}]"


def sr(b, n):
    return f"s[{b}:{b + n - 1}]"


def mfma(d, a, b, c):
    cs = c if isinstance(c, str) else vr(c, 16)
    return f"v_mfma_f32_32x32x16_bf16 {vr(d, 16)}, {vr(a, 4)}, {vr(b, 4)}, {cs}"


def srd(a, d, lo, nbytes):
    a(f"s_mov_b32 s{d}, s{lo}", f"s_mov_b32 s{d + 1}, s{lo + 1}",
      f"s_mov_b32 s{d + 2}, {nbytes}", f"s_mov_b32 s{d + 3}, 0x20000")


DBG = False
LST = (0,)
ROLE = ["main"]
DBG_MAP = {"main": {0: 2, 3: 3, 5: 4, 6: 5, 9: 6, 15: 7}, "aux": {5: 8, 6: 9, 8: 10, 11: 11, 15: 12}}


def stamp(a, i, rt=False):
    if DBG:
        w = DBG_MAP[ROLE[0]].get(i)
        if w is not None:
            a("s_memrealtime s[98:99]", "s_waitcnt lgkmcnt(0)", f"v_writelane_b32 v63, s98, {w}")
            inv = {2: 1, 4: 13, 5: 14, 12: 15}.get(w)
            if inv:
                a("s_not_b32 s98, s98", f"v_writelane_b32 v63, s98, {inv}")
        return
    if not STAMP:
        return
    a(f"s_mem{'real' if rt else ''}time s[98:99]", "s_waitcnt lgkmcnt(0)",
      f"v_writelane_b32 v63, s98, {i}")


def lstamp(a, ureg, k):
    if not STAMP or k not in LST or "ks" in EXP:
        return
    a("s_memtime s[98:99]", f"s_lshl_b32 s97, {ureg}, 2", f"s_add_u32 m0, s97, {16 + k}", "s_waitcnt lgkmcnt(0)",
      "v_writelane_b32 v63, s98, m0")


def stamp_out(a):
    if DBG:
        stamp(a, 15)
        a("s_load_dwordx2 s[92:93], s[0:1], 72", "s_waitcnt lgkmcnt(0)", "s_mov_b32 s94, 256", "s_mov_b32 s95, 0x20000",
          "s_mov_b64 exec, 0xfffe", "v_lshlrev_b32 v62, 2, v1", "buffer_atomic_umax v63, v62, s[92:95], 0 offen sc1")
        return
    if not STAMP:
        return
    stamp(a, 14)
    stamp(a, 15, rt=True)
    a("s_mov_b32 s92, s24", "s_mov_b32 s93, s25", f"s_mov_b32 s94, {64 << 20}", "s_mov_b32 s95, 0x20000",
      "s_lshl_b32 s96, s2, 3", "s_add_u32 s96, s96, s3", "s_lshl_b32 s96, s96, 8",
      f"s_add_u32 s96, s96, {OFF_STAMP}", "s_mov_b64 exec, -1", "v_lshlrev_b32 v62, 2, v1",
      "buffer_store_dword v63, v62, s[92:95], s96 offen")


P_X, P_WQKV, P_WO, P_W1, P_B1, P_W2, P_B2, P_OUT, P_DBG, P_WS = 4, 6, 8, 12, 14, 16, 18, 20, 22, 24
SWS, SA, SB, SC, SD = 28, 32, 36, 40, 84


def gen(a):
    name = NAME + "_kernel"
    a.raw(f".globl {name}")
    a.raw(".p2align 8")
    a.raw(f".type {name},@function")
    a.label(name)
    a("s_cmp_ge_u32 s2, 256", "s_cbranch_scc1 L_END")
    a("s_load_dwordx16 s[4:19], s[0:1], 0", "s_load_dwordx4 s[20:23], s[0:1], 64",
      "s_load_dwordx2 s[24:25], s[0:1], 80")
    a("v_lshrrev_b32 v2, 6, v0", "v_and_b32 v1, 63, v0", "v_readfirstlane_b32 s3, v2")
    MAP = os.environ.get("MAP", "42")
    if MAP == "81":
        a("s_and_b32 s52, s2, 7", "s_lshr_b32 s53, s2, 3", "s_lshl_b32 s48, s52, 1", "s_and_b32 s27, s53, 1",
          "s_add_u32 s48, s48, s27", "s_lshr_b32 s49, s53, 1", "s_and_b32 s56, s49, 3", "s_and_b32 s55, s48, 7",
          "s_and_b32 s51, s49, 1", "s_cmp_ge_u32 s53, 28", "s_cselect_b32 s50, 7, 6", "s_cselect_b32 s51, s51, 0",
          "s_and_b32 s26, s3, 3")
    elif MAP == "42":
        a("s_and_b32 s52, s2, 7", "s_lshr_b32 s53, s2, 3", "s_lshr_b32 s48, s52, 1", "s_lshl_b32 s48, s48, 2",
          "s_and_b32 s27, s53, 3", "s_add_u32 s48, s48, s27", "s_and_b32 s51, s52, 1", "s_lshl_b32 s49, s51, 3",
          "s_lshr_b32 s27, s53, 2", "s_add_u32 s49, s49, s27", "s_and_b32 s56, s27, 3", "s_and_b32 s55, s48, 7",
          "s_cmp_ge_u32 s53, 28", "s_cselect_b32 s50, 7, 6", "s_cselect_b32 s51, s51, 0", "s_and_b32 s26, s3, 3")
    else:
        a("s_and_b32 s52, s2, 7", "s_lshr_b32 s53, s2, 3",
          "s_lshr_b32 s55, s53, 2", "s_and_b32 s56, s53, 3",
          "s_and_b32 s27, s53, 1", "s_add_u32 s27, s27, 6", "s_bfe_u32 s57, s53, 0x20001",
          "s_cmp_ge_u32 s53, 24", "s_cselect_b32 s55, s27, s55", "s_cselect_b32 s56, s57, s56",
          "s_and_b32 s57, s52, 3", "s_lshl_b32 s27, s57, 1", "s_add_u32 s55, s55, s27", "s_add_u32 s55, s55, 2",
          "s_and_b32 s55, s55, 7", "s_lshr_b32 s48, s52, 2", "s_lshl_b32 s48, s48, 3", "s_add_u32 s48, s48, s55",
          "s_lshl_b32 s49, s57, 2", "s_add_u32 s49, s49, s56",
          "s_and_b32 s51, s56, 1", "s_cmp_ge_u32 s53, 28", "s_cselect_b32 s50, 7, 6", "s_cselect_b32 s51, s51, 0",
          "s_and_b32 s26, s3, 3")
    a("s_cmp_ge_u32 s49, 14", "s_cselect_b32 s54, 5, 0",
      "s_cmp_lt_u32 s49, 5", "s_cselect_b32 s27, 5, 10", "s_lshl_b32 s27, s27, 4", "s_or_b32 s54, s54, s27",
      "s_or_b32 s54, s54, 0xaa00")
    assert MAP == "42"
    a("s_cmp_eq_u32 s49, 7", "s_cselect_b32 s57, 14, s49", "s_cmp_eq_u32 s49, 14", "s_cselect_b32 s57, 7, s57")
    a("s_lshl_b32 s58, s48, 2", "s_add_u32 s58, s58, s26")
    a("v_and_b32 v2, 31, v1", "v_lshrrev_b32 v3, 5, v1")
    if DBG:
        a("v_mov_b32 v63, 0")
    a("s_cmp_ge_u32 s3, 4", "s_cbranch_scc1 L_AUX")
    gen_main(a)
    gen_attn(a)
    a.label("L_AUX")
    ROLE[0] = "aux"
    gen_aux(a)
    gen_gemm(a)
    a.label("L_END")
    a("s_endpgm")
    a.label("L_CODE_END")
    return name


QF = 48
VCHK = 2
MK = 248
APRIO = int(os.environ.get("APRIO", "2"))


def ms(i):
    return sr((list(range(4, 24, 2)) + [40, 42, 44, 92, 94, 100])[i], 2)


def pads(base, tiles, va, vt):
    o = [f"v_mov_b32 v{vt + k}, 0x3f803f80" for k in range(4)]
    o += [f"v_min_u32 v{va}, 2, v1", f"v_lshl_add_u32 v{va}, v{va}, 12, s{base}",
          f"ds_write_b128 v{va}, {vr(vt, 4)} offset:3840", f"v_lshl_add_u32 v{va}, v1, 2, s{base}",
          "s_mov_b32 vcc_lo, 0x55555555", "s_mov_b32 vcc_hi, 0x55555555"]
    for i in range(3):
        o += [f"s_cmp_lt_u32 s{tiles + i}, 0x40000000", "s_cselect_b32 s27, 0, 0xf149", f"v_mov_b32 v{vt + 3}, s27",
              f"v_cndmask_b32 v{vt + i}, 0, v{vt + 3}, vcc", f"ds_write_b32 v{va}, v{vt + i} offset:{1792 + 4096 * i}"]
    return o
PFF = "sc1" if "pfsc1" in EXP else ("nt" if "pfnt" in EXP else "")


def stage_kv(off, lds, vaddr, base, tiles):
    o = []
    for i in range(3):
        o += [f"s_add_u32 m0, s{base}, {i * 4096 + lds}", f"s_add_u32 s27, s{tiles + i}, {off}",
              f"buffer_load_dwordx4 v{vaddr}, {sr(SWS, 4)}, s27 offen sc1 lds", "s_mov_b32 exec_hi, 0xffff",
              f"buffer_load_dwordx4 v{vaddr}, {sr(SWS, 4)}, s27 offen offset:1024 sc1 lds", "s_mov_b32 exec_hi, -1"]
    return o


GC0 = -2.0 * 0.7978845608028654 * 1.4426950408889634
GC1 = GC0 * 0.044715


def gen_main(a):
    X, ACA, ACB, WR, T = 128, 64, 80, 96, 16
    AB, BB = 240, 244
    if "xnorot" in EXP:
        a("s_mov_b32 s56, 0")
    a("v_lshrrev_b32 v8, 3, v1", "v_and_b32 v9, 7, v1", "v_lshrrev_b32 v4, 4, v1",
      "v_xor_b32 v9, v9, v4", "v_mul_u32_u24 v8, 896, v8", "v_lshl_add_u32 v8, v9, 4, v8", "v_xor_b32 v9, 64, v8")
    for k in range(4):
        a(f"s_add_u32 s27, s56, {k}", "s_and_b32 s27, s27, 3", "s_mulk_i32 s27, 7168",
          f"s_add_u32 s27, s27, {4096 - 1024 * k}", f"v_add_u32 v{4 + k}, s27, v{8 + (k & 1)}")
    a(f"s_mul_i32 s59, s58, {RT}", f"s_mul_i32 s60, s3, {SLOT}")
    a("s_waitcnt lgkmcnt(0)")
    stamp(a, 0, rt=True)
    stamp(a, 1)
    a(f"s_sub_u32 s{SA}, s{P_X}, 4096", f"s_subb_u32 s{SA + 1}, s{P_X + 1}, 0",
      f"s_mov_b32 s{SA + 2}, {X_BYTES + 4096}", f"s_mov_b32 s{SA + 3}, 0x20000")
    for g in range(7):
        a(f"s_add_u32 m0, s60, {g * 4096}", f"s_add_u32 s61, s59, {g * 128}",
          f"buffer_load_dwordx4 v4, {sr(SA, 4)}, s61 offen lds")
    pre = []
    pre += ["s_lshl_b32 s27, s56, 3", "v_subrev_u32 v9, s27, v2", "v_and_b32 v9, 31, v9",
            "v_bfe_u32 v8, v9, 1, 3", "v_xor_b32 v8, v8, v3",
            "v_lshlrev_b32 v8, 4, v8", "v_lshl_add_u32 v8, v9, 7, v8", "v_add_u32 v8, s60, v8",
            "v_xor_b32 v9, 32, v8", "v_xor_b32 v10, 64, v8", "v_xor_b32 v11, 96, v8"]
    pre += ["v_bfe_u32 v12, v1, 2, 1", "v_bfe_u32 v13, v1, 3, 1",
            "v_bfe_u32 v14, v1, 1, 1", "v_lshl_add_u32 v13, v13, 1, v14",
            "v_bfe_u32 v14, v1, 4, 1", "v_lshl_add_u32 v13, v14, 2, v13",
            "v_xor_b32 v12, v12, v3", "v_lshl_add_u32 v13, v12, 3, v13",
            "v_and_b32 v14, 1, v1", "v_lshlrev_b32 v14, 4, v14", "v_mov_b32 v15, 0x3f80",
            "v_lshlrev_b32 v14, v14, v15"]
    pre += [f"v_cmp_eq_u32 {sr(64 + 2 * k, 2)}, {k}, v13" for k in range(8)]
    pre += [f"v_cndmask_b32 v{WR + k}, 0, v14, {sr(64 + 2 * k, 2)}" for k in range(8)]
    pre += ["v_and_b32 v13, 3, v1", "v_bfe_u32 v14, v1, 4, 1", "v_lshl_add_u32 v13, v14, 2, v13",
            "v_bfe_u32 v14, v1, 2, 2", "v_lshlrev_b32 v14, 6, v14", "v_lshl_add_u32 v13, v13, 3, v14",
            "v_lshl_add_u32 v12, v3, 10, v13", f"v_add_u32 v12, {L_S2}, v12"]
    pre += ["s_lshl_b32 s70, s52, 1", "s_and_b32 s27, s53, 1", "s_add_u32 s70, s70, s27",
            "s_lshr_b32 s27, s53, 1", "s_lshl_b32 s27, s27, 2", "s_add_u32 s71, s27, s3",
            "s_mul_i32 s73, s3, 3", "s_add_u32 s72, s27, s73", "s_sub_u32 s72, s72, 8",
            "s_lshl_b32 s73, s73, 12", f"s_add_u32 s73, s73, {L_ATT}", "s_mul_i32 s78, s70, 1792",
            f"s_mul_i32 s74, s71, {RT}", "s_add_u32 s74, s74, s78"]
    for i in range(3):
        pre += [f"s_add_u32 s27, s72, {i}", f"s_mul_i32 s{75 + i}, s27, {RT}", f"s_add_u32 s{75 + i}, s{75 + i}, s78",
                "s_cmp_lt_i32 s27, 0", f"s_cselect_b32 s{75 + i}, 0x40000000, s{75 + i}"]
    pre += ["s_mul_i32 s27, s70, 28", "s_lshr_b32 s79, s27, 5", "s_add_u32 s27, s27, 27", "s_lshr_b32 s27, s27, 5",
            "s_sub_u32 s27, s27, s79",
            "v_and_b32 v13, 1, v1", "v_mul_u32_u24 v13, s27, v13", "v_add_u32 v13, s79, v13",
            "v_lshrrev_b32 v14, 1, v1", "v_add_u32 v14, s72, v14", "v_max_i32 v14, 0, v14",
            f"v_mul_u32_u24 v14, {FLG_N}, v14", "v_add_u32 v14, 14, v14", f"s_mul_i32 s27, s71, {FLG_N}",
            "v_cmp_gt_u32 vcc, 6, v1", "v_mov_b32 v15, s27", "v_lshlrev_b32 v59, 3, v1",
            "v_cndmask_b32 v14, v15, v14, vcc", "v_add_u32 v13, v13, v14", "v_lshlrev_b32 v13, 7, v13",
            f"v_add_u32 v57, {OFF_FLG}, v13", f"v_add_u32 v56, {OFF_FLG + 14 * 128}, v13"]
    pre += ["s_sub_u32 s86, s50, 1",
            f"s_mov_b32 s{SWS}, s{P_WS}", f"s_mov_b32 s{SWS + 1}, s{P_WS + 1}", f"s_mov_b32 s{SWS + 2}, {WS_BYTES}",
            f"s_mov_b32 s{SWS + 3}, 0x20000",
            "v_mov_b32 v14, 0", "v_mov_b32 v15, 0", "s_mov_b32 s62, 0x3f803f80", "s_mov_b32 s82, 0"]
    def xgrp(g):
        return [f"s_add_u32 m0, s60, {g * 4096}", f"s_add_u32 s61, s59, {g * 128}"] + \
               [f"buffer_load_dwordx4 v{4 + i}, {sr(SA, 4)}, s61 offen offset:{i * 1024} lds" for i in range(1, 4)]

    XA = next((int(e[2:]) for e in EXP if e.startswith('xa')), 3)
    for g in range(XA):
        a(*xgrp(g))
    a(*pre)
    a("v_lshlrev_b32 v13, 7, v1", f"s_mov_b32 s{SB + 3}, 0x20000", "s_cmp_eq_u32 s3, 0", "s_cbranch_scc0 M_T1",
      "s_sub_u32 s80, s2, 196", "s_cmp_lt_u32 s2, 196", "s_cselect_b32 s80, s2, s80",
      f"s_cselect_b32 s{SB}, s{P_W2}, s{P_WO}", f"s_cselect_b32 s{SB + 1}, s{P_W2 + 1}, s{P_WO + 1}",
      f"s_mov_b32 s{SB + 2}, {WO_BYTES}", f"s_cselect_b32 s{SB + 2}, {W2_BYTES}, s{SB + 2}",
      "s_lshl_b32 s80, s80, 13", "s_branch M_TD")
    a.label("M_T1")
    a("s_cmp_eq_u32 s3, 3", "s_cbranch_scc0 M_T2", "s_cmp_eq_u32 s50, 7", "s_cbranch_scc1 M_T3",
      f"s_getpc_b64 {sr(SB, 2)}")
    a.label("M_PC")
    a(f"s_sub_u32 s{SB}, s{SB}, M_PC-{NAME}_kernel", f"s_subb_u32 s{SB + 1}, s{SB + 1}, 0",
      f"s_mov_b32 s{SB + 2}, L_CODE_END-{NAME}_kernel", "s_and_b32 s80, s53, 3", "s_lshl_b32 s80, s80, 13",
      "s_branch M_TD")
    a.label("M_T2")
    a("s_mul_i32 s27, s55, 56", "v_min_u32 v13, 55, v1", "v_add_u32 v13, s27, v13",
      "s_add_u32 s80, s57, 11", "s_sub_u32 s27, s49, 5", "s_cmp_eq_u32 s3, 1", "s_cselect_b32 s80, s27, s80",
      "s_movk_i32 s81, 3584", f"s_mov_b32 s{SB + 2}, {W1_BYTES}", "s_add_u32 s27, s49, 16", "s_cmp_lt_i32 s80, 0",
      "s_cselect_b32 s80, s27, s80", "s_cselect_b32 s81, 2688, s81",
      f"s_cselect_b32 s{SB}, s{P_WQKV}, s{P_W1}", f"s_cselect_b32 s{SB + 1}, s{P_WQKV + 1}, s{P_W1 + 1}",
      f"s_cselect_b32 s{SB + 2}, {WQKV_BYTES}, s{SB + 2}", "s_lshl_b32 s80, s80, 7", "v_mul_u32_u24 v13, s81, v13")
    a("s_branch M_TD")
    a.label("M_T3")
    a("s_lshl_b32 s27, s52, 2", "s_and_b32 s80, s53, 3", "s_add_u32 s27, s27, s80", "s_mul_i32 s27, s27, 14",
      "v_min_u32 v13, 13, v1", "v_add_u32 v13, s27, v13", "v_mul_u32_u24 v13, 3584, v13",
      f"s_mov_b32 s{SB}, s{P_W1}", f"s_mov_b32 s{SB + 1}, s{P_W1 + 1}", f"s_mov_b32 s{SB + 2}, {W1_BYTES}",
      f"s_movk_i32 s80, {27 * 128}")
    a.label("M_TD")
    a("s_lshl_b32 s27, s57, 1", "s_add_u32 s27, s27, 23", "s_add_u32 s84, s51, 54", "s_cmp_eq_u32 s50, 7",
      "s_cselect_b32 s27, s84, s27", f"s_mul_i32 s85, s58, {FLG_N}", "s_add_u32 s85, s85, s27",
      "s_lshl_b32 s85, s85, 7", f"s_add_u32 s85, s85, {OFF_FLG + 42 * 128}", f"s_mul_i32 s84, s58, {ACT_RT}",
      "s_lshl_b32 s27, s27, 11", "s_add_u32 s84, s84, s27", f"s_add_u32 s84, s84, {OFF_ACT}")
    a("v_lshlrev_b32 v124, 2, v3", "v_sub_u32 v124, v2, v124", "v_mov_b32 v125, 0xffff", "v_mov_b32 v126, 0xffff0000")
    for i in range(16):
        a(f"v_cmp_le_i32 {ms(i)}, {(i & 3) + 8 * (i >> 2)}, v124")
    for k in range(8):
        a(f"v_cndmask_b32 v{MK + k}, 0, v125, {ms(2 * k)}", f"v_cndmask_b32 v127, 0, v126, {ms(2 * k + 1)}",
          f"v_or_b32 v{MK + k}, v{MK + k}, v127")
    a("s_lshl_b32 s27, s3, 12", f"s_add_u32 s27, s27, {L_ATT}", "v_add_u32 v124, s27, v59",
      "v_mul_u32_u24 v126, 448, v3", "v_lshl_add_u32 v125, v2, 4, v126", "v_add_u32 v126, 896, v125",
      "v_cmp_gt_u32 vcc, 28, v2", "v_mov_b32 v127, 1792", "s_add_u32 s27, s27, 2048",
      "v_cndmask_b32 v125, v127, v125, vcc", "v_cndmask_b32 v126, v127, v126, vcc",
      "v_add_u32 v125, s27, v125", "v_add_u32 v126, s27, v126")
    stamp(a, 2)

    def stats(g):
        for r in range(X + 16 * g, X + 16 * g + 16):
            a(f"v_dot2c_f32_bf16 v14, s62, v{r}", f"v_dot2c_f32_bf16 v15, v{r}, v{r}")

    for g in range(7):
        a(f"s_waitcnt vmcnt({3 * (min(7, g + XA) - g - 1)})")
        if g == 0 and "st1" in EXP:
            stamp(a, 2)
        for q in range(4):
            a(f"ds_read_b128 {vr(X + 16 * g + 4 * q, 4)}, v{8 + q} offset:{g * 4096}")
        if g + XA < 7:
            a(*xgrp(g + XA))
        if g:
            a("s_waitcnt lgkmcnt(4)")
            stats(g - 1)
    a("s_waitcnt lgkmcnt(0)")
    stamp(a, 3)
    a("s_barrier")
    stats(6)
    a("s_nop 2", "v_mov_b32 v4, v14", "v_mov_b32 v5, v15", "s_nop 1",
      "v_permlane32_swap_b32 v4, v14", "v_permlane32_swap_b32 v5, v15",
      "v_add_f32 v14, v4, v14", "v_add_f32 v15, v5, v15",
      f"v_mul_f32 v14, {f32(1 / 448)}, v14", f"v_mul_f32 v15, {f32(1 / 448)}, v15",
      "v_cvt_pk_bf16_f32 v4, v14, v14", "v_fma_f32 v15, -v14, v14, v15",
      "v_lshlrev_b32 v4, 16, v4", "v_max_f32 v15, 0, v15", "v_xor_b32 v4, 0x80000000, v4")
    for i in range(16):
        a(f"v_mov_b32 v{T + i}, v4")
    a("s_nop 1")
    t0 = [168, 169, 0, 1, 168, 169, 0, 0]
    t1 = [112, 113, 56, 57, 112, 113, 56, 0]
    pk = lambda b: b[0] | b[1] << 8 | b[2] << 16 | b[3] << 24
    fin = ["v_cvt_pk_bf16_f32 v15, v15, v15", "v_lshlrev_b32 v15, 16, v15", f"v_add_f32 v15, {f32(1e-5)}, v15",
           "v_cvt_pk_bf16_f32 v15, v15, v15", "v_lshlrev_b32 v15, 16, v15", "v_sqrt_f32 v15, v15",
           "s_lshl_b32 s27, s3, 8",
           "v_cvt_pk_bf16_f32 v5, v15, v15", "v_lshlrev_b32 v15, 16, v5", "v_rcp_f32 v14, v15",
           "v_and_b32 v5, 0xffff, v5", "v_cmp_eq_u32 vcc, 0, v3", f"s_add_u32 s27, s27, {L_STAT}",
           "v_lshl_add_u32 v4, v1, 2, s27", "v_cndmask_b32 v6, v15, v14, vcc", f"v_cndmask_b32 v{BB}, 0, v5, vcc",
           "ds_write_b32 v4, v6",
           f"v_mov_b32 v{AB + 1}, 0", f"v_mov_b32 v{AB + 2}, 0", f"v_mov_b32 v{AB + 3}, 0",
           f"v_mov_b32 v{BB + 1}, 0", f"v_mov_b32 v{BB + 2}, 0", f"v_mov_b32 v{BB + 3}, 0",
           "v_lshlrev_b32 v10, 1, v2", f"v_add_u32 v10, {L_BIAS}, v10",
           "s_lshl_b32 s83, s3, 13", f"v_add_u32 v8, {t0[0] * 512}, v12", "s_mov_b32 s68, 0"]
    assert len(fin) == 28
    late = [f"s_mov_b32 s64, {pk(t0[1:5])}", "s_lshl_b32 s27, s51, 8", f"s_add_u32 s65, s27, {pk(t0[5:8] + [0])}",
            f"s_mov_b32 s66, {pk(t1[0:4])}", "s_lshl_b32 s27, s51, 16", f"s_add_u32 s67, s27, {pk(t1[4:8])}",
            "s_mov_b32 s69, s54", f"v_mul_f32 v7, {f32(GC0)}, v14", "v_mul_f32 v6, v14, v14", "v_mul_f32 v6, v6, v14",
            f"v_mul_f32 v6, {f32(GC1)}, v6"]
    CB = (ACA, ACB, 32)

    def cv(p, h):
        d = CB[p % 3]
        return [f"v_cvt_pk_bf16_f32 v{X + 8 * p + k}, v{d + 2 * k}, v{d + 2 * k + 1}" for k in range(4 * h, 4 * h + 4)]

    for p in range(16):
        d = CB[p % 3]
        if p < 14:
            a(mfma(d, WR, X + 8 * p, T))
        a(*(cv(p - 2, 0) if p >= 2 else fin[14 * p:14 * p + 7]))
        if p < 14:
            a(mfma(d, WR + 4, X + 8 * p + 4, d))
        a(*(cv(p - 2, 1) if p >= 2 else fin[14 * p + 7:14 * p + 14]))
        if 2 <= p < 2 + len(late):
            a(late[p - 2])
        if p == 14:
            a("s_nop 1")

    PD = 4

    def ring(j):
        return WR + 4 * (j % 7)

    def rd(j):
        jj = j % 28
        base = "v8" if jj < 14 else "v9"
        r = ring(j)
        return [f"ds_read_b64_tr_b16 {vr(r, 2)}, {base} offset:{(jj % 14) * 2048}",
                f"ds_read_b64_tr_b16 {vr(r + 2, 2)}, {base} offset:{(jj % 14) * 2048 + 256}"]

    accw = [f"ds_write_addtid_b32 v{ACB + k} offset:{k * 256}" for k in range(16)]
    touch = f"buffer_load_dword v60, v13, {sr(SB, 4)}, s80 offen"
    MT = next((int(e[2:]) for e in EXP if e.startswith('mt')), 1)
    a("s_cmp_eq_u32 s3, 0", f"s_cselect_b32 s81, {MT}, s86", "s_cbranch_scc1 M_NOT", touch)
    a.label("M_NOT")
    stamp(a, 4)
    a("s_waitcnt lgkmcnt(0)", "s_barrier")
    stamp(a, 5)
    if "prio" in EXP:
        a("s_setprio 2")
    if "zero" in EXP:
        for r in range(X, X + 112):
            a(f"v_mov_b32 v{r}, 0")
    for j in range(PD):
        a(*rd(j))
    if "align" in EXP:
        a.raw(".p2align 6")
    a.label("M_TILE")
    a("s_cmp_eq_u32 s68, s81", "s_cbranch_scc1 M_SIDE")
    a.label("M_SIDER")
    a("s_mov_b32 m0, s83", "s_bitcmp1_b32 s69, 0", "s_cbranch_scc1 M_V")
    WPOS = {1: (0, 3), 2: (3, 6), 3: (6, 9), 4: (9, 12), 5: (12, 14), 6: (14, 16)}

    pfs = []

    def body(tag):
        q = [f for f in range(PD) for _ in range(2)]
        for j in range(28):
            if j % 2 == 0:
                q = q[max(i for i, f in enumerate(q) if f == j + 1) + 1:][-15:]
                a(f"s_waitcnt lgkmcnt({len(q)})")
            d = ACB if j == 27 else ACA
            ops = (X + 4 * j, ring(j)) if tag == "V" else (ring(j), X + 4 * j)
            if j == 0 and tag == "N":
                a("s_bitcmp1_b32 s69, 1", "s_cbranch_scc0 M_NOB", mfma(ACA, AB, BB, "0"),
                  mfma(ACA, *ops, ACA), "s_branch M_NOB2")
                a.label("M_NOB")
                a(mfma(ACA, *ops, "0"))
                a.label("M_NOB2")
            else:
                a(mfma(d, *ops, "0" if j == 0 else ACA))
            if j + PD == 14:
                assert "w" not in q
                a("s_barrier")
            if j in WPOS and "noaccw" not in EXP:
                a(*accw[WPOS[j][0]:WPOS[j][1]])
                q += ["w"] * (WPOS[j][1] - WPOS[j][0])
            a(*rd(j + PD))
            q += [j + PD] * 2
            if j == 0:
                a("s_and_b32 s27, s66, 0xff", "s_lshr_b64 s[66:67], s[66:67], 8",
                  "v_lshl_add_u32 v9, s27, 9, v12", "v_add_u32 v10, 64, v10")
            if j == 12:
                a("s_and_b32 s27, s64, 0xff", "s_lshr_b64 s[64:65], s[64:65], 8",
                  "v_lshl_add_u32 v8, s27, 9, v12", "s_xor_b32 s83, s83, 4096")
            if j + PD == 27:
                a(f"ds_read_u16 v{AB}, v10")
                q += ["b"]
        a("s_lshr_b32 s69, s69, 2", "s_add_u32 s68, s68, 1", "s_cmp_lt_u32 s68, s50", "s_cbranch_scc1 M_TILE")

    body("N")
    a("s_branch M_DONE")
    a.label("M_SIDE")
    a("s_cmp_eq_u32 s68, s86", "s_cbranch_scc1 M_SIDE2", touch, "s_mov_b32 s81, s86", "s_branch M_SIDER")
    a.label("M_SIDE2")
    a(f"v_mov_b32 v61, {L_CNT + 64}", "ds_read_b32 v61, v61", "s_mov_b64 exec, 0xff",
      f"buffer_load_dword v60, v57, {sr(SWS, 4)}, 0 offen sc1", "s_mov_b64 exec, -1", "s_branch M_SIDER")
    a.label("M_V")
    body("V")
    a.label("M_DONE")
    stamp(a, 6)
    lds_arrive(a, 2, 4, 5)
    qld = [f"buffer_load_dwordx2 {vr(QF + 2 * g, 2)}, v59, {sr(SWS, 4)}, s74 offen offset:{g * 512} sc1" for g in range(4)]
    a("v_readfirstlane_b32 s47, v61", "s_setprio 3", "s_waitcnt vmcnt(0)", "v_cmp_ne_u32 s[90:91], s47, v60",
      "s_mov_b64 exec, 0x3f", f"buffer_load_dword v61, v56, {sr(SWS, 4)}, 0 offen sc1", "s_mov_b64 exec, -1",
      "s_nop 0")
    a("v_lshlrev_b32 v4, 4, v1", "s_nop 3")
    for h in range(2):
        t = [T + 8 * h + 2 * k for k in range(4)]
        c = [ACB + 8 * h + 2 * k for k in range(4)]
        a(*[f"v_pk_mul_f32 {vr(t[k], 2)}, {vr(c[k], 2)}, {vr(c[k], 2)}" for k in range(4)])
        a(*[f"v_pk_fma_f32 {vr(t[k], 2)}, {vr(t[k], 2)}, v[6:7], v[6:7] op_sel:[0,0,1] op_sel_hi:[1,0,1]" for k in range(4)])
        a(*[f"v_pk_mul_f32 {vr(t[k], 2)}, {vr(c[k], 2)}, {vr(t[k], 2)}" for k in range(4)])
        a(*[f"v_exp_f32 v{t[0] + k}, v{t[0] + k}" for k in range(8)])
        a(*[f"v_pk_fma_f32 {vr(t[k], 2)}, {vr(t[k], 2)}, v[14:15], v[14:15] op_sel:[0,1,1] op_sel_hi:[1,1,1]" for k in range(4)])
        a(*[f"v_rcp_f32 v{t[0] + k}, v{t[0] + k}" for k in range(8)])
        a(*[f"v_pk_mul_f32 {vr(t[k], 2)}, {vr(c[k], 2)}, {vr(t[k], 2)}" for k in range(4)])
        a(*[f"v_cvt_pk_bf16_f32 v{32 + 4 * h + k}, v{t[k]}, v{t[k] + 1}" for k in range(4)])
        a(f"buffer_store_dwordx4 {vr(32 + 4 * h, 4)}, v4, {sr(SWS, 4)}, s84 offen offset:{1024 * h} sc1")
    a("s_setprio 0")


def lds_arrive(a, idx, vaddr, vtmp, val="1"):
    a(f"v_mov_b32 v{vaddr}, {L_CNT + 4 * idx}", f"v_mov_b32 v{vtmp}, {val}", "s_mov_b64 exec, 1",
      f"ds_add_u32 v{vaddr}, v{vtmp}", "s_mov_b64 exec, -1")


def lds_wait(a, tag, vaddr, vtmp, n=4):
    a(f"s_mov_b32 s27, {SPIN_MAX}")
    a.label(tag)
    a(f"ds_read_b32 v{vtmp}, v{vaddr}", "s_waitcnt lgkmcnt(0)", f"v_readfirstlane_b32 s88, v{vtmp}",
      "s_sub_u32 s27, s27, 1", f"s_cbranch_scc1 {tag}_X", f"s_cmp_lt_u32 s88, {n}", f"s_cbranch_scc1 {tag}")
    a.label(tag + "_X")


def poll(a, tag, vaddr, nl, vtmp=60):
    a(f"s_mov_b32 s27, {SPIN_MAX}", f"s_mov_b64 exec, {(1 << nl) - 1}", f"s_branch {tag}_L")
    a.label(tag)
    a("s_sleep 3")
    a.label(tag + "_L")
    a(f"buffer_load_dword v{vtmp}, v{vaddr}, {sr(SWS, 4)}, 0 offen sc1", "s_waitcnt vmcnt(0)",
      f"v_cmp_ne_u32 s[88:89], s47, v{vtmp}", "s_sub_u32 s27, s27, 1", f"s_cbranch_scc1 {tag}_X",
      "s_cmp_lg_u64 s[88:89], 0", f"s_cbranch_scc1 {tag}")
    a.label(tag + "_X")
    a("s_mov_b64 exec, -1")


def epoch_issue(a, vz, vtmp):
    srd(a, SC, P_DBG, 256)
    a(f"v_mov_b32 v{vz}, 0", f"buffer_load_dword v{vtmp}, v{vz}, {sr(SC, 4)}, 0 offen sc1")


def epoch_wait(a, tag, vz, vtmp, n0):
    a(f"s_mov_b32 s27, {SPIN_MAX}", f"s_waitcnt vmcnt({n0})", f"s_branch {tag}_L")
    a.label(tag)
    a("s_sleep 3", f"buffer_load_dword v{vtmp}, v{vz}, {sr(SC, 4)}, 0 offen sc1", "s_waitcnt vmcnt(0)")
    a.label(tag + "_L")
    a(f"v_readfirstlane_b32 s47, v{vtmp}", "s_sub_u32 s27, s27, 1", f"s_cbranch_scc1 {tag}_X",
      "s_cmp_eq_u32 s47, 0", f"s_cbranch_scc1 {tag}")
    a.label(tag + "_X")


def gen_attn(a):
    KF, OA, CN, SM, VF = 128, 200, 216, 232, 16
    SB3 = (64, 80, 96)
    PFR = (32, 40, 112)
    qld = [f"buffer_load_dwordx2 {vr(QF + 2 * g, 2)}, v59, {sr(SWS, 4)}, s74 offen offset:{g * 512} sc1" for g in range(4)]
    pubm = ["v_mov_b32 v10, s47", "v_mov_b32 v11, 0", "s_mov_b64 exec, 1",
            f"buffer_store_dword v10, v11, {sr(SWS, 4)}, s85 offen sc1", "s_mov_b64 exec, -1"]
    vstage = stage_kv(OFF_V, 2048, 4, 73, 75)
    a("s_and_b32 s27, s90, 0xff", "s_cbranch_scc0 A_QOK", "s_waitcnt vmcnt(0)", *pubm)
    poll(a, "A_PQ", 57, 8)
    a.label("A_QOK")
    a("s_cmp_eq_u32 s50, 7", "s_cbranch_scc0 A_FREE", f"v_mov_b32 v8, {L_CNT + 8}")
    lds_wait(a, "A_LB2", 8, 9)
    a.label("A_FREE")
    a(*stage_kv(OFF_K, 0, 4, 73, 75), *qld, *pads(73, 75, 12, 8))
    a("s_waitcnt vmcnt(12)", "v_cmp_ne_u32 s[88:89], s47, v61", "s_mov_b32 s83, 0", "s_and_b32 s88, s88, 0x3f",
      "s_cbranch_scc1 A_VL0", *vstage, "s_mov_b32 s83, 1", "s_waitcnt vmcnt(16)", *pubm, "s_waitcnt vmcnt(7)",
      "s_branch A_VL1")
    a.label("A_VL0")
    a("s_waitcnt vmcnt(10)", *pubm, "s_waitcnt vmcnt(1)")
    a.label("A_VL1")
    a("s_waitcnt lgkmcnt(0)")
    lds_arrive(a, 0, 8, 9)
    a("v_cmp_eq_u32 vcc, 0, v3", "v_mov_b32 v5, 0x3f80", f"v_mov_b32 v15, {f32(-3e38)}",
      f"v_cndmask_b32 v{QF + 6}, v5, v{QF + 6}, vcc", f"v_cndmask_b32 v{QF + 7}, 0, v{QF + 7}, vcc")
    stamp(a, 8)
    a(f"s_setprio {APRIO}")
    lds_wait(a, "A_LB0", 8, 9)
    stamp(a, 9)
    TL = [0, 8, 1, 2, 3, 4, 5, 6, 7]

    def kread(n):
        i = TL[n]
        return [f"ds_read_b64 {vr(KF + 8 * i + 2 * g, 2)}, v124 offset:{(8 - i) * 4096 + g * 512}" for g in range(4)]

    def smm(i, s, c):
        return [mfma(s, KF + 8 * i, QF, c), mfma(s, KF + 8 * i + 4, QF + 4, s)]

    def smax(s):
        return [f"v_max3_f32 v15, v{s + 2 * k}, v{s + 2 * k + 1}, v15" for k in range(8)]

    p1buf = [SM, CN] + [SB3[n % 3] for n in range(7)]
    merge = [f"v_cndmask_b32 v{SM + k}, v{CN + k}, v{SM + k}, {ms(k)}" for k in range(16)]
    work = {0: ["s_nop 1"] * 2, 1: ["s_nop 1"] * 2, 2: ["s_nop 1"] * 4, 3: merge[:12], 4: merge[12:] + smax(p1buf[2]),
            5: smax(p1buf[3]) + smax(SM)[:4], 6: smax(p1buf[4]) + smax(SM)[4:]}
    a(*kread(0), *kread(1), *kread(2))
    for n in range(11):
        mx = work[n] if n in work else smax(p1buf[n - 2])
        h = len(mx) // 2
        if n < 9:
            mm = smm(TL[n], p1buf[n], "0")
            a(f"s_waitcnt lgkmcnt({4 * (min(8, n + 2) - n)})", mm[0])
            if n + 3 <= 8:
                a(*kread(n + 3))
            a(*mx[:h], mm[1], *mx[h:])
            if n == VCHK:
                a("s_cmp_eq_u32 s83, 1", "s_cbranch_scc1 A_PB",
                  "s_mov_b64 exec, 0x3f", f"buffer_load_dword v61, v56, {sr(SWS, 4)}, 0 offen sc1", "s_mov_b64 exec, -1")
                a.label("A_PB")
        else:
            if n == 10:
                a("s_nop 1")
            a(*mx)
    stamp(a, 10)
    a("v_mov_b32 v8, v15", "s_nop 1", "v_permlane32_swap_b32 v8, v15", "v_max_f32 v15, v8, v15",
      "v_xor_b32 v14, 0x80000000, v15")
    for i in range(16):
        a(f"v_mov_b32 v{CN + i}, v14")

    def vread(i, b):
        return [f"ds_read_b128 {vr(b, 4)}, v125 offset:{(8 - i) * 4096}",
                f"ds_read_b128 {vr(b + 4, 4)}, v126 offset:{(8 - i) * 4096}"]

    def pexp(s, p):
        o = []
        for h in range(2):
            o += [f"v_exp_f32 v{s + 8 * h + k}, v{s + 8 * h + k}" for k in range(8)]
            o += [f"v_cvt_pk_bf16_f32 v{p + 4 * h + k}, v{s + 8 * h + 2 * k}, v{s + 8 * h + 2 * k + 1}"
                  for k in range(4)]
        return o

    PD_, PO_ = KF, KF + 64
    pvq = [(0, PD_), (8, PO_)] + [(i, PFR[i % 3]) for i in range(1, 8)]
    vb = lambda n: VF + 8 * (n & 1)

    def pv(n):
        p = pvq[n][1]
        return [mfma(OA, vb(n), p, "0" if n == 0 else OA), mfma(OA, vb(n) + 4, p + 4, OA)]

    plan = {2: [0], 3: [1, 2], 4: [3], 5: [4, 5], 6: [6], 7: [7]}
    for b in range(8):
        if b == 0:
            ex = [f"v_sub_f32 v{SM + k}, v{SM + k}, v15" for k in range(16)] + pexp(SM, PO_)
            ex += [x for k in range(8) for x in (f"v_and_b32 v{PD_ + k}, v{MK + k}, v{PO_ + k}",
                                                 f"v_xor_b32 v{PO_ + k}, v{PD_ + k}, v{PO_ + k}")]
        else:
            ex = pexp(SB3[b % 3], PFR[b % 3])
        seq = []
        if b < 7:
            seq += [[m] for m in smm(b + 1, SB3[(b + 1) % 3], CN)]
        if b == 1:
            a("s_cmp_eq_u32 s83, 1", "s_cbranch_scc1 A_VD", "s_waitcnt vmcnt(0)", "v_cmp_ne_u32 s[88:89], s47, v61",
              "s_nop 0", "s_and_b32 s88, s88, 0x3f", "s_cbranch_scc0 A_VG")
            poll(a, "A_PV", 56, 6)
            a.label("A_VG")
            a(*vstage)
            a.label("A_VD")
        if b == 2:
            a("s_waitcnt vmcnt(0)")
            lds_arrive(a, 1, 8, 9)
            lds_wait(a, "A_LB1", 8, 9)
            a(*vread(pvq[0][0], vb(0)), *vread(pvq[1][0], vb(1)))
        for n in plan.get(b, []):
            pp = pv(n)
            seq += [["s_waitcnt lgkmcnt(2)", pp[0]], [pp[1]] + vread(pvq[n + 2][0], vb(n)) if n + 2 < 9 else [pp[1]]]
        if b == 7:
            seq += [["s_waitcnt lgkmcnt(0)", pv(8)[0]]]
        step = 24 // len(seq)
        ins = {(2 if b == 0 else 0) + i * (8 if b == 0 else step): x for i, x in enumerate(seq)}
        for k, e in enumerate(ex):
            a(*ins.get(k, []))
            a(e)
    a("s_nop 1", pv(8)[1])
    a.label("A_FIN")
    stamp(a, 11)
    PF = 32
    a(f"s_mul_i32 s41, s71, {ACT_RT}", "s_lshl_b32 s42, s70, 11", "s_add_u32 s41, s41, s42",
      f"s_add_u32 s41, s41, {OFF_ACT + 112 * 1024}", f"s_mul_i32 s42, s71, {FLG_RT}", "s_lshl_b32 s27, s70, 7",
      "s_add_u32 s42, s42, s27", f"s_add_u32 s42, s42, {OFF_FLG + 98 * 128}",
      "v_mov_b32 v10, s47", "v_mov_b32 v11, 0", "s_nop 1")
    a(f"v_mov_b32 v8, v{OA + 12}", f"v_mov_b32 v9, v{OA + 12}", "s_nop 1", "v_permlane32_swap_b32 v8, v9",
      "v_rcp_f32 v9, v9", "s_nop 0")
    for h in range(2):
        for i in range(8 * h, 8 * h + 8):
            a(f"v_mul_f32 v{OA + i}, v9, v{OA + i}")
        for k in range(4 * h, 4 * h + 4):
            a(f"v_cvt_pk_bf16_f32 v{PF + k}, v{OA + 2 * k}, v{OA + 2 * k + 1}")
        if h:
            a(f"v_cndmask_b32 v{PF + 6}, 0, v{PF + 6}, vcc", f"v_cndmask_b32 v{PF + 7}, 0, v{PF + 7}, vcc")
        a(f"buffer_store_dwordx4 {vr(PF + 4 * h, 4)}, v4, {sr(SWS, 4)}, s41 offen offset:{1024 * h} sc1")
    a("s_waitcnt vmcnt(0)", "s_mov_b64 exec, 1",
      f"buffer_store_dword v10, v11, {sr(SWS, 4)}, s42 offen sc1", "s_mov_b64 exec, -1")
    stamp_out(a)
    a("s_endpgm")


G_R = 10
G_RW = 12
G_RES = 192
G_P1 = 3
HLEAD = 3
G_MW = 9
GX, GWO, GW2, GOUT = 4, 8, 16, 20


def publish(reg, off=0):
    return ["s_mov_b64 exec, 1", f"buffer_store_dword v58, v59, {sr(SWS, 4)}, s{reg} offen offset:{off} sc1",
            "s_mov_b64 exec, -1"]


HCHK = eval(os.environ.get('HCHK', '{4: (2, 24), 16: (10, 28)}'))
OCHK = eval(os.environ.get('OCHK', '(18, 23)'))
AMAX = int(os.environ.get('AMAX', '2'))
BURST = int(os.environ.get('BURST', '10'))
BAR = int(os.environ.get('BAR', '16'))
XPRIO = int(os.environ.get('XPRIO', '2'))
PUBK = int(os.environ.get('PUBK', '2'))


KORD = [0, 2, 1, 3, 4, 5, 6, 8, 10, 7, 9, 11, 12, 13]


KT = sum(n << (4 * i) for i, n in enumerate(KORD))


def kpos(k):
    n = KORD[k >> 1]
    return 16 * (n >> 1) + 2 * (n & 1) + (k & 1)


def slot(k):
    sl = k % G_RW
    if sl < 4:
        return 0, sl * 2048
    return 1, (L_S0 - L_RING + (sl - 4) * 2048) if sl < 8 else (sl - 8) * 2048


def dma_w(k):
    up, off = slot(k)
    src, w = wsrc(k)
    return [f"s_add_u32 m0, s{14 if up else 65}, {off}", src, f"buffer_load_dwordx4 v32, {sr(w, 4)}, s27 offen lds",
            f"buffer_load_dwordx4 v33, {sr(w, 4)}, s27 offen offset:1024 lds"]


def areg(k):
    return (128 + 8 * (k % G_R)) if (k % G_R) < 8 else (16 + 8 * (k % G_R - 8))


def issue_a(k, b0=44, b1=45):
    r = areg(k)
    off = (k & 1) * 1024
    o = []
    if k & 1 == 0:
        o = [f"s_add_u32 s70, s{b0}, {kpos(k) * 1024}", f"s_add_u32 s71, s{b1}, {kpos(k) * 1024}"]
    return o + [f"buffer_load_dwordx4 {vr(r, 4)}, v13, {sr(SWS, 4)}, s70 offen offset:{off} sc1",
                f"buffer_load_dwordx4 {vr(r + 4, 4)}, v13, {sr(SWS, 4)}, s71 offen offset:{off} sc1"]


def wsrc(k):
    if k < 28:
        return f"s_add_u32 s27, s12, {kpos(k) * 16 * 896}", GW2
    kk = k - 28
    return f"s_add_u32 s27, s13, {((kk >> 1) * 28 + (kk & 1) * 16) * 896}", GWO


PK0 = G_RW
PK1 = G_RW + 16
NA1 = int(os.environ.get('NA1', '4'))
NPA = 4


def preg(k):
    return 96 + 8 * k if k < NPA else 192 + 8 * ((k - PK0) % 8)


def park_w(k):
    src, w = wsrc(k)
    return [src, f"buffer_load_dwordx4 {vr(preg(k), 4)}, v32, {sr(w, 4)}, s27 offen",
            f"buffer_load_dwordx4 {vr(preg(k) + 4, 4)}, v33, {sr(w, 4)}, s27 offen offset:1024"]


PSCHED = [int(x) for x in os.environ.get("PS", "2,1,1,2,2").split(",")]
PORDER = list(range(NPA)) + list(range(PK0, PK0 + 8))


def gen_aux(a):
    AC, T, P = 64, 16, 48
    SWQ, SW1 = SA, SB
    a("s_setprio 3", "s_mov_b32 s59, s49", "s_lshl_b32 s69, s49, 7", "s_mul_i32 s27, s55, 56",
      "v_min_u32 v16, 55, v1", "v_add_u32 v16, s27, v16", "v_mul_u32_u24 v17, 2688, v16",
      "s_add_u32 s60, s49, 16", "s_sub_u32 s27, s49, 5",
      "s_cmp_lt_u32 s49, 5", "s_cselect_b32 s60, s60, s27", "s_add_u32 s61, s57, 11", "v_lshlrev_b32 v12, 2, v1")
    a("s_waitcnt lgkmcnt(0)")
    stamp(a, 0, rt=True)
    stamp(a, 1)
    srd(a, SWQ, P_WQKV, WQKV_BYTES)
    if "notouch0" not in EXP:
        a("s_cmp_eq_u32 s26, 0", "s_cbranch_scc0 X_WD", f"buffer_load_dword v17, v17, {sr(SWQ, 4)}, s69 offen")
    a.label("X_WD")
    srd(a, SW1, P_W1, W1_BYTES)
    srd(a, SWS, P_WS, WS_BYTES)
    a("s_lshl_b32 s27, s2, 3", "s_add_u32 s27, s27, s3", "s_cmp_eq_u32 s27, 7", "s_cbranch_scc0 X_NOEP")
    srd(a, SC, P_DBG, 256)
    a(f"v_mov_b32 v20, {OFF_EPOCH}", "v_mov_b32 v22, 0", "s_mov_b64 exec, 1",
      f"buffer_load_dword v21, v20, {sr(SWS, 4)}, 0 offen sc1", "s_waitcnt vmcnt(0)",
      "v_add_u32 v21, 1, v21", "v_max_u32 v21, 1, v21",
      f"buffer_store_dword v21, v22, {sr(SC, 4)}, 0 offen sc1",
      f"buffer_store_dword v21, v20, {sr(SWS, 4)}, 0 offen sc1", "s_mov_b64 exec, -1")
    a.label("X_NOEP")
    a("s_cmp_eq_u32 s3, 5", "s_cbranch_scc0 X_PRE")
    srd(a, SC, P_B1, 3584)
    a("s_mov_b32 exec_hi, 0", f"s_mov_b32 m0, {L_BIAS + 128}", "s_lshl_b32 s27, s60, 7",
      f"buffer_load_dword v12, {sr(SC, 4)}, s27 offen lds",
      f"s_mov_b32 m0, {L_BIAS + 256}", "s_lshl_b32 s27, s61, 7",
      f"buffer_load_dword v12, {sr(SC, 4)}, s27 offen lds",
      f"s_mov_b32 m0, {L_BIAS + 384}", "s_lshl_b32 s27, s51, 6", f"s_add_u32 s27, s27, {27 * 128}",
      f"buffer_load_dword v12, {sr(SC, 4)}, s27 offen lds", "s_mov_b32 exec_hi, -1",
      f"v_add_u32 v20, {L_CNT}, v12", "v_mov_b32 v21, 0", "ds_write_b32 v20, v21")
    a.label("X_PRE")
    a(f"s_setprio {1 if 'auxprio' in EXP else 0}")
    a("v_bfe_u32 v15, v1, 2, 3", "v_lshlrev_b32 v13, 6, v3", "v_and_b32 v14, 3, v1", "v_lshl_add_u32 v13, v14, 4, v13",
      "v_mul_u32_u24 v4, 2688, v15", "v_add_u32 v4, v4, v13", "v_mul_u32_u24 v8, 3584, v15", "v_add_u32 v8, v8, v13")
    for k in range(1, 4):
        a(f"v_add_u32 v{4 + k}, {k * (8 * 2688 - 1024)}, v4", f"v_add_u32 v{8 + k}, {k * (8 * 3584 - 1024)}, v8")
    a(f"s_mul_i32 s27, s58, {FLG_RT}", f"s_add_u32 s27, s27, {OFF_FLG}", "s_lshl_b32 s62, s49, 8",
      "s_add_u32 s62, s62, s27", f"s_add_u32 s63, s62, {32 * 128}", "s_lshl_b32 s64, s57, 8", "s_add_u32 s64, s64, s27",
      f"s_add_u32 s64, s64, {64 * 128}")
    a(f"s_mul_i32 s66, s26, {56 * 2688}", f"s_mul_i32 s67, s26, {56 * 3584}", "s_mul_i32 s68, s26, 7168",
      "v_lshlrev_b32 v13, 4, v1", "v_lshlrev_b32 v14, 3, v1")
    a(f"s_mul_i32 s76, s58, {RT}", f"s_mul_i32 s77, s58, {ACT_RT}", f"s_add_u32 s77, s77, {OFF_ACT}",
      f"s_add_u32 s78, s76, {OFF_V}",
      "s_lshl_b32 s72, s49, 12", f"s_add_u32 s27, s72, {OFF_K - 7 * 4096}", "s_cmp_ge_u32 s49, 7",
      "s_cselect_b32 s72, s27, s72", "s_add_u32 s72, s72, s76",
      "s_sub_u32 s27, s49, 14", "s_lshl_b32 s27, s27, 10", "s_add_u32 s27, s27, s78",
      "s_cmp_ge_u32 s49, 14", "s_cselect_b32 s72, s27, s72",
      "s_add_u32 s27, s49, 2", "s_lshl_b32 s27, s27, 10", "s_add_u32 s27, s27, s78",
      "s_lshl_b32 s73, s60, 12", "s_add_u32 s73, s73, s77", "s_cmp_lt_u32 s49, 5", "s_cselect_b32 s73, s27, s73",
      "s_lshl_b32 s74, s61, 12", "s_add_u32 s74, s74, s77",
      "v_mul_u32_u24 v15, 448, v3", "v_lshl_add_u32 v15, v2, 4, v15", "s_movk_i32 s79, 1344",
      "s_lshl_b32 s27, s26, 13", "v_add_u32 v57, s27, v12", "v_add_u32 v56, 4096, v57", "v_mov_b32 v59, 0")
    gemm_setup(a)

    def dma(ffn, src, slot):
        vb, pitch, w, wo = (8, 3584, SW1, 67) if ffn else (4, 2688, SWQ, 66)
        o = [f"s_add_u32 m0, s68, {slot}", f"s_add_u32 s27, {src}, s{wo}"]
        o += [f"buffer_load_dwordx4 v{vb + k}, {sr(w, 4)}, s27 offen offset:{k * 1024} lds" for k in range(4)]
        o += ["s_add_u32 m0, m0, 4096", f"s_add_u32 s27, s27, {32 * pitch}"]
        o += [f"buffer_load_dwordx4 v{vb + k}, {sr(w, 4)}, s27 offen offset:{k * 1024} lds" for k in range(3)]
        return o

    def dma2(tag, slot, half):
        a("s_cmp_lt_u32 s49, 5", f"s_cbranch_scc0 {tag}F", f"s_add_u32 s83, s71, {half * 224 * 2688}",
          *dma(False, "s83", slot), f"s_branch {tag}D")
        a.label(tag + "F")
        a(f"s_add_u32 s83, s71, {half * 224 * 3584}", *dma(True, "s83", slot))
        a.label(tag + "D")

    a("s_lshl_b32 s69, s59, 7", f"s_add_u32 s70, s69, {224 * 2688}", "s_lshl_b32 s71, s60, 7", "s_waitcnt lgkmcnt(0)")
    if "st0early" in EXP:
        a(*dma(False, "s69", L_S0))
    stamp(a, 2)
    a("s_barrier")
    stamp(a, 3)
    if "st0early" not in EXP:
        a(*dma(False, "s69", L_S0))
    a(*dma(False, "s70", L_S1))
    dma2("X_D2", L_S2, 0)
    a(f"buffer_load_dword v58, v59, {sr(SC, 4)}, 0 offen sc1", "s_waitcnt vmcnt(15)")
    stamp(a, 4)
    a("s_barrier")
    c0, c1 = GC0, GC1
    a("s_lshl_b32 s27, s26, 8", f"s_add_u32 s27, s27, {L_STAT}", "v_lshl_add_u32 v16, v2, 2, s27",
      "v_lshl_add_u32 v17, v3, 4, s27", "ds_read_b32 v40, v16", "ds_read_b32 v41, v16 offset:128",
      f"v_mov_b32 v18, {L_CNT + 64}")
    a("s_waitcnt vmcnt(8)", "s_barrier")
    dma2("X_D3", L_S3, 1)
    a("v_mov_b32 v7, v17")
    XR = 80
    if "noxres" in EXP:
        a("s_mov_b32 s6, 0")
    a(f"buffer_load_dwordx4 {vr(XR, 4)}, v44, {sr(GX, 4)}, s15 offen",
      f"buffer_load_dwordx4 {vr(XR + 4, 4)}, v44, {sr(GX, 4)}, s15 offen offset:32",
      f"buffer_load_dwordx4 {vr(XR + 8, 4)}, v39, {sr(SD, 4)}, s101 offen",
      f"buffer_load_dwordx4 {vr(XR + 12, 4)}, v39, {sr(SD, 4)}, s101 offen offset:32")
    a("s_cmp_lt_u32 s49, 7", f"s_cselect_b32 s27, {f32(28 ** -0.5 * 1.4426950408889634)}, 1.0",
      "s_waitcnt lgkmcnt(0)",
      f"v_mul_f32 v42, {f32(c0)}, v40", "v_mul_f32 v43, v40, v40", "v_mul_f32 v43, v43, v40",
      f"v_mul_f32 v43, {f32(c1)}, v43", "v_mul_f32 v40, s27, v40")
    pos = [0]

    def take(p):
        n = PSCHED[p + 1]
        ks = PORDER[pos[0]:pos[0] + n]
        pos[0] += n
        return [x for k in ks for x in (park_w(k)[:2], park_w(k)[2:])]

    np_ = lambda p: 2 * PSCHED[p + 1]
    for x in take(-1):
        a(*x)
    epoch_wait(a, "X_EP", 59, 58, 11 + np_(-1))
    a("ds_write_b32 v18, v58", "s_lshl_b32 s82, s61, 7", "s_waitcnt lgkmcnt(0)")

    ACX = (AC, 128)

    def reads(u):
        return [f"ds_read2st64_b32 {vr(ACX[u & 1] + 2 * q, 2)}, v{56 + (u & 1)} offset0:{2 * q} offset1:{2 * q + 1}"
                for q in range(8)]

    def head(u):
        o = ["s_barrier"]
        if STAMP and "ks" not in EXP:
            o += ["s_memtime s[98:99]", "s_waitcnt lgkmcnt(0)", f"v_writelane_b32 v63, s98, {16 + 4 * u}"]
        return o + reads(u)

    def ffn(u, weave, mid, nxt):
        blocks = []
        for g in range(4):
            t = [T + 4 * (g & 1) + k for k in range(4)]
            s = [ACX[u & 1] + 4 * g + k for k in range(4)]
            blocks += [[f"s_waitcnt lgkmcnt({6 - 2 * g})"] + [f"v_mul_f32 v{t[k]}, v{s[k]}, v{s[k]}" for k in range(4)],
                       [f"v_fma_f32 v{t[k]}, v{t[k]}, v43, v42" for k in range(4)]
                       + [f"v_mul_f32 v{t[k]}, v{s[k]}, v{t[k]}" for k in range(4)],
                       [f"v_exp_f32 v{t[k]}, v{t[k]}" for k in range(4)],
                       [f"v_fma_f32 v{t[k]}, v{t[k]}, v41, v41" for k in range(4)]
                       + [f"v_rcp_f32 v{t[k]}, v{t[k]}" for k in range(2)],
                       [f"v_rcp_f32 v{t[k]}, v{t[k]}" for k in range(2, 4)]
                       + [f"v_mul_f32 v{t[k]}, v{s[k]}, v{t[k]}" for k in range(4)]
                       + [f"v_cvt_pk_bf16_f32 v{P + 2 * g}, v{t[0]}, v{t[1]}",
                          f"v_cvt_pk_bf16_f32 v{P + 2 * g + 1}, v{t[2]}, v{t[3]}"]]
        at = {}
        for i in range(0, len(weave), 2):
            b = i * 8 // len(weave)
            at.setdefault(b, []).append(weave[i])
            at.setdefault(b + 1, []).insert(0, weave[i + 1])
        n = 0
        for b, blk in enumerate(blocks):
            if b == BAR and nxt:
                a("s_waitcnt lgkmcnt(0)", *nxt(n))
            a(*[x for x in blk if not (nxt and b >= BAR and x.startswith("s_waitcnt"))])
            if b == 9:
                m = mid(n)
                a(*m)
                n += sum(x.startswith("buffer_") for x in m)
            if b in (9, 19):
                a(f"buffer_store_dwordx4 {vr(P + 4 * (b // 10), 4)}, v13, {sr(SWS, 4)}, s72 offen offset:{(b // 10) * 1024} sc1")
                n += 1
            for w in at.get(b, []):
                a(*w)
                n += 1
        a("s_add_u32 s72, s72, 2048")

    def qkv(u):
        a(f"s_bitcmp1_b32 s54, {2 * u}", f"s_cbranch_scc1 X_B{u}", f"s_call_b64 s[90:91], X_QK{u & 1}", f"s_branch X_C{u}")
        a.label(f"X_B{u}")
        a(f"s_call_b64 s[90:91], X_V{u & 1}")
        a.label(f"X_C{u}")

    def extra(tag, slot, setup):
        return ["s_cmp_eq_u32 s50, 7", f"s_cbranch_scc0 {tag}", setup, *dma(True, "s82", slot), tag + ":"]

    a(*head(0))
    qkv(0)
    a(*dma(True, "s82", L_S0))
    for x in take(0):
        a(*x)
    a(f"s_waitcnt vmcnt({4 + np_(-1) + 2 + 7 + np_(0)})")
    a(*head(1))
    qkv(1)
    a(f"s_waitcnt vmcnt({7 + np_(0) + 2})", *publish(62))
    a("s_mov_b32 s72, s73", f"s_add_u32 s82, s82, {224 * 3584}", *dma(True, "s82", L_S1))
    for x in take(1):
        a(*x)
    a(f"s_waitcnt vmcnt({np_(0) + 2 + 1 + 7 + np_(1)})")
    a(*head(2))
    w2, w3 = take(2), take(3)
    d6 = lambda t: extra(t, L_S2, f"s_movk_i32 s82, {27 * 128}")
    d7 = lambda t: extra(t, L_S3, f"s_add_u32 s82, s82, {224 * 3584}")
    a("s_bitcmp1_b32 s54, 4", "s_cbranch_scc0 X_R1F")
    a("s_call_b64 s[90:91], X_V0", f"s_waitcnt vmcnt({np_(1) + 2})", *publish(62, 128))
    for x in w2:
        a(*x)
    a(*head(3), "s_call_b64 s[90:91], X_V1", f"s_waitcnt vmcnt({np_(2) + 2})", *publish(63))
    for x in w3:
        a(*x)
    a(*head(4), f"s_waitcnt vmcnt({np_(3)})", *publish(63, 128), "s_branch X_R2")
    a.label("X_R1F")
    x7 = lambda tag, n: ["s_cmp_eq_u32 s50, 7", f"s_cbranch_scc1 {tag}", f"s_waitcnt vmcnt({n})", tag + ":",
                         f"s_waitcnt vmcnt({n + 7})"]
    a(*d6("X_N6F"))
    ffn(2, w2, lambda n: [*x7("X_W2", np_(1) + n), *publish(62, 128)], lambda n: head(3))
    a(*d7("X_N7F"))
    ffn(3, w3, lambda n: [*x7("X_W3", n), *publish(63)], lambda n: head(4))
    a.label("X_R2")
    a("s_mov_b32 s72, s74")
    kreq = ["s_mov_b64 exec, 0xf",
            f"buffer_load_dword v62, v36, {sr(SWS, 4)}, 0 offen sc1", "s_mov_b64 exec, -1"]
    ffn(4, [], lambda n: [f"s_setprio {XPRIO}", "s_waitcnt vmcnt(0)", *publish(63, 128), *kreq], None)
    a("s_cmp_eq_u32 s50, 7", "s_cbranch_scc0 X_DONE", *head(5))
    ffn(5, [], lambda n: ["s_waitcnt vmcnt(0)", *publish(64)], None)
    a("s_branch X_DONE")
    for par in range(2):
        A_ = ACX[par]
        a.label(f"X_QK{par}")
        for g in range(4):
            a(f"s_waitcnt lgkmcnt({6 - 2 * g})")
            for k in range(4):
                a(f"v_mul_f32 v{T + 4 * g + k}, v40, v{A_ + 4 * g + k}")
            a(f"v_cvt_pk_bf16_f32 v{P + 2 * g}, v{T + 4 * g}, v{T + 4 * g + 1}",
              f"v_cvt_pk_bf16_f32 v{P + 2 * g + 1}, v{T + 4 * g + 2}, v{T + 4 * g + 3}",
              f"buffer_store_dwordx2 {vr(P + 2 * g, 2)}, v14, {sr(SWS, 4)}, s72 offen offset:{g * 512} sc1")
        a("s_add_u32 s72, s72, 2048", "s_setpc_b64 s[90:91]")
        a.label(f"X_V{par}")
        for g in range(4):
            a(f"ds_read_b128 {vr(T + 4 * g, 4)}, v7 offset:{g * 32}")
        a("s_sub_u32 s27, s72, s78", "s_lshr_b32 s27, s27, 4", "v_add_u32 v60, s27, v2",
          "v_mul_u32_u24 v60, 2341, v60", "v_lshrrev_b32 v60, 16, v60", "v_mad_u32_u24 v60, v60, s79, v15")
        for s in range(2):
            a(f"s_waitcnt lgkmcnt({2 - 2 * s})")
            for k in range(8):
                a(f"v_mul_f32 v{T + 8 * s + k}, v{T + 8 * s + k}, v{A_ + 8 * s + k}")
            for k in range(4):
                a(f"v_cvt_pk_bf16_f32 v{P + 4 * s + k}, v{T + 8 * s + 2 * k}, v{T + 8 * s + 2 * k + 1}")
            a(f"buffer_store_dwordx4 {vr(P + 4 * s, 4)}, v60, {sr(SWS, 4)}, s72 offen offset:{s * 896} sc1")
        a("s_add_u32 s72, s72, 512", "s_setpc_b64 s[90:91]")
    a.label("X_DONE")
    stamp(a, 5)


def gemm_setup(a):
    srd(a, SD, P_B2, 896)
    srd(a, SC, P_DBG, 256)
    a(f"s_mov_b32 s{GX + 2}, {X_BYTES}", f"s_mov_b32 s{GX + 3}, 0x20000",
      "s_lshl_b32 s88, s52, 2", "s_and_b32 s27, s53, 3", "s_add_u32 s88, s88, s27", "s_lshr_b32 s89, s53, 2",
      "s_and_b32 s90, s26, 1", "s_lshr_b32 s91, s26, 1", "s_lshl_b32 s27, s88, 1",
      "s_add_u32 s44, s27, s90", "s_xor_b32 s45, s44, 1", "s_lshl_b32 s89, s89, 7",
      "s_lshl_b32 s101, s91, 6", "s_add_u32 s101, s101, s89", f"s_mul_i32 s15, s44, {RT}", "s_add_u32 s15, s15, s101",
      "v_lshlrev_b32 v39, 4, v3", "v_mul_u32_u24 v44, 896, v2", "v_add_u32 v44, v44, v39",
      f"s_mov_b32 s{GWO + 2}, {WO_BYTES}", f"s_mov_b32 s{GWO + 3}, 0x20000",
      f"s_mov_b32 s{GW2 + 2}, {W2_BYTES}", f"s_mov_b32 s{GW2 + 3}, 0x20000",
      f"s_mov_b32 s{GOUT + 2}, {X_BYTES}", f"s_mov_b32 s{GOUT + 3}, 0x20000")
    a("v_bfe_u32 v46, v1, 2, 2", "v_bfe_u32 v47, v1, 4, 1", "v_lshl_add_u32 v46, v47, 3, v46",
      "v_mul_u32_u24 v32, 896, v46", "v_lshl_add_u32 v32, v3, 6, v32", "v_and_b32 v46, 3, v1",
      "v_lshl_add_u32 v32, v46, 4, v32", f"v_add_u32 v33, {4 * 896 - 1024}, v32")
    a(f"s_mul_i32 s88, s88, {2 * FLG_RT}", f"s_add_u32 s88, s88, {OFF_FLG}",
      f"v_mov_b32 v46, {KT & 0xffffffff}", f"v_mov_b32 v47, {KT >> 32}", "v_and_b32 v45, 30, v1",
      "v_lshlrev_b32 v45, 1, v45", "v_lshrrev_b64 v[46:47], v45, v[46:47]", "v_bfe_u32 v47, v46, 1, 3",
      "v_and_b32 v46, 1, v46", "v_lshl_add_u32 v47, v47, 3, v46",
      "v_and_b32 v46, 1, v1", f"v_mul_u32_u24 v46, {FLG_N}, v46",
      "s_lshl_b32 s27, s26, 1", "s_add_u32 s27, s27, 42", "v_add3_u32 v47, v47, v46, s27",
      "v_lshlrev_b32 v47, 7, v47", "v_add_u32 v36, s88, v47",
      "v_bfe_u32 v47, v1, 1, 2", "v_add_u32 v46, v46, v47",
      "s_lshl_b32 s27, s26, 2", "s_add_u32 s27, s27, 98", "v_add_u32 v46, s27, v46", "v_lshlrev_b32 v46, 7, v46",
      "v_add_u32 v37, s88, v46")
    a(f"s_mul_i32 s12, s26, {64 * 896}", "s_add_u32 s12, s12, s89",
      f"s_mul_i32 s13, s26, {112 * 896}", "s_add_u32 s13, s13, s89",
      "s_lshl_b32 s65, s26, 13", f"s_add_u32 s14, s65, {L_RING}",
      f"s_mul_i32 s44, s44, {ACT_RT}", f"s_mul_i32 s45, s45, {ACT_RT}",
      "s_lshl_b32 s27, s26, 13", f"s_add_u32 s27, s27, {OFF_ACT + 112 * 1024}",
      "s_add_u32 s46, s44, s27", "s_add_u32 s100, s45, s27",
      "s_lshl_b32 s27, s26, 12", f"s_add_u32 s27, s27, {OFF_ACT}", "s_add_u32 s44, s44, s27", "s_add_u32 s45, s45, s27")
    a("v_and_b32 v46, 1, v1", "v_bfe_u32 v47, v1, 1, 1", "v_lshl_add_u32 v46, v46, 1, v47",
      "v_bfe_u32 v47, v1, 4, 1", "v_lshl_add_u32 v46, v47, 2, v46",
      "v_bfe_u32 v47, v1, 2, 2", "v_lshlrev_b32 v47, 6, v47", "v_lshl_add_u32 v46, v46, 3, v47",
      "v_lshl_add_u32 v46, v3, 10, v46", "s_lshl_b32 s27, s91, 9", "s_add_u32 s27, s27, s14",
      "v_add_u32 v34, s27, v46", "v_xor_b32 v35, 512, v34")
    a("v_add_u32 v38, s14, v13")
    for t in range(1, 4):
        a(f"s_xor_b32 s27, s26, {t}", "s_lshl_b32 s27, s27, 13", f"s_add_u32 s27, s27, {L_RING}",
          f"v_add_u32 v{44 + t}, s27, v13")


def gemm_res(a):
    XR, RES, TM = 80, 64, 16
    for k in range(8):
        a(f"v_lshlrev_b32 v{RES + 2 * k}, 16, v{XR + k}", f"v_and_b32 v{RES + 2 * k + 1}, 0xffff0000, v{XR + k}",
          f"v_lshlrev_b32 v{TM + 2 * k}, 16, v{XR + 8 + k}", f"v_and_b32 v{TM + 1 + 2 * k}, 0xffff0000, v{XR + 8 + k}")
    for i in range(16):
        a(f"v_add_f32 v{XR + i}, v{RES + i}, v{TM + i}")


def gen_gemm(a):
    R, RW = G_R, G_RW
    AC, OR, XR = 64, 192, 16
    WFR = (4, 48)
    NK = 36
    ACS = (80, 64, 96, 112)
    pub = publish(64)
    a("s_cmp_lt_u32 s53, 28", "s_cbranch_scc1 G_GO", "s_waitcnt vmcnt(0)", *publish(64, 128))
    stamp_out(a)
    a("s_endpgm")
    a.label("G_GO")

    def req(v, nl, dst=60):
        return [f"s_mov_b64 exec, {(1 << nl) - 1}", f"buffer_load_dword v{dst}, v{v}, {sr(SWS, 4)}, 0 offen sc1",
                "s_mov_b64 exec, -1"]

    def chk(mask, target, src=60):
        return [f"v_cmp_ne_u32 s[88:89], s47, v{src}", "s_nop 0", f"s_and_b32 s88, s88, {mask}", f"s_cbranch_scc0 {target}"]

    def issue_w(k):
        return park_w(k) if PK0 <= k < PK1 else dma_w(k)

    def dump(k):
        up, off = slot(k)
        va = 38 if up else 43
        return [f"ds_write_b128 v{va}, {vr(preg(k), 4)} offset:{off}",
                f"ds_write_b128 v{va}, {vr(preg(k) + 4, 4)} offset:{off + 1024}"]

    def wread(k):
        w = WFR[k & 1]
        up, off = slot(k)
        va = 34 if up else 40
        return [f"ds_read_b64_tr_b16 {vr(w, 2)}, v{va} offset:{off}",
                f"ds_read_b64_tr_b16 {vr(w + 2, 2)}, v{va} offset:{off + 256}",
                f"ds_read_b64_tr_b16 {vr(w + 4, 2)}, v{va + 1} offset:{off}",
                f"ds_read_b64_tr_b16 {vr(w + 6, 2)}, v{va + 1} offset:{off + 256}"]

    q = []

    def emit_w(k):
        nonlocal q
        a(*issue_w(k))
        q += [("w", k)] * 2

    def upto(tags):
        nonlocal q
        need = [i for i, kk in enumerate(q) if kk in tags]
        q = q[max(need) + 1:] if need else q
        assert len(q) <= 63
        return f"s_waitcnt vmcnt({len(q)})"

    left = PORDER[sum(PSCHED):]
    a("v_add_u32 v43, s65, v13", f"v_mov_b32 v42, {L_CNT + 8}",
      f"v_subrev_u32 v40, {L_RING}, v34", f"v_subrev_u32 v41, {L_RING}, v35")
    for k in range(4):
        a(*dump(k))
    gemm_res(a)
    a("s_waitcnt vmcnt(0)", *pub, "s_setprio 0")
    stamp(a, 7)
    a(*chk(0xf, "G_OK0", 62))
    for k in range(4, 8):
        a(*issue_w(k))
    poll(a, "G_P0", 36, NA1, 61)
    for k in range(NA1):
        a(*issue_a(k))
    a("s_waitcnt vmcnt(0)", "s_branch G_OK1")
    a.label("G_OK0")
    for k in range(NA1):
        a(*issue_a(k))
        q += [("a", k)] * 2
    for k in range(4, 8):
        emit_w(k)
    a.label("G_OK1")
    while left and left[0] < PK0 + 2:
        emit_w(left.pop(0))
    stamp(a, 6)
    a(*wread(0))
    if -1 in {v[0] for v in HCHK.values()}:
        a(*req(36, 28))
        q += ["b"]
    lds_wait(a, "G_LW", 42, 56)
    pend = [("w", k) for k in left + list(range(8, RW))]
    anext = NA1
    alim = NA1
    onext = 0

    def split(ops):
        out, cur = [], []
        for o in ops:
            if o == "s_mov_b64 exec, -1":
                out[-1].append(o)
                continue
            cur.append(o)
            if o.startswith("buffer_") or o.startswith("ds_"):
                out.append(cur)
                cur = []
        assert not cur
        return out

    def issue_o1(kk):
        o = ["s_add_u32 s46, s46, 4096", "s_add_u32 s100, s100, 4096"] if kk == 4 else []
        return o + [f"buffer_load_dwordx4 {vr(OR + 8 * kk, 4)}, v13, {sr(SWS, 4)}, s46 offen offset:{(kk & 3) * 1024} sc1",
                    f"buffer_load_dwordx4 {vr(OR + 8 * kk + 4, 4)}, v13, {sr(SWS, 4)}, s100 offen offset:{(kk & 3) * 1024} sc1"]

    for k in range(NK):
        if k in HCHK:
            nl = HCHK[k][1]
            a(upto({"b"}), *chk((1 << nl) - 1, f"G_OK{k}"))
            poll(a, f"G_P{k}", 36, nl)
            a.label(f"G_OK{k}")
            if k == min(HCHK):
                stamp(a, 8)
            alim = nl
            while anext < min(alim, k + BURST):
                a(*issue_a(anext))
                q += [("a", anext)] * 2
                anext += 1
        if k == OCHK[1]:
            assert k > PK1 - RW
            a(upto({"p"}), *chk(0xff, "G_OKO", 61))
            poll(a, "G_PO", 37, 8, 61)
            a.label("G_OKO")
            stamp(a, 10)
        kd = k + RW
        tags = {("a", k), ("w", k + 1)}
        if PK0 <= kd < PK1:
            tags |= {("w", kd)}
        assert not any(t in pend for t in tags)
        n0 = len(q)
        wt = upto(tags)
        if len(q) != n0:
            a(wt)
        if STAMP and "ks" in EXP:
            if k:
                a(f"v_writelane_b32 v63, s96, {27 + k}")
            a("s_memtime s[96:97]")
        elif k in (12, 28):
            stamp(a, {12: 9, 28: 11}[k])
        w = WFR[k & 1]
        r = areg(k) if k < 28 else OR + 8 * (k - 28)
        c = (lambda t: ACS[0] if t == 0 else "0") if k == 0 else (lambda t: ACS[t])
        vm = []
        if k == OCHK[0]:
            vm += req(37, 8, 61)
            q += ["p"]
        if k in {v[0] for v in HCHK.values()}:
            vm += req(36, 28)
            q += ["b"]
        budget = AMAX
        while anext < min(alim, k + R) and budget:
            vm += issue_a(anext)
            q += [("a", anext)] * 2
            anext += 1
            budget -= 1
        if k >= OCHK[1]:
            budget += 1
        while k >= OCHK[1] and onext < 8 and budget:
            vm += issue_o1(onext)
            q += [("a", 28 + onext)] * 2
            onext += 1
            budget -= 1
        kp = kd + 7
        if k >= 1 and kp < PK1:
            pend.append(("w", kp))
        if PK1 <= kd < NK:
            pend.append(("w", kd))
        for _ in range(2 if budget == AMAX else 1):
            if pend:
                t = pend.pop(0)
                vm += issue_w(t[1])
                q += [t] * 2
        pieces = split(vm)
        dm = split(dump(kd)) if PK0 <= kd < PK1 else []
        rd = wread(k + 1) if k < NK - 1 else []
        mm = [mfma(ACS[0], w, r, c(0)), mfma(ACS[1], w, r + 4, c(1)), mfma(ACS[2], w + 4, r, c(2)),
              mfma(ACS[3], w + 4, r + 4, c(3))]
        pieces = dm + pieces
        per = (len(pieces) + 2) // 3
        a("s_waitcnt lgkmcnt(0)", mm[0], *rd)
        for t in range(1, 4):
            a(mm[t])
            for p in pieces[(t - 1) * per:t * per]:
                a(*p)
    assert onext == 8 and not pend
    assert anext == 28
    stamp(a, 12)
    RO = (0, 0, 4096, L_S0 - L_RING)
    a("s_nop 7", "s_nop 1")
    for t in range(1, 4):
        for qq in range(4):
            a(f"ds_write_b128 v38, {vr(ACS[t] + 4 * qq, 4)} offset:{RO[t] + qq * 1024}")
    a("s_waitcnt lgkmcnt(0)", "s_barrier")
    stamp(a, 13)
    for t in range(1, 4):
        for qq in range(4):
            a(f"ds_read_b128 {vr(ACS[t] + 4 * qq, 4)}, v{44 + t} offset:{RO[t] + qq * 1024}")
    a("s_waitcnt lgkmcnt(4)")
    for i in range(0, 16, 2):
        a(f"v_pk_add_f32 {vr(ACS[1] + i, 2)}, {vr(ACS[1] + i, 2)}, {vr(ACS[2] + i, 2)}")
    for i in range(0, 16, 2):
        a(f"v_pk_add_f32 {vr(ACS[0] + i, 2)}, {vr(ACS[0] + i, 2)}, {vr(ACS[1] + i, 2)}")
    for h in range(2):
        a(f"s_waitcnt lgkmcnt({2 - 2 * h})")
        for i in range(8 * h, 8 * h + 8, 2):
            a(f"v_pk_add_f32 {vr(ACS[0] + i, 2)}, {vr(ACS[0] + i, 2)}, {vr(ACS[3] + i, 2)}")
        for k in range(4 * h, 4 * h + 4):
            a(f"v_cvt_pk_bf16_f32 v{XR + k}, v{ACS[0] + 2 * k}, v{ACS[0] + 2 * k + 1}")
        a(f"buffer_store_dwordx4 {vr(XR + 4 * h, 4)}, v44, {sr(GOUT, 4)}, s15 offen offset:{32 * h} {os.environ.get('OUTF', '')}")
    stamp_out(a)


def post(t):
    lines = t.split("\n")
    g = next(i for i, l in enumerate(lines) if l.startswith("G_GO"))
    o = lines[:g]
    for l in lines[g:]:
        if "plainact" in EXP and "buffer_load_dwordx4 v[" in l:
            l = l.replace(" sc1", "")
        if "gnomfma" in EXP and "v_mfma" in l:
            continue
        if "gnoa" in EXP and "buffer_load_dwordx4 v[" in l:
            l = l.replace("v13,", "v59,")
        if "gnow" in EXP and " lds" in l:
            l = l.replace("v32,", "v59,").replace("v33,", "v59,")
        o.append(l)
    return "\n".join(o)


def main(out):
    a = Asm()
    a.raw(f"; @launch grid=(256,1,1) block=(512,1,1) lds={LDS_BYTES}")
    a.raw('.amdgcn_target "amdgcn-amd-amdhsa--gfx950"')
    a.raw(".text")
    name = gen(a)
    a.raw('.section .rodata,"a"')
    a.raw(".p2align 6")
    a.raw(f".amdhsa_kernel {name}")
    a.raw("  .amdhsa_next_free_vgpr 256")
    a.raw("  .amdhsa_next_free_sgpr 102")
    a.raw("  .amdhsa_accum_offset 256")
    a.raw("  .amdhsa_group_segment_fixed_size 0")
    a.raw("  .amdhsa_kernarg_size 88")
    a.raw("  .amdhsa_user_sgpr_count 2")
    a.raw("  .amdhsa_user_sgpr_kernarg_segment_ptr 1")
    a.raw("  .amdhsa_system_sgpr_workgroup_id_x 1")
    a.raw(".end_amdhsa_kernel")
    open(out, "w").write(post(a.text()))


if __name__ == "__main__":
    if "--stamp" in sys.argv:
        sys.argv.remove("--stamp")
        STAMP = True
    if "--dbg" in sys.argv:
        sys.argv.remove("--dbg")
        DBG = True
    main(sys.argv[1] if len(sys.argv) > 1 else f"cdna_kernels/{NAME}.s")
```

```python
import os
import struct
import sys

EXP = set(os.environ.get('EXP', '').split(','))

NAME = "parallel_sum__sliding_block__dense_activation_gelu__prompt"

RT = 28672
OFF_Q = 0
OFF_K = 64 * RT
OFF_V = 2 * 64 * RT
OFF_ACT = 3 * 64 * RT
ACT_RT = 144 * 1024
OFF_FLG = OFF_ACT + 64 * ACT_RT
FLG_N = 114
FLG_RT = FLG_N * 128
OFF_EPOCH = OFF_FLG + 64 * FLG_RT
WS_BYTES = OFF_EPOCH + 128
NATIVE_K = True

X_BYTES = 2048 * 896
WQKV_BYTES = 448 * 2688
W1_BYTES = 448 * 3584
W2_BYTES = 1792 * 896
WO_BYTES = 448 * 896

SLOT = 28672
L_S2 = 32768
L_S3 = L_S2 + SLOT
L_S1 = L_S3 + SLOT
L_S0 = L_S1 + SLOT
L_BIAS = 159744
L_STAT = L_BIAS + 768
L_CNT = L_STAT + 1024
L_ATT = L_S2
L_RING = L_ATT + 49152
LDS_BYTES = 163840
SPIN_MAX = 1 << 16

STAMP = False
OFF_STAMP = 32 << 20


def f32(x):
    return "0x%08x" % struct.unpack("<I", struct.pack("<f", x))[0]


class Asm:
    def __init__(self):
        self.o = []

    def __call__(self, *lines):
        for s in lines:
            self.o.append("    " + s)

    def label(self, s):
        self.o.append(s + ":")

    def raw(self, s):
        self.o.append(s)

    def text(self):
        return "\n".join(self.o) + "\n"


def vr(b, n):
    return f"v[{b}:{b + n - 1}]"


def sr(b, n):
    return f"s[{b}:{b + n - 1}]"


def mfma(d, a, b, c):
    cs = c if isinstance(c, str) else vr(c, 16)
    return f"v_mfma_f32_32x32x16_bf16 {vr(d, 16)}, {vr(a, 4)}, {vr(b, 4)}, {cs}"


def srd(a, d, lo, nbytes):
    a(f"s_mov_b32 s{d}, s{lo}", f"s_mov_b32 s{d + 1}, s{lo + 1}",
      f"s_mov_b32 s{d + 2}, {nbytes}", f"s_mov_b32 s{d + 3}, 0x20000")


DBG = False
LST = (0,)
ROLE = ["main"]
DBG_MAP = {"main": {0: 2, 3: 3, 5: 4, 6: 5, 9: 6, 15: 7}, "aux": {5: 8, 6: 9, 8: 10, 11: 11, 15: 12}}


def stamp(a, i, rt=False):
    if DBG:
        w = DBG_MAP[ROLE[0]].get(i)
        if w is not None:
            a("s_memrealtime s[98:99]", "s_waitcnt lgkmcnt(0)", f"v_writelane_b32 v63, s98, {w}")
            inv = {2: 1, 4: 13, 5: 14, 12: 15}.get(w)
            if inv:
                a("s_not_b32 s98, s98", f"v_writelane_b32 v63, s98, {inv}")
        return
    if not STAMP:
        return
    a(f"s_mem{'real' if rt else ''}time s[98:99]", "s_waitcnt lgkmcnt(0)",
      f"v_writelane_b32 v63, s98, {i}")


def lstamp(a, ureg, k):
    if not STAMP or k not in LST or "ks" in EXP:
        return
    a("s_memtime s[98:99]", f"s_lshl_b32 s97, {ureg}, 2", f"s_add_u32 m0, s97, {16 + k}", "s_waitcnt lgkmcnt(0)",
      "v_writelane_b32 v63, s98, m0")


def stamp_out(a):
    if DBG:
        stamp(a, 15)
        a("s_load_dwordx2 s[92:93], s[0:1], 72", "s_waitcnt lgkmcnt(0)", "s_mov_b32 s94, 256", "s_mov_b32 s95, 0x20000",
          "s_mov_b64 exec, 0xfffe", "v_lshlrev_b32 v62, 2, v1", "buffer_atomic_umax v63, v62, s[92:95], 0 offen sc1")
        return
    if not STAMP:
        return
    stamp(a, 14)
    stamp(a, 15, rt=True)
    a("s_mov_b32 s92, s24", "s_mov_b32 s93, s25", f"s_mov_b32 s94, {64 << 20}", "s_mov_b32 s95, 0x20000",
      "s_lshl_b32 s96, s2, 3", "s_add_u32 s96, s96, s3", "s_lshl_b32 s96, s96, 8",
      f"s_add_u32 s96, s96, {OFF_STAMP}", "s_mov_b64 exec, -1", "v_lshlrev_b32 v62, 2, v1",
      "buffer_store_dword v63, v62, s[92:95], s96 offen")


P_X, P_WQKV, P_WO, P_W1, P_B1, P_W2, P_B2, P_OUT, P_DBG, P_WS = 4, 6, 8, 12, 14, 16, 18, 20, 22, 24
SWS, SA, SB, SC, SD = 28, 32, 36, 40, 84


def gen(a):
    name = NAME + "_kernel"
    a.raw(f".globl {name}")
    a.raw(".p2align 8")
    a.raw(f".type {name},@function")
    a.label(name)
    a("s_cmp_ge_u32 s2, 256", "s_cbranch_scc1 L_END")
    a("s_load_dwordx16 s[4:19], s[0:1], 0", "s_load_dwordx4 s[20:23], s[0:1], 64",
      "s_load_dwordx2 s[24:25], s[0:1], 80")
    a("v_lshrrev_b32 v2, 6, v0", "v_and_b32 v1, 63, v0", "v_readfirstlane_b32 s3, v2")
    MAP = os.environ.get("MAP", "42")
    if MAP == "81":
        a("s_and_b32 s52, s2, 7", "s_lshr_b32 s53, s2, 3", "s_lshl_b32 s48, s52, 1", "s_and_b32 s27, s53, 1",
          "s_add_u32 s48, s48, s27", "s_lshr_b32 s49, s53, 1", "s_and_b32 s56, s49, 3", "s_and_b32 s55, s48, 7",
          "s_and_b32 s51, s49, 1", "s_cmp_ge_u32 s53, 28", "s_cselect_b32 s50, 7, 6", "s_cselect_b32 s51, s51, 0",
          "s_and_b32 s26, s3, 3")
    elif MAP == "42":
        a("s_and_b32 s52, s2, 7", "s_lshr_b32 s53, s2, 3", "s_lshr_b32 s48, s52, 1", "s_lshl_b32 s48, s48, 2",
          "s_and_b32 s27, s53, 3", "s_add_u32 s48, s48, s27", "s_and_b32 s51, s52, 1", "s_lshl_b32 s49, s51, 3",
          "s_lshr_b32 s27, s53, 2", "s_add_u32 s49, s49, s27", "s_and_b32 s56, s27, 3", "s_and_b32 s55, s48, 7",
          "s_cmp_ge_u32 s53, 28", "s_cselect_b32 s50, 7, 6", "s_cselect_b32 s51, s51, 0", "s_and_b32 s26, s3, 3")
    else:
        a("s_and_b32 s52, s2, 7", "s_lshr_b32 s53, s2, 3",
          "s_lshr_b32 s55, s53, 2", "s_and_b32 s56, s53, 3",
          "s_and_b32 s27, s53, 1", "s_add_u32 s27, s27, 6", "s_bfe_u32 s57, s53, 0x20001",
          "s_cmp_ge_u32 s53, 24", "s_cselect_b32 s55, s27, s55", "s_cselect_b32 s56, s57, s56",
          "s_and_b32 s57, s52, 3", "s_lshl_b32 s27, s57, 1", "s_add_u32 s55, s55, s27", "s_add_u32 s55, s55, 2",
          "s_and_b32 s55, s55, 7", "s_lshr_b32 s48, s52, 2", "s_lshl_b32 s48, s48, 3", "s_add_u32 s48, s48, s55",
          "s_lshl_b32 s49, s57, 2", "s_add_u32 s49, s49, s56",
          "s_and_b32 s51, s56, 1", "s_cmp_ge_u32 s53, 28", "s_cselect_b32 s50, 7, 6", "s_cselect_b32 s51, s51, 0",
          "s_and_b32 s26, s3, 3")
    a("s_cmp_ge_u32 s49, 14", "s_cselect_b32 s54, 5, 0",
      "s_cmp_lt_u32 s49, 5", "s_cselect_b32 s27, 5, 10", "s_lshl_b32 s27, s27, 4", "s_or_b32 s54, s54, s27",
      "s_or_b32 s54, s54, 0xaa00")
    assert MAP == "42"
    a("s_cmp_eq_u32 s49, 7", "s_cselect_b32 s57, 14, s49", "s_cmp_eq_u32 s49, 14", "s_cselect_b32 s57, 7, s57")
    a("s_lshl_b32 s58, s48, 2", "s_add_u32 s58, s58, s26")
    a("v_and_b32 v2, 31, v1", "v_lshrrev_b32 v3, 5, v1")
    if DBG:
        a("v_mov_b32 v63, 0")
    jitter(a)
    a("s_cmp_ge_u32 s3, 4", "s_cbranch_scc1 L_AUX")
    gen_main(a)
    gen_attn(a)
    a.label("L_AUX")
    ROLE[0] = "aux"
    gen_aux(a)
    gen_gemm(a)
    a.label("L_END")
    a("s_endpgm")
    a.label("L_CODE_END")
    return name


QF = 48
VCHK = 2
MK = 248
APRIO = int(os.environ.get("APRIO", "2"))


def ms(i):
    return sr((list(range(4, 24, 2)) + [40, 42, 44, 92, 94, 100])[i], 2)


def pads(base, tiles, va, vt):
    o = [f"v_mov_b32 v{vt + k}, 0x3f803f80" for k in range(4)]
    o += [f"v_min_u32 v{va}, 2, v1", f"v_lshl_add_u32 v{va}, v{va}, 12, s{base}",
          f"ds_write_b128 v{va}, {vr(vt, 4)} offset:3840", f"v_lshl_add_u32 v{va}, v1, 2, s{base}",
          "s_mov_b32 vcc_lo, 0x55555555", "s_mov_b32 vcc_hi, 0x55555555"]
    for i in range(3):
        o += [f"s_cmp_lt_u32 s{tiles + i}, 0x40000000", "s_cselect_b32 s27, 0, 0xf149", f"v_mov_b32 v{vt + 3}, s27",
              f"v_cndmask_b32 v{vt + i}, 0, v{vt + 3}, vcc", f"ds_write_b32 v{va}, v{vt + i} offset:{1792 + 4096 * i}"]
    return o
PFF = "sc1" if "pfsc1" in EXP else ("nt" if "pfnt" in EXP else "")


def stage_kv(off, lds, vaddr, base, tiles):
    o = []
    for i in range(3):
        o += [f"s_add_u32 m0, s{base}, {i * 4096 + lds}", f"s_add_u32 s27, s{tiles + i}, {off}",
              f"buffer_load_dwordx4 v{vaddr}, {sr(SWS, 4)}, s27 offen sc1 lds", "s_mov_b32 exec_hi, 0xffff",
              f"buffer_load_dwordx4 v{vaddr}, {sr(SWS, 4)}, s27 offen offset:1024 sc1 lds", "s_mov_b32 exec_hi, -1"]
    return o


GC0 = -2.0 * 0.7978845608028654 * 1.4426950408889634
GC1 = GC0 * 0.044715


def gen_main(a):
    X, ACA, ACB, WR, T = 128, 64, 80, 96, 16
    AB, BB = 240, 244
    if "xnorot" in EXP:
        a("s_mov_b32 s56, 0")
    a("v_lshrrev_b32 v8, 3, v1", "v_and_b32 v9, 7, v1", "v_lshrrev_b32 v4, 4, v1",
      "v_xor_b32 v9, v9, v4", "v_mul_u32_u24 v8, 896, v8", "v_lshl_add_u32 v8, v9, 4, v8", "v_xor_b32 v9, 64, v8")
    for k in range(4):
        a(f"s_add_u32 s27, s56, {k}", "s_and_b32 s27, s27, 3", "s_mulk_i32 s27, 7168",
          f"s_add_u32 s27, s27, {4096 - 1024 * k}", f"v_add_u32 v{4 + k}, s27, v{8 + (k & 1)}")
    a(f"s_mul_i32 s59, s58, {RT}", f"s_mul_i32 s60, s3, {SLOT}")
    a("s_waitcnt lgkmcnt(0)")
    stamp(a, 0, rt=True)
    stamp(a, 1)
    a(f"s_sub_u32 s{SA}, s{P_X}, 4096", f"s_subb_u32 s{SA + 1}, s{P_X + 1}, 0",
      f"s_mov_b32 s{SA + 2}, {X_BYTES + 4096}", f"s_mov_b32 s{SA + 3}, 0x20000")
    for g in range(7):
        a(f"s_add_u32 m0, s60, {g * 4096}", f"s_add_u32 s61, s59, {g * 128}",
          f"buffer_load_dwordx4 v4, {sr(SA, 4)}, s61 offen lds")
    pre = []
    pre += ["s_lshl_b32 s27, s56, 3", "v_subrev_u32 v9, s27, v2", "v_and_b32 v9, 31, v9",
            "v_bfe_u32 v8, v9, 1, 3", "v_xor_b32 v8, v8, v3",
            "v_lshlrev_b32 v8, 4, v8", "v_lshl_add_u32 v8, v9, 7, v8", "v_add_u32 v8, s60, v8",
            "v_xor_b32 v9, 32, v8", "v_xor_b32 v10, 64, v8", "v_xor_b32 v11, 96, v8"]
    pre += ["v_bfe_u32 v12, v1, 2, 1", "v_bfe_u32 v13, v1, 3, 1",
            "v_bfe_u32 v14, v1, 1, 1", "v_lshl_add_u32 v13, v13, 1, v14",
            "v_bfe_u32 v14, v1, 4, 1", "v_lshl_add_u32 v13, v14, 2, v13",
            "v_xor_b32 v12, v12, v3", "v_lshl_add_u32 v13, v12, 3, v13",
            "v_and_b32 v14, 1, v1", "v_lshlrev_b32 v14, 4, v14", "v_mov_b32 v15, 0x3f80",
            "v_lshlrev_b32 v14, v14, v15"]
    pre += [f"v_cmp_eq_u32 {sr(64 + 2 * k, 2)}, {k}, v13" for k in range(8)]
    pre += [f"v_cndmask_b32 v{WR + k}, 0, v14, {sr(64 + 2 * k, 2)}" for k in range(8)]
    pre += ["v_and_b32 v13, 3, v1", "v_bfe_u32 v14, v1, 4, 1", "v_lshl_add_u32 v13, v14, 2, v13",
            "v_bfe_u32 v14, v1, 2, 2", "v_lshlrev_b32 v14, 6, v14", "v_lshl_add_u32 v13, v13, 3, v14",
            "v_lshl_add_u32 v12, v3, 10, v13", f"v_add_u32 v12, {L_S2}, v12"]
    pre += ["s_lshl_b32 s70, s52, 1", "s_and_b32 s27, s53, 1", "s_add_u32 s70, s70, s27",
            "s_lshr_b32 s27, s53, 1", "s_lshl_b32 s27, s27, 2", "s_add_u32 s71, s27, s3",
            "s_mul_i32 s73, s3, 3", "s_add_u32 s72, s27, s73", "s_sub_u32 s72, s72, 8",
            "s_lshl_b32 s73, s73, 12", f"s_add_u32 s73, s73, {L_ATT}", "s_mul_i32 s78, s70, 1792",
            f"s_mul_i32 s74, s71, {RT}", "s_add_u32 s74, s74, s78"]
    for i in range(3):
        pre += [f"s_add_u32 s27, s72, {i}", f"s_mul_i32 s{75 + i}, s27, {RT}", f"s_add_u32 s{75 + i}, s{75 + i}, s78",
                "s_cmp_lt_i32 s27, 0", f"s_cselect_b32 s{75 + i}, 0x40000000, s{75 + i}"]
    pre += ["s_mul_i32 s27, s70, 28", "s_lshr_b32 s79, s27, 5", "s_add_u32 s27, s27, 27", "s_lshr_b32 s27, s27, 5",
            "s_sub_u32 s27, s27, s79",
            "v_and_b32 v13, 1, v1", "v_mul_u32_u24 v13, s27, v13", "v_add_u32 v13, s79, v13",
            "v_lshrrev_b32 v14, 1, v1", "v_add_u32 v14, s72, v14", "v_max_i32 v14, 0, v14",
            f"v_mul_u32_u24 v14, {FLG_N}, v14", "v_add_u32 v14, 14, v14", f"s_mul_i32 s27, s71, {FLG_N}",
            "v_cmp_gt_u32 vcc, 6, v1", "v_mov_b32 v15, s27", "v_lshlrev_b32 v59, 3, v1",
            "v_cndmask_b32 v14, v15, v14, vcc", "v_add_u32 v13, v13, v14", "v_lshlrev_b32 v13, 7, v13",
            f"v_add_u32 v57, {OFF_FLG}, v13", f"v_add_u32 v56, {OFF_FLG + 14 * 128}, v13"]
    pre += ["s_sub_u32 s86, s50, 1",
            f"s_mov_b32 s{SWS}, s{P_WS}", f"s_mov_b32 s{SWS + 1}, s{P_WS + 1}", f"s_mov_b32 s{SWS + 2}, {WS_BYTES}",
            f"s_mov_b32 s{SWS + 3}, 0x20000",
            "v_mov_b32 v14, 0", "v_mov_b32 v15, 0", "s_mov_b32 s62, 0x3f803f80", "s_mov_b32 s82, 0"]
    def xgrp(g):
        return [f"s_add_u32 m0, s60, {g * 4096}", f"s_add_u32 s61, s59, {g * 128}"] + \
               [f"buffer_load_dwordx4 v{4 + i}, {sr(SA, 4)}, s61 offen offset:{i * 1024} lds" for i in range(1, 4)]

    XA = next((int(e[2:]) for e in EXP if e.startswith('xa')), 3)
    for g in range(XA):
        a(*xgrp(g))
    a(*pre)
    a("v_lshlrev_b32 v13, 7, v1", f"s_mov_b32 s{SB + 3}, 0x20000", "s_cmp_eq_u32 s3, 0", "s_cbranch_scc0 M_T1",
      "s_sub_u32 s80, s2, 196", "s_cmp_lt_u32 s2, 196", "s_cselect_b32 s80, s2, s80",
      f"s_cselect_b32 s{SB}, s{P_W2}, s{P_WO}", f"s_cselect_b32 s{SB + 1}, s{P_W2 + 1}, s{P_WO + 1}",
      f"s_mov_b32 s{SB + 2}, {WO_BYTES}", f"s_cselect_b32 s{SB + 2}, {W2_BYTES}, s{SB + 2}",
      "s_lshl_b32 s80, s80, 13", "s_branch M_TD")
    a.label("M_T1")
    a("s_cmp_eq_u32 s3, 3", "s_cbranch_scc0 M_T2", "s_cmp_eq_u32 s50, 7", "s_cbranch_scc1 M_T3",
      f"s_getpc_b64 {sr(SB, 2)}")
    a.label("M_PC")
    a(f"s_sub_u32 s{SB}, s{SB}, M_PC-{NAME}_kernel", f"s_subb_u32 s{SB + 1}, s{SB + 1}, 0",
      f"s_mov_b32 s{SB + 2}, L_CODE_END-{NAME}_kernel", "s_and_b32 s80, s53, 3", "s_lshl_b32 s80, s80, 13",
      "s_branch M_TD")
    a.label("M_T2")
    a("s_mul_i32 s27, s55, 56", "v_min_u32 v13, 55, v1", "v_add_u32 v13, s27, v13",
      "s_add_u32 s80, s57, 11", "s_sub_u32 s27, s49, 5", "s_cmp_eq_u32 s3, 1", "s_cselect_b32 s80, s27, s80",
      "s_movk_i32 s81, 3584", f"s_mov_b32 s{SB + 2}, {W1_BYTES}", "s_add_u32 s27, s49, 16", "s_cmp_lt_i32 s80, 0",
      "s_cselect_b32 s80, s27, s80", "s_cselect_b32 s81, 2688, s81",
      f"s_cselect_b32 s{SB}, s{P_WQKV}, s{P_W1}", f"s_cselect_b32 s{SB + 1}, s{P_WQKV + 1}, s{P_W1 + 1}",
      f"s_cselect_b32 s{SB + 2}, {WQKV_BYTES}, s{SB + 2}", "s_lshl_b32 s80, s80, 7", "v_mul_u32_u24 v13, s81, v13")
    a("s_branch M_TD")
    a.label("M_T3")
    a("s_lshl_b32 s27, s52, 2", "s_and_b32 s80, s53, 3", "s_add_u32 s27, s27, s80", "s_mul_i32 s27, s27, 14",
      "v_min_u32 v13, 13, v1", "v_add_u32 v13, s27, v13", "v_mul_u32_u24 v13, 3584, v13",
      f"s_mov_b32 s{SB}, s{P_W1}", f"s_mov_b32 s{SB + 1}, s{P_W1 + 1}", f"s_mov_b32 s{SB + 2}, {W1_BYTES}",
      f"s_movk_i32 s80, {27 * 128}")
    a.label("M_TD")
    a("s_lshl_b32 s27, s57, 1", "s_add_u32 s27, s27, 23", "s_add_u32 s84, s51, 54", "s_cmp_eq_u32 s50, 7",
      "s_cselect_b32 s27, s84, s27", f"s_mul_i32 s85, s58, {FLG_N}", "s_add_u32 s85, s85, s27",
      "s_lshl_b32 s85, s85, 7", f"s_add_u32 s85, s85, {OFF_FLG + 42 * 128}", f"s_mul_i32 s84, s58, {ACT_RT}",
      "s_lshl_b32 s27, s27, 11", "s_add_u32 s84, s84, s27", f"s_add_u32 s84, s84, {OFF_ACT}")
    a("v_lshlrev_b32 v124, 2, v3", "v_sub_u32 v124, v2, v124", "v_mov_b32 v125, 0xffff", "v_mov_b32 v126, 0xffff0000")
    for i in range(16):
        a(f"v_cmp_le_i32 {ms(i)}, {(i & 3) + 8 * (i >> 2)}, v124")
    for k in range(8):
        a(f"v_cndmask_b32 v{MK + k}, 0, v125, {ms(2 * k)}", f"v_cndmask_b32 v127, 0, v126, {ms(2 * k + 1)}",
          f"v_or_b32 v{MK + k}, v{MK + k}, v127")
    a("s_lshl_b32 s27, s3, 12", f"s_add_u32 s27, s27, {L_ATT}", "v_add_u32 v124, s27, v59",
      "v_mul_u32_u24 v126, 448, v3", "v_lshl_add_u32 v125, v2, 4, v126", "v_add_u32 v126, 896, v125",
      "v_cmp_gt_u32 vcc, 28, v2", "v_mov_b32 v127, 1792", "s_add_u32 s27, s27, 2048",
      "v_cndmask_b32 v125, v127, v125, vcc", "v_cndmask_b32 v126, v127, v126, vcc",
      "v_add_u32 v125, s27, v125", "v_add_u32 v126, s27, v126")
    stamp(a, 2)

    def stats(g):
        for r in range(X + 16 * g, X + 16 * g + 16):
            a(f"v_dot2c_f32_bf16 v14, s62, v{r}", f"v_dot2c_f32_bf16 v15, v{r}, v{r}")

    for g in range(7):
        a(f"s_waitcnt vmcnt({3 * (min(7, g + XA) - g - 1)})")
        if g == 0 and "st1" in EXP:
            stamp(a, 2)
        for q in range(4):
            a(f"ds_read_b128 {vr(X + 16 * g + 4 * q, 4)}, v{8 + q} offset:{g * 4096}")
        if g + XA < 7:
            a(*xgrp(g + XA))
        if g:
            a("s_waitcnt lgkmcnt(4)")
            stats(g - 1)
    a("s_waitcnt lgkmcnt(0)")
    stamp(a, 3)
    a("s_barrier")
    stats(6)
    a("s_nop 2", "v_mov_b32 v4, v14", "v_mov_b32 v5, v15", "s_nop 1",
      "v_permlane32_swap_b32 v4, v14", "v_permlane32_swap_b32 v5, v15",
      "v_add_f32 v14, v4, v14", "v_add_f32 v15, v5, v15",
      f"v_mul_f32 v14, {f32(1 / 448)}, v14", f"v_mul_f32 v15, {f32(1 / 448)}, v15",
      "v_cvt_pk_bf16_f32 v4, v14, v14", "v_fma_f32 v15, -v14, v14, v15",
      "v_lshlrev_b32 v4, 16, v4", "v_max_f32 v15, 0, v15", "v_xor_b32 v4, 0x80000000, v4")
    for i in range(16):
        a(f"v_mov_b32 v{T + i}, v4")
    a("s_nop 1")
    t0 = [168, 169, 0, 1, 168, 169, 0, 0]
    t1 = [112, 113, 56, 57, 112, 113, 1, 0]
    pk = lambda b: b[0] | b[1] << 8 | b[2] << 16 | b[3] << 24
    fin = ["v_cvt_pk_bf16_f32 v15, v15, v15", "v_lshlrev_b32 v15, 16, v15", f"v_add_f32 v15, {f32(1e-5)}, v15",
           "v_cvt_pk_bf16_f32 v15, v15, v15", "v_lshlrev_b32 v15, 16, v15", "v_sqrt_f32 v15, v15",
           "s_lshl_b32 s27, s3, 8",
           "v_cvt_pk_bf16_f32 v5, v15, v15", "v_lshlrev_b32 v15, 16, v5", "v_rcp_f32 v14, v15",
           "v_and_b32 v5, 0xffff, v5", "v_cmp_eq_u32 vcc, 0, v3", f"s_add_u32 s27, s27, {L_STAT}",
           "v_lshl_add_u32 v4, v1, 2, s27", "v_cndmask_b32 v6, v15, v14, vcc", f"v_cndmask_b32 v{BB}, 0, v5, vcc",
           "ds_write_b32 v4, v6",
           f"v_mov_b32 v{AB + 1}, 0", f"v_mov_b32 v{AB + 2}, 0", f"v_mov_b32 v{AB + 3}, 0",
           f"v_mov_b32 v{BB + 1}, 0", f"v_mov_b32 v{BB + 2}, 0", f"v_mov_b32 v{BB + 3}, 0",
           "v_lshlrev_b32 v10, 1, v2", f"v_add_u32 v10, {L_BIAS}, v10",
           "s_lshl_b32 s83, s3, 13", f"v_add_u32 v8, {t0[0] * 512}, v12", "s_mov_b32 s68, 0"]
    assert len(fin) == 28
    late = [f"s_mov_b32 s64, {pk(t0[1:5])}", f"s_mov_b32 s65, {pk(t0[5:8] + [0])}",
            f"s_mov_b32 s66, {pk(t1[0:4])}", f"s_mov_b32 s67, {pk(t1[4:8])}",
            "s_mov_b32 s69, s54", f"v_mul_f32 v7, {f32(GC0)}, v14", "v_mul_f32 v6, v14, v14", "v_mul_f32 v6, v6, v14",
            f"v_mul_f32 v6, {f32(GC1)}, v6"]
    CB = (ACA, ACB, 32)

    def cv(p, h):
        d = CB[p % 3]
        return [f"v_cvt_pk_bf16_f32 v{X + 8 * p + k}, v{d + 2 * k}, v{d + 2 * k + 1}" for k in range(4 * h, 4 * h + 4)]

    for p in range(16):
        d = CB[p % 3]
        if p < 14:
            a(mfma(d, WR, X + 8 * p, T))
        a(*(cv(p - 2, 0) if p >= 2 else fin[14 * p:14 * p + 7]))
        if p < 14:
            a(mfma(d, WR + 4, X + 8 * p + 4, d))
        a(*(cv(p - 2, 1) if p >= 2 else fin[14 * p + 7:14 * p + 14]))
        if 2 <= p < 2 + len(late):
            a(late[p - 2])
        if p == 14:
            a("s_nop 1")

    PD = 4

    def ring(j):
        return WR + 4 * (j % 7)

    def rd(j):
        jj = j % 28
        base = "v8" if jj < 14 else "v9"
        r = ring(j)
        return [f"ds_read_b64_tr_b16 {vr(r, 2)}, {base} offset:{(jj % 14) * 2048}",
                f"ds_read_b64_tr_b16 {vr(r + 2, 2)}, {base} offset:{(jj % 14) * 2048 + 256}"]

    accw = [f"ds_write_addtid_b32 v{ACB + k} offset:{k * 256}" for k in range(16)]
    touch = f"buffer_load_dword v60, v13, {sr(SB, 4)}, s80 offen"
    MT = next((int(e[2:]) for e in EXP if e.startswith('mt')), 1)
    a("s_cmp_eq_u32 s3, 0", f"s_cselect_b32 s81, {MT}, s86", "s_cbranch_scc1 M_NOT", touch)
    a.label("M_NOT")
    stamp(a, 4)
    a("s_waitcnt lgkmcnt(0)", "s_barrier")
    stamp(a, 5)
    stamp(a, 12, rt=True)
    if "prio" in EXP:
        a("s_setprio 2")
    if "zero" in EXP:
        for r in range(X, X + 112):
            a(f"v_mov_b32 v{r}, 0")
    for j in range(PD):
        a(*rd(j))
    if "align" in EXP:
        a.raw(".p2align 6")
    a.label("M_TILE")
    a("s_cmp_eq_u32 s68, s81", "s_cbranch_scc1 M_SIDE")
    a.label("M_SIDER")
    jitter(a)
    a("s_mov_b32 m0, s83", "s_bitcmp1_b32 s69, 0", "s_cbranch_scc1 M_V")
    WPOS = {1: (0, 3), 2: (3, 6), 3: (6, 9), 4: (9, 12), 5: (12, 14), 6: (14, 16)}

    pfs = []

    def body(tag):
        q = [f for f in range(PD) for _ in range(2)]
        for j in range(28):
            if j % 2 == 0:
                q = q[max(i for i, f in enumerate(q) if f == j + 1) + 1:][-15:]
                a(f"s_waitcnt lgkmcnt({len(q)})")
            d = ACB if j == 27 else ACA
            ops = (X + 4 * j, ring(j)) if tag == "V" else (ring(j), X + 4 * j)
            if j == 0 and tag == "N":
                a("s_bitcmp1_b32 s69, 1", "s_cbranch_scc0 M_NOB", mfma(ACA, AB, BB, "0"),
                  mfma(ACA, *ops, ACA), "s_branch M_NOB2")
                a.label("M_NOB")
                a(mfma(ACA, *ops, "0"))
                a.label("M_NOB2")
            else:
                a(mfma(d, *ops, "0" if j == 0 else ACA))
            if j + PD == 14:
                assert "w" not in q
                a("s_barrier")
            if j in WPOS and "noaccw" not in EXP:
                a(*accw[WPOS[j][0]:WPOS[j][1]])
                q += ["w"] * (WPOS[j][1] - WPOS[j][0])
            a(*rd(j + PD))
            q += [j + PD] * 2
            if j == 0:
                a("s_and_b32 s27, s66, 0xff", "s_lshr_b64 s[66:67], s[66:67], 8",
                  "v_lshl_add_u32 v9, s27, 9, v12", "v_add_u32 v10, 64, v10")
            if j == 12:
                a("s_and_b32 s27, s64, 0xff", "s_lshr_b64 s[64:65], s[64:65], 8",
                  "v_lshl_add_u32 v8, s27, 9, v12", "s_xor_b32 s83, s83, 4096")
            if j + PD == 27:
                a(f"ds_read_u16 v{AB}, v10")
                q += ["b"]
        a("s_lshr_b32 s69, s69, 2", "s_add_u32 s68, s68, 1", "s_cmp_lt_u32 s68, s50", "s_cbranch_scc1 M_TILE")

    body("N")
    a("s_branch M_DONE")
    a.label("M_SIDE")
    a("s_cmp_eq_u32 s68, s86", "s_cbranch_scc1 M_SIDE2", touch, "s_mov_b32 s81, s86", "s_branch M_SIDER")
    a.label("M_SIDE2")
    a(f"v_mov_b32 v61, {L_CNT + 64}", "ds_read_b32 v61, v61", "s_mov_b64 exec, 0xff",
      f"buffer_load_dword v60, v57, {sr(SWS, 4)}, 0 offen sc1", "s_mov_b64 exec, -1", "s_branch M_SIDER")
    a.label("M_V")
    body("V")
    a.label("M_DONE")
    jitter(a)
    stamp(a, 6)
    stamp(a, 13, rt=True)
    lds_arrive(a, 2, 4, 5)
    qld = [f"buffer_load_dwordx2 {vr(QF + 2 * g, 2)}, v59, {sr(SWS, 4)}, s74 offen offset:{g * 512} sc1" for g in range(4)]
    a("v_readfirstlane_b32 s47, v61", "s_setprio 3", "s_waitcnt vmcnt(0)", "v_cmp_ne_u32 s[90:91], s47, v60",
      "s_mov_b64 exec, 0x3f", f"buffer_load_dword v61, v56, {sr(SWS, 4)}, 0 offen sc1", "s_mov_b64 exec, -1",
      "s_nop 0")
    a("v_lshlrev_b32 v4, 4, v1", "s_nop 3")
    for h in range(2):
        t = [T + 8 * h + k for k in range(8)]
        c = [ACB + 8 * h + k for k in range(8)]
        a(*[f"v_mul_f32 v{t[k]}, v{c[k]}, v{c[k]}" for k in range(8)])
        a(*[f"v_fma_f32 v{t[k]}, v{t[k]}, v6, v7" for k in range(8)])
        a(*[f"v_mul_f32 v{t[k]}, v{c[k]}, v{t[k]}" for k in range(8)])
        a(*[f"v_exp_f32 v{t[k]}, v{t[k]}" for k in range(8)])
        a(*[f"v_fma_f32 v{t[k]}, v{t[k]}, v15, v15" for k in range(8)])
        a(*[f"v_rcp_f32 v{t[k]}, v{t[k]}" for k in range(8)])
        a(*[f"v_mul_f32 v{t[k]}, v{c[k]}, v{t[k]}" for k in range(8)])
        a(*[f"v_cvt_pk_bf16_f32 v{32 + 4 * h + k}, v{t[2 * k]}, v{t[2 * k + 1]}" for k in range(4)])
        a(f"buffer_store_dwordx4 {vr(32 + 4 * h, 4)}, v4, {sr(SWS, 4)}, s84 offen offset:{1024 * h} sc1")
    a("s_setprio 0")


JIT = [0]


def jitter(a):
    if "jitter" not in EXP:
        return
    JIT[0] += 1
    n = JIT[0]
    a("s_memtime s[98:99]", "s_waitcnt lgkmcnt(0)", "s_lshl_b32 s99, s2, 3", "s_add_u32 s99, s99, s3",
      f"s_mul_i32 s99, s99, {2654435761 if n & 1 else 40503}", "s_xor_b32 s98, s98, s99", "s_lshr_b32 s98, s98, 3",
      "s_and_b32 s99, s98, 7", "s_cmp_eq_u32 s99, 0", f"s_cbranch_scc0 J_{n}X", "s_bfe_u32 s98, s98, 0x50003")
    a.label(f"J_{n}")
    a("s_sleep 8", "s_sub_u32 s98, s98, 1", f"s_cbranch_scc0 J_{n}")
    a.label(f"J_{n}X")


def lds_arrive(a, idx, vaddr, vtmp, val="1"):
    a(f"v_mov_b32 v{vaddr}, {L_CNT + 4 * idx}", f"v_mov_b32 v{vtmp}, {val}", "s_mov_b64 exec, 1",
      f"ds_add_u32 v{vaddr}, v{vtmp}", "s_mov_b64 exec, -1")


def lds_wait(a, tag, vaddr, vtmp, n=4):
    a(f"s_mov_b32 s27, {SPIN_MAX * 64}", f"s_branch {tag}_L")
    a.label(tag)
    a("s_sleep 1")
    a.label(tag + "_L")
    a(f"ds_read_b32 v{vtmp}, v{vaddr}", "s_waitcnt lgkmcnt(0)", f"v_readfirstlane_b32 s88, v{vtmp}",
      "s_sub_u32 s27, s27, 1", f"s_cbranch_scc1 {tag}_X", f"s_cmp_lt_u32 s88, {n}", f"s_cbranch_scc1 {tag}")
    a.label(tag + "_X")


def poll(a, tag, vaddr, nl, vtmp=60):
    a(f"s_mov_b32 s27, {SPIN_MAX}", f"s_mov_b64 exec, {(1 << nl) - 1}", f"s_branch {tag}_L")
    a.label(tag)
    a("s_sleep 3")
    a.label(tag + "_L")
    a(f"buffer_load_dword v{vtmp}, v{vaddr}, {sr(SWS, 4)}, 0 offen sc1", "s_waitcnt vmcnt(0)",
      f"v_cmp_ne_u32 s[88:89], s47, v{vtmp}", "s_sub_u32 s27, s27, 1", f"s_cbranch_scc1 {tag}_X",
      "s_cmp_lg_u64 s[88:89], 0", f"s_cbranch_scc1 {tag}")
    a.label(tag + "_X")
    a("s_mov_b64 exec, -1")


def epoch_issue(a, vz, vtmp):
    srd(a, SC, P_DBG, 256)
    a(f"v_mov_b32 v{vz}, 0", f"buffer_load_dword v{vtmp}, v{vz}, {sr(SC, 4)}, 0 offen sc1")


def epoch_wait(a, tag, vz, vtmp, n0):
    a(f"s_mov_b32 s27, {SPIN_MAX}", f"s_waitcnt vmcnt({n0})", f"s_branch {tag}_L")
    a.label(tag)
    a("s_sleep 3", f"buffer_load_dword v{vtmp}, v{vz}, {sr(SC, 4)}, 0 offen sc1", "s_waitcnt vmcnt(0)")
    a.label(tag + "_L")
    a(f"v_readfirstlane_b32 s47, v{vtmp}", "s_sub_u32 s27, s27, 1", f"s_cbranch_scc1 {tag}_X",
      "s_cmp_eq_u32 s47, 0", f"s_cbranch_scc1 {tag}")
    a.label(tag + "_X")


def gen_attn(a):
    KF, OA, CN, SM, VF = 128, 200, 216, 232, 16
    SB3 = (64, 80, 96)
    PFR = (32, 40, 112)
    qld = [f"buffer_load_dwordx2 {vr(QF + 2 * g, 2)}, v59, {sr(SWS, 4)}, s74 offen offset:{g * 512} sc1" for g in range(4)]
    pubm = ["v_mov_b32 v10, s47", "v_mov_b32 v11, 0", "s_mov_b64 exec, 1",
            f"buffer_store_dword v10, v11, {sr(SWS, 4)}, s85 offen sc1", "s_mov_b64 exec, -1"]
    vstage = stage_kv(OFF_V, 2048, 4, 73, 75)
    a("s_cmp_eq_u32 s50, 7", "s_cbranch_scc0 A_FREE", f"v_mov_b32 v8, {L_CNT + 8}")
    lds_wait(a, "A_LB2", 8, 9)
    a.label("A_FREE")
    a(*pads(73, 75, 12, 8), "s_waitcnt vmcnt(0)", *pubm, "s_and_b32 s27, s90, 0xff", "s_cbranch_scc0 A_QOK")
    poll(a, "A_PQ", 57, 8)
    a.label("A_QOK")
    a(*stage_kv(OFF_K, 0, 4, 73, 75), *qld)
    a("v_cmp_ne_u32 s[88:89], s47, v61", "s_mov_b32 s83, 0", "s_and_b32 s88, s88, 0x3f",
      "s_cbranch_scc1 A_VL0", *vstage, "s_mov_b32 s83, 1", "s_waitcnt vmcnt(6)", "s_branch A_VL1")
    a.label("A_VL0")
    a("s_waitcnt vmcnt(0)")
    a.label("A_VL1")
    a("s_waitcnt lgkmcnt(0)")
    lds_arrive(a, 0, 8, 9)
    a("v_cmp_eq_u32 vcc, 0, v3", "v_mov_b32 v5, 0x3f80", f"v_mov_b32 v15, {f32(-3e38)}",
      f"v_cndmask_b32 v{QF + 6}, v5, v{QF + 6}, vcc", f"v_cndmask_b32 v{QF + 7}, 0, v{QF + 7}, vcc")
    stamp(a, 8)
    a(f"s_setprio {APRIO}")
    lds_wait(a, "A_LB0", 8, 9)
    stamp(a, 9)
    TL = [0, 8, 1, 2, 3, 4, 5, 6, 7]

    def kread(n):
        i = TL[n]
        return [f"ds_read_b64 {vr(KF + 8 * i + 2 * g, 2)}, v124 offset:{(8 - i) * 4096 + g * 512}" for g in range(4)]

    def smm(i, s, c):
        return [mfma(s, KF + 8 * i, QF, c), mfma(s, KF + 8 * i + 4, QF + 4, s)]

    def smax(s):
        return [f"v_max3_f32 v15, v{s + 2 * k}, v{s + 2 * k + 1}, v15" for k in range(8)]

    p1buf = [SM, CN] + [SB3[n % 3] for n in range(7)]
    merge = [f"v_cndmask_b32 v{SM + k}, v{CN + k}, v{SM + k}, {ms(k)}" for k in range(16)]
    work = {0: ["s_nop 1"] * 2, 1: ["s_nop 1"] * 2, 2: ["s_nop 1"] * 4, 3: merge[:12], 4: merge[12:] + smax(p1buf[2]),
            5: smax(p1buf[3]) + smax(SM)[:4], 6: smax(p1buf[4]) + smax(SM)[4:]}
    a(*kread(0), *kread(1), *kread(2))
    for n in range(11):
        mx = work[n] if n in work else smax(p1buf[n - 2])
        h = len(mx) // 2
        if n < 9:
            mm = smm(TL[n], p1buf[n], "0")
            a(f"s_waitcnt lgkmcnt({4 * (min(8, n + 2) - n)})", mm[0])
            if n + 3 <= 8:
                a(*kread(n + 3))
            a(*mx[:h], mm[1], *mx[h:])
            if n == VCHK:
                a("s_cmp_eq_u32 s83, 1", "s_cbranch_scc1 A_PB",
                  "s_mov_b64 exec, 0x3f", f"buffer_load_dword v61, v56, {sr(SWS, 4)}, 0 offen sc1", "s_mov_b64 exec, -1")
                a.label("A_PB")
        else:
            if n == 10:
                a("s_nop 1")
            a(*mx)
    stamp(a, 10)
    a("v_mov_b32 v8, v15", "s_nop 1", "v_permlane32_swap_b32 v8, v15", "v_max_f32 v15, v8, v15",
      "v_xor_b32 v14, 0x80000000, v15")
    for i in range(16):
        a(f"v_mov_b32 v{CN + i}, v14")

    def vread(i, b):
        return [f"ds_read_b128 {vr(b, 4)}, v125 offset:{(8 - i) * 4096}",
                f"ds_read_b128 {vr(b + 4, 4)}, v126 offset:{(8 - i) * 4096}"]

    def pexp(s, p):
        o = []
        for h in range(2):
            o += [f"v_exp_f32 v{s + 8 * h + k}, v{s + 8 * h + k}" for k in range(8)]
            o += [f"v_cvt_pk_bf16_f32 v{p + 4 * h + k}, v{s + 8 * h + 2 * k}, v{s + 8 * h + 2 * k + 1}"
                  for k in range(4)]
        return o

    PD_, PO_ = KF, KF + 64
    pvq = [(0, PD_), (8, PO_)] + [(i, PFR[i % 3]) for i in range(1, 8)]
    vb = lambda n: VF + 8 * (n & 1)

    def pv(n):
        p = pvq[n][1]
        return [mfma(OA, vb(n), p, "0" if n == 0 else OA), mfma(OA, vb(n) + 4, p + 4, OA)]

    plan = {2: [0], 3: [1, 2], 4: [3], 5: [4, 5], 6: [6], 7: [7]}
    for b in range(8):
        if b == 0:
            ex = [f"v_sub_f32 v{SM + k}, v{SM + k}, v15" for k in range(16)] + pexp(SM, PO_)
            ex += [x for k in range(8) for x in (f"v_and_b32 v{PD_ + k}, v{MK + k}, v{PO_ + k}",
                                                 f"v_xor_b32 v{PO_ + k}, v{PD_ + k}, v{PO_ + k}")]
        else:
            ex = pexp(SB3[b % 3], PFR[b % 3])
        seq = []
        if b < 7:
            seq += [[m] for m in smm(b + 1, SB3[(b + 1) % 3], CN)]
        if b == 1:
            a("s_cmp_eq_u32 s83, 1", "s_cbranch_scc1 A_VD", "s_waitcnt vmcnt(0)", "v_cmp_ne_u32 s[88:89], s47, v61",
              "s_nop 0", "s_and_b32 s88, s88, 0x3f", "s_cbranch_scc0 A_VG")
            poll(a, "A_PV", 56, 6)
            a.label("A_VG")
            a(*vstage)
            a.label("A_VD")
        if b == 2:
            a("s_waitcnt vmcnt(0)")
            lds_arrive(a, 1, 8, 9)
            lds_wait(a, "A_LB1", 8, 9)
            a(*vread(pvq[0][0], vb(0)), *vread(pvq[1][0], vb(1)))
        for n in plan.get(b, []):
            pp = pv(n)
            seq += [["s_waitcnt lgkmcnt(2)", pp[0]], [pp[1]] + vread(pvq[n + 2][0], vb(n)) if n + 2 < 9 else [pp[1]]]
        if b == 7:
            seq += [["s_waitcnt lgkmcnt(0)", pv(8)[0]]]
        step = 24 // len(seq)
        ins = {(2 if b == 0 else 0) + i * (8 if b == 0 else step): x for i, x in enumerate(seq)}
        for k, e in enumerate(ex):
            a(*ins.get(k, []))
            a(e)
    a("s_nop 1", pv(8)[1])
    a.label("A_FIN")
    jitter(a)
    stamp(a, 11)
    PF = 32
    a(f"s_mul_i32 s41, s71, {ACT_RT}", "s_lshl_b32 s42, s70, 11", "s_add_u32 s41, s41, s42",
      f"s_add_u32 s41, s41, {OFF_ACT + 112 * 1024}", f"s_mul_i32 s42, s71, {FLG_RT}", "s_lshl_b32 s27, s70, 7",
      "s_add_u32 s42, s42, s27", f"s_add_u32 s42, s42, {OFF_FLG + 98 * 128}",
      "v_mov_b32 v10, s47", "v_mov_b32 v11, 0", "s_nop 1")
    a(f"v_mov_b32 v8, v{OA + 12}", f"v_mov_b32 v9, v{OA + 12}", "s_nop 1", "v_permlane32_swap_b32 v8, v9",
      "v_rcp_f32 v9, v9", "s_nop 0")
    for h in range(2):
        for i in range(8 * h, 8 * h + 8):
            a(f"v_mul_f32 v{OA + i}, v9, v{OA + i}")
        for k in range(4 * h, 4 * h + 4):
            a(f"v_cvt_pk_bf16_f32 v{PF + k}, v{OA + 2 * k}, v{OA + 2 * k + 1}")
        if h:
            a(f"v_cndmask_b32 v{PF + 6}, 0, v{PF + 6}, vcc", f"v_cndmask_b32 v{PF + 7}, 0, v{PF + 7}, vcc")
        a(f"buffer_store_dwordx4 {vr(PF + 4 * h, 4)}, v4, {sr(SWS, 4)}, s41 offen offset:{1024 * h} sc1")
    a("s_waitcnt vmcnt(0)", "s_mov_b64 exec, 1",
      f"buffer_store_dword v10, v11, {sr(SWS, 4)}, s42 offen sc1", "s_mov_b64 exec, -1")
    stamp_out(a)
    a("s_endpgm")


G_R = 10
G_RW = 12
G_RES = 192
G_P1 = 3
HLEAD = 3
G_MW = 9
GX, GWO, GW2, GOUT = 4, 8, 16, 20


def publish(reg, off=0):
    return ["s_mov_b64 exec, 1", f"buffer_store_dword v58, v59, {sr(SWS, 4)}, s{reg} offen offset:{off} sc1",
            "s_mov_b64 exec, -1"]


HCHK = eval(os.environ.get('HCHK', '{4: (2, 24), 16: (10, 28)}'))
OCHK = eval(os.environ.get('OCHK', '(18, 23)'))
AMAX = int(os.environ.get('AMAX', '2'))
BURST = int(os.environ.get('BURST', '10'))
BAR = int(os.environ.get('BAR', '16'))
XPRIO = int(os.environ.get('XPRIO', '2'))
PUBD = int(os.environ.get('PUBD', '3'))
PUBK = int(os.environ.get('PUBK', '2'))


KORD = [0, 2, 1, 3, 4, 5, 6, 8, 10, 7, 9, 11, 12, 13]


KT = sum(n << (4 * i) for i, n in enumerate(KORD))


def kpos(k):
    n = KORD[k >> 1]
    return 16 * (n >> 1) + 2 * (n & 1) + (k & 1)


def slot(k):
    sl = k % G_RW
    if sl < 4:
        return 0, sl * 2048
    return 1, (L_S0 - L_RING + (sl - 4) * 2048) if sl < 8 else (sl - 8) * 2048


def dma_w(k):
    up, off = slot(k)
    src, w = wsrc(k)
    return [f"s_add_u32 m0, s{14 if up else 65}, {off}", src, f"buffer_load_dwordx4 v32, {sr(w, 4)}, s27 offen lds",
            f"buffer_load_dwordx4 v33, {sr(w, 4)}, s27 offen offset:1024 lds"]


def areg(k):
    return (16 + 8 * (k % G_R)) if (k % G_R) < 2 else (128 + 8 * (k % G_R - 2))


def issue_a(k, b0=44, b1=45):
    r = areg(k)
    off = (k & 1) * 1024
    o = []
    if k & 1 == 0:
        o = [f"s_add_u32 s70, s{b0}, {kpos(k) * 1024}", f"s_add_u32 s71, s{b1}, {kpos(k) * 1024}"]
    return o + [f"buffer_load_dwordx4 {vr(r, 4)}, v13, {sr(SWS, 4)}, s70 offen offset:{off} sc1",
                f"buffer_load_dwordx4 {vr(r + 4, 4)}, v13, {sr(SWS, 4)}, s71 offen offset:{off} sc1"]


def wsrc(k):
    if k < 28:
        return f"s_add_u32 s27, s12, {kpos(k) * 16 * 896}", GW2
    kk = k - 28
    return f"s_add_u32 s27, s13, {((kk >> 1) * 28 + (kk & 1) * 16) * 896}", GWO


PK0 = G_RW
PK1 = G_RW + 16
NA1 = int(os.environ.get('NA1', '4'))
NPA = int(os.environ.get('NPA', '4'))


def preg(k):
    if k < NPA:
        return 96 + 8 * k if k < 4 else 144 + 8 * (k - 4)
    return 192 + 8 * ((k - PK0) % 8)


def park_w(k):
    src, w = wsrc(k)
    return [src, f"buffer_load_dwordx4 {vr(preg(k), 4)}, v32, {sr(w, 4)}, s27 offen",
            f"buffer_load_dwordx4 {vr(preg(k) + 4, 4)}, v33, {sr(w, 4)}, s27 offen offset:1024"]


PSCHED = [int(x) for x in os.environ.get("PS", "2,1,1,4,4").split(",")]
PORDER = list(range(NPA)) + list(range(PK0, PK0 + 8))


def gen_aux(a):
    AC, T, P = 64, 16, 48
    SWQ, SW1 = SA, SB
    a("s_setprio 3", "s_mov_b32 s59, s49", "s_lshl_b32 s69, s49, 7", "s_mul_i32 s27, s55, 56",
      "v_min_u32 v16, 55, v1", "v_add_u32 v16, s27, v16", "v_mul_u32_u24 v17, 2688, v16",
      "s_add_u32 s60, s49, 16", "s_sub_u32 s27, s49, 5",
      "s_cmp_lt_u32 s49, 5", "s_cselect_b32 s60, s60, s27", "s_add_u32 s61, s57, 11", "v_lshlrev_b32 v12, 2, v1")
    if "ct0" in EXP:
        a("s_cmp_lt_u32 s53, 4", "s_cbranch_scc0 X_CT", "s_cmp_eq_u32 s26, 1", "s_cbranch_scc0 X_CT",
          f"s_getpc_b64 {sr(SC, 2)}")
        a.label("X_PC")
        a(f"s_sub_u32 s{SC}, s{SC}, X_PC-{NAME}_kernel", f"s_subb_u32 s{SC + 1}, s{SC + 1}, 0",
          f"s_mov_b32 s{SC + 2}, L_CODE_END-{NAME}_kernel", f"s_mov_b32 s{SC + 3}, 0x20000", "s_lshl_b32 s27, s53, 13",
          "v_lshlrev_b32 v19, 7, v1", f"buffer_load_dword v19, v19, {sr(SC, 4)}, s27 offen")
        a.label("X_CT")
    a("s_waitcnt lgkmcnt(0)")
    stamp(a, 0, rt=True)
    stamp(a, 1)
    srd(a, SWQ, P_WQKV, WQKV_BYTES)
    if "notouch0" not in EXP:
        a("s_cmp_eq_u32 s26, 0", "s_cbranch_scc0 X_WD", f"buffer_load_dword v17, v17, {sr(SWQ, 4)}, s69 offen")
    a.label("X_WD")
    srd(a, SW1, P_W1, W1_BYTES)
    srd(a, SWS, P_WS, WS_BYTES)
    a("s_lshl_b32 s27, s2, 3", "s_add_u32 s27, s27, s3", "s_cmp_eq_u32 s27, 7", "s_cbranch_scc0 X_NOEP")
    srd(a, SC, P_DBG, 256)
    a(f"v_mov_b32 v20, {OFF_EPOCH}", "v_mov_b32 v22, 0", "s_mov_b64 exec, 1",
      f"buffer_load_dword v21, v20, {sr(SWS, 4)}, 0 offen sc1", "s_waitcnt vmcnt(0)",
      "v_add_u32 v21, 1, v21", "v_max_u32 v21, 1, v21",
      f"buffer_store_dword v21, v22, {sr(SC, 4)}, 0 offen sc1",
      f"buffer_store_dword v21, v20, {sr(SWS, 4)}, 0 offen sc1", "s_mov_b64 exec, -1")
    a.label("X_NOEP")
    a("s_cmp_eq_u32 s3, 5", "s_cbranch_scc0 X_PRE")
    srd(a, SC, P_B1, 3584)
    a("s_mov_b32 exec_hi, 0", f"s_mov_b32 m0, {L_BIAS + 128}", "s_lshl_b32 s27, s60, 7",
      f"buffer_load_dword v12, {sr(SC, 4)}, s27 offen lds",
      f"s_mov_b32 m0, {L_BIAS + 256}", "s_lshl_b32 s27, s61, 7",
      f"buffer_load_dword v12, {sr(SC, 4)}, s27 offen lds",
      f"s_mov_b32 m0, {L_BIAS + 384}", "s_lshl_b32 s27, s51, 6", f"s_add_u32 s27, s27, {27 * 128}",
      f"buffer_load_dword v12, {sr(SC, 4)}, s27 offen lds", "s_mov_b32 exec_hi, -1",
      f"v_add_u32 v20, {L_CNT}, v12", "v_mov_b32 v21, 0", "ds_write_b32 v20, v21")
    a.label("X_PRE")
    a(f"s_setprio {1 if 'auxprio' in EXP else 0}")
    a("v_bfe_u32 v15, v1, 2, 3", "v_lshlrev_b32 v13, 6, v3", "v_and_b32 v14, 3, v1", "v_lshl_add_u32 v13, v14, 4, v13",
      "v_mul_u32_u24 v4, 2688, v15", "v_add_u32 v4, v4, v13", "v_mul_u32_u24 v8, 3584, v15", "v_add_u32 v8, v8, v13")
    for k in range(1, 4):
        a(f"v_add_u32 v{4 + k}, {k * (8 * 2688 - 1024)}, v4", f"v_add_u32 v{8 + k}, {k * (8 * 3584 - 1024)}, v8")
    a(f"s_mul_i32 s27, s58, {FLG_RT}", f"s_add_u32 s27, s27, {OFF_FLG}", "s_lshl_b32 s62, s49, 8",
      "s_add_u32 s62, s62, s27", f"s_add_u32 s63, s62, {32 * 128}", "s_lshl_b32 s64, s57, 8", "s_add_u32 s64, s64, s27",
      f"s_add_u32 s64, s64, {64 * 128}")
    a(f"s_mul_i32 s66, s26, {56 * 2688}", f"s_mul_i32 s67, s26, {56 * 3584}", "s_mul_i32 s68, s26, 7168",
      "v_lshlrev_b32 v13, 4, v1", "v_lshlrev_b32 v14, 3, v1")
    a(f"s_mul_i32 s76, s58, {RT}", f"s_mul_i32 s77, s58, {ACT_RT}", f"s_add_u32 s77, s77, {OFF_ACT}",
      f"s_add_u32 s78, s76, {OFF_V}",
      "s_lshl_b32 s72, s49, 12", f"s_add_u32 s27, s72, {OFF_K - 7 * 4096}", "s_cmp_ge_u32 s49, 7",
      "s_cselect_b32 s72, s27, s72", "s_add_u32 s72, s72, s76",
      "s_sub_u32 s27, s49, 14", "s_lshl_b32 s27, s27, 10", "s_add_u32 s27, s27, s78",
      "s_cmp_ge_u32 s49, 14", "s_cselect_b32 s72, s27, s72",
      "s_add_u32 s27, s49, 2", "s_lshl_b32 s27, s27, 10", "s_add_u32 s27, s27, s78",
      "s_lshl_b32 s73, s60, 12", "s_add_u32 s73, s73, s77", "s_cmp_lt_u32 s49, 5", "s_cselect_b32 s73, s27, s73",
      "s_lshl_b32 s74, s61, 12", "s_add_u32 s74, s74, s77",
      "v_mul_u32_u24 v15, 448, v3", "v_lshl_add_u32 v15, v2, 4, v15", "s_movk_i32 s79, 1344",
      "s_lshl_b32 s27, s26, 13", "v_add_u32 v57, s27, v12", "v_add_u32 v56, 4096, v57", "v_mov_b32 v59, 0")
    gemm_setup(a)

    def dma(ffn, src, slot):
        vb, pitch, w, wo = (8, 3584, SW1, 67) if ffn else (4, 2688, SWQ, 66)
        o = [f"s_add_u32 m0, s68, {slot}", f"s_add_u32 s27, {src}, s{wo}"]
        o += [f"buffer_load_dwordx4 v{vb + k}, {sr(w, 4)}, s27 offen offset:{k * 1024} lds" for k in range(4)]
        o += ["s_add_u32 m0, m0, 4096", f"s_add_u32 s27, s27, {32 * pitch}"]
        o += [f"buffer_load_dwordx4 v{vb + k}, {sr(w, 4)}, s27 offen offset:{k * 1024} lds" for k in range(3)]
        return o

    def dma2(tag, slot, half):
        a("s_cmp_lt_u32 s49, 5", f"s_cbranch_scc0 {tag}F", f"s_add_u32 s83, s71, {half * 224 * 2688}",
          *dma(False, "s83", slot), f"s_branch {tag}D")
        a.label(tag + "F")
        a(f"s_add_u32 s83, s71, {half * 224 * 3584}", *dma(True, "s83", slot))
        a.label(tag + "D")

    a("s_lshl_b32 s69, s59, 7", f"s_add_u32 s70, s69, {224 * 2688}", "s_lshl_b32 s71, s60, 7", "s_waitcnt lgkmcnt(0)")
    if "st0early" in EXP:
        a(*dma(False, "s69", L_S0))
    stamp(a, 2)
    a("s_barrier")
    stamp(a, 3)
    if "st0early" not in EXP:
        a(*dma(False, "s69", L_S0))
    a(*dma(False, "s70", L_S1))
    dma2("X_D2", L_S2, 0)
    a(f"buffer_load_dword v58, v59, {sr(SC, 4)}, 0 offen sc1", "s_waitcnt vmcnt(15)")
    stamp(a, 4)
    a("s_barrier")
    c0, c1 = GC0, GC1
    a("s_lshl_b32 s27, s26, 8", f"s_add_u32 s27, s27, {L_STAT}", "v_lshl_add_u32 v16, v2, 2, s27",
      "v_lshl_add_u32 v17, v3, 4, s27", "ds_read_b32 v40, v16", "ds_read_b32 v41, v16 offset:128",
      f"v_mov_b32 v18, {L_CNT + 64}")
    a("s_waitcnt vmcnt(8)", "s_barrier")
    dma2("X_D3", L_S3, 1)
    a("v_mov_b32 v7, v17")
    XR = 80
    if "noxres" in EXP:
        a("s_mov_b32 s6, 0")
    a(f"buffer_load_dwordx4 {vr(XR, 4)}, v44, {sr(GX, 4)}, s15 offen",
      f"buffer_load_dwordx4 {vr(XR + 4, 4)}, v44, {sr(GX, 4)}, s15 offen offset:32",
      f"buffer_load_dwordx4 {vr(XR + 8, 4)}, v39, {sr(SD, 4)}, s101 offen",
      f"buffer_load_dwordx4 {vr(XR + 12, 4)}, v39, {sr(SD, 4)}, s101 offen offset:32")
    a("s_cmp_lt_u32 s49, 7", f"s_cselect_b32 s27, {f32(28 ** -0.5 * 1.4426950408889634)}, 1.0",
      "s_waitcnt lgkmcnt(0)",
      f"v_mul_f32 v42, {f32(c0)}, v40", "v_mul_f32 v43, v40, v40", "v_mul_f32 v43, v43, v40",
      f"v_mul_f32 v43, {f32(c1)}, v43", "v_mul_f32 v40, s27, v40")
    pos = [0]

    def take(p):
        n = PSCHED[p + 1]
        ks = PORDER[pos[0]:pos[0] + n]
        pos[0] += n
        return [x for k in ks for x in (park_w(k)[:2], park_w(k)[2:])]

    np_ = lambda p: 2 * PSCHED[p + 1]
    for x in take(-1):
        a(*x)
    epoch_wait(a, "X_EP", 59, 58, 11 + np_(-1))
    a("ds_write_b32 v18, v58", "s_lshl_b32 s82, s61, 7", "s_waitcnt lgkmcnt(0)")

    ACX = (AC, 128)

    def reads(u):
        return [f"ds_read2st64_b32 {vr(ACX[u & 1] + 2 * q, 2)}, v{56 + (u & 1)} offset0:{2 * q} offset1:{2 * q + 1}"
                for q in range(8)]

    def head(u):
        o = ["s_barrier"]
        if STAMP and "ks" not in EXP:
            o += ["s_memtime s[98:99]", "s_waitcnt lgkmcnt(0)", f"v_writelane_b32 v63, s98, {16 + 4 * u}"]
        return o + reads(u)

    def ffn(u, weave, mid, nxt):
        blocks = []
        for g in range(4):
            t = [T + 4 * (g & 1) + k for k in range(4)]
            s = [ACX[u & 1] + 4 * g + k for k in range(4)]
            blocks += [[f"s_waitcnt lgkmcnt({6 - 2 * g})"] + [f"v_mul_f32 v{t[k]}, v{s[k]}, v{s[k]}" for k in range(4)],
                       [f"v_fma_f32 v{t[k]}, v{t[k]}, v43, v42" for k in range(4)]
                       + [f"v_mul_f32 v{t[k]}, v{s[k]}, v{t[k]}" for k in range(4)],
                       [f"v_exp_f32 v{t[k]}, v{t[k]}" for k in range(4)],
                       [f"v_fma_f32 v{t[k]}, v{t[k]}, v41, v41" for k in range(4)]
                       + [f"v_rcp_f32 v{t[k]}, v{t[k]}" for k in range(2)],
                       [f"v_rcp_f32 v{t[k]}, v{t[k]}" for k in range(2, 4)]
                       + [f"v_mul_f32 v{t[k]}, v{s[k]}, v{t[k]}" for k in range(4)]
                       + [f"v_cvt_pk_bf16_f32 v{P + 2 * g}, v{t[0]}, v{t[1]}",
                          f"v_cvt_pk_bf16_f32 v{P + 2 * g + 1}, v{t[2]}, v{t[3]}"]]
        at = {}
        for i in range(0, len(weave), 2):
            b = 9 + i * 9 // len(weave)
            at.setdefault(b, []).append(weave[i])
            at.setdefault(b + 1, []).insert(0, weave[i + 1])
        n = 0
        for b, blk in enumerate(blocks):
            if b == BAR and nxt:
                a("s_waitcnt lgkmcnt(0)", *nxt(n))
            a(*[x for x in blk if not (nxt and b >= BAR and x.startswith("s_waitcnt"))])
            if b == 9:
                m = mid(n)
                a(*m)
                n += sum(x.startswith("buffer_load") for x in m)
            if b in (9, 19):
                a(f"buffer_store_dwordx4 {vr(P + 4 * (b // 10), 4)}, v13, {sr(SWS, 4)}, s72 offen offset:{(b // 10) * 1024} sc1")
            for w in at.get(b, []):
                a(*w)
                n += 1
        a("s_add_u32 s72, s72, 2048")

    def qkv(u):
        a(f"s_bitcmp1_b32 s54, {2 * u}", f"s_cbranch_scc1 X_B{u}", f"s_call_b64 s[90:91], X_QK{u & 1}", f"s_branch X_C{u}")
        a.label(f"X_B{u}")
        a(f"s_call_b64 s[90:91], X_V{u & 1}")
        a.label(f"X_C{u}")
        jitter(a)

    def extra(tag, slot, setup):
        return ["s_cmp_eq_u32 s50, 7", f"s_cbranch_scc0 {tag}", setup, *dma(True, "s82", slot), tag + ":"]

    a(*head(0))
    qkv(0)
    a(*dma(True, "s82", L_S0))
    for x in take(0):
        a(*x)
    a(f"s_waitcnt vmcnt({4 + np_(-1) + 7 + np_(0)})")
    a(*head(1))
    qkv(1)
    a("s_mov_b32 s72, s73", f"s_add_u32 s82, s82, {224 * 3584}", *dma(True, "s82", L_S1))
    for x in take(1):
        a(*x)
    a(f"s_waitcnt vmcnt({np_(0) + 7 + np_(1)})")
    a(*head(2))
    w2, w3 = take(2), take(3)
    pub01 = ["s_waitcnt vmcnt(0)", *publish(62), *publish(62, 128)]
    a("s_bitcmp1_b32 s54, 4", "s_cbranch_scc0 X_R1F")
    a(*pub01, "s_call_b64 s[90:91], X_V0")
    for x in w2:
        a(*x)
    a(*head(3), "s_waitcnt vmcnt(0)", *publish(63), "s_call_b64 s[90:91], X_V1")
    for x in w3:
        a(*x)
    a(*head(4), "s_waitcnt vmcnt(0)", *publish(63, 128), "s_branch X_R2")
    a.label("X_R1F")
    jitter(a)
    d6 = ["s_cmp_eq_u32 s50, 7", "s_cbranch_scc0 X_N6", f"v_mul_u32_u24 v60, {224 * 3584 - 64}, v3",
          *[f"v_add_u32 v{8 + k}, v60, v{8 + k}" for k in range(4)], "s_lshl_b32 s82, s51, 6",
          f"s_add_u32 s82, s82, {27 * 128}", *dma(True, "s82", L_S2), "X_N6:"]
    ffn(2, w2, lambda n: pub01 + d6, lambda n: head(3))
    ffn(3, w3, lambda n: ["s_waitcnt vmcnt(0)", *publish(63)], lambda n: head(4))
    a.label("X_R2")
    jitter(a)
    a("s_mov_b32 s72, s74")
    kreq = ["s_mov_b64 exec, 0xf",
            f"buffer_load_dword v62, v36, {sr(SWS, 4)}, 0 offen sc1", "s_mov_b64 exec, -1"]
    ffn(4, [], lambda n: [f"s_setprio {XPRIO}", "s_waitcnt vmcnt(0)", *publish(63, 128), *kreq], None)
    a("s_cmp_eq_u32 s50, 7", "s_cbranch_scc0 X_DONE", *head(5))
    ffn(5, [], lambda n: ["s_waitcnt vmcnt(0)", *publish(64)], None)
    a("s_branch X_DONE")
    for par in range(2):
        A_ = ACX[par]
        a.label(f"X_QK{par}")
        for g in range(4):
            a(f"s_waitcnt lgkmcnt({6 - 2 * g})")
            for k in range(4):
                a(f"v_mul_f32 v{T + 4 * g + k}, v40, v{A_ + 4 * g + k}")
            a(f"v_cvt_pk_bf16_f32 v{P + 2 * g}, v{T + 4 * g}, v{T + 4 * g + 1}",
              f"v_cvt_pk_bf16_f32 v{P + 2 * g + 1}, v{T + 4 * g + 2}, v{T + 4 * g + 3}",
              f"buffer_store_dwordx2 {vr(P + 2 * g, 2)}, v14, {sr(SWS, 4)}, s72 offen offset:{g * 512} sc1")
        a("s_add_u32 s72, s72, 2048", "s_setpc_b64 s[90:91]")
        a.label(f"X_V{par}")
        for g in range(4):
            a(f"ds_read_b128 {vr(T + 4 * g, 4)}, v7 offset:{g * 32}")
        a("s_sub_u32 s27, s72, s78", "s_lshr_b32 s27, s27, 4", "v_add_u32 v60, s27, v2",
          "v_mul_u32_u24 v60, 2341, v60", "v_lshrrev_b32 v60, 16, v60", "v_mad_u32_u24 v60, v60, s79, v15")
        for s in range(2):
            a(f"s_waitcnt lgkmcnt({2 - 2 * s})")
            for k in range(8):
                a(f"v_mul_f32 v{T + 8 * s + k}, v{T + 8 * s + k}, v{A_ + 8 * s + k}")
            for k in range(4):
                a(f"v_cvt_pk_bf16_f32 v{P + 4 * s + k}, v{T + 8 * s + 2 * k}, v{T + 8 * s + 2 * k + 1}")
            a(f"buffer_store_dwordx4 {vr(P + 4 * s, 4)}, v60, {sr(SWS, 4)}, s72 offen offset:{s * 896} sc1")
        a("s_add_u32 s72, s72, 512", "s_setpc_b64 s[90:91]")
    a.label("X_DONE")
    stamp(a, 5)


def gemm_setup(a):
    srd(a, SD, P_B2, 896)
    srd(a, SC, P_DBG, 256)
    a(f"s_mov_b32 s{GX + 2}, {X_BYTES}", f"s_mov_b32 s{GX + 3}, 0x20000",
      "s_lshl_b32 s88, s52, 2", "s_and_b32 s27, s53, 3", "s_add_u32 s88, s88, s27", "s_lshr_b32 s89, s53, 2",
      "s_and_b32 s90, s26, 1", "s_lshr_b32 s91, s26, 1", "s_lshl_b32 s27, s88, 1",
      "s_add_u32 s44, s27, s90", "s_xor_b32 s45, s44, 1", "s_lshl_b32 s89, s89, 7",
      "s_lshl_b32 s101, s91, 6", "s_add_u32 s101, s101, s89", f"s_mul_i32 s15, s44, {RT}", "s_add_u32 s15, s15, s101",
      "v_lshlrev_b32 v39, 4, v3", "v_mul_u32_u24 v44, 896, v2", "v_add_u32 v44, v44, v39",
      f"s_mov_b32 s{GWO + 2}, {WO_BYTES}", f"s_mov_b32 s{GWO + 3}, 0x20000",
      f"s_mov_b32 s{GW2 + 2}, {W2_BYTES}", f"s_mov_b32 s{GW2 + 3}, 0x20000",
      f"s_mov_b32 s{GOUT + 2}, {X_BYTES}", f"s_mov_b32 s{GOUT + 3}, 0x20000")
    a("v_bfe_u32 v46, v1, 2, 2", "v_bfe_u32 v47, v1, 4, 1", "v_lshl_add_u32 v46, v47, 3, v46",
      "v_mul_u32_u24 v32, 896, v46", "v_lshl_add_u32 v32, v3, 6, v32", "v_and_b32 v46, 3, v1",
      "v_lshl_add_u32 v32, v46, 4, v32", f"v_add_u32 v33, {4 * 896 - 1024}, v32")
    a(f"s_mul_i32 s88, s88, {2 * FLG_RT}", f"s_add_u32 s88, s88, {OFF_FLG}",
      f"v_mov_b32 v46, {KT & 0xffffffff}", f"v_mov_b32 v47, {KT >> 32}", "v_and_b32 v45, 30, v1",
      "v_lshlrev_b32 v45, 1, v45", "v_lshrrev_b64 v[46:47], v45, v[46:47]", "v_bfe_u32 v47, v46, 1, 3",
      "v_and_b32 v46, 1, v46", "v_lshl_add_u32 v47, v47, 3, v46",
      "v_and_b32 v46, 1, v1", f"v_mul_u32_u24 v46, {FLG_N}, v46",
      "s_lshl_b32 s27, s26, 1", "s_add_u32 s27, s27, 42", "v_add3_u32 v47, v47, v46, s27",
      "v_lshlrev_b32 v47, 7, v47", "v_add_u32 v36, s88, v47",
      "v_bfe_u32 v47, v1, 1, 2", "v_add_u32 v46, v46, v47",
      "s_lshl_b32 s27, s26, 2", "s_add_u32 s27, s27, 98", "v_add_u32 v46, s27, v46", "v_lshlrev_b32 v46, 7, v46",
      "v_add_u32 v37, s88, v46")
    a(f"s_mul_i32 s12, s26, {64 * 896}", "s_add_u32 s12, s12, s89",
      f"s_mul_i32 s13, s26, {112 * 896}", "s_add_u32 s13, s13, s89",
      "s_lshl_b32 s65, s26, 13", f"s_add_u32 s14, s65, {L_RING}",
      f"s_mul_i32 s44, s44, {ACT_RT}", f"s_mul_i32 s45, s45, {ACT_RT}",
      "s_lshl_b32 s27, s26, 13", f"s_add_u32 s27, s27, {OFF_ACT + 112 * 1024}",
      "s_add_u32 s46, s44, s27", "s_add_u32 s100, s45, s27",
      "s_lshl_b32 s27, s26, 12", f"s_add_u32 s27, s27, {OFF_ACT}", "s_add_u32 s44, s44, s27", "s_add_u32 s45, s45, s27")
    a("v_and_b32 v46, 1, v1", "v_bfe_u32 v47, v1, 1, 1", "v_lshl_add_u32 v46, v46, 1, v47",
      "v_bfe_u32 v47, v1, 4, 1", "v_lshl_add_u32 v46, v47, 2, v46",
      "v_bfe_u32 v47, v1, 2, 2", "v_lshlrev_b32 v47, 6, v47", "v_lshl_add_u32 v46, v46, 3, v47",
      "v_lshl_add_u32 v46, v3, 10, v46", "s_lshl_b32 s27, s91, 9", "s_add_u32 s27, s27, s14",
      "v_add_u32 v34, s27, v46", "v_xor_b32 v35, 512, v34")
    a("v_add_u32 v38, s14, v13")
    for t in range(1, 4):
        a(f"s_xor_b32 s27, s26, {t}", "s_lshl_b32 s27, s27, 13", f"s_add_u32 s27, s27, {L_RING}",
          f"v_add_u32 v{44 + t}, s27, v13")


def gemm_res(a):
    XR, RES, TM = 80, 64, 16
    for k in range(8):
        a(f"v_lshlrev_b32 v{RES + 2 * k}, 16, v{XR + k}", f"v_and_b32 v{RES + 2 * k + 1}, 0xffff0000, v{XR + k}",
          f"v_lshlrev_b32 v{TM + 2 * k}, 16, v{XR + 8 + k}", f"v_and_b32 v{TM + 1 + 2 * k}, 0xffff0000, v{XR + 8 + k}")
    for i in range(16):
        a(f"v_add_f32 v{XR + i}, v{RES + i}, v{TM + i}")


def gen_gemm(a):
    R, RW = G_R, G_RW
    AC, OR, XR = 64, 192, 16
    WFR = (4, 48)
    NK = 36
    ACS = (80, 64, 96, 112)
    pub = publish(64)
    a("s_cmp_lt_u32 s53, 28", "s_cbranch_scc1 G_GO", "s_waitcnt vmcnt(0)", *publish(64, 128))
    stamp_out(a)
    a("s_endpgm")
    a.label("G_GO")
    jitter(a)

    def req(v, nl, dst=60):
        return [f"s_mov_b64 exec, {(1 << nl) - 1}", f"buffer_load_dword v{dst}, v{v}, {sr(SWS, 4)}, 0 offen sc1",
                "s_mov_b64 exec, -1"]

    def chk(mask, target, src=60):
        return [f"v_cmp_ne_u32 s[88:89], s47, v{src}", "s_nop 0", f"s_and_b32 s88, s88, {mask}", f"s_cbranch_scc0 {target}"]

    def issue_w(k):
        return park_w(k) if PK0 <= k < PK1 else dma_w(k)

    def dump(k):
        up, off = slot(k)
        va = 38 if up else 43
        return [f"ds_write_b128 v{va}, {vr(preg(k), 4)} offset:{off}",
                f"ds_write_b128 v{va}, {vr(preg(k) + 4, 4)} offset:{off + 1024}"]

    def wread(k):
        w = WFR[k & 1]
        up, off = slot(k)
        va = 34 if up else 40
        return [f"ds_read_b64_tr_b16 {vr(w, 2)}, v{va} offset:{off}",
                f"ds_read_b64_tr_b16 {vr(w + 2, 2)}, v{va} offset:{off + 256}",
                f"ds_read_b64_tr_b16 {vr(w + 4, 2)}, v{va + 1} offset:{off}",
                f"ds_read_b64_tr_b16 {vr(w + 6, 2)}, v{va + 1} offset:{off + 256}"]

    q = []

    def emit_w(k):
        nonlocal q
        a(*issue_w(k))
        q += [("w", k)] * 2

    def upto(tags):
        nonlocal q
        need = [i for i, kk in enumerate(q) if kk in tags]
        q = q[max(need) + 1:] if need else q
        assert len(q) <= 63
        return f"s_waitcnt vmcnt({len(q)})"

    left = PORDER[sum(PSCHED):]
    a("v_add_u32 v43, s65, v13", f"v_mov_b32 v42, {L_CNT + 8}",
      f"v_subrev_u32 v40, {L_RING}, v34", f"v_subrev_u32 v41, {L_RING}, v35")
    assert sum(PSCHED) >= NPA + 2
    gemm_res(a)
    for k in range(min(NPA, 8)):
        a(*dump(k))
        if k == PUBD:
            a("s_waitcnt vmcnt(0)", *pub, "s_setprio 0")
            stamp(a, 7)
            a(*chk(0xf, "G_OK0", 62))
            poll(a, "G_P0", 36, NA1, 61)
            a.label("G_OK0")
            for kk in range(NA1):
                a(*issue_a(kk))
                q += [("a", kk)] * 2
    lds_wait(a, "G_LW", 42, 56)
    for k in range(8, NPA):
        a(*dump(k))
    for k in range(NPA, 8):
        emit_w(k)
    while left and left[0] < PK0 + 2:
        emit_w(left.pop(0))
    stamp(a, 6)
    a(*wread(0))
    if -1 in {v[0] for v in HCHK.values()}:
        a(*req(36, 28))
        q += ["b"]
    pend = [("w", k) for k in left + list(range(max(8, NPA), RW))]
    anext = NA1
    alim = NA1
    onext = 0

    def split(ops):
        out, cur = [], []
        for o in ops:
            if o == "s_mov_b64 exec, -1":
                out[-1].append(o)
                continue
            cur.append(o)
            if o.startswith("buffer_") or o.startswith("ds_"):
                out.append(cur)
                cur = []
        assert not cur
        return out

    def issue_o1(kk):
        o = ["s_add_u32 s46, s46, 4096", "s_add_u32 s100, s100, 4096"] if kk == 4 else []
        return o + [f"buffer_load_dwordx4 {vr(OR + 8 * kk, 4)}, v13, {sr(SWS, 4)}, s46 offen offset:{(kk & 3) * 1024} sc1",
                    f"buffer_load_dwordx4 {vr(OR + 8 * kk + 4, 4)}, v13, {sr(SWS, 4)}, s100 offen offset:{(kk & 3) * 1024} sc1"]

    for k in range(NK):
        if k in HCHK:
            nl = HCHK[k][1]
            a(upto({"b"}), *chk((1 << nl) - 1, f"G_HK{k}"))
            poll(a, f"G_HP{k}", 36, nl)
            a.label(f"G_HK{k}")
            if k == min(HCHK):
                stamp(a, 8)
            alim = nl
            while anext < min(alim, k + BURST):
                a(*issue_a(anext))
                q += [("a", anext)] * 2
                anext += 1
        if k == OCHK[1]:
            assert k > PK1 - RW
            a(upto({"p"}), *chk(0xff, "G_OKO", 61))
            poll(a, "G_PO", 37, 8, 61)
            a.label("G_OKO")
            stamp(a, 10)
        kd = k + RW
        tags = {("a", k), ("w", k + 1)}
        if PK0 <= kd < PK1:
            tags |= {("w", kd)}
        assert not any(t in pend for t in tags)
        n0 = len(q)
        wt = upto(tags)
        if len(q) != n0:
            a(wt)
        if STAMP and "ks" in EXP:
            if k:
                a(f"v_writelane_b32 v63, s96, {27 + k}")
            a("s_memtime s[96:97]")
        elif k in (12, 28):
            stamp(a, {12: 9, 28: 11}[k])
        w = WFR[k & 1]
        r = areg(k) if k < 28 else OR + 8 * (k - 28)
        c = (lambda t: ACS[0] if t == 0 else "0") if k == 0 else (lambda t: ACS[t])
        vm = []
        if k == OCHK[0]:
            vm += req(37, 8, 61)
            q += ["p"]
        if k in {v[0] for v in HCHK.values()}:
            vm += req(36, 28)
            q += ["b"]
        budget = AMAX
        while anext < min(alim, k + R) and budget:
            vm += issue_a(anext)
            q += [("a", anext)] * 2
            anext += 1
            budget -= 1
        if k >= OCHK[1]:
            budget += 1
        while k >= OCHK[1] and onext < 8 and budget:
            vm += issue_o1(onext)
            q += [("a", 28 + onext)] * 2
            onext += 1
            budget -= 1
        kp = kd + 7
        if k >= 1 and kp < PK1:
            pend.append(("w", kp))
        if PK1 <= kd < NK:
            pend.append(("w", kd))
        for _ in range(2 if budget == AMAX else 1):
            if pend:
                t = pend.pop(0)
                vm += issue_w(t[1])
                q += [t] * 2
        pieces = split(vm)
        dm = split(dump(kd)) if PK0 <= kd < PK1 else []
        rd = wread(k + 1) if k < NK - 1 else []
        mm = [mfma(ACS[0], w, r, c(0)), mfma(ACS[1], w, r + 4, c(1)), mfma(ACS[2], w + 4, r, c(2)),
              mfma(ACS[3], w + 4, r + 4, c(3))]
        pieces = dm + pieces
        per = (len(pieces) + 2) // 3
        a("s_waitcnt lgkmcnt(0)", mm[0], *rd)
        for t in range(1, 4):
            a(mm[t])
            for p in pieces[(t - 1) * per:t * per]:
                a(*p)
    assert onext == 8 and not pend
    assert anext == 28
    stamp(a, 12)
    jitter(a)
    RO = (0, 0, 4096, L_S0 - L_RING)
    a("s_nop 7", "s_nop 1")
    for t in range(1, 4):
        for qq in range(4):
            a(f"ds_write_b128 v38, {vr(ACS[t] + 4 * qq, 4)} offset:{RO[t] + qq * 1024}")
    a("s_waitcnt lgkmcnt(0)", "s_barrier")
    stamp(a, 13)
    for t in range(1, 4):
        for qq in range(4):
            a(f"ds_read_b128 {vr(ACS[t] + 4 * qq, 4)}, v{44 + t} offset:{RO[t] + qq * 1024}")
    for t in (1, 2):
        a(f"s_waitcnt lgkmcnt({12 - 4 * t})")
        for i in range(16):
            a(f"v_add_f32 v{ACS[0] + i}, v{ACS[0] + i}, v{ACS[t] + i}")
    for h in range(2):
        a(f"s_waitcnt lgkmcnt({2 - 2 * h})")
        for i in range(8 * h, 8 * h + 8):
            a(f"v_add_f32 v{ACS[0] + i}, v{ACS[0] + i}, v{ACS[3] + i}")
        for k in range(4 * h, 4 * h + 4):
            a(f"v_cvt_pk_bf16_f32 v{XR + k}, v{ACS[0] + 2 * k}, v{ACS[0] + 2 * k + 1}")
        a(f"buffer_store_dwordx4 {vr(XR + 4 * h, 4)}, v44, {sr(GOUT, 4)}, s15 offen offset:{32 * h} {os.environ.get('OUTF', '')}")
    stamp_out(a)


def post(t):
    lines = t.split("\n")
    g = next(i for i, l in enumerate(lines) if l.startswith("G_GO"))
    o = lines[:g]
    for l in lines[g:]:
        if "plainact" in EXP and "buffer_load_dwordx4 v[" in l:
            l = l.replace(" sc1", "")
        if "gnomfma" in EXP and "v_mfma" in l:
            continue
        if "gnoa" in EXP and "buffer_load_dwordx4 v[" in l:
            l = l.replace("v13,", "v59,")
        if "gnow" in EXP and " lds" in l:
            l = l.replace("v32,", "v59,").replace("v33,", "v59,")
        o.append(l)
    return "\n".join(o)


def main(out):
    a = Asm()
    a.raw(f"; @launch grid=(256,1,1) block=(512,1,1) lds={LDS_BYTES}")
    a.raw('.amdgcn_target "amdgcn-amd-amdhsa--gfx950"')
    a.raw(".text")
    name = gen(a)
    a.raw('.section .rodata,"a"')
    a.raw(".p2align 6")
    a.raw(f".amdhsa_kernel {name}")
    a.raw("  .amdhsa_next_free_vgpr 256")
    a.raw("  .amdhsa_next_free_sgpr 102")
    a.raw("  .amdhsa_accum_offset 256")
    a.raw("  .amdhsa_group_segment_fixed_size 0")
    a.raw("  .amdhsa_kernarg_size 88")
    a.raw("  .amdhsa_user_sgpr_count 2")
    a.raw("  .amdhsa_user_sgpr_kernarg_segment_ptr 1")
    a.raw("  .amdhsa_system_sgpr_workgroup_id_x 1")
    a.raw(".end_amdhsa_kernel")
    open(out, "w").write(post(a.text()))


if __name__ == "__main__":
    if "--stamp" in sys.argv:
        sys.argv.remove("--stamp")
        STAMP = True
    if "--dbg" in sys.argv:
        sys.argv.remove("--dbg")
        DBG = True
    main(sys.argv[1] if len(sys.argv) > 1 else f"cdna_kernels/{NAME}.s")
```

```python
import os
import struct
import sys

EXP = set(os.environ.get('EXP', '').split(','))

NAME = "parallel_sum__sliding_block__dense_activation_gelu__prompt"

RT = 28672
OFF_Q = 0
OFF_K = 64 * RT
OFF_V = 2 * 64 * RT
OFF_ACT = 3 * 64 * RT
ACT_RT = 144 * 1024
OFF_FLG = OFF_ACT + 64 * ACT_RT
FLG_N = 114
FLG_RT = FLG_N * 128
OFF_EPOCH = OFF_FLG + 64 * FLG_RT
WS_BYTES = OFF_EPOCH + 128
NATIVE_K = True

X_BYTES = 2048 * 896
WQKV_BYTES = 448 * 2688
W1_BYTES = 448 * 3584
W2_BYTES = 1792 * 896
WO_BYTES = 448 * 896

SLOT = 28672
L_S2 = 32768
L_S3 = L_S2 + SLOT
L_S1 = L_S3 + SLOT
L_S0 = L_S1 + SLOT
L_BIAS = 159744
L_STAT = L_BIAS + 768
L_CNT = L_STAT + 1024
L_ATT = L_S2
L_RING = L_ATT + 49152
LDS_BYTES = 163840
SPIN_MAX = 1 << 16

STAMP = False
OFF_STAMP = 32 << 20


def f32(x):
    return "0x%08x" % struct.unpack("<I", struct.pack("<f", x))[0]


class Asm:
    def __init__(self):
        self.o = []

    def __call__(self, *lines):
        for s in lines:
            self.o.append("    " + s)

    def label(self, s):
        self.o.append(s + ":")

    def raw(self, s):
        self.o.append(s)

    def text(self):
        return "\n".join(self.o) + "\n"


def vr(b, n):
    return f"v[{b}:{b + n - 1}]"


def sr(b, n):
    return f"s[{b}:{b + n - 1}]"


def mfma(d, a, b, c):
    cs = c if isinstance(c, str) else vr(c, 16)
    return f"v_mfma_f32_32x32x16_bf16 {vr(d, 16)}, {vr(a, 4)}, {vr(b, 4)}, {cs}"


def srd(a, d, lo, nbytes):
    a(f"s_mov_b32 s{d}, s{lo}", f"s_mov_b32 s{d + 1}, s{lo + 1}",
      f"s_mov_b32 s{d + 2}, {nbytes}", f"s_mov_b32 s{d + 3}, 0x20000")


DBG = False
LST = (0,)
ROLE = ["main"]
DBG_MAP = {"main": {0: 2, 3: 3, 5: 4, 6: 5, 9: 6, 15: 7}, "aux": {5: 8, 6: 9, 8: 10, 11: 11, 15: 12}}


HOLD = int(os.environ.get("HOLD", "-99"))


def stamp(a, i, rt=False):
    if i == HOLD and ROLE[0] == "aux":
        a("s_memrealtime s[96:97]")
    if DBG:
        w = DBG_MAP[ROLE[0]].get(i)
        if w is not None:
            a("s_memrealtime s[98:99]", "s_waitcnt lgkmcnt(0)", f"v_writelane_b32 v63, s98, {w}")
            inv = {2: 1, 4: 13, 5: 14, 12: 15}.get(w)
            if inv:
                a("s_not_b32 s98, s98", f"v_writelane_b32 v63, s98, {inv}")
        return
    if not STAMP:
        return
    a(f"s_mem{'real' if rt else ''}time s[98:99]", "s_waitcnt lgkmcnt(0)",
      f"v_writelane_b32 v63, s98, {i}")


def lstamp(a, ureg, k):
    if not STAMP or k not in LST or "ks" in EXP:
        return
    a("s_memtime s[98:99]", f"s_lshl_b32 s97, {ureg}, 2", f"s_add_u32 m0, s97, {16 + k}", "s_waitcnt lgkmcnt(0)",
      "v_writelane_b32 v63, s98, m0")


def stamp_out(a):
    if DBG:
        stamp(a, 15)
        a("s_load_dwordx2 s[92:93], s[0:1], 72", "s_waitcnt lgkmcnt(0)", "s_mov_b32 s94, 256", "s_mov_b32 s95, 0x20000",
          "s_mov_b64 exec, 0xfffe", "v_lshlrev_b32 v62, 2, v1", "buffer_atomic_umax v63, v62, s[92:95], 0 offen sc1")
        return
    if not STAMP:
        return
    stamp(a, 14)
    stamp(a, 15, rt=True)
    a("s_mov_b32 s92, s24", "s_mov_b32 s93, s25", f"s_mov_b32 s94, {64 << 20}", "s_mov_b32 s95, 0x20000",
      "s_lshl_b32 s96, s2, 3", "s_add_u32 s96, s96, s3", "s_lshl_b32 s96, s96, 8",
      f"s_add_u32 s96, s96, {OFF_STAMP}", "s_mov_b64 exec, -1", "v_lshlrev_b32 v62, 2, v1",
      "buffer_store_dword v63, v62, s[92:95], s96 offen")


P_X, P_WQKV, P_WO, P_W1, P_B1, P_W2, P_B2, P_OUT, P_DBG, P_WS = 4, 6, 8, 12, 14, 16, 18, 20, 22, 24
SWS, SA, SB, SC, SD = 28, 32, 36, 40, 84


def gen(a):
    name = NAME + "_kernel"
    a.raw(f".globl {name}")
    a.raw(".p2align 8")
    a.raw(f".type {name},@function")
    a.label(name)
    if HOLD == -1:
        a("s_memrealtime s[96:97]")
    a("s_cmp_ge_u32 s2, 256", "s_cbranch_scc1 L_END")
    a("s_load_dwordx16 s[4:19], s[0:1], 0", "s_load_dwordx4 s[20:23], s[0:1], 64",
      "s_load_dwordx2 s[24:25], s[0:1], 80")
    a("v_lshrrev_b32 v2, 6, v0", "v_and_b32 v1, 63, v0", "v_readfirstlane_b32 s3, v2")
    MAP = os.environ.get("MAP", "42")
    if MAP == "81":
        a("s_and_b32 s52, s2, 7", "s_lshr_b32 s53, s2, 3", "s_lshl_b32 s48, s52, 1", "s_and_b32 s27, s53, 1",
          "s_add_u32 s48, s48, s27", "s_lshr_b32 s49, s53, 1", "s_and_b32 s56, s49, 3", "s_and_b32 s55, s48, 7",
          "s_and_b32 s51, s49, 1", "s_cmp_ge_u32 s53, 28", "s_cselect_b32 s50, 7, 6", "s_cselect_b32 s51, s51, 0",
          "s_and_b32 s26, s3, 3")
    elif MAP == "42":
        a("s_and_b32 s52, s2, 7", "s_lshr_b32 s53, s2, 3", "s_lshr_b32 s48, s52, 1", "s_lshl_b32 s48, s48, 2",
          "s_and_b32 s27, s53, 3", "s_add_u32 s48, s48, s27", "s_and_b32 s51, s52, 1", "s_lshl_b32 s49, s51, 3",
          "s_lshr_b32 s27, s53, 2", "s_add_u32 s49, s49, s27", "s_and_b32 s56, s27, 3", "s_and_b32 s55, s48, 7",
          "s_cmp_ge_u32 s53, 28", "s_cselect_b32 s50, 7, 6", "s_cselect_b32 s51, s51, 0", "s_and_b32 s26, s3, 3")
    else:
        a("s_and_b32 s52, s2, 7", "s_lshr_b32 s53, s2, 3",
          "s_lshr_b32 s55, s53, 2", "s_and_b32 s56, s53, 3",
          "s_and_b32 s27, s53, 1", "s_add_u32 s27, s27, 6", "s_bfe_u32 s57, s53, 0x20001",
          "s_cmp_ge_u32 s53, 24", "s_cselect_b32 s55, s27, s55", "s_cselect_b32 s56, s57, s56",
          "s_and_b32 s57, s52, 3", "s_lshl_b32 s27, s57, 1", "s_add_u32 s55, s55, s27", "s_add_u32 s55, s55, 2",
          "s_and_b32 s55, s55, 7", "s_lshr_b32 s48, s52, 2", "s_lshl_b32 s48, s48, 3", "s_add_u32 s48, s48, s55",
          "s_lshl_b32 s49, s57, 2", "s_add_u32 s49, s49, s56",
          "s_and_b32 s51, s56, 1", "s_cmp_ge_u32 s53, 28", "s_cselect_b32 s50, 7, 6", "s_cselect_b32 s51, s51, 0",
          "s_and_b32 s26, s3, 3")
    a("s_cmp_ge_u32 s49, 14", "s_cselect_b32 s54, 5, 0",
      "s_cmp_lt_u32 s49, 5", "s_cselect_b32 s27, 5, 10", "s_lshl_b32 s27, s27, 4", "s_or_b32 s54, s54, s27",
      "s_or_b32 s54, s54, 0xaa00")
    assert MAP == "42"
    a("s_cmp_eq_u32 s49, 7", "s_cselect_b32 s57, 14, s49", "s_cmp_eq_u32 s49, 14", "s_cselect_b32 s57, 7, s57")
    a("s_lshl_b32 s58, s48, 2", "s_add_u32 s58, s58, s26")
    a("v_and_b32 v2, 31, v1", "v_lshrrev_b32 v3, 5, v1")
    if DBG:
        a("v_mov_b32 v63, 0")
    jitter(a)
    a("s_cmp_ge_u32 s3, 4", "s_cbranch_scc1 L_AUX")
    gen_main(a)
    gen_attn(a)
    a.label("L_AUX")
    ROLE[0] = "aux"
    gen_aux(a)
    gen_gemm(a)
    if HOLD != -99:
        a("s_waitcnt vmcnt(0)", "L_HOLD:", "s_sleep 1", "s_memrealtime s[98:99]", "s_waitcnt lgkmcnt(0)",
          "s_sub_u32 s98, s98, s96", "s_cmp_lt_u32 s98, 3000", "s_cbranch_scc1 L_HOLD")
    a.label("L_END")
    a("s_endpgm")
    a.label("L_CODE_END")
    return name


QF = 48
VCHK = 2
MK = 248
APRIO = int(os.environ.get("APRIO", "2"))


def ms(i):
    return sr((list(range(4, 24, 2)) + [40, 42, 44, 92, 94, 100])[i], 2)


def pads(base, tiles, va, vt):
    o = [f"v_mov_b32 v{vt + k}, 0x3f803f80" for k in range(4)]
    o += [f"v_min_u32 v{va}, 2, v1", f"v_lshl_add_u32 v{va}, v{va}, 12, s{base}",
          f"ds_write_b128 v{va}, {vr(vt, 4)} offset:3840", f"v_lshl_add_u32 v{va}, v1, 2, s{base}",
          "s_mov_b32 vcc_lo, 0x55555555", "s_mov_b32 vcc_hi, 0x55555555"]
    for i in range(3):
        o += [f"s_cmp_lt_u32 s{tiles + i}, 0x40000000", "s_cselect_b32 s27, 0, 0xf149", f"v_mov_b32 v{vt + 3}, s27",
              f"v_cndmask_b32 v{vt + i}, 0, v{vt + 3}, vcc", f"ds_write_b32 v{va}, v{vt + i} offset:{1792 + 4096 * i}"]
    return o
PFF = "sc1" if "pfsc1" in EXP else ("nt" if "pfnt" in EXP else "")


def stage_kv(off, lds, vaddr, base, tiles):
    o = []
    for i in range(3):
        o += [f"s_add_u32 m0, s{base}, {i * 4096 + lds}", f"s_add_u32 s27, s{tiles + i}, {off}",
              f"buffer_load_dwordx4 v{vaddr}, {sr(SWS, 4)}, s27 offen sc1 lds", "s_mov_b32 exec_hi, 0xffff",
              f"buffer_load_dwordx4 v{vaddr}, {sr(SWS, 4)}, s27 offen offset:1024 sc1 lds", "s_mov_b32 exec_hi, -1"]
    return o


GC0 = -2.0 * 0.7978845608028654 * 1.4426950408889634
GC1 = GC0 * 0.044715


def gen_main(a):
    X, ACA, ACB, WR, T = 128, 64, 80, 96, 16
    AB, BB = 240, 244
    if "xnorot" in EXP:
        a("s_mov_b32 s56, 0")
    a("v_lshrrev_b32 v8, 3, v1", "v_and_b32 v9, 7, v1", "v_lshrrev_b32 v4, 4, v1",
      "v_xor_b32 v9, v9, v4", "v_mul_u32_u24 v8, 896, v8", "v_lshl_add_u32 v8, v9, 4, v8", "v_xor_b32 v9, 64, v8")
    for k in range(4):
        a(f"s_add_u32 s27, s56, {k}", "s_and_b32 s27, s27, 3", "s_mulk_i32 s27, 7168",
          f"s_add_u32 s27, s27, {4096 - 1024 * k}", f"v_add_u32 v{4 + k}, s27, v{8 + (k & 1)}")
    a(f"s_mul_i32 s59, s58, {RT}", f"s_mul_i32 s60, s3, {SLOT}")
    a("s_waitcnt lgkmcnt(0)")
    stamp(a, 0, rt=True)
    stamp(a, 1)
    a(f"s_sub_u32 s{SA}, s{P_X}, 4096", f"s_subb_u32 s{SA + 1}, s{P_X + 1}, 0",
      f"s_mov_b32 s{SA + 2}, {X_BYTES + 4096}", f"s_mov_b32 s{SA + 3}, 0x20000")
    for g in range(7):
        a(f"s_add_u32 m0, s60, {g * 4096}", f"s_add_u32 s61, s59, {g * 128}",
          f"buffer_load_dwordx4 v4, {sr(SA, 4)}, s61 offen lds")
    pre = []
    pre += ["s_lshl_b32 s27, s56, 3", "v_subrev_u32 v9, s27, v2", "v_and_b32 v9, 31, v9",
            "v_bfe_u32 v8, v9, 1, 3", "v_xor_b32 v8, v8, v3",
            "v_lshlrev_b32 v8, 4, v8", "v_lshl_add_u32 v8, v9, 7, v8", "v_add_u32 v8, s60, v8",
            "v_xor_b32 v9, 32, v8", "v_xor_b32 v10, 64, v8", "v_xor_b32 v11, 96, v8"]
    pre += ["v_bfe_u32 v12, v1, 2, 1", "v_bfe_u32 v13, v1, 3, 1",
            "v_bfe_u32 v14, v1, 1, 1", "v_lshl_add_u32 v13, v13, 1, v14",
            "v_bfe_u32 v14, v1, 4, 1", "v_lshl_add_u32 v13, v14, 2, v13",
            "v_xor_b32 v12, v12, v3", "v_lshl_add_u32 v13, v12, 3, v13",
            "v_and_b32 v14, 1, v1", "v_lshlrev_b32 v14, 4, v14", "v_mov_b32 v15, 0x3f80",
            "v_lshlrev_b32 v14, v14, v15"]
    pre += [f"v_cmp_eq_u32 {sr(64 + 2 * k, 2)}, {k}, v13" for k in range(8)]
    pre += [f"v_cndmask_b32 v{WR + k}, 0, v14, {sr(64 + 2 * k, 2)}" for k in range(8)]
    pre += ["v_and_b32 v13, 3, v1", "v_bfe_u32 v14, v1, 4, 1", "v_lshl_add_u32 v13, v14, 2, v13",
            "v_bfe_u32 v14, v1, 2, 2", "v_lshlrev_b32 v14, 6, v14", "v_lshl_add_u32 v13, v13, 3, v14",
            "v_lshl_add_u32 v12, v3, 10, v13", f"v_add_u32 v12, {L_S2}, v12"]
    pre += ["s_lshl_b32 s70, s52, 1", "s_and_b32 s27, s53, 1", "s_add_u32 s70, s70, s27",
            "s_lshr_b32 s27, s53, 1", "s_lshl_b32 s27, s27, 2", "s_add_u32 s71, s27, s3",
            "s_mul_i32 s73, s3, 3", "s_add_u32 s72, s27, s73", "s_sub_u32 s72, s72, 8",
            "s_lshl_b32 s73, s73, 12", f"s_add_u32 s73, s73, {L_ATT}", "s_mul_i32 s78, s70, 1792",
            f"s_mul_i32 s74, s71, {RT}", "s_add_u32 s74, s74, s78"]
    for i in range(3):
        pre += [f"s_add_u32 s27, s72, {i}", f"s_mul_i32 s{75 + i}, s27, {RT}", f"s_add_u32 s{75 + i}, s{75 + i}, s78",
                "s_cmp_lt_i32 s27, 0", f"s_cselect_b32 s{75 + i}, 0x40000000, s{75 + i}"]
    pre += ["s_mul_i32 s27, s70, 28", "s_lshr_b32 s79, s27, 5", "s_add_u32 s27, s27, 27", "s_lshr_b32 s27, s27, 5",
            "s_sub_u32 s27, s27, s79",
            "v_and_b32 v13, 1, v1", "v_mul_u32_u24 v13, s27, v13", "v_add_u32 v13, s79, v13",
            "v_lshrrev_b32 v14, 1, v1", "v_add_u32 v14, s72, v14", "v_max_i32 v14, 0, v14",
            f"v_mul_u32_u24 v14, {FLG_N}, v14", "v_add_u32 v14, 14, v14", f"s_mul_i32 s27, s71, {FLG_N}",
            "v_cmp_gt_u32 vcc, 6, v1", "v_mov_b32 v15, s27", "v_lshlrev_b32 v59, 3, v1",
            "v_cndmask_b32 v14, v15, v14, vcc", "v_add_u32 v13, v13, v14", "v_lshlrev_b32 v13, 7, v13",
            f"v_add_u32 v57, {OFF_FLG}, v13", f"v_add_u32 v56, {OFF_FLG + 14 * 128}, v13"]
    pre += ["s_sub_u32 s86, s50, 1",
            f"s_mov_b32 s{SWS}, s{P_WS}", f"s_mov_b32 s{SWS + 1}, s{P_WS + 1}", f"s_mov_b32 s{SWS + 2}, {WS_BYTES}",
            f"s_mov_b32 s{SWS + 3}, 0x20000",
            "v_mov_b32 v14, 0", "v_mov_b32 v15, 0", "s_mov_b32 s62, 0x3f803f80", "s_mov_b32 s82, 0"]
    def xgrp(g):
        return [f"s_add_u32 m0, s60, {g * 4096}", f"s_add_u32 s61, s59, {g * 128}"] + \
               [f"buffer_load_dwordx4 v{4 + i}, {sr(SA, 4)}, s61 offen offset:{i * 1024} lds" for i in range(1, 4)]

    XA = next((int(e[2:]) for e in EXP if e.startswith('xa')), 3)
    for g in range(XA):
        a(*xgrp(g))
    a(*pre)
    a("v_lshlrev_b32 v13, 7, v1", f"s_mov_b32 s{SB + 3}, 0x20000", "s_cmp_eq_u32 s3, 0", "s_cbranch_scc0 M_T1",
      "s_sub_u32 s80, s2, 196", "s_cmp_lt_u32 s2, 196", "s_cselect_b32 s80, s2, s80",
      f"s_cselect_b32 s{SB}, s{P_W2}, s{P_WO}", f"s_cselect_b32 s{SB + 1}, s{P_W2 + 1}, s{P_WO + 1}",
      f"s_mov_b32 s{SB + 2}, {WO_BYTES}", f"s_cselect_b32 s{SB + 2}, {W2_BYTES}, s{SB + 2}",
      "s_lshl_b32 s80, s80, 13", "s_branch M_TD")
    a.label("M_T1")
    a("s_cmp_eq_u32 s3, 3", "s_cbranch_scc0 M_T2", "s_cmp_eq_u32 s50, 7", "s_cbranch_scc1 M_T3",
      f"s_getpc_b64 {sr(SB, 2)}")
    a.label("M_PC")
    a(f"s_sub_u32 s{SB}, s{SB}, M_PC-{NAME}_kernel", f"s_subb_u32 s{SB + 1}, s{SB + 1}, 0",
      f"s_mov_b32 s{SB + 2}, L_CODE_END-{NAME}_kernel", "s_and_b32 s80, s53, 3", "s_lshl_b32 s80, s80, 13",
      "s_branch M_TD")
    a.label("M_T2")
    a("s_mul_i32 s27, s55, 56", "v_min_u32 v13, 55, v1", "v_add_u32 v13, s27, v13",
      "s_add_u32 s80, s57, 11", "s_sub_u32 s27, s49, 5", "s_cmp_eq_u32 s3, 1", "s_cselect_b32 s80, s27, s80",
      "s_movk_i32 s81, 3584", f"s_mov_b32 s{SB + 2}, {W1_BYTES}", "s_add_u32 s27, s49, 16", "s_cmp_lt_i32 s80, 0",
      "s_cselect_b32 s80, s27, s80", "s_cselect_b32 s81, 2688, s81",
      f"s_cselect_b32 s{SB}, s{P_WQKV}, s{P_W1}", f"s_cselect_b32 s{SB + 1}, s{P_WQKV + 1}, s{P_W1 + 1}",
      f"s_cselect_b32 s{SB + 2}, {WQKV_BYTES}, s{SB + 2}", "s_lshl_b32 s80, s80, 7", "v_mul_u32_u24 v13, s81, v13")
    a("s_branch M_TD")
    a.label("M_T3")
    a("s_lshl_b32 s27, s52, 2", "s_and_b32 s80, s53, 3", "s_add_u32 s27, s27, s80", "s_mul_i32 s27, s27, 14",
      "v_min_u32 v13, 13, v1", "v_add_u32 v13, s27, v13", "v_mul_u32_u24 v13, 3584, v13",
      f"s_mov_b32 s{SB}, s{P_W1}", f"s_mov_b32 s{SB + 1}, s{P_W1 + 1}", f"s_mov_b32 s{SB + 2}, {W1_BYTES}",
      f"s_movk_i32 s80, {27 * 128}")
    a.label("M_TD")
    a("s_lshl_b32 s27, s57, 1", "s_add_u32 s27, s27, 23", "s_add_u32 s84, s51, 54", "s_cmp_eq_u32 s50, 7",
      "s_cselect_b32 s27, s84, s27", f"s_mul_i32 s85, s58, {FLG_N}", "s_add_u32 s85, s85, s27",
      "s_lshl_b32 s85, s85, 7", f"s_add_u32 s85, s85, {OFF_FLG + 42 * 128}", f"s_mul_i32 s84, s58, {ACT_RT}",
      "s_lshl_b32 s27, s27, 11", "s_add_u32 s84, s84, s27", f"s_add_u32 s84, s84, {OFF_ACT}")
    a("v_lshlrev_b32 v124, 2, v3", "v_sub_u32 v124, v2, v124", "v_mov_b32 v125, 0xffff", "v_mov_b32 v126, 0xffff0000")
    for i in range(16):
        a(f"v_cmp_le_i32 {ms(i)}, {(i & 3) + 8 * (i >> 2)}, v124")
    for k in range(8):
        a(f"v_cndmask_b32 v{MK + k}, 0, v125, {ms(2 * k)}", f"v_cndmask_b32 v127, 0, v126, {ms(2 * k + 1)}",
          f"v_or_b32 v{MK + k}, v{MK + k}, v127")
    a("s_lshl_b32 s27, s3, 12", f"s_add_u32 s27, s27, {L_ATT}", "v_add_u32 v124, s27, v59",
      "v_mul_u32_u24 v126, 448, v3", "v_lshl_add_u32 v125, v2, 4, v126", "v_add_u32 v126, 896, v125",
      "v_cmp_gt_u32 vcc, 28, v2", "v_mov_b32 v127, 1792", "s_add_u32 s27, s27, 2048",
      "v_cndmask_b32 v125, v127, v125, vcc", "v_cndmask_b32 v126, v127, v126, vcc",
      "v_add_u32 v125, s27, v125", "v_add_u32 v126, s27, v126")
    stamp(a, 2)

    def stats(g):
        for r in range(X + 16 * g, X + 16 * g + 16):
            a(f"v_dot2c_f32_bf16 v14, s62, v{r}", f"v_dot2c_f32_bf16 v15, v{r}, v{r}")

    for g in range(7):
        a(f"s_waitcnt vmcnt({3 * (min(7, g + XA) - g - 1)})")
        if g == 0 and "st1" in EXP:
            stamp(a, 2)
        for q in range(4):
            a(f"ds_read_b128 {vr(X + 16 * g + 4 * q, 4)}, v{8 + q} offset:{g * 4096}")
        if g + XA < 7:
            a(*xgrp(g + XA))
        if g:
            a("s_waitcnt lgkmcnt(4)")
            stats(g - 1)
    a("s_waitcnt lgkmcnt(0)")
    stamp(a, 3)
    a("s_barrier")
    stats(6)
    a("s_nop 2", "v_mov_b32 v4, v14", "v_mov_b32 v5, v15", "s_nop 1",
      "v_permlane32_swap_b32 v4, v14", "v_permlane32_swap_b32 v5, v15",
      "v_add_f32 v14, v4, v14", "v_add_f32 v15, v5, v15",
      f"v_mul_f32 v14, {f32(1 / 448)}, v14", f"v_mul_f32 v15, {f32(1 / 448)}, v15",
      "v_cvt_pk_bf16_f32 v4, v14, v14", "v_fma_f32 v15, -v14, v14, v15",
      "v_lshlrev_b32 v4, 16, v4", "v_max_f32 v15, 0, v15", "v_xor_b32 v4, 0x80000000, v4")
    for i in range(16):
        a(f"v_mov_b32 v{T + i}, v4")
    a("s_nop 1")
    t0 = [168, 169, 0, 1, 168, 169, 0, 0]
    t1 = [112, 113, 56, 57, 112, 113, 1, 0]
    pk = lambda b: b[0] | b[1] << 8 | b[2] << 16 | b[3] << 24
    fin = ["v_cvt_pk_bf16_f32 v15, v15, v15", "v_lshlrev_b32 v15, 16, v15", f"v_add_f32 v15, {f32(1e-5)}, v15",
           "v_cvt_pk_bf16_f32 v15, v15, v15", "v_lshlrev_b32 v15, 16, v15", "v_sqrt_f32 v15, v15",
           "s_lshl_b32 s27, s3, 8",
           "v_cvt_pk_bf16_f32 v5, v15, v15", "v_lshlrev_b32 v15, 16, v5", "v_rcp_f32 v14, v15",
           "v_and_b32 v5, 0xffff, v5", "v_cmp_eq_u32 vcc, 0, v3", f"s_add_u32 s27, s27, {L_STAT}",
           "v_lshl_add_u32 v4, v1, 2, s27", "v_cndmask_b32 v6, v15, v14, vcc", f"v_cndmask_b32 v{BB}, 0, v5, vcc",
           "ds_write_b32 v4, v6",
           f"v_mov_b32 v{AB + 1}, 0", f"v_mov_b32 v{AB + 2}, 0", f"v_mov_b32 v{AB + 3}, 0",
           f"v_mov_b32 v{BB + 1}, 0", f"v_mov_b32 v{BB + 2}, 0", f"v_mov_b32 v{BB + 3}, 0",
           "v_lshlrev_b32 v10, 1, v2", f"v_add_u32 v10, {L_BIAS}, v10",
           "s_lshl_b32 s83, s3, 13", f"v_add_u32 v8, {t0[0] * 512}, v12", "s_mov_b32 s68, 0"]
    assert len(fin) == 28
    late = [f"s_mov_b32 s64, {pk(t0[1:5])}", f"s_mov_b32 s65, {pk(t0[5:8] + [0])}",
            f"s_mov_b32 s66, {pk(t1[0:4])}", f"s_mov_b32 s67, {pk(t1[4:8])}",
            "s_mov_b32 s69, s54", f"v_mul_f32 v7, {f32(GC0)}, v14", "v_mul_f32 v6, v14, v14", "v_mul_f32 v6, v6, v14",
            f"v_mul_f32 v6, {f32(GC1)}, v6"]
    CB = (ACA, ACB, 32)

    def cv(p, h):
        d = CB[p % 3]
        return [f"v_cvt_pk_bf16_f32 v{X + 8 * p + k}, v{d + 2 * k}, v{d + 2 * k + 1}" for k in range(4 * h, 4 * h + 4)]

    for p in range(16):
        d = CB[p % 3]
        if p < 14:
            a(mfma(d, WR, X + 8 * p, T))
        a(*(cv(p - 2, 0) if p >= 2 else fin[14 * p:14 * p + 7]))
        if p < 14:
            a(mfma(d, WR + 4, X + 8 * p + 4, d))
        a(*(cv(p - 2, 1) if p >= 2 else fin[14 * p + 7:14 * p + 14]))
        if 2 <= p < 2 + len(late):
            a(late[p - 2])
        if p == 14:
            a("s_nop 1")

    PD = 4

    def ring(j):
        return WR + 4 * (j % 7)

    def rd(j):
        jj = j % 28
        base = "v8" if jj < 14 else "v9"
        r = ring(j)
        return [f"ds_read_b64_tr_b16 {vr(r, 2)}, {base} offset:{(jj % 14) * 2048}",
                f"ds_read_b64_tr_b16 {vr(r + 2, 2)}, {base} offset:{(jj % 14) * 2048 + 256}"]

    accw = [f"ds_write_addtid_b32 v{ACB + k} offset:{k * 256}" for k in range(16)]
    touch = f"buffer_load_dword v60, v13, {sr(SB, 4)}, s80 offen"
    MT = next((int(e[2:]) for e in EXP if e.startswith('mt')), 1)
    a("s_cmp_eq_u32 s3, 0", f"s_cselect_b32 s81, {MT}, s86", "s_cbranch_scc1 M_NOT", touch)
    a.label("M_NOT")
    stamp(a, 4)
    a("s_waitcnt lgkmcnt(0)", "s_barrier")
    stamp(a, 5)
    stamp(a, 12, rt=True)
    if "prio" in EXP:
        a("s_setprio 2")
    if "zero" in EXP:
        for r in range(X, X + 112):
            a(f"v_mov_b32 v{r}, 0")
    for j in range(PD):
        a(*rd(j))
    if "align" in EXP:
        a.raw(".p2align 6")
    a.label("M_TILE")
    a("s_cmp_eq_u32 s68, s81", "s_cbranch_scc1 M_SIDE")
    a.label("M_SIDER")
    jitter(a)
    a("s_mov_b32 m0, s83", "s_bitcmp1_b32 s69, 0", "s_cbranch_scc1 M_V")
    WPOS = {1: (0, 3), 2: (3, 6), 3: (6, 9), 4: (9, 12), 5: (12, 14), 6: (14, 16)}

    pfs = []

    def body(tag):
        q = [f for f in range(PD) for _ in range(2)]
        for j in range(28):
            if j % 2 == 0:
                q = q[max(i for i, f in enumerate(q) if f == j + 1) + 1:][-15:]
                a(f"s_waitcnt lgkmcnt({len(q)})")
            d = ACB if j == 27 else ACA
            ops = (X + 4 * j, ring(j)) if tag == "V" else (ring(j), X + 4 * j)
            if j == 0 and tag == "N":
                a("s_bitcmp1_b32 s69, 1", "s_cbranch_scc0 M_NOB", mfma(ACA, AB, BB, "0"),
                  mfma(ACA, *ops, ACA), "s_branch M_NOB2")
                a.label("M_NOB")
                a(mfma(ACA, *ops, "0"))
                a.label("M_NOB2")
            else:
                a(mfma(d, *ops, "0" if j == 0 else ACA))
            if j + PD == 14:
                assert "w" not in q
                a("s_barrier")
            if j in WPOS and "noaccw" not in EXP:
                a(*accw[WPOS[j][0]:WPOS[j][1]])
                q += ["w"] * (WPOS[j][1] - WPOS[j][0])
            a(*rd(j + PD))
            q += [j + PD] * 2
            if j == 0:
                a("s_and_b32 s27, s66, 0xff", "s_lshr_b64 s[66:67], s[66:67], 8",
                  "v_lshl_add_u32 v9, s27, 9, v12", "v_add_u32 v10, 64, v10")
            if j == 12:
                a("s_and_b32 s27, s64, 0xff", "s_lshr_b64 s[64:65], s[64:65], 8",
                  "v_lshl_add_u32 v8, s27, 9, v12", "s_xor_b32 s83, s83, 4096")
            if j + PD == 27:
                a(f"ds_read_u16 v{AB}, v10")
                q += ["b"]
        a("s_lshr_b32 s69, s69, 2", "s_add_u32 s68, s68, 1", "s_cmp_lt_u32 s68, s50", "s_cbranch_scc1 M_TILE")

    body("N")
    a("s_branch M_DONE")
    a.label("M_SIDE")
    a("s_cmp_eq_u32 s68, s86", "s_cbranch_scc1 M_SIDE2", touch, "s_mov_b32 s81, s86", "s_branch M_SIDER")
    a.label("M_SIDE2")
    a(f"v_mov_b32 v61, {L_CNT + 64}", "ds_read_b32 v61, v61", "s_mov_b64 exec, 0xff",
      f"buffer_load_dword v60, v57, {sr(SWS, 4)}, 0 offen sc1", "s_mov_b64 exec, -1", "s_branch M_SIDER")
    a.label("M_V")
    body("V")
    a.label("M_DONE")
    jitter(a)
    stamp(a, 6)
    stamp(a, 13, rt=True)
    lds_arrive(a, 2, 4, 5)
    qld = [f"buffer_load_dwordx2 {vr(QF + 2 * g, 2)}, v59, {sr(SWS, 4)}, s74 offen offset:{g * 512} sc1" for g in range(4)]
    a("v_readfirstlane_b32 s47, v61", "s_setprio 3", "s_waitcnt vmcnt(0)", "v_cmp_ne_u32 s[90:91], s47, v60",
      "s_mov_b64 exec, 0x3f", f"buffer_load_dword v61, v56, {sr(SWS, 4)}, 0 offen sc1", "s_mov_b64 exec, -1",
      "s_nop 0")
    a("v_lshlrev_b32 v4, 4, v1", "s_nop 3")
    for h in range(2):
        t = [T + 8 * h + k for k in range(8)]
        c = [ACB + 8 * h + k for k in range(8)]
        a(*[f"v_mul_f32 v{t[k]}, v{c[k]}, v{c[k]}" for k in range(8)])
        a(*[f"v_fma_f32 v{t[k]}, v{t[k]}, v6, v7" for k in range(8)])
        a(*[f"v_mul_f32 v{t[k]}, v{c[k]}, v{t[k]}" for k in range(8)])
        a(*[f"v_exp_f32 v{t[k]}, v{t[k]}" for k in range(8)])
        a(*[f"v_fma_f32 v{t[k]}, v{t[k]}, v15, v15" for k in range(8)])
        a(*[f"v_rcp_f32 v{t[k]}, v{t[k]}" for k in range(8)])
        a(*[f"v_mul_f32 v{t[k]}, v{c[k]}, v{t[k]}" for k in range(8)])
        a(*[f"v_cvt_pk_bf16_f32 v{32 + 4 * h + k}, v{t[2 * k]}, v{t[2 * k + 1]}" for k in range(4)])
        a(f"buffer_store_dwordx4 {vr(32 + 4 * h, 4)}, v4, {sr(SWS, 4)}, s84 offen offset:{1024 * h} sc1")
    a("s_setprio 0")


JIT = [0]


def jitter(a):
    if "jitter" not in EXP:
        return
    JIT[0] += 1
    n = JIT[0]
    a("s_memtime s[98:99]", "s_waitcnt lgkmcnt(0)", "s_lshl_b32 s99, s2, 3", "s_add_u32 s99, s99, s3",
      f"s_mul_i32 s99, s99, {2654435761 if n & 1 else 40503}", "s_xor_b32 s98, s98, s99", "s_lshr_b32 s98, s98, 3",
      "s_and_b32 s99, s98, 7", "s_cmp_eq_u32 s99, 0", f"s_cbranch_scc0 J_{n}X", "s_bfe_u32 s98, s98, 0x50003")
    a.label(f"J_{n}")
    a("s_sleep 8", "s_sub_u32 s98, s98, 1", f"s_cbranch_scc0 J_{n}")
    a.label(f"J_{n}X")


def lds_arrive(a, idx, vaddr, vtmp, val="1"):
    a(f"v_mov_b32 v{vaddr}, {L_CNT + 4 * idx}", f"v_mov_b32 v{vtmp}, {val}", "s_mov_b64 exec, 1",
      f"ds_add_u32 v{vaddr}, v{vtmp}", "s_mov_b64 exec, -1")


def lds_wait(a, tag, vaddr, vtmp, n=4):
    a(f"s_mov_b32 s27, {SPIN_MAX * 64}", f"s_branch {tag}_L")
    a.label(tag)
    a("s_sleep 1")
    a.label(tag + "_L")
    a(f"ds_read_b32 v{vtmp}, v{vaddr}", "s_waitcnt lgkmcnt(0)", f"v_readfirstlane_b32 s88, v{vtmp}",
      "s_sub_u32 s27, s27, 1", f"s_cbranch_scc1 {tag}_X", f"s_cmp_lt_u32 s88, {n}", f"s_cbranch_scc1 {tag}")
    a.label(tag + "_X")


def poll(a, tag, vaddr, nl, vtmp=60):
    a(f"s_mov_b32 s27, {SPIN_MAX}", f"s_mov_b64 exec, {(1 << nl) - 1}", f"s_branch {tag}_L")
    a.label(tag)
    a("s_sleep 3")
    a.label(tag + "_L")
    a(f"buffer_load_dword v{vtmp}, v{vaddr}, {sr(SWS, 4)}, 0 offen sc1", "s_waitcnt vmcnt(0)",
      f"v_cmp_ne_u32 s[88:89], s47, v{vtmp}", "s_sub_u32 s27, s27, 1", f"s_cbranch_scc1 {tag}_X",
      "s_cmp_lg_u64 s[88:89], 0", f"s_cbranch_scc1 {tag}")
    a.label(tag + "_X")
    a("s_mov_b64 exec, -1")


def epoch_issue(a, vz, vtmp):
    srd(a, SC, P_DBG, 256)
    a(f"v_mov_b32 v{vz}, 0", f"buffer_load_dword v{vtmp}, v{vz}, {sr(SC, 4)}, 0 offen sc1")


def epoch_wait(a, tag, vz, vtmp, n0):
    a(f"s_mov_b32 s27, {SPIN_MAX}", f"s_waitcnt vmcnt({n0})", f"s_branch {tag}_L")
    a.label(tag)
    a("s_sleep 3", f"buffer_load_dword v{vtmp}, v{vz}, {sr(SC, 4)}, 0 offen sc1", "s_waitcnt vmcnt(0)")
    a.label(tag + "_L")
    a(f"v_readfirstlane_b32 s47, v{vtmp}", "s_sub_u32 s27, s27, 1", f"s_cbranch_scc1 {tag}_X",
      "s_cmp_eq_u32 s47, 0", f"s_cbranch_scc1 {tag}")
    a.label(tag + "_X")


def gen_attn(a):
    KF, OA, CN, SM, VF = 128, 200, 216, 232, 16
    SB3 = (64, 80, 96)
    PFR = (32, 40, 112)
    qld = [f"buffer_load_dwordx2 {vr(QF + 2 * g, 2)}, v59, {sr(SWS, 4)}, s74 offen offset:{g * 512} sc1" for g in range(4)]
    pubm = ["v_mov_b32 v10, s47", "v_mov_b32 v11, 0", "s_mov_b64 exec, 1",
            f"buffer_store_dword v10, v11, {sr(SWS, 4)}, s85 offen sc1", "s_mov_b64 exec, -1"]
    vstage = stage_kv(OFF_V, 2048, 4, 73, 75)
    a("s_cmp_eq_u32 s50, 7", "s_cbranch_scc0 A_FREE", f"v_mov_b32 v8, {L_CNT + 8}")
    lds_wait(a, "A_LB2", 8, 9)
    a.label("A_FREE")
    a(*pads(73, 75, 12, 8), "s_waitcnt vmcnt(0)", *pubm, "s_and_b32 s27, s90, 0xff", "s_cbranch_scc0 A_QOK")
    poll(a, "A_PQ", 57, 8)
    a.label("A_QOK")
    a(*stage_kv(OFF_K, 0, 4, 73, 75), *qld)
    a("v_cmp_ne_u32 s[88:89], s47, v61", "s_mov_b32 s83, 0", "s_and_b32 s88, s88, 0x3f",
      "s_cbranch_scc1 A_VL0", *vstage, "s_mov_b32 s83, 1", "s_waitcnt vmcnt(6)", "s_branch A_VL1")
    a.label("A_VL0")
    a("s_waitcnt vmcnt(0)")
    a.label("A_VL1")
    a("s_waitcnt lgkmcnt(0)")
    lds_arrive(a, 0, 8, 9)
    a("v_cmp_eq_u32 vcc, 0, v3", "v_mov_b32 v5, 0x3f80", f"v_mov_b32 v15, {f32(-3e38)}",
      f"v_cndmask_b32 v{QF + 6}, v5, v{QF + 6}, vcc", f"v_cndmask_b32 v{QF + 7}, 0, v{QF + 7}, vcc")
    stamp(a, 8)
    a(f"s_setprio {APRIO}")
    lds_wait(a, "A_LB0", 8, 9)
    stamp(a, 9)
    TL = [0, 8, 1, 2, 3, 4, 5, 6, 7]

    def kread(n):
        i = TL[n]
        return [f"ds_read_b64 {vr(KF + 8 * i + 2 * g, 2)}, v124 offset:{(8 - i) * 4096 + g * 512}" for g in range(4)]

    def smm(i, s, c):
        return [mfma(s, KF + 8 * i, QF, c), mfma(s, KF + 8 * i + 4, QF + 4, s)]

    def smax(s):
        return [f"v_max3_f32 v15, v{s + 2 * k}, v{s + 2 * k + 1}, v15" for k in range(8)]

    p1buf = [SM, CN] + [SB3[n % 3] for n in range(7)]
    merge = [f"v_cndmask_b32 v{SM + k}, v{CN + k}, v{SM + k}, {ms(k)}" for k in range(16)]
    work = {0: ["s_nop 1"] * 2, 1: ["s_nop 1"] * 2, 2: ["s_nop 1"] * 4, 3: merge[:12], 4: merge[12:] + smax(p1buf[2]),
            5: smax(p1buf[3]) + smax(SM)[:4], 6: smax(p1buf[4]) + smax(SM)[4:]}
    a(*kread(0), *kread(1), *kread(2))
    for n in range(11):
        mx = work[n] if n in work else smax(p1buf[n - 2])
        h = len(mx) // 2
        if n < 9:
            mm = smm(TL[n], p1buf[n], "0")
            a(f"s_waitcnt lgkmcnt({4 * (min(8, n + 2) - n)})", mm[0])
            if n + 3 <= 8:
                a(*kread(n + 3))
            a(*mx[:h], mm[1], *mx[h:])
            if n == VCHK:
                a("s_cmp_eq_u32 s83, 1", "s_cbranch_scc1 A_PB",
                  "s_mov_b64 exec, 0x3f", f"buffer_load_dword v61, v56, {sr(SWS, 4)}, 0 offen sc1", "s_mov_b64 exec, -1")
                a.label("A_PB")
        else:
            if n == 10:
                a("s_nop 1")
            a(*mx)
    stamp(a, 10)
    a("v_mov_b32 v8, v15", "s_nop 1", "v_permlane32_swap_b32 v8, v15", "v_max_f32 v15, v8, v15",
      "v_xor_b32 v14, 0x80000000, v15")
    for i in range(16):
        a(f"v_mov_b32 v{CN + i}, v14")

    def vread(i, b):
        return [f"ds_read_b128 {vr(b, 4)}, v125 offset:{(8 - i) * 4096}",
                f"ds_read_b128 {vr(b + 4, 4)}, v126 offset:{(8 - i) * 4096}"]

    def pexp(s, p):
        o = []
        for h in range(2):
            o += [f"v_exp_f32 v{s + 8 * h + k}, v{s + 8 * h + k}" for k in range(8)]
            o += [f"v_cvt_pk_bf16_f32 v{p + 4 * h + k}, v{s + 8 * h + 2 * k}, v{s + 8 * h + 2 * k + 1}"
                  for k in range(4)]
        return o

    PD_, PO_ = KF, KF + 64
    pvq = [(0, PD_), (8, PO_)] + [(i, PFR[i % 3]) for i in range(1, 8)]
    vb = lambda n: VF + 8 * (n & 1)

    def pv(n):
        p = pvq[n][1]
        return [mfma(OA, vb(n), p, "0" if n == 0 else OA), mfma(OA, vb(n) + 4, p + 4, OA)]

    plan = {2: [0], 3: [1, 2], 4: [3], 5: [4, 5], 6: [6], 7: [7]}
    for b in range(8):
        if b == 0:
            ex = [f"v_sub_f32 v{SM + k}, v{SM + k}, v15" for k in range(16)] + pexp(SM, PO_)
            ex += [x for k in range(8) for x in (f"v_and_b32 v{PD_ + k}, v{MK + k}, v{PO_ + k}",
                                                 f"v_xor_b32 v{PO_ + k}, v{PD_ + k}, v{PO_ + k}")]
        else:
            ex = pexp(SB3[b % 3], PFR[b % 3])
        seq = []
        if b < 7:
            seq += [[m] for m in smm(b + 1, SB3[(b + 1) % 3], CN)]
        if b == 1:
            a("s_cmp_eq_u32 s83, 1", "s_cbranch_scc1 A_VD", "s_waitcnt vmcnt(0)", "v_cmp_ne_u32 s[88:89], s47, v61",
              "s_nop 0", "s_and_b32 s88, s88, 0x3f", "s_cbranch_scc0 A_VG")
            poll(a, "A_PV", 56, 6)
            a.label("A_VG")
            a(*vstage)
            a.label("A_VD")
        if b == 2:
            a("s_waitcnt vmcnt(0)")
            lds_arrive(a, 1, 8, 9)
            lds_wait(a, "A_LB1", 8, 9)
            a(*vread(pvq[0][0], vb(0)), *vread(pvq[1][0], vb(1)))
        for n in plan.get(b, []):
            pp = pv(n)
            seq += [["s_waitcnt lgkmcnt(2)", pp[0]], [pp[1]] + vread(pvq[n + 2][0], vb(n)) if n + 2 < 9 else [pp[1]]]
        if b == 7:
            seq += [["s_waitcnt lgkmcnt(0)", pv(8)[0]]]
        step = 24 // len(seq)
        ins = {(2 if b == 0 else 0) + i * (8 if b == 0 else step): x for i, x in enumerate(seq)}
        for k, e in enumerate(ex):
            a(*ins.get(k, []))
            a(e)
    a("s_nop 1", pv(8)[1])
    a.label("A_FIN")
    jitter(a)
    stamp(a, 11)
    PF = 32
    a(f"s_mul_i32 s41, s71, {ACT_RT}", "s_lshl_b32 s42, s70, 11", "s_add_u32 s41, s41, s42",
      f"s_add_u32 s41, s41, {OFF_ACT + 112 * 1024}", f"s_mul_i32 s42, s71, {FLG_RT}", "s_lshl_b32 s27, s70, 7",
      "s_add_u32 s42, s42, s27", f"s_add_u32 s42, s42, {OFF_FLG + 98 * 128}",
      "v_mov_b32 v10, s47", "v_mov_b32 v11, 0", "s_nop 1")
    a(f"v_mov_b32 v8, v{OA + 12}", f"v_mov_b32 v9, v{OA + 12}", "s_nop 1", "v_permlane32_swap_b32 v8, v9",
      "v_rcp_f32 v9, v9", "s_nop 0")
    for h in range(2):
        for i in range(8 * h, 8 * h + 8):
            a(f"v_mul_f32 v{OA + i}, v9, v{OA + i}")
        for k in range(4 * h, 4 * h + 4):
            a(f"v_cvt_pk_bf16_f32 v{PF + k}, v{OA + 2 * k}, v{OA + 2 * k + 1}")
        if h:
            a(f"v_cndmask_b32 v{PF + 6}, 0, v{PF + 6}, vcc", f"v_cndmask_b32 v{PF + 7}, 0, v{PF + 7}, vcc")
        a(f"buffer_store_dwordx4 {vr(PF + 4 * h, 4)}, v4, {sr(SWS, 4)}, s41 offen offset:{1024 * h} sc1")
    a("s_waitcnt vmcnt(0)", "s_mov_b64 exec, 1",
      f"buffer_store_dword v10, v11, {sr(SWS, 4)}, s42 offen sc1", "s_mov_b64 exec, -1")
    stamp_out(a)
    a("s_endpgm")


G_R = 10
G_RW = 12
G_RES = 192
G_P1 = 3
HLEAD = 3
G_MW = 9
GX, GWO, GW2, GOUT = 4, 8, 16, 20


def publish(reg, off=0):
    return ["s_mov_b64 exec, 1", f"buffer_store_dword v58, v59, {sr(SWS, 4)}, s{reg} offen offset:{off} sc1",
            "s_mov_b64 exec, -1"]


HCHK = eval(os.environ.get('HCHK', '{4: (2, 24), 16: (10, 28)}'))
OCHK = eval(os.environ.get('OCHK', '(18, 23)'))
AMAX = int(os.environ.get('AMAX', '2'))
BURST = int(os.environ.get('BURST', '10'))
BAR = int(os.environ.get('BAR', '16'))
XPRIO = int(os.environ.get('XPRIO', '2'))
PUBD = int(os.environ.get('PUBD', '3'))
PUBK = int(os.environ.get('PUBK', '2'))


KORD = [0, 2, 1, 3, 4, 5, 6, 8, 10, 7, 9, 11, 12, 13]


KT = sum(n << (4 * i) for i, n in enumerate(KORD))


def kpos(k):
    n = KORD[k >> 1]
    return 16 * (n >> 1) + 2 * (n & 1) + (k & 1)


def slot(k):
    sl = k % G_RW
    if sl < 4:
        return 0, sl * 2048
    return 1, (L_S0 - L_RING + (sl - 4) * 2048) if sl < 8 else (sl - 8) * 2048


def dma_w(k):
    up, off = slot(k)
    src, w = wsrc(k)
    return [f"s_add_u32 m0, s{14 if up else 65}, {off}", src, f"buffer_load_dwordx4 v32, {sr(w, 4)}, s27 offen lds",
            f"buffer_load_dwordx4 v33, {sr(w, 4)}, s27 offen offset:1024 lds"]


def areg(k):
    return (16 + 8 * (k % G_R)) if (k % G_R) < 2 else (128 + 8 * (k % G_R - 2))


def issue_a(k, b0=44, b1=45):
    r = areg(k)
    off = (k & 1) * 1024
    o = []
    if k & 1 == 0:
        o = [f"s_add_u32 s70, s{b0}, {kpos(k) * 1024}", f"s_add_u32 s71, s{b1}, {kpos(k) * 1024}"]
    return o + [f"buffer_load_dwordx4 {vr(r, 4)}, v13, {sr(SWS, 4)}, s70 offen offset:{off} sc1",
                f"buffer_load_dwordx4 {vr(r + 4, 4)}, v13, {sr(SWS, 4)}, s71 offen offset:{off} sc1"]


def wsrc(k):
    if k < 28:
        return f"s_add_u32 s27, s12, {kpos(k) * 16 * 896}", GW2
    kk = k - 28
    return f"s_add_u32 s27, s13, {((kk >> 1) * 28 + (kk & 1) * 16) * 896}", GWO


PK0 = G_RW
PK1 = G_RW + 16
NA1 = int(os.environ.get('NA1', '4'))
NPA = int(os.environ.get('NPA', '4'))


def preg(k):
    if k < NPA:
        return 96 + 8 * k if k < 4 else 144 + 8 * (k - 4)
    return 192 + 8 * ((k - PK0) % 8)


def park_w(k):
    src, w = wsrc(k)
    return [src, f"buffer_load_dwordx4 {vr(preg(k), 4)}, v32, {sr(w, 4)}, s27 offen",
            f"buffer_load_dwordx4 {vr(preg(k) + 4, 4)}, v33, {sr(w, 4)}, s27 offen offset:1024"]


PSCHED = [int(x) for x in os.environ.get("PS", "2,1,1,4,4").split(",")]
PORDER = list(range(NPA)) + list(range(PK0, PK0 + 8))


def gen_aux(a):
    AC, T, P = 64, 16, 48
    SWQ, SW1 = SA, SB
    a("s_setprio 3", "s_mov_b32 s59, s49", "s_lshl_b32 s69, s49, 7", "s_mul_i32 s27, s55, 56",
      "v_min_u32 v16, 55, v1", "v_add_u32 v16, s27, v16", "v_mul_u32_u24 v17, 2688, v16",
      "s_add_u32 s60, s49, 16", "s_sub_u32 s27, s49, 5",
      "s_cmp_lt_u32 s49, 5", "s_cselect_b32 s60, s60, s27", "s_add_u32 s61, s57, 11", "v_lshlrev_b32 v12, 2, v1")
    if "ct0" in EXP:
        a("s_cmp_lt_u32 s53, 4", "s_cbranch_scc0 X_CT", "s_cmp_eq_u32 s26, 1", "s_cbranch_scc0 X_CT",
          f"s_getpc_b64 {sr(SC, 2)}")
        a.label("X_PC")
        a(f"s_sub_u32 s{SC}, s{SC}, X_PC-{NAME}_kernel", f"s_subb_u32 s{SC + 1}, s{SC + 1}, 0",
          f"s_mov_b32 s{SC + 2}, L_CODE_END-{NAME}_kernel", f"s_mov_b32 s{SC + 3}, 0x20000", "s_lshl_b32 s27, s53, 13",
          "v_lshlrev_b32 v19, 7, v1", f"buffer_load_dword v19, v19, {sr(SC, 4)}, s27 offen")
        a.label("X_CT")
    a("s_waitcnt lgkmcnt(0)")
    stamp(a, 0, rt=True)
    stamp(a, 1)
    srd(a, SWQ, P_WQKV, WQKV_BYTES)
    if "notouch0" not in EXP:
        a("s_cmp_eq_u32 s26, 0", "s_cbranch_scc0 X_WD", f"buffer_load_dword v17, v17, {sr(SWQ, 4)}, s69 offen")
    a.label("X_WD")
    srd(a, SW1, P_W1, W1_BYTES)
    srd(a, SWS, P_WS, WS_BYTES)
    a("s_lshl_b32 s27, s2, 3", "s_add_u32 s27, s27, s3", "s_cmp_eq_u32 s27, 7", "s_cbranch_scc0 X_NOEP")
    srd(a, SC, P_DBG, 256)
    a(f"v_mov_b32 v20, {OFF_EPOCH}", "v_mov_b32 v22, 0", "s_mov_b64 exec, 1",
      f"buffer_load_dword v21, v20, {sr(SWS, 4)}, 0 offen sc1", "s_waitcnt vmcnt(0)",
      "v_add_u32 v21, 1, v21", "v_max_u32 v21, 1, v21",
      f"buffer_store_dword v21, v22, {sr(SC, 4)}, 0 offen sc1",
      f"buffer_store_dword v21, v20, {sr(SWS, 4)}, 0 offen sc1", "s_mov_b64 exec, -1")
    a.label("X_NOEP")
    a("s_cmp_eq_u32 s3, 5", "s_cbranch_scc0 X_PRE")
    srd(a, SC, P_B1, 3584)
    a("s_mov_b32 exec_hi, 0", f"s_mov_b32 m0, {L_BIAS + 128}", "s_lshl_b32 s27, s60, 7",
      f"buffer_load_dword v12, {sr(SC, 4)}, s27 offen lds",
      f"s_mov_b32 m0, {L_BIAS + 256}", "s_lshl_b32 s27, s61, 7",
      f"buffer_load_dword v12, {sr(SC, 4)}, s27 offen lds",
      f"s_mov_b32 m0, {L_BIAS + 384}", "s_lshl_b32 s27, s51, 6", f"s_add_u32 s27, s27, {27 * 128}",
      f"buffer_load_dword v12, {sr(SC, 4)}, s27 offen lds", "s_mov_b32 exec_hi, -1",
      f"v_add_u32 v20, {L_CNT}, v12", "v_mov_b32 v21, 0", "ds_write_b32 v20, v21")
    a.label("X_PRE")
    a(f"s_setprio {1 if 'auxprio' in EXP else 0}")
    a("v_bfe_u32 v15, v1, 2, 3", "v_lshlrev_b32 v13, 6, v3", "v_and_b32 v14, 3, v1", "v_lshl_add_u32 v13, v14, 4, v13",
      "v_mul_u32_u24 v4, 2688, v15", "v_add_u32 v4, v4, v13", "v_mul_u32_u24 v8, 3584, v15", "v_add_u32 v8, v8, v13")
    for k in range(1, 4):
        a(f"v_add_u32 v{4 + k}, {k * (8 * 2688 - 1024)}, v4", f"v_add_u32 v{8 + k}, {k * (8 * 3584 - 1024)}, v8")
    a(f"s_mul_i32 s27, s58, {FLG_RT}", f"s_add_u32 s27, s27, {OFF_FLG}", "s_lshl_b32 s62, s49, 8",
      "s_add_u32 s62, s62, s27", f"s_add_u32 s63, s62, {32 * 128}", "s_lshl_b32 s64, s57, 8", "s_add_u32 s64, s64, s27",
      f"s_add_u32 s64, s64, {64 * 128}")
    a(f"s_mul_i32 s66, s26, {56 * 2688}", f"s_mul_i32 s67, s26, {56 * 3584}", "s_mul_i32 s68, s26, 7168",
      "v_lshlrev_b32 v13, 4, v1", "v_lshlrev_b32 v14, 3, v1")
    a(f"s_mul_i32 s76, s58, {RT}", f"s_mul_i32 s77, s58, {ACT_RT}", f"s_add_u32 s77, s77, {OFF_ACT}",
      f"s_add_u32 s78, s76, {OFF_V}",
      "s_lshl_b32 s72, s49, 12", f"s_add_u32 s27, s72, {OFF_K - 7 * 4096}", "s_cmp_ge_u32 s49, 7",
      "s_cselect_b32 s72, s27, s72", "s_add_u32 s72, s72, s76",
      "s_sub_u32 s27, s49, 14", "s_lshl_b32 s27, s27, 10", "s_add_u32 s27, s27, s78",
      "s_cmp_ge_u32 s49, 14", "s_cselect_b32 s72, s27, s72",
      "s_add_u32 s27, s49, 2", "s_lshl_b32 s27, s27, 10", "s_add_u32 s27, s27, s78",
      "s_lshl_b32 s73, s60, 12", "s_add_u32 s73, s73, s77", "s_cmp_lt_u32 s49, 5", "s_cselect_b32 s73, s27, s73",
      "s_lshl_b32 s74, s61, 12", "s_add_u32 s74, s74, s77",
      "v_mul_u32_u24 v15, 448, v3", "v_lshl_add_u32 v15, v2, 4, v15", "s_movk_i32 s79, 1344",
      "s_lshl_b32 s27, s26, 13", "v_add_u32 v57, s27, v12", "v_add_u32 v56, 4096, v57", "v_mov_b32 v59, 0")
    gemm_setup(a)

    def dma(ffn, src, slot):
        vb, pitch, w, wo = (8, 3584, SW1, 67) if ffn else (4, 2688, SWQ, 66)
        o = [f"s_add_u32 m0, s68, {slot}", f"s_add_u32 s27, {src}, s{wo}"]
        o += [f"buffer_load_dwordx4 v{vb + k}, {sr(w, 4)}, s27 offen offset:{k * 1024} lds" for k in range(4)]
        o += ["s_add_u32 m0, m0, 4096", f"s_add_u32 s27, s27, {32 * pitch}"]
        o += [f"buffer_load_dwordx4 v{vb + k}, {sr(w, 4)}, s27 offen offset:{k * 1024} lds" for k in range(3)]
        return o

    def dma2(tag, slot, half):
        a("s_cmp_lt_u32 s49, 5", f"s_cbranch_scc0 {tag}F", f"s_add_u32 s83, s71, {half * 224 * 2688}",
          *dma(False, "s83", slot), f"s_branch {tag}D")
        a.label(tag + "F")
        a(f"s_add_u32 s83, s71, {half * 224 * 3584}", *dma(True, "s83", slot))
        a.label(tag + "D")

    a("s_lshl_b32 s69, s59, 7", f"s_add_u32 s70, s69, {224 * 2688}", "s_lshl_b32 s71, s60, 7", "s_waitcnt lgkmcnt(0)")
    if "st0early" in EXP:
        a(*dma(False, "s69", L_S0))
    stamp(a, 2)
    a("s_barrier")
    stamp(a, 3)
    if "st0early" not in EXP:
        a(*dma(False, "s69", L_S0))
    a(*dma(False, "s70", L_S1))
    dma2("X_D2", L_S2, 0)
    a(f"buffer_load_dword v58, v59, {sr(SC, 4)}, 0 offen sc1", "s_waitcnt vmcnt(15)")
    stamp(a, 4)
    a("s_barrier")
    c0, c1 = GC0, GC1
    a("s_lshl_b32 s27, s26, 8", f"s_add_u32 s27, s27, {L_STAT}", "v_lshl_add_u32 v16, v2, 2, s27",
      "v_lshl_add_u32 v17, v3, 4, s27", "ds_read_b32 v40, v16", "ds_read_b32 v41, v16 offset:128",
      f"v_mov_b32 v18, {L_CNT + 64}")
    a("s_waitcnt vmcnt(8)", "s_barrier")
    dma2("X_D3", L_S3, 1)
    a("v_mov_b32 v7, v17")
    XR = 80
    if "noxres" in EXP:
        a("s_mov_b32 s6, 0")
    a(f"buffer_load_dwordx4 {vr(XR, 4)}, v44, {sr(GX, 4)}, s15 offen",
      f"buffer_load_dwordx4 {vr(XR + 4, 4)}, v44, {sr(GX, 4)}, s15 offen offset:32",
      f"buffer_load_dwordx4 {vr(XR + 8, 4)}, v39, {sr(SD, 4)}, s101 offen",
      f"buffer_load_dwordx4 {vr(XR + 12, 4)}, v39, {sr(SD, 4)}, s101 offen offset:32")
    a("s_cmp_lt_u32 s49, 7", f"s_cselect_b32 s27, {f32(28 ** -0.5 * 1.4426950408889634)}, 1.0",
      "s_waitcnt lgkmcnt(0)",
      f"v_mul_f32 v42, {f32(c0)}, v40", "v_mul_f32 v43, v40, v40", "v_mul_f32 v43, v43, v40",
      f"v_mul_f32 v43, {f32(c1)}, v43", "v_mul_f32 v40, s27, v40")
    pos = [0]

    def take(p):
        n = PSCHED[p + 1]
        ks = PORDER[pos[0]:pos[0] + n]
        pos[0] += n
        return [x for k in ks for x in (park_w(k)[:2], park_w(k)[2:])]

    np_ = lambda p: 2 * PSCHED[p + 1]
    for x in take(-1):
        a(*x)
    epoch_wait(a, "X_EP", 59, 58, 11 + np_(-1))
    a("ds_write_b32 v18, v58", "s_lshl_b32 s82, s61, 7", "s_waitcnt lgkmcnt(0)")

    ACX = (AC, 128)

    def reads(u):
        return [f"ds_read2st64_b32 {vr(ACX[u & 1] + 2 * q, 2)}, v{56 + (u & 1)} offset0:{2 * q} offset1:{2 * q + 1}"
                for q in range(8)]

    def head(u):
        o = ["s_barrier"]
        if STAMP and "ks" not in EXP:
            o += ["s_memtime s[98:99]", "s_waitcnt lgkmcnt(0)", f"v_writelane_b32 v63, s98, {16 + 4 * u}"]
        return o + reads(u)

    def ffn(u, weave, mid, nxt):
        blocks = []
        for g in range(4):
            t = [T + 4 * (g & 1) + k for k in range(4)]
            s = [ACX[u & 1] + 4 * g + k for k in range(4)]
            blocks += [[f"s_waitcnt lgkmcnt({6 - 2 * g})"] + [f"v_mul_f32 v{t[k]}, v{s[k]}, v{s[k]}" for k in range(4)],
                       [f"v_fma_f32 v{t[k]}, v{t[k]}, v43, v42" for k in range(4)]
                       + [f"v_mul_f32 v{t[k]}, v{s[k]}, v{t[k]}" for k in range(4)],
                       [f"v_exp_f32 v{t[k]}, v{t[k]}" for k in range(4)],
                       [f"v_fma_f32 v{t[k]}, v{t[k]}, v41, v41" for k in range(4)]
                       + [f"v_rcp_f32 v{t[k]}, v{t[k]}" for k in range(2)],
                       [f"v_rcp_f32 v{t[k]}, v{t[k]}" for k in range(2, 4)]
                       + [f"v_mul_f32 v{t[k]}, v{s[k]}, v{t[k]}" for k in range(4)]
                       + [f"v_cvt_pk_bf16_f32 v{P + 2 * g}, v{t[0]}, v{t[1]}",
                          f"v_cvt_pk_bf16_f32 v{P + 2 * g + 1}, v{t[2]}, v{t[3]}"]]
        at = {}
        for i in range(0, len(weave), 2):
            b = 9 + i * 9 // len(weave)
            at.setdefault(b, []).append(weave[i])
            at.setdefault(b + 1, []).insert(0, weave[i + 1])
        n = 0
        for b, blk in enumerate(blocks):
            if b == BAR and nxt:
                a("s_waitcnt lgkmcnt(0)", *nxt(n))
            a(*[x for x in blk if not (nxt and b >= BAR and x.startswith("s_waitcnt"))])
            if b == 9:
                m = mid(n)
                a(*m)
                n += sum(x.startswith("buffer_load") for x in m)
            if b in (9, 19):
                a(f"buffer_store_dwordx4 {vr(P + 4 * (b // 10), 4)}, v13, {sr(SWS, 4)}, s72 offen offset:{(b // 10) * 1024} sc1")
            for w in at.get(b, []):
                a(*w)
                n += 1
        a("s_add_u32 s72, s72, 2048")

    def qkv(u):
        a(f"s_bitcmp1_b32 s54, {2 * u}", f"s_cbranch_scc1 X_B{u}", f"s_call_b64 s[90:91], X_QK{u & 1}", f"s_branch X_C{u}")
        a.label(f"X_B{u}")
        a(f"s_call_b64 s[90:91], X_V{u & 1}")
        a.label(f"X_C{u}")
        jitter(a)

    def extra(tag, slot, setup):
        return ["s_cmp_eq_u32 s50, 7", f"s_cbranch_scc0 {tag}", setup, *dma(True, "s82", slot), tag + ":"]

    a(*head(0))
    qkv(0)
    a(*dma(True, "s82", L_S0))
    for x in take(0):
        a(*x)
    a(f"s_waitcnt vmcnt({4 + np_(-1) + 7 + np_(0)})")
    a(*head(1))
    qkv(1)
    a("s_mov_b32 s72, s73", f"s_add_u32 s82, s82, {224 * 3584}", *dma(True, "s82", L_S1))
    for x in take(1):
        a(*x)
    a(f"s_waitcnt vmcnt({np_(0) + 7 + np_(1)})")
    a(*head(2))
    w2, w3 = take(2), take(3)
    pub01 = ["s_waitcnt vmcnt(0)", *publish(62), *publish(62, 128)]
    a("s_bitcmp1_b32 s54, 4", "s_cbranch_scc0 X_R1F")
    a(*pub01, "s_call_b64 s[90:91], X_V0")
    for x in w2:
        a(*x)
    a(*head(3), "s_waitcnt vmcnt(0)", *publish(63), "s_call_b64 s[90:91], X_V1")
    for x in w3:
        a(*x)
    a(*head(4), "s_waitcnt vmcnt(0)", *publish(63, 128), "s_branch X_R2")
    a.label("X_R1F")
    jitter(a)
    d6 = ["s_cmp_eq_u32 s50, 7", "s_cbranch_scc0 X_N6", f"v_mul_u32_u24 v60, {224 * 3584 - 64}, v3",
          *[f"v_add_u32 v{8 + k}, v60, v{8 + k}" for k in range(4)], "s_lshl_b32 s82, s51, 6",
          f"s_add_u32 s82, s82, {27 * 128}", *dma(True, "s82", L_S2), "X_N6:"]
    ffn(2, w2, lambda n: pub01 + d6, lambda n: head(3))
    ffn(3, w3, lambda n: ["s_waitcnt vmcnt(0)", *publish(63)], lambda n: head(4))
    a.label("X_R2")
    jitter(a)
    a("s_mov_b32 s72, s74")
    kreq = ["s_mov_b64 exec, 0xf",
            f"buffer_load_dword v62, v36, {sr(SWS, 4)}, 0 offen sc1", "s_mov_b64 exec, -1"]
    ffn(4, [], lambda n: [f"s_setprio {XPRIO}", "s_waitcnt vmcnt(0)", *publish(63, 128), *kreq], None)
    a("s_cmp_eq_u32 s50, 7", "s_cbranch_scc0 X_DONE", *head(5))
    ffn(5, [], lambda n: ["s_waitcnt vmcnt(0)", *publish(64)], None)
    a("s_branch X_DONE")
    for par in range(2):
        A_ = ACX[par]
        a.label(f"X_QK{par}")
        for g in range(4):
            a(f"s_waitcnt lgkmcnt({6 - 2 * g})")
            for k in range(4):
                a(f"v_mul_f32 v{T + 4 * g + k}, v40, v{A_ + 4 * g + k}")
            a(f"v_cvt_pk_bf16_f32 v{P + 2 * g}, v{T + 4 * g}, v{T + 4 * g + 1}",
              f"v_cvt_pk_bf16_f32 v{P + 2 * g + 1}, v{T + 4 * g + 2}, v{T + 4 * g + 3}",
              f"buffer_store_dwordx2 {vr(P + 2 * g, 2)}, v14, {sr(SWS, 4)}, s72 offen offset:{g * 512} sc1")
        a("s_add_u32 s72, s72, 2048", "s_setpc_b64 s[90:91]")
        a.label(f"X_V{par}")
        for g in range(4):
            a(f"ds_read_b128 {vr(T + 4 * g, 4)}, v7 offset:{g * 32}")
        a("s_sub_u32 s27, s72, s78", "s_lshr_b32 s27, s27, 4", "v_add_u32 v60, s27, v2",
          "v_mul_u32_u24 v60, 2341, v60", "v_lshrrev_b32 v60, 16, v60", "v_mad_u32_u24 v60, v60, s79, v15")
        for s in range(2):
            a(f"s_waitcnt lgkmcnt({2 - 2 * s})")
            for k in range(8):
                a(f"v_mul_f32 v{T + 8 * s + k}, v{T + 8 * s + k}, v{A_ + 8 * s + k}")
            for k in range(4):
                a(f"v_cvt_pk_bf16_f32 v{P + 4 * s + k}, v{T + 8 * s + 2 * k}, v{T + 8 * s + 2 * k + 1}")
            a(f"buffer_store_dwordx4 {vr(P + 4 * s, 4)}, v60, {sr(SWS, 4)}, s72 offen offset:{s * 896} sc1")
        a("s_add_u32 s72, s72, 512", "s_setpc_b64 s[90:91]")
    a.label("X_DONE")
    stamp(a, 5)


def gemm_setup(a):
    srd(a, SD, P_B2, 896)
    srd(a, SC, P_DBG, 256)
    a(f"s_mov_b32 s{GX + 2}, {X_BYTES}", f"s_mov_b32 s{GX + 3}, 0x20000",
      "s_lshl_b32 s88, s52, 2", "s_and_b32 s27, s53, 3", "s_add_u32 s88, s88, s27", "s_lshr_b32 s89, s53, 2",
      "s_and_b32 s90, s26, 1", "s_lshr_b32 s91, s26, 1", "s_lshl_b32 s27, s88, 1",
      "s_add_u32 s44, s27, s90", "s_xor_b32 s45, s44, 1", "s_lshl_b32 s89, s89, 7",
      "s_lshl_b32 s101, s91, 6", "s_add_u32 s101, s101, s89", f"s_mul_i32 s15, s44, {RT}", "s_add_u32 s15, s15, s101",
      "v_lshlrev_b32 v39, 4, v3", "v_mul_u32_u24 v44, 896, v2", "v_add_u32 v44, v44, v39",
      f"s_mov_b32 s{GWO + 2}, {WO_BYTES}", f"s_mov_b32 s{GWO + 3}, 0x20000",
      f"s_mov_b32 s{GW2 + 2}, {W2_BYTES}", f"s_mov_b32 s{GW2 + 3}, 0x20000",
      f"s_mov_b32 s{GOUT + 2}, {X_BYTES}", f"s_mov_b32 s{GOUT + 3}, 0x20000")
    a("v_bfe_u32 v46, v1, 2, 2", "v_bfe_u32 v47, v1, 4, 1", "v_lshl_add_u32 v46, v47, 3, v46",
      "v_mul_u32_u24 v32, 896, v46", "v_lshl_add_u32 v32, v3, 6, v32", "v_and_b32 v46, 3, v1",
      "v_lshl_add_u32 v32, v46, 4, v32", f"v_add_u32 v33, {4 * 896 - 1024}, v32")
    a(f"s_mul_i32 s88, s88, {2 * FLG_RT}", f"s_add_u32 s88, s88, {OFF_FLG}",
      f"v_mov_b32 v46, {KT & 0xffffffff}", f"v_mov_b32 v47, {KT >> 32}", "v_and_b32 v45, 30, v1",
      "v_lshlrev_b32 v45, 1, v45", "v_lshrrev_b64 v[46:47], v45, v[46:47]", "v_bfe_u32 v47, v46, 1, 3",
      "v_and_b32 v46, 1, v46", "v_lshl_add_u32 v47, v47, 3, v46",
      "v_and_b32 v46, 1, v1", f"v_mul_u32_u24 v46, {FLG_N}, v46",
      "s_lshl_b32 s27, s26, 1", "s_add_u32 s27, s27, 42", "v_add3_u32 v47, v47, v46, s27",
      "v_lshlrev_b32 v47, 7, v47", "v_add_u32 v36, s88, v47",
      "v_bfe_u32 v47, v1, 1, 2", "v_add_u32 v46, v46, v47",
      "s_lshl_b32 s27, s26, 2", "s_add_u32 s27, s27, 98", "v_add_u32 v46, s27, v46", "v_lshlrev_b32 v46, 7, v46",
      "v_add_u32 v37, s88, v46")
    a(f"s_mul_i32 s12, s26, {64 * 896}", "s_add_u32 s12, s12, s89",
      f"s_mul_i32 s13, s26, {112 * 896}", "s_add_u32 s13, s13, s89",
      "s_lshl_b32 s65, s26, 13", f"s_add_u32 s14, s65, {L_RING}",
      f"s_mul_i32 s44, s44, {ACT_RT}", f"s_mul_i32 s45, s45, {ACT_RT}",
      "s_lshl_b32 s27, s26, 13", f"s_add_u32 s27, s27, {OFF_ACT + 112 * 1024}",
      "s_add_u32 s46, s44, s27", "s_add_u32 s100, s45, s27",
      "s_lshl_b32 s27, s26, 12", f"s_add_u32 s27, s27, {OFF_ACT}", "s_add_u32 s44, s44, s27", "s_add_u32 s45, s45, s27")
    a("v_and_b32 v46, 1, v1", "v_bfe_u32 v47, v1, 1, 1", "v_lshl_add_u32 v46, v46, 1, v47",
      "v_bfe_u32 v47, v1, 4, 1", "v_lshl_add_u32 v46, v47, 2, v46",
      "v_bfe_u32 v47, v1, 2, 2", "v_lshlrev_b32 v47, 6, v47", "v_lshl_add_u32 v46, v46, 3, v47",
      "v_lshl_add_u32 v46, v3, 10, v46", "s_lshl_b32 s27, s91, 9", "s_add_u32 s27, s27, s14",
      "v_add_u32 v34, s27, v46", "v_xor_b32 v35, 512, v34")
    a("v_add_u32 v38, s14, v13")
    for t in range(1, 4):
        a(f"s_xor_b32 s27, s26, {t}", "s_lshl_b32 s27, s27, 13", f"s_add_u32 s27, s27, {L_RING}",
          f"v_add_u32 v{44 + t}, s27, v13")


def gemm_res(a):
    XR, RES, TM = 80, 64, 16
    for k in range(8):
        a(f"v_lshlrev_b32 v{RES + 2 * k}, 16, v{XR + k}", f"v_and_b32 v{RES + 2 * k + 1}, 0xffff0000, v{XR + k}",
          f"v_lshlrev_b32 v{TM + 2 * k}, 16, v{XR + 8 + k}", f"v_and_b32 v{TM + 1 + 2 * k}, 0xffff0000, v{XR + 8 + k}")
    for i in range(16):
        a(f"v_add_f32 v{XR + i}, v{RES + i}, v{TM + i}")


def gen_gemm(a):
    R, RW = G_R, G_RW
    AC, OR, XR = 64, 192, 16
    WFR = (4, 48)
    NK = 36
    ACS = (80, 64, 96, 112)
    pub = publish(64)
    a("s_cmp_lt_u32 s53, 28", "s_cbranch_scc1 G_GO", "s_waitcnt vmcnt(0)", *publish(64, 128))
    stamp_out(a)
    a("s_endpgm")
    a.label("G_GO")
    jitter(a)

    def req(v, nl, dst=60):
        return [f"s_mov_b64 exec, {(1 << nl) - 1}", f"buffer_load_dword v{dst}, v{v}, {sr(SWS, 4)}, 0 offen sc1",
                "s_mov_b64 exec, -1"]

    def chk(mask, target, src=60):
        return [f"v_cmp_ne_u32 s[88:89], s47, v{src}", "s_nop 0", f"s_and_b32 s88, s88, {mask}", f"s_cbranch_scc0 {target}"]

    def issue_w(k):
        return park_w(k) if PK0 <= k < PK1 else dma_w(k)

    def dump(k):
        up, off = slot(k)
        va = 38 if up else 43
        return [f"ds_write_b128 v{va}, {vr(preg(k), 4)} offset:{off}",
                f"ds_write_b128 v{va}, {vr(preg(k) + 4, 4)} offset:{off + 1024}"]

    def wread(k):
        w = WFR[k & 1]
        up, off = slot(k)
        va = 34 if up else 40
        return [f"ds_read_b64_tr_b16 {vr(w, 2)}, v{va} offset:{off}",
                f"ds_read_b64_tr_b16 {vr(w + 2, 2)}, v{va} offset:{off + 256}",
                f"ds_read_b64_tr_b16 {vr(w + 4, 2)}, v{va + 1} offset:{off}",
                f"ds_read_b64_tr_b16 {vr(w + 6, 2)}, v{va + 1} offset:{off + 256}"]

    q = []

    def emit_w(k):
        nonlocal q
        a(*issue_w(k))
        q += [("w", k)] * 2

    def upto(tags):
        nonlocal q
        need = [i for i, kk in enumerate(q) if kk in tags]
        q = q[max(need) + 1:] if need else q
        assert len(q) <= 63
        return f"s_waitcnt vmcnt({len(q)})"

    left = PORDER[sum(PSCHED):]
    a("v_add_u32 v43, s65, v13", f"v_mov_b32 v42, {L_CNT + 8}",
      f"v_subrev_u32 v40, {L_RING}, v34", f"v_subrev_u32 v41, {L_RING}, v35")
    assert sum(PSCHED) >= NPA + 2
    gemm_res(a)
    for k in range(min(NPA, 8)):
        a(*dump(k))
        if k == PUBD:
            a("s_waitcnt vmcnt(0)", *pub, "s_setprio 0")
            stamp(a, 7)
            a(*chk(0xf, "G_OK0", 62))
            poll(a, "G_P0", 36, NA1, 61)
            a.label("G_OK0")
            for kk in range(NA1):
                a(*issue_a(kk))
                q += [("a", kk)] * 2
    lds_wait(a, "G_LW", 42, 56)
    for k in range(8, NPA):
        a(*dump(k))
    for k in range(NPA, 8):
        emit_w(k)
    while left and left[0] < PK0 + 2:
        emit_w(left.pop(0))
    stamp(a, 6)
    a(*wread(0))
    if -1 in {v[0] for v in HCHK.values()}:
        a(*req(36, 28))
        q += ["b"]
    pend = [("w", k) for k in left + list(range(max(8, NPA), RW))]
    anext = NA1
    alim = NA1
    onext = 0

    def split(ops):
        out, cur = [], []
        for o in ops:
            if o == "s_mov_b64 exec, -1":
                out[-1].append(o)
                continue
            cur.append(o)
            if o.startswith("buffer_") or o.startswith("ds_"):
                out.append(cur)
                cur = []
        assert not cur
        return out

    def issue_o1(kk):
        o = ["s_add_u32 s46, s46, 4096", "s_add_u32 s100, s100, 4096"] if kk == 4 else []
        return o + [f"buffer_load_dwordx4 {vr(OR + 8 * kk, 4)}, v13, {sr(SWS, 4)}, s46 offen offset:{(kk & 3) * 1024} sc1",
                    f"buffer_load_dwordx4 {vr(OR + 8 * kk + 4, 4)}, v13, {sr(SWS, 4)}, s100 offen offset:{(kk & 3) * 1024} sc1"]

    for k in range(NK):
        if k in HCHK:
            nl = HCHK[k][1]
            a(upto({"b"}), *chk((1 << nl) - 1, f"G_HK{k}"))
            poll(a, f"G_HP{k}", 36, nl)
            a.label(f"G_HK{k}")
            if k == min(HCHK):
                stamp(a, 8)
            alim = nl
            while anext < min(alim, k + BURST):
                a(*issue_a(anext))
                q += [("a", anext)] * 2
                anext += 1
        if k == OCHK[1]:
            assert k > PK1 - RW
            a(upto({"p"}), *chk(0xff, "G_OKO", 61))
            poll(a, "G_PO", 37, 8, 61)
            a.label("G_OKO")
            stamp(a, 10)
        kd = k + RW
        tags = {("a", k), ("w", k + 1)}
        if PK0 <= kd < PK1:
            tags |= {("w", kd)}
        assert not any(t in pend for t in tags)
        n0 = len(q)
        wt = upto(tags)
        if len(q) != n0:
            a(wt)
        if STAMP and "ks" in EXP:
            if k:
                a(f"v_writelane_b32 v63, s96, {27 + k}")
            a("s_memtime s[96:97]")
        elif k in (12, 28):
            stamp(a, {12: 9, 28: 11}[k])
        w = WFR[k & 1]
        r = areg(k) if k < 28 else OR + 8 * (k - 28)
        c = (lambda t: ACS[0] if t == 0 else "0") if k == 0 else (lambda t: ACS[t])
        vm = []
        if k == OCHK[0]:
            vm += req(37, 8, 61)
            q += ["p"]
        if k in {v[0] for v in HCHK.values()}:
            vm += req(36, 28)
            q += ["b"]
        budget = AMAX
        while anext < min(alim, k + R) and budget:
            vm += issue_a(anext)
            q += [("a", anext)] * 2
            anext += 1
            budget -= 1
        if k >= OCHK[1]:
            budget += 1
        while k >= OCHK[1] and onext < 8 and budget:
            vm += issue_o1(onext)
            q += [("a", 28 + onext)] * 2
            onext += 1
            budget -= 1
        kp = kd + 7
        if k >= 1 and kp < PK1:
            pend.append(("w", kp))
        if PK1 <= kd < NK:
            pend.append(("w", kd))
        for _ in range(2 if budget == AMAX else 1):
            if pend:
                t = pend.pop(0)
                vm += issue_w(t[1])
                q += [t] * 2
        pieces = split(vm)
        dm = split(dump(kd)) if PK0 <= kd < PK1 else []
        rd = wread(k + 1) if k < NK - 1 else []
        mm = [mfma(ACS[0], w, r, c(0)), mfma(ACS[1], w, r + 4, c(1)), mfma(ACS[2], w + 4, r, c(2)),
              mfma(ACS[3], w + 4, r + 4, c(3))]
        pieces = dm + pieces
        per = (len(pieces) + 2) // 3
        a("s_waitcnt lgkmcnt(0)", mm[0], *rd)
        for t in range(1, 4):
            a(mm[t])
            for p in pieces[(t - 1) * per:t * per]:
                a(*p)
    assert onext == 8 and not pend
    assert anext == 28
    stamp(a, 12)
    jitter(a)
    RO = (0, 0, 4096, L_S0 - L_RING)
    a("s_nop 7", "s_nop 1")
    for t in range(1, 4):
        for qq in range(4):
            a(f"ds_write_b128 v38, {vr(ACS[t] + 4 * qq, 4)} offset:{RO[t] + qq * 1024}")
    a("s_waitcnt lgkmcnt(0)", "s_barrier")
    stamp(a, 13)
    for t in range(1, 4):
        for qq in range(4):
            a(f"ds_read_b128 {vr(ACS[t] + 4 * qq, 4)}, v{44 + t} offset:{RO[t] + qq * 1024}")
    for t in (1, 2):
        a(f"s_waitcnt lgkmcnt({12 - 4 * t})")
        for i in range(16):
            a(f"v_add_f32 v{ACS[0] + i}, v{ACS[0] + i}, v{ACS[t] + i}")
    for h in range(2):
        a(f"s_waitcnt lgkmcnt({2 - 2 * h})")
        for i in range(8 * h, 8 * h + 8):
            a(f"v_add_f32 v{ACS[0] + i}, v{ACS[0] + i}, v{ACS[3] + i}")
        for k in range(4 * h, 4 * h + 4):
            a(f"v_cvt_pk_bf16_f32 v{XR + k}, v{ACS[0] + 2 * k}, v{ACS[0] + 2 * k + 1}")
        a(f"buffer_store_dwordx4 {vr(XR + 4 * h, 4)}, v44, {sr(GOUT, 4)}, s15 offen offset:{32 * h} {os.environ.get('OUTF', '')}")
    stamp_out(a)


def post(t):
    lines = t.split("\n")
    g = next(i for i, l in enumerate(lines) if l.startswith("G_GO"))
    o = lines[:g]
    for l in lines[g:]:
        if "plainact" in EXP and "buffer_load_dwordx4 v[" in l:
            l = l.replace(" sc1", "")
        if "gnomfma" in EXP and "v_mfma" in l:
            continue
        if "gnoa" in EXP and "buffer_load_dwordx4 v[" in l:
            l = l.replace("v13,", "v59,")
        if "gnow" in EXP and " lds" in l:
            l = l.replace("v32,", "v59,").replace("v33,", "v59,")
        o.append(l)
    return "\n".join(o)


def main(out):
    a = Asm()
    a.raw(f"; @launch grid=(256,1,1) block=(512,1,1) lds={LDS_BYTES}")
    a.raw('.amdgcn_target "amdgcn-amd-amdhsa--gfx950"')
    a.raw(".text")
    name = gen(a)
    a.raw('.section .rodata,"a"')
    a.raw(".p2align 6")
    a.raw(f".amdhsa_kernel {name}")
    a.raw("  .amdhsa_next_free_vgpr 256")
    a.raw("  .amdhsa_next_free_sgpr 102")
    a.raw("  .amdhsa_accum_offset 256")
    a.raw("  .amdhsa_group_segment_fixed_size 0")
    a.raw("  .amdhsa_kernarg_size 88")
    a.raw("  .amdhsa_user_sgpr_count 2")
    a.raw("  .amdhsa_user_sgpr_kernarg_segment_ptr 1")
    a.raw("  .amdhsa_system_sgpr_workgroup_id_x 1")
    a.raw(".end_amdhsa_kernel")
    open(out, "w").write(post(a.text()))


if __name__ == "__main__":
    if "--stamp" in sys.argv:
        sys.argv.remove("--stamp")
        STAMP = True
    if "--dbg" in sys.argv:
        sys.argv.remove("--dbg")
        DBG = True
    main(sys.argv[1] if len(sys.argv) > 1 else f"cdna_kernels/{NAME}.s")
```

```python
import os
import struct
import sys

EXP = set(os.environ.get('EXP', '').split(','))

NAME = "parallel_sum__sliding_block__dense_activation_gelu__prompt"

RT = 28672
OFF_Q = 0
OFF_K = 64 * RT
OFF_V = 2 * 64 * RT
OFF_ACT = 3 * 64 * RT
ACT_RT = 144 * 1024
OFF_FLG = OFF_ACT + 64 * ACT_RT
FLG_N = 114
FLG_RT = FLG_N * 128
OFF_EPOCH = OFF_FLG + 64 * FLG_RT
WS_BYTES = OFF_EPOCH + 128
NATIVE_K = True

X_BYTES = 2048 * 896
WQKV_BYTES = 448 * 2688
W1_BYTES = 448 * 3584
W2_BYTES = 1792 * 896
WO_BYTES = 448 * 896

SLOT = 28672
L_S2 = 32768
L_S3 = L_S2 + SLOT
L_S1 = L_S3 + SLOT
L_S0 = L_S1 + SLOT
L_BIAS = 159744
L_STAT = L_BIAS + 768
L_CNT = L_STAT + 1024
L_ATT = L_S2
L_RING = L_ATT + 49152
LDS_BYTES = 163840
SPIN_MAX = 1 << 16

STAMP = False
OFF_STAMP = 32 << 20


def f32(x):
    return "0x%08x" % struct.unpack("<I", struct.pack("<f", x))[0]


class Asm:
    def __init__(self):
        self.o = []

    def __call__(self, *lines):
        for s in lines:
            self.o.append("    " + s)

    def label(self, s):
        self.o.append(s + ":")

    def raw(self, s):
        self.o.append(s)

    def text(self):
        return "\n".join(self.o) + "\n"


def vr(b, n):
    return f"v[{b}:{b + n - 1}]"


def sr(b, n):
    return f"s[{b}:{b + n - 1}]"


def mfma(d, a, b, c):
    cs = c if isinstance(c, str) else vr(c, 16)
    return f"v_mfma_f32_32x32x16_bf16 {vr(d, 16)}, {vr(a, 4)}, {vr(b, 4)}, {cs}"


def srd(a, d, lo, nbytes):
    a(f"s_mov_b32 s{d}, s{lo}", f"s_mov_b32 s{d + 1}, s{lo + 1}",
      f"s_mov_b32 s{d + 2}, {nbytes}", f"s_mov_b32 s{d + 3}, 0x20000")


DBG = False
LST = (0,)
ROLE = ["main"]
DBG_MAP = {"main": {0: 2, 3: 3, 5: 4, 6: 5, 9: 6, 15: 7}, "aux": {5: 8, 6: 9, 8: 10, 11: 11, 15: 12}}


HOLD = int(os.environ.get("HOLD", "-99"))


def stamp(a, i, rt=False):
    if i == HOLD and ROLE[0] == "aux":
        a("s_memrealtime s[96:97]")
    if DBG:
        w = DBG_MAP[ROLE[0]].get(i)
        if w is not None:
            a("s_memrealtime s[98:99]", "s_waitcnt lgkmcnt(0)", f"v_writelane_b32 v63, s98, {w}")
            inv = {2: 1, 4: 13, 5: 14, 12: 15}.get(w)
            if inv:
                a("s_not_b32 s98, s98", f"v_writelane_b32 v63, s98, {inv}")
        return
    if not STAMP or i > 15:
        return
    a(f"s_mem{'real' if rt else ''}time s[98:99]", "s_waitcnt lgkmcnt(0)",
      f"v_writelane_b32 v63, s98, {i}")


def lstamp(a, ureg, k):
    if not STAMP or k not in LST or "ks" in EXP:
        return
    a("s_memtime s[98:99]", f"s_lshl_b32 s97, {ureg}, 2", f"s_add_u32 m0, s97, {16 + k}", "s_waitcnt lgkmcnt(0)",
      "v_writelane_b32 v63, s98, m0")


def stamp_out(a):
    if DBG:
        stamp(a, 15)
        a("s_load_dwordx2 s[92:93], s[0:1], 72", "s_waitcnt lgkmcnt(0)", "s_mov_b32 s94, 256", "s_mov_b32 s95, 0x20000",
          "s_mov_b64 exec, 0xfffe", "v_lshlrev_b32 v62, 2, v1", "buffer_atomic_umax v63, v62, s[92:95], 0 offen sc1")
        return
    if not STAMP:
        return
    stamp(a, 14)
    stamp(a, 15, rt=True)
    a("s_mov_b32 s92, s24", "s_mov_b32 s93, s25", f"s_mov_b32 s94, {64 << 20}", "s_mov_b32 s95, 0x20000",
      "s_lshl_b32 s96, s2, 3", "s_add_u32 s96, s96, s3", "s_lshl_b32 s96, s96, 8",
      f"s_add_u32 s96, s96, {OFF_STAMP}", "s_mov_b64 exec, -1", "v_lshlrev_b32 v62, 2, v1",
      "buffer_store_dword v63, v62, s[92:95], s96 offen")


P_X, P_WQKV, P_WO, P_W1, P_B1, P_W2, P_B2, P_OUT, P_DBG, P_WS = 4, 6, 8, 12, 14, 16, 18, 20, 22, 24
SWS, SA, SB, SC, SD = 28, 32, 36, 40, 84


def gen(a):
    name = NAME + "_kernel"
    a.raw(f".globl {name}")
    a.raw(".p2align 8")
    a.raw(f".type {name},@function")
    a.label(name)
    if HOLD == -1:
        a("s_memrealtime s[96:97]")
    a("s_cmp_ge_u32 s2, 256", "s_cbranch_scc1 L_END")
    a("s_load_dwordx16 s[4:19], s[0:1], 0", "s_load_dwordx4 s[20:23], s[0:1], 64",
      "s_load_dwordx2 s[24:25], s[0:1], 80")
    a("v_lshrrev_b32 v2, 6, v0", "v_and_b32 v1, 63, v0", "v_readfirstlane_b32 s3, v2")
    MAP = os.environ.get("MAP", "42")
    if MAP == "81":
        a("s_and_b32 s52, s2, 7", "s_lshr_b32 s53, s2, 3", "s_lshl_b32 s48, s52, 1", "s_and_b32 s27, s53, 1",
          "s_add_u32 s48, s48, s27", "s_lshr_b32 s49, s53, 1", "s_and_b32 s56, s49, 3", "s_and_b32 s55, s48, 7",
          "s_and_b32 s51, s49, 1", "s_cmp_ge_u32 s53, 28", "s_cselect_b32 s50, 7, 6", "s_cselect_b32 s51, s51, 0",
          "s_and_b32 s26, s3, 3")
    elif MAP == "42":
        a("s_and_b32 s52, s2, 7", "s_lshr_b32 s53, s2, 3", "s_lshr_b32 s48, s52, 1", "s_lshl_b32 s48, s48, 2",
          "s_and_b32 s27, s53, 3", "s_add_u32 s48, s48, s27", "s_and_b32 s51, s52, 1", "s_lshl_b32 s49, s51, 3",
          "s_lshr_b32 s27, s53, 2", "s_add_u32 s49, s49, s27", "s_and_b32 s56, s27, 3", "s_and_b32 s55, s48, 7",
          "s_cmp_ge_u32 s53, 28", "s_cselect_b32 s50, 7, 6", "s_cselect_b32 s51, s51, 0", "s_and_b32 s26, s3, 3")
    else:
        a("s_and_b32 s52, s2, 7", "s_lshr_b32 s53, s2, 3",
          "s_lshr_b32 s55, s53, 2", "s_and_b32 s56, s53, 3",
          "s_and_b32 s27, s53, 1", "s_add_u32 s27, s27, 6", "s_bfe_u32 s57, s53, 0x20001",
          "s_cmp_ge_u32 s53, 24", "s_cselect_b32 s55, s27, s55", "s_cselect_b32 s56, s57, s56",
          "s_and_b32 s57, s52, 3", "s_lshl_b32 s27, s57, 1", "s_add_u32 s55, s55, s27", "s_add_u32 s55, s55, 2",
          "s_and_b32 s55, s55, 7", "s_lshr_b32 s48, s52, 2", "s_lshl_b32 s48, s48, 3", "s_add_u32 s48, s48, s55",
          "s_lshl_b32 s49, s57, 2", "s_add_u32 s49, s49, s56",
          "s_and_b32 s51, s56, 1", "s_cmp_ge_u32 s53, 28", "s_cselect_b32 s50, 7, 6", "s_cselect_b32 s51, s51, 0",
          "s_and_b32 s26, s3, 3")
    a("s_cmp_ge_u32 s49, 14", "s_cselect_b32 s54, 5, 0",
      "s_cmp_lt_u32 s49, 5", "s_cselect_b32 s27, 5, 10", "s_lshl_b32 s27, s27, 4", "s_or_b32 s54, s54, s27",
      "s_or_b32 s54, s54, 0xaa00")
    assert MAP == "42"
    a("s_cmp_eq_u32 s49, 7", "s_cselect_b32 s57, 14, s49", "s_cmp_eq_u32 s49, 14", "s_cselect_b32 s57, 7, s57")
    a("s_lshl_b32 s58, s48, 2", "s_add_u32 s58, s58, s26")
    a("v_and_b32 v2, 31, v1", "v_lshrrev_b32 v3, 5, v1")
    if DBG:
        a("v_mov_b32 v63, 0")
    jitter(a)
    a("s_cmp_ge_u32 s3, 4", "s_cbranch_scc1 L_AUX")
    gen_main(a)
    gen_attn(a)
    a.label("L_AUX")
    ROLE[0] = "aux"
    gen_aux(a)
    gen_gemm(a)
    if HOLD != -99:
        a("s_waitcnt vmcnt(0)", "L_HOLD:", "s_sleep 1", "s_memrealtime s[98:99]", "s_waitcnt lgkmcnt(0)",
          "s_sub_u32 s98, s98, s96", "s_cmp_lt_u32 s98, 3000", "s_cbranch_scc1 L_HOLD")
    a.label("L_END")
    a("s_endpgm")
    a.label("L_CODE_END")
    return name


QF = 48
VCHK = 2
MK = 248
APRIO = int(os.environ.get("APRIO", "2"))


def ms(i):
    return sr((list(range(4, 24, 2)) + [40, 42, 44, 92, 94, 100])[i], 2)


def pads(base, tiles, va, vt):
    o = [f"v_mov_b32 v{vt + k}, 0x3f803f80" for k in range(4)]
    o += [f"v_min_u32 v{va}, 2, v1", f"v_lshl_add_u32 v{va}, v{va}, 12, s{base}",
          f"ds_write_b128 v{va}, {vr(vt, 4)} offset:3840", f"v_lshl_add_u32 v{va}, v1, 2, s{base}",
          "s_mov_b32 vcc_lo, 0x55555555", "s_mov_b32 vcc_hi, 0x55555555"]
    for i in range(3):
        o += [f"s_cmp_lt_u32 s{tiles + i}, 0x40000000", "s_cselect_b32 s27, 0, 0xf149", f"v_mov_b32 v{vt + 3}, s27",
              f"v_cndmask_b32 v{vt + i}, 0, v{vt + 3}, vcc", f"ds_write_b32 v{va}, v{vt + i} offset:{1792 + 4096 * i}"]
    return o
PFF = "sc1" if "pfsc1" in EXP else ("nt" if "pfnt" in EXP else "")


def stage_kv(off, lds, vaddr, base, tiles):
    o = []
    for i in range(3):
        o += [f"s_add_u32 m0, s{base}, {i * 4096 + lds}", f"s_add_u32 s27, s{tiles + i}, {off}",
              f"buffer_load_dwordx4 v{vaddr}, {sr(SWS, 4)}, s27 offen sc1 lds", "s_mov_b32 exec_hi, 0xffff",
              f"buffer_load_dwordx4 v{vaddr}, {sr(SWS, 4)}, s27 offen offset:1024 sc1 lds", "s_mov_b32 exec_hi, -1"]
    return o


GC0 = -2.0 * 0.7978845608028654 * 1.4426950408889634
GC1 = GC0 * 0.044715


def gen_main(a):
    X, ACA, ACB, WR, T = 128, 64, 80, 96, 16
    AB, BB = 240, 244
    if "xnorot" in EXP:
        a("s_mov_b32 s56, 0")
    a("v_lshrrev_b32 v8, 3, v1", "v_and_b32 v9, 7, v1", "v_lshrrev_b32 v4, 4, v1",
      "v_xor_b32 v9, v9, v4", "v_mul_u32_u24 v8, 896, v8", "v_lshl_add_u32 v8, v9, 4, v8", "v_xor_b32 v9, 64, v8")
    for k in range(4):
        a(f"s_add_u32 s27, s56, {k}", "s_and_b32 s27, s27, 3", "s_mulk_i32 s27, 7168",
          f"s_add_u32 s27, s27, {4096 - 1024 * k}", f"v_add_u32 v{4 + k}, s27, v{8 + (k & 1)}")
    a(f"s_mul_i32 s59, s58, {RT}", f"s_mul_i32 s60, s3, {SLOT}")
    a("s_waitcnt lgkmcnt(0)")
    stamp(a, 0, rt=True)
    stamp(a, 1)
    a(f"s_sub_u32 s{SA}, s{P_X}, 4096", f"s_subb_u32 s{SA + 1}, s{P_X + 1}, 0",
      f"s_mov_b32 s{SA + 2}, {X_BYTES + 4096}", f"s_mov_b32 s{SA + 3}, 0x20000")
    for g in range(7):
        a(f"s_add_u32 m0, s60, {g * 4096}", f"s_add_u32 s61, s59, {g * 128}",
          f"buffer_load_dwordx4 v4, {sr(SA, 4)}, s61 offen lds")
    pre = []
    pre += ["s_lshl_b32 s27, s56, 3", "v_subrev_u32 v9, s27, v2", "v_and_b32 v9, 31, v9",
            "v_bfe_u32 v8, v9, 1, 3", "v_xor_b32 v8, v8, v3",
            "v_lshlrev_b32 v8, 4, v8", "v_lshl_add_u32 v8, v9, 7, v8", "v_add_u32 v8, s60, v8",
            "v_xor_b32 v9, 32, v8", "v_xor_b32 v10, 64, v8", "v_xor_b32 v11, 96, v8"]
    pre += ["v_bfe_u32 v12, v1, 2, 1", "v_bfe_u32 v13, v1, 3, 1",
            "v_bfe_u32 v14, v1, 1, 1", "v_lshl_add_u32 v13, v13, 1, v14",
            "v_bfe_u32 v14, v1, 4, 1", "v_lshl_add_u32 v13, v14, 2, v13",
            "v_xor_b32 v12, v12, v3", "v_lshl_add_u32 v13, v12, 3, v13",
            "v_and_b32 v14, 1, v1", "v_lshlrev_b32 v14, 4, v14", "v_mov_b32 v15, 0x3f80",
            "v_lshlrev_b32 v14, v14, v15"]
    pre += [f"v_cmp_eq_u32 {sr(64 + 2 * k, 2)}, {k}, v13" for k in range(8)]
    pre += [f"v_cndmask_b32 v{WR + k}, 0, v14, {sr(64 + 2 * k, 2)}" for k in range(8)]
    pre += ["v_and_b32 v13, 3, v1", "v_bfe_u32 v14, v1, 4, 1", "v_lshl_add_u32 v13, v14, 2, v13",
            "v_bfe_u32 v14, v1, 2, 2", "v_lshlrev_b32 v14, 6, v14", "v_lshl_add_u32 v13, v13, 3, v14",
            "v_lshl_add_u32 v12, v3, 10, v13", f"v_add_u32 v12, {L_S2}, v12"]
    pre += ["s_lshl_b32 s70, s52, 1", "s_and_b32 s27, s53, 1", "s_add_u32 s70, s70, s27",
            "s_lshr_b32 s27, s53, 1", "s_lshl_b32 s27, s27, 2", "s_add_u32 s71, s27, s3",
            "s_mul_i32 s73, s3, 3", "s_add_u32 s72, s27, s73", "s_sub_u32 s72, s72, 8",
            "s_lshl_b32 s73, s73, 12", f"s_add_u32 s73, s73, {L_ATT}", "s_mul_i32 s78, s70, 1792",
            f"s_mul_i32 s74, s71, {RT}", "s_add_u32 s74, s74, s78"]
    for i in range(3):
        pre += [f"s_add_u32 s27, s72, {i}", f"s_mul_i32 s{75 + i}, s27, {RT}", f"s_add_u32 s{75 + i}, s{75 + i}, s78",
                "s_cmp_lt_i32 s27, 0", f"s_cselect_b32 s{75 + i}, 0x40000000, s{75 + i}"]
    pre += ["s_mul_i32 s27, s70, 28", "s_lshr_b32 s79, s27, 5", "s_add_u32 s27, s27, 27", "s_lshr_b32 s27, s27, 5",
            "s_sub_u32 s27, s27, s79",
            "v_and_b32 v13, 1, v1", "v_mul_u32_u24 v13, s27, v13", "v_add_u32 v13, s79, v13",
            "v_lshrrev_b32 v14, 1, v1", "v_add_u32 v14, s72, v14", "v_max_i32 v14, 0, v14",
            f"v_mul_u32_u24 v14, {FLG_N}, v14", "v_add_u32 v14, 14, v14", f"s_mul_i32 s27, s71, {FLG_N}",
            "v_cmp_gt_u32 vcc, 6, v1", "v_mov_b32 v15, s27", "v_lshlrev_b32 v59, 3, v1",
            "v_cndmask_b32 v14, v15, v14, vcc", "v_add_u32 v13, v13, v14", "v_lshlrev_b32 v13, 7, v13",
            f"v_add_u32 v57, {OFF_FLG}, v13", f"v_add_u32 v56, {OFF_FLG + 14 * 128}, v13"]
    pre += ["s_sub_u32 s86, s50, 1",
            f"s_mov_b32 s{SWS}, s{P_WS}", f"s_mov_b32 s{SWS + 1}, s{P_WS + 1}", f"s_mov_b32 s{SWS + 2}, {WS_BYTES}",
            f"s_mov_b32 s{SWS + 3}, 0x20000",
            "v_mov_b32 v14, 0", "v_mov_b32 v15, 0", "s_mov_b32 s62, 0x3f803f80", "s_mov_b32 s82, 0"]
    def xgrp(g):
        return [f"s_add_u32 m0, s60, {g * 4096}", f"s_add_u32 s61, s59, {g * 128}"] + \
               [f"buffer_load_dwordx4 v{4 + i}, {sr(SA, 4)}, s61 offen offset:{i * 1024} lds" for i in range(1, 4)]

    XA = next((int(e[2:]) for e in EXP if e.startswith('xa')), 3)
    for g in range(XA):
        a(*xgrp(g))
    a(*pre)
    a("v_lshlrev_b32 v13, 7, v1", f"s_mov_b32 s{SB + 3}, 0x20000", "s_cmp_eq_u32 s3, 0", "s_cbranch_scc0 M_T1",
      "s_sub_u32 s80, s2, 196", "s_cmp_lt_u32 s2, 196", "s_cselect_b32 s80, s2, s80",
      f"s_cselect_b32 s{SB}, s{P_W2}, s{P_WO}", f"s_cselect_b32 s{SB + 1}, s{P_W2 + 1}, s{P_WO + 1}",
      f"s_mov_b32 s{SB + 2}, {WO_BYTES}", f"s_cselect_b32 s{SB + 2}, {W2_BYTES}, s{SB + 2}",
      "s_lshl_b32 s80, s80, 13", "s_branch M_TD")
    a.label("M_T1")
    a("s_cmp_eq_u32 s3, 3", "s_cbranch_scc0 M_T2", "s_cmp_eq_u32 s50, 7", "s_cbranch_scc1 M_T3",
      f"s_getpc_b64 {sr(SB, 2)}")
    a.label("M_PC")
    a(f"s_sub_u32 s{SB}, s{SB}, M_PC-{NAME}_kernel", f"s_subb_u32 s{SB + 1}, s{SB + 1}, 0",
      f"s_mov_b32 s{SB + 2}, L_CODE_END-{NAME}_kernel", "s_and_b32 s80, s53, 3", "s_lshl_b32 s80, s80, 13",
      "s_branch M_TD")
    a.label("M_T2")
    a("s_mul_i32 s27, s55, 56", "v_min_u32 v13, 55, v1", "v_add_u32 v13, s27, v13",
      "s_add_u32 s80, s57, 11", "s_sub_u32 s27, s49, 5", "s_cmp_eq_u32 s3, 1", "s_cselect_b32 s80, s27, s80",
      "s_movk_i32 s81, 3584", f"s_mov_b32 s{SB + 2}, {W1_BYTES}", "s_add_u32 s27, s49, 16", "s_cmp_lt_i32 s80, 0",
      "s_cselect_b32 s80, s27, s80", "s_cselect_b32 s81, 2688, s81",
      f"s_cselect_b32 s{SB}, s{P_WQKV}, s{P_W1}", f"s_cselect_b32 s{SB + 1}, s{P_WQKV + 1}, s{P_W1 + 1}",
      f"s_cselect_b32 s{SB + 2}, {WQKV_BYTES}, s{SB + 2}", "s_lshl_b32 s80, s80, 7", "v_mul_u32_u24 v13, s81, v13")
    a("s_branch M_TD")
    a.label("M_T3")
    a("s_lshl_b32 s27, s52, 2", "s_and_b32 s80, s53, 3", "s_add_u32 s27, s27, s80", "s_mul_i32 s27, s27, 14",
      "v_min_u32 v13, 13, v1", "v_add_u32 v13, s27, v13", "v_mul_u32_u24 v13, 3584, v13",
      f"s_mov_b32 s{SB}, s{P_W1}", f"s_mov_b32 s{SB + 1}, s{P_W1 + 1}", f"s_mov_b32 s{SB + 2}, {W1_BYTES}",
      f"s_movk_i32 s80, {27 * 128}")
    a.label("M_TD")
    a("s_lshl_b32 s27, s57, 1", "s_add_u32 s27, s27, 23", "s_add_u32 s84, s51, 54", "s_cmp_eq_u32 s50, 7",
      "s_cselect_b32 s27, s84, s27", f"s_mul_i32 s85, s58, {FLG_N}", "s_add_u32 s85, s85, s27",
      "s_lshl_b32 s85, s85, 7", f"s_add_u32 s85, s85, {OFF_FLG + 42 * 128}", f"s_mul_i32 s84, s58, {ACT_RT}",
      "s_lshl_b32 s27, s27, 11", "s_add_u32 s84, s84, s27", f"s_add_u32 s84, s84, {OFF_ACT}")
    a("v_lshlrev_b32 v124, 2, v3", "v_sub_u32 v124, v2, v124", "v_mov_b32 v125, 0xffff", "v_mov_b32 v126, 0xffff0000")
    for i in range(16):
        a(f"v_cmp_le_i32 {ms(i)}, {(i & 3) + 8 * (i >> 2)}, v124")
    for k in range(8):
        a(f"v_cndmask_b32 v{MK + k}, 0, v125, {ms(2 * k)}", f"v_cndmask_b32 v127, 0, v126, {ms(2 * k + 1)}",
          f"v_or_b32 v{MK + k}, v{MK + k}, v127")
    a("s_lshl_b32 s27, s3, 12", f"s_add_u32 s27, s27, {L_ATT}", "v_add_u32 v124, s27, v59",
      "v_mul_u32_u24 v126, 448, v3", "v_lshl_add_u32 v125, v2, 4, v126", "v_add_u32 v126, 896, v125",
      "v_cmp_gt_u32 vcc, 28, v2", "v_mov_b32 v127, 1792", "s_add_u32 s27, s27, 2048",
      "v_cndmask_b32 v125, v127, v125, vcc", "v_cndmask_b32 v126, v127, v126, vcc",
      "v_add_u32 v125, s27, v125", "v_add_u32 v126, s27, v126")
    stamp(a, 2)

    def stats(g):
        for r in range(X + 16 * g, X + 16 * g + 16):
            a(f"v_dot2c_f32_bf16 v14, s62, v{r}", f"v_dot2c_f32_bf16 v15, v{r}, v{r}")

    for g in range(7):
        a(f"s_waitcnt vmcnt({3 * (min(7, g + XA) - g - 1)})")
        if g == 0 and "st1" in EXP:
            stamp(a, 2)
        for q in range(4):
            a(f"ds_read_b128 {vr(X + 16 * g + 4 * q, 4)}, v{8 + q} offset:{g * 4096}")
        if g + XA < 7:
            a(*xgrp(g + XA))
        if g:
            a("s_waitcnt lgkmcnt(4)")
            stats(g - 1)
    a("s_waitcnt lgkmcnt(0)")
    stamp(a, 3)
    a("s_barrier")
    stats(6)
    a("s_nop 2", "v_mov_b32 v4, v14", "v_mov_b32 v5, v15", "s_nop 1",
      "v_permlane32_swap_b32 v4, v14", "v_permlane32_swap_b32 v5, v15",
      "v_add_f32 v14, v4, v14", "v_add_f32 v15, v5, v15",
      f"v_mul_f32 v14, {f32(1 / 448)}, v14", f"v_mul_f32 v15, {f32(1 / 448)}, v15",
      "v_cvt_pk_bf16_f32 v4, v14, v14", "v_fma_f32 v15, -v14, v14, v15",
      "v_lshlrev_b32 v4, 16, v4", "v_max_f32 v15, 0, v15", "v_xor_b32 v4, 0x80000000, v4")
    for i in range(16):
        a(f"v_mov_b32 v{T + i}, v4")
    a("s_nop 1")
    t0 = [168, 169, 0, 1, 168, 169, 0, 0]
    t1 = [112, 113, 56, 57, 112, 113, 1, 0]
    pk = lambda b: b[0] | b[1] << 8 | b[2] << 16 | b[3] << 24
    fin = ["v_cvt_pk_bf16_f32 v15, v15, v15", "v_lshlrev_b32 v15, 16, v15", f"v_add_f32 v15, {f32(1e-5)}, v15",
           "v_cvt_pk_bf16_f32 v15, v15, v15", "v_lshlrev_b32 v15, 16, v15", "v_sqrt_f32 v15, v15",
           "s_lshl_b32 s27, s3, 8",
           "v_cvt_pk_bf16_f32 v5, v15, v15", "v_lshlrev_b32 v15, 16, v5", "v_rcp_f32 v14, v15",
           "v_and_b32 v5, 0xffff, v5", "v_cmp_eq_u32 vcc, 0, v3", f"s_add_u32 s27, s27, {L_STAT}",
           "v_lshl_add_u32 v4, v1, 2, s27", "v_cndmask_b32 v6, v15, v14, vcc", f"v_cndmask_b32 v{BB}, 0, v5, vcc",
           "ds_write_b32 v4, v6",
           f"v_mov_b32 v{AB + 1}, 0", f"v_mov_b32 v{AB + 2}, 0", f"v_mov_b32 v{AB + 3}, 0",
           f"v_mov_b32 v{BB + 1}, 0", f"v_mov_b32 v{BB + 2}, 0", f"v_mov_b32 v{BB + 3}, 0",
           "v_lshlrev_b32 v10, 1, v2", f"v_add_u32 v10, {L_BIAS}, v10",
           "s_lshl_b32 s83, s3, 13", f"v_add_u32 v8, {t0[0] * 512}, v12", "s_mov_b32 s68, 0"]
    assert len(fin) == 28
    late = [f"s_mov_b32 s64, {pk(t0[1:5])}", f"s_mov_b32 s65, {pk(t0[5:8] + [0])}",
            f"s_mov_b32 s66, {pk(t1[0:4])}", f"s_mov_b32 s67, {pk(t1[4:8])}",
            "s_mov_b32 s69, s54", f"v_mul_f32 v7, {f32(GC0)}, v14", "v_mul_f32 v6, v14, v14", "v_mul_f32 v6, v6, v14",
            f"v_mul_f32 v6, {f32(GC1)}, v6"]
    CB = (ACA, ACB, 32)

    def cv(p, h):
        d = CB[p % 3]
        return [f"v_cvt_pk_bf16_f32 v{X + 8 * p + k}, v{d + 2 * k}, v{d + 2 * k + 1}" for k in range(4 * h, 4 * h + 4)]

    for p in range(16):
        d = CB[p % 3]
        if p < 14:
            a(mfma(d, WR, X + 8 * p, T))
        a(*(cv(p - 2, 0) if p >= 2 else fin[14 * p:14 * p + 7]))
        if p < 14:
            a(mfma(d, WR + 4, X + 8 * p + 4, d))
        a(*(cv(p - 2, 1) if p >= 2 else fin[14 * p + 7:14 * p + 14]))
        if 2 <= p < 2 + len(late):
            a(late[p - 2])
        if p == 14:
            a("s_nop 1")

    PD = 4

    def ring(j):
        return WR + 4 * (j % 7)

    def rd(j):
        jj = j % 28
        base = "v8" if jj < 14 else "v9"
        r = ring(j)
        return [f"ds_read_b64_tr_b16 {vr(r, 2)}, {base} offset:{(jj % 14) * 2048}",
                f"ds_read_b64_tr_b16 {vr(r + 2, 2)}, {base} offset:{(jj % 14) * 2048 + 256}"]

    accw = [f"ds_write_addtid_b32 v{ACB + k} offset:{k * 256}" for k in range(16)]
    touch = f"buffer_load_dword v60, v13, {sr(SB, 4)}, s80 offen"
    MT = next((int(e[2:]) for e in EXP if e.startswith('mt')), 1)
    a("s_cmp_eq_u32 s3, 0", f"s_cselect_b32 s81, {MT}, s86", "s_cbranch_scc1 M_NOT", touch)
    a.label("M_NOT")
    stamp(a, 4)
    a("s_waitcnt lgkmcnt(0)", "s_barrier")
    stamp(a, 5)
    stamp(a, 12, rt=True)
    if "prio" in EXP:
        a("s_setprio 2")
    if "zero" in EXP:
        for r in range(X, X + 112):
            a(f"v_mov_b32 v{r}, 0")
    for j in range(PD):
        a(*rd(j))
    if "align" in EXP:
        a.raw(".p2align 6")
    a.label("M_TILE")
    a("s_cmp_eq_u32 s68, s81", "s_cbranch_scc1 M_SIDE")
    a.label("M_SIDER")
    jitter(a)
    a("s_mov_b32 m0, s83", "s_bitcmp1_b32 s69, 0", "s_cbranch_scc1 M_V")
    WPOS = {1: (0, 3), 2: (3, 6), 3: (6, 9), 4: (9, 12), 5: (12, 14), 6: (14, 16)}

    pfs = []

    def body(tag):
        q = [f for f in range(PD) for _ in range(2)]
        for j in range(28):
            if j % 2 == 0:
                q = q[max(i for i, f in enumerate(q) if f == j + 1) + 1:][-15:]
                a(f"s_waitcnt lgkmcnt({len(q)})")
            d = ACB if j == 27 else ACA
            ops = (X + 4 * j, ring(j)) if tag == "V" else (ring(j), X + 4 * j)
            if j == 0 and tag == "N":
                a("s_bitcmp1_b32 s69, 1", "s_cbranch_scc0 M_NOB", mfma(ACA, AB, BB, "0"),
                  mfma(ACA, *ops, ACA), "s_branch M_NOB2")
                a.label("M_NOB")
                a(mfma(ACA, *ops, "0"))
                a.label("M_NOB2")
            else:
                a(mfma(d, *ops, "0" if j == 0 else ACA))
            if j + PD == 14:
                assert "w" not in q
                a("s_barrier")
            if j in WPOS and "noaccw" not in EXP:
                a(*accw[WPOS[j][0]:WPOS[j][1]])
                q += ["w"] * (WPOS[j][1] - WPOS[j][0])
            a(*rd(j + PD))
            q += [j + PD] * 2
            if j == 0:
                a("s_and_b32 s27, s66, 0xff", "s_lshr_b64 s[66:67], s[66:67], 8",
                  "v_lshl_add_u32 v9, s27, 9, v12", "v_add_u32 v10, 64, v10")
            if j == 12:
                a("s_and_b32 s27, s64, 0xff", "s_lshr_b64 s[64:65], s[64:65], 8",
                  "v_lshl_add_u32 v8, s27, 9, v12", "s_xor_b32 s83, s83, 4096")
            if j + PD == 27:
                a(f"ds_read_u16 v{AB}, v10")
                q += ["b"]
        a("s_lshr_b32 s69, s69, 2", "s_add_u32 s68, s68, 1", "s_cmp_lt_u32 s68, s50", "s_cbranch_scc1 M_TILE")

    body("N")
    a("s_branch M_DONE")
    a.label("M_SIDE")
    a("s_cmp_eq_u32 s68, s86", "s_cbranch_scc1 M_SIDE2", touch, "s_mov_b32 s81, s86", "s_branch M_SIDER")
    a.label("M_SIDE2")
    a(f"v_mov_b32 v61, {L_CNT + 64}", "ds_read_b32 v61, v61", "s_mov_b64 exec, 0xff",
      f"buffer_load_dword v60, v57, {sr(SWS, 4)}, 0 offen sc1", "s_mov_b64 exec, -1", "s_branch M_SIDER")
    a.label("M_V")
    body("V")
    a.label("M_DONE")
    jitter(a)
    stamp(a, 6)
    stamp(a, 13, rt=True)
    lds_arrive(a, 2, 4, 5)
    qld = [f"buffer_load_dwordx2 {vr(QF + 2 * g, 2)}, v59, {sr(SWS, 4)}, s74 offen offset:{g * 512} sc1" for g in range(4)]
    a("v_readfirstlane_b32 s47, v61", "s_setprio 3", "s_waitcnt vmcnt(0)", "v_cmp_ne_u32 s[90:91], s47, v60",
      "s_mov_b64 exec, 0x3f", f"buffer_load_dword v61, v56, {sr(SWS, 4)}, 0 offen sc1", "s_mov_b64 exec, -1",
      "s_nop 0")
    a("v_lshlrev_b32 v4, 4, v1", "s_nop 3")
    for h in range(2):
        t = [T + 8 * h + k for k in range(8)]
        c = [ACB + 8 * h + k for k in range(8)]
        a(*[f"v_mul_f32 v{t[k]}, v{c[k]}, v{c[k]}" for k in range(8)])
        a(*[f"v_fma_f32 v{t[k]}, v{t[k]}, v6, v7" for k in range(8)])
        a(*[f"v_mul_f32 v{t[k]}, v{c[k]}, v{t[k]}" for k in range(8)])
        a(*[f"v_exp_f32 v{t[k]}, v{t[k]}" for k in range(8)])
        a(*[f"v_fma_f32 v{t[k]}, v{t[k]}, v15, v15" for k in range(8)])
        a(*[f"v_rcp_f32 v{t[k]}, v{t[k]}" for k in range(8)])
        a(*[f"v_mul_f32 v{t[k]}, v{c[k]}, v{t[k]}" for k in range(8)])
        a(*[f"v_cvt_pk_bf16_f32 v{32 + 4 * h + k}, v{t[2 * k]}, v{t[2 * k + 1]}" for k in range(4)])
        a(f"buffer_store_dwordx4 {vr(32 + 4 * h, 4)}, v4, {sr(SWS, 4)}, s84 offen offset:{1024 * h} sc1")
    a("s_setprio 0")


JIT = [0]


def jitter(a):
    if "jitter" not in EXP:
        return
    JIT[0] += 1
    n = JIT[0]
    a("s_memtime s[98:99]", "s_waitcnt lgkmcnt(0)", "s_lshl_b32 s99, s2, 3", "s_add_u32 s99, s99, s3",
      f"s_mul_i32 s99, s99, {2654435761 if n & 1 else 40503}", "s_xor_b32 s98, s98, s99", "s_lshr_b32 s98, s98, 3",
      "s_and_b32 s99, s98, 7", "s_cmp_eq_u32 s99, 0", f"s_cbranch_scc0 J_{n}X", "s_bfe_u32 s98, s98, 0x50003")
    a.label(f"J_{n}")
    a("s_sleep 8", "s_sub_u32 s98, s98, 1", f"s_cbranch_scc0 J_{n}")
    a.label(f"J_{n}X")


def lds_arrive(a, idx, vaddr, vtmp, val="1"):
    a(f"v_mov_b32 v{vaddr}, {L_CNT + 4 * idx}", f"v_mov_b32 v{vtmp}, {val}", "s_mov_b64 exec, 1",
      f"ds_add_u32 v{vaddr}, v{vtmp}", "s_mov_b64 exec, -1")


def lds_wait(a, tag, vaddr, vtmp, n=4):
    a(f"s_mov_b32 s27, {SPIN_MAX * 64}", f"s_branch {tag}_L")
    a.label(tag)
    a("s_sleep 1")
    a.label(tag + "_L")
    a(f"ds_read_b32 v{vtmp}, v{vaddr}", "s_waitcnt lgkmcnt(0)", f"v_readfirstlane_b32 s88, v{vtmp}",
      "s_sub_u32 s27, s27, 1", f"s_cbranch_scc1 {tag}_X", f"s_cmp_lt_u32 s88, {n}", f"s_cbranch_scc1 {tag}")
    a.label(tag + "_X")


def poll(a, tag, vaddr, nl, vtmp=60):
    a(f"s_mov_b32 s27, {SPIN_MAX}", f"s_mov_b64 exec, {(1 << nl) - 1}", f"s_branch {tag}_L")
    a.label(tag)
    a("s_sleep 3")
    a.label(tag + "_L")
    a(f"buffer_load_dword v{vtmp}, v{vaddr}, {sr(SWS, 4)}, 0 offen sc1", "s_waitcnt vmcnt(0)",
      f"v_cmp_ne_u32 s[88:89], s47, v{vtmp}", "s_sub_u32 s27, s27, 1", f"s_cbranch_scc1 {tag}_X",
      "s_cmp_lg_u64 s[88:89], 0", f"s_cbranch_scc1 {tag}")
    a.label(tag + "_X")
    a("s_mov_b64 exec, -1")


def epoch_issue(a, vz, vtmp):
    srd(a, SC, P_DBG, 256)
    a(f"v_mov_b32 v{vz}, 0", f"buffer_load_dword v{vtmp}, v{vz}, {sr(SC, 4)}, 0 offen sc1")


def epoch_wait(a, tag, vz, vtmp, n0):
    a(f"s_mov_b32 s27, {SPIN_MAX}", f"s_waitcnt vmcnt({n0})", f"s_branch {tag}_L")
    a.label(tag)
    a("s_sleep 3", f"buffer_load_dword v{vtmp}, v{vz}, {sr(SC, 4)}, 0 offen sc1", "s_waitcnt vmcnt(0)")
    a.label(tag + "_L")
    a(f"v_readfirstlane_b32 s47, v{vtmp}", "s_sub_u32 s27, s27, 1", f"s_cbranch_scc1 {tag}_X",
      "s_cmp_eq_u32 s47, 0", f"s_cbranch_scc1 {tag}")
    a.label(tag + "_X")


def gen_attn(a):
    KF, OA, CN, SM, VF = 128, 200, 216, 232, 16
    SB3 = (64, 80, 96)
    PFR = (32, 40, 112)
    qld = [f"buffer_load_dwordx2 {vr(QF + 2 * g, 2)}, v59, {sr(SWS, 4)}, s74 offen offset:{g * 512} sc1" for g in range(4)]
    pubm = ["v_mov_b32 v10, s47", "v_mov_b32 v11, 0", "s_mov_b64 exec, 1",
            f"buffer_store_dword v10, v11, {sr(SWS, 4)}, s85 offen sc1", "s_mov_b64 exec, -1"]
    vstage = stage_kv(OFF_V, 2048, 4, 73, 75)
    a("s_cmp_eq_u32 s50, 7", "s_cbranch_scc0 A_FREE", f"v_mov_b32 v8, {L_CNT + 8}")
    lds_wait(a, "A_LB2", 8, 9)
    a.label("A_FREE")
    a(*pads(73, 75, 12, 8), "s_waitcnt vmcnt(0)", *pubm, "s_and_b32 s27, s90, 0xff", "s_cbranch_scc0 A_QOK")
    poll(a, "A_PQ", 57, 8)
    a.label("A_QOK")
    a(*stage_kv(OFF_K, 0, 4, 73, 75), *qld)
    a("v_cmp_ne_u32 s[88:89], s47, v61", "s_mov_b32 s83, 0", "s_and_b32 s88, s88, 0x3f",
      "s_cbranch_scc1 A_VL0", *vstage, "s_mov_b32 s83, 1", "s_waitcnt vmcnt(6)", "s_branch A_VL1")
    a.label("A_VL0")
    a("s_waitcnt vmcnt(0)")
    a.label("A_VL1")
    a("s_waitcnt lgkmcnt(0)")
    lds_arrive(a, 0, 8, 9)
    a("v_cmp_eq_u32 vcc, 0, v3", "v_mov_b32 v5, 0x3f80", f"v_mov_b32 v15, {f32(-3e38)}",
      f"v_cndmask_b32 v{QF + 6}, v5, v{QF + 6}, vcc", f"v_cndmask_b32 v{QF + 7}, 0, v{QF + 7}, vcc")
    stamp(a, 8)
    a(f"s_setprio {APRIO}")
    lds_wait(a, "A_LB0", 8, 9)
    stamp(a, 9)
    TL = [0, 8, 1, 2, 3, 4, 5, 6, 7]

    def kread(n):
        i = TL[n]
        return [f"ds_read_b64 {vr(KF + 8 * i + 2 * g, 2)}, v124 offset:{(8 - i) * 4096 + g * 512}" for g in range(4)]

    def smm(i, s, c):
        return [mfma(s, KF + 8 * i, QF, c), mfma(s, KF + 8 * i + 4, QF + 4, s)]

    def smax(s):
        return [f"v_max3_f32 v15, v{s + 2 * k}, v{s + 2 * k + 1}, v15" for k in range(8)]

    p1buf = [SM, CN] + [SB3[n % 3] for n in range(7)]
    merge = [f"v_cndmask_b32 v{SM + k}, v{CN + k}, v{SM + k}, {ms(k)}" for k in range(16)]
    work = {0: ["s_nop 1"] * 2, 1: ["s_nop 1"] * 2, 2: ["s_nop 1"] * 4, 3: merge[:12], 4: merge[12:] + smax(p1buf[2]),
            5: smax(p1buf[3]) + smax(SM)[:4], 6: smax(p1buf[4]) + smax(SM)[4:]}
    a(*kread(0), *kread(1), *kread(2))
    for n in range(11):
        mx = work[n] if n in work else smax(p1buf[n - 2])
        h = len(mx) // 2
        if n < 9:
            mm = smm(TL[n], p1buf[n], "0")
            a(f"s_waitcnt lgkmcnt({4 * (min(8, n + 2) - n)})", mm[0])
            if n + 3 <= 8:
                a(*kread(n + 3))
            a(*mx[:h], mm[1], *mx[h:])
            if n == VCHK:
                a("s_cmp_eq_u32 s83, 1", "s_cbranch_scc1 A_PB",
                  "s_mov_b64 exec, 0x3f", f"buffer_load_dword v61, v56, {sr(SWS, 4)}, 0 offen sc1", "s_mov_b64 exec, -1")
                a.label("A_PB")
        else:
            if n == 10:
                a("s_nop 1")
            a(*mx)
    stamp(a, 10)
    a("v_mov_b32 v8, v15", "s_nop 1", "v_permlane32_swap_b32 v8, v15", "v_max_f32 v15, v8, v15",
      "v_xor_b32 v14, 0x80000000, v15")
    for i in range(16):
        a(f"v_mov_b32 v{CN + i}, v14")

    def vread(i, b):
        return [f"ds_read_b128 {vr(b, 4)}, v125 offset:{(8 - i) * 4096}",
                f"ds_read_b128 {vr(b + 4, 4)}, v126 offset:{(8 - i) * 4096}"]

    def pexp(s, p):
        o = []
        for h in range(2):
            o += [f"v_exp_f32 v{s + 8 * h + k}, v{s + 8 * h + k}" for k in range(8)]
            o += [f"v_cvt_pk_bf16_f32 v{p + 4 * h + k}, v{s + 8 * h + 2 * k}, v{s + 8 * h + 2 * k + 1}"
                  for k in range(4)]
        return o

    PD_, PO_ = KF, KF + 64
    pvq = [(0, PD_), (8, PO_)] + [(i, PFR[i % 3]) for i in range(1, 8)]
    vb = lambda n: VF + 8 * (n & 1)

    def pv(n):
        p = pvq[n][1]
        return [mfma(OA, vb(n), p, "0" if n == 0 else OA), mfma(OA, vb(n) + 4, p + 4, OA)]

    plan = {2: [0], 3: [1, 2], 4: [3], 5: [4, 5], 6: [6], 7: [7]}
    for b in range(8):
        if b == 0:
            ex = [f"v_sub_f32 v{SM + k}, v{SM + k}, v15" for k in range(16)] + pexp(SM, PO_)
            ex += [x for k in range(8) for x in (f"v_and_b32 v{PD_ + k}, v{MK + k}, v{PO_ + k}",
                                                 f"v_xor_b32 v{PO_ + k}, v{PD_ + k}, v{PO_ + k}")]
        else:
            ex = pexp(SB3[b % 3], PFR[b % 3])
        seq = []
        if b < 7:
            seq += [[m] for m in smm(b + 1, SB3[(b + 1) % 3], CN)]
        if b == 1:
            a("s_cmp_eq_u32 s83, 1", "s_cbranch_scc1 A_VD", "s_waitcnt vmcnt(0)", "v_cmp_ne_u32 s[88:89], s47, v61",
              "s_nop 0", "s_and_b32 s88, s88, 0x3f", "s_cbranch_scc0 A_VG")
            poll(a, "A_PV", 56, 6)
            a.label("A_VG")
            a(*vstage)
            a.label("A_VD")
        if b == 2:
            a("s_waitcnt vmcnt(0)")
            lds_arrive(a, 1, 8, 9)
            lds_wait(a, "A_LB1", 8, 9)
            a(*vread(pvq[0][0], vb(0)), *vread(pvq[1][0], vb(1)))
        for n in plan.get(b, []):
            pp = pv(n)
            seq += [["s_waitcnt lgkmcnt(2)", pp[0]], [pp[1]] + vread(pvq[n + 2][0], vb(n)) if n + 2 < 9 else [pp[1]]]
        if b == 7:
            seq += [["s_waitcnt lgkmcnt(0)", pv(8)[0]]]
        step = 24 // len(seq)
        ins = {(2 if b == 0 else 0) + i * (8 if b == 0 else step): x for i, x in enumerate(seq)}
        for k, e in enumerate(ex):
            a(*ins.get(k, []))
            a(e)
    a("s_nop 1", pv(8)[1])
    a.label("A_FIN")
    jitter(a)
    stamp(a, 11)
    PF = 32
    a(f"s_mul_i32 s41, s71, {ACT_RT}", "s_lshl_b32 s42, s70, 11", "s_add_u32 s41, s41, s42",
      f"s_add_u32 s41, s41, {OFF_ACT + 112 * 1024}", f"s_mul_i32 s42, s71, {FLG_RT}", "s_lshl_b32 s27, s70, 7",
      "s_add_u32 s42, s42, s27", f"s_add_u32 s42, s42, {OFF_FLG + 98 * 128}",
      "v_mov_b32 v10, s47", "v_mov_b32 v11, 0", "s_nop 1")
    a(f"v_mov_b32 v8, v{OA + 12}", f"v_mov_b32 v9, v{OA + 12}", "s_nop 1", "v_permlane32_swap_b32 v8, v9",
      "v_rcp_f32 v9, v9", "s_nop 0")
    for h in range(2):
        for i in range(8 * h, 8 * h + 8):
            a(f"v_mul_f32 v{OA + i}, v9, v{OA + i}")
        for k in range(4 * h, 4 * h + 4):
            a(f"v_cvt_pk_bf16_f32 v{PF + k}, v{OA + 2 * k}, v{OA + 2 * k + 1}")
        if h:
            a(f"v_cndmask_b32 v{PF + 6}, 0, v{PF + 6}, vcc", f"v_cndmask_b32 v{PF + 7}, 0, v{PF + 7}, vcc")
        a(f"buffer_store_dwordx4 {vr(PF + 4 * h, 4)}, v4, {sr(SWS, 4)}, s41 offen offset:{1024 * h} sc1")
    a("s_waitcnt vmcnt(0)", "s_mov_b64 exec, 1",
      f"buffer_store_dword v10, v11, {sr(SWS, 4)}, s42 offen sc1", "s_mov_b64 exec, -1")
    stamp_out(a)
    a("s_endpgm")


G_R = 10
G_RW = 12
G_RES = 192
G_P1 = 3
HLEAD = 3
G_MW = 9
GX, GWO, GW2, GOUT = 4, 8, 16, 20


def publish(reg, off=0):
    return ["s_mov_b64 exec, 1", f"buffer_store_dword v58, v59, {sr(SWS, 4)}, s{reg} offen offset:{off} sc1",
            "s_mov_b64 exec, -1"]


HCHK = eval(os.environ.get('HCHK', '{4: (2, 24), 16: (10, 28)}'))
OCHK = eval(os.environ.get('OCHK', '(18, 23)'))
AMAX = int(os.environ.get('AMAX', '2'))
BURST = int(os.environ.get('BURST', '10'))
BAR = int(os.environ.get('BAR', '16'))
XPRIO = int(os.environ.get('XPRIO', '2'))
PUBD = int(os.environ.get('PUBD', '3'))
PUBK = int(os.environ.get('PUBK', '2'))


KORD = [0, 2, 1, 3, 4, 5, 6, 8, 10, 7, 9, 11, 12, 13]


KT = sum(n << (4 * i) for i, n in enumerate(KORD))


def kpos(k):
    n = KORD[k >> 1]
    return 16 * (n >> 1) + 2 * (n & 1) + (k & 1)


def slot(k):
    sl = k % G_RW
    if sl < 4:
        return 0, sl * 2048
    return 1, (L_S0 - L_RING + (sl - 4) * 2048) if sl < 8 else (sl - 8) * 2048


def dma_w(k):
    up, off = slot(k)
    src, w = wsrc(k)
    return [f"s_add_u32 m0, s{14 if up else 65}, {off}", src, f"buffer_load_dwordx4 v32, {sr(w, 4)}, s27 offen lds",
            f"buffer_load_dwordx4 v33, {sr(w, 4)}, s27 offen offset:1024 lds"]


def areg(k):
    return (16 + 8 * (k % G_R)) if (k % G_R) < 2 else (128 + 8 * (k % G_R - 2))


def issue_a(k, b0=44, b1=45):
    r = areg(k)
    off = (k & 1) * 1024
    o = []
    if k & 1 == 0:
        o = [f"s_add_u32 s70, s{b0}, {kpos(k) * 1024}", f"s_add_u32 s71, s{b1}, {kpos(k) * 1024}"]
    return o + [f"buffer_load_dwordx4 {vr(r, 4)}, v13, {sr(SWS, 4)}, s70 offen offset:{off} sc1",
                f"buffer_load_dwordx4 {vr(r + 4, 4)}, v13, {sr(SWS, 4)}, s71 offen offset:{off} sc1"]


def wsrc(k):
    if k < 28:
        return f"s_add_u32 s27, s12, {kpos(k) * 16 * 896}", GW2
    kk = k - 28
    return f"s_add_u32 s27, s13, {((kk >> 1) * 28 + (kk & 1) * 16) * 896}", GWO


PK0 = G_RW
PK1 = G_RW + 16
NA1 = int(os.environ.get('NA1', '4'))
NPA = int(os.environ.get('NPA', '4'))


def preg(k):
    if k < NPA:
        return 96 + 8 * k if k < 4 else 144 + 8 * (k - 4)
    return 192 + 8 * ((k - PK0) % 8)


def park_w(k):
    src, w = wsrc(k)
    return [src, f"buffer_load_dwordx4 {vr(preg(k), 4)}, v32, {sr(w, 4)}, s27 offen",
            f"buffer_load_dwordx4 {vr(preg(k) + 4, 4)}, v33, {sr(w, 4)}, s27 offen offset:1024"]


PSCHED = [int(x) for x in os.environ.get("PS", "2,1,1,4,4").split(",")]
PORDER = list(range(NPA)) + list(range(PK0, PK0 + 8))


def gen_aux(a):
    AC, T, P = 64, 16, 48
    SWQ, SW1 = SA, SB
    a("s_setprio 3", "s_mov_b32 s59, s49", "s_lshl_b32 s69, s49, 7", "s_mul_i32 s27, s55, 56",
      "v_min_u32 v16, 55, v1", "v_add_u32 v16, s27, v16", "v_mul_u32_u24 v17, 2688, v16",
      "s_add_u32 s60, s49, 16", "s_sub_u32 s27, s49, 5",
      "s_cmp_lt_u32 s49, 5", "s_cselect_b32 s60, s60, s27", "s_add_u32 s61, s57, 11", "v_lshlrev_b32 v12, 2, v1")
    if "ct0" in EXP:
        a("s_cmp_lt_u32 s53, 4", "s_cbranch_scc0 X_CT", "s_cmp_eq_u32 s26, 1", "s_cbranch_scc0 X_CT",
          f"s_getpc_b64 {sr(SC, 2)}")
        a.label("X_PC")
        a(f"s_sub_u32 s{SC}, s{SC}, X_PC-{NAME}_kernel", f"s_subb_u32 s{SC + 1}, s{SC + 1}, 0",
          f"s_mov_b32 s{SC + 2}, L_CODE_END-{NAME}_kernel", f"s_mov_b32 s{SC + 3}, 0x20000", "s_lshl_b32 s27, s53, 13",
          "v_lshlrev_b32 v19, 7, v1", f"buffer_load_dword v19, v19, {sr(SC, 4)}, s27 offen")
        a.label("X_CT")
    a("s_waitcnt lgkmcnt(0)")
    stamp(a, 0, rt=True)
    stamp(a, 1)
    srd(a, SWQ, P_WQKV, WQKV_BYTES)
    if "notouch0" not in EXP:
        a("s_cmp_eq_u32 s26, 0", "s_cbranch_scc0 X_WD", f"buffer_load_dword v17, v17, {sr(SWQ, 4)}, s69 offen")
    a.label("X_WD")
    srd(a, SW1, P_W1, W1_BYTES)
    srd(a, SWS, P_WS, WS_BYTES)
    a("s_lshl_b32 s27, s2, 3", "s_add_u32 s27, s27, s3", "s_cmp_eq_u32 s27, 7", "s_cbranch_scc0 X_NOEP")
    srd(a, SC, P_DBG, 256)
    a(f"v_mov_b32 v20, {OFF_EPOCH}", "v_mov_b32 v22, 0", "s_mov_b64 exec, 1",
      f"buffer_load_dword v21, v20, {sr(SWS, 4)}, 0 offen sc1", "s_waitcnt vmcnt(0)",
      "v_add_u32 v21, 1, v21", "v_max_u32 v21, 1, v21",
      f"buffer_store_dword v21, v22, {sr(SC, 4)}, 0 offen sc1",
      f"buffer_store_dword v21, v20, {sr(SWS, 4)}, 0 offen sc1", "s_mov_b64 exec, -1")
    a.label("X_NOEP")
    a("s_cmp_eq_u32 s3, 5", "s_cbranch_scc0 X_PRE")
    srd(a, SC, P_B1, 3584)
    a("s_mov_b32 exec_hi, 0", f"s_mov_b32 m0, {L_BIAS + 128}", "s_lshl_b32 s27, s60, 7",
      f"buffer_load_dword v12, {sr(SC, 4)}, s27 offen lds",
      f"s_mov_b32 m0, {L_BIAS + 256}", "s_lshl_b32 s27, s61, 7",
      f"buffer_load_dword v12, {sr(SC, 4)}, s27 offen lds",
      f"s_mov_b32 m0, {L_BIAS + 384}", "s_lshl_b32 s27, s51, 6", f"s_add_u32 s27, s27, {27 * 128}",
      f"buffer_load_dword v12, {sr(SC, 4)}, s27 offen lds", "s_mov_b32 exec_hi, -1",
      f"v_add_u32 v20, {L_CNT}, v12", "v_mov_b32 v21, 0", "ds_write_b32 v20, v21")
    a.label("X_PRE")
    a(f"s_setprio {1 if 'auxprio' in EXP else 0}")
    a("v_bfe_u32 v15, v1, 2, 3", "v_lshlrev_b32 v13, 6, v3", "v_and_b32 v14, 3, v1", "v_lshl_add_u32 v13, v14, 4, v13",
      "v_mul_u32_u24 v4, 2688, v15", "v_add_u32 v4, v4, v13", "v_mul_u32_u24 v8, 3584, v15", "v_add_u32 v8, v8, v13")
    for k in range(1, 4):
        a(f"v_add_u32 v{4 + k}, {k * (8 * 2688 - 1024)}, v4", f"v_add_u32 v{8 + k}, {k * (8 * 3584 - 1024)}, v8")
    a(f"s_mul_i32 s27, s58, {FLG_RT}", f"s_add_u32 s27, s27, {OFF_FLG}", "s_lshl_b32 s62, s49, 8",
      "s_add_u32 s62, s62, s27", f"s_add_u32 s63, s62, {32 * 128}", "s_lshl_b32 s64, s57, 8", "s_add_u32 s64, s64, s27",
      f"s_add_u32 s64, s64, {64 * 128}")
    a(f"s_mul_i32 s66, s26, {56 * 2688}", f"s_mul_i32 s67, s26, {56 * 3584}", "s_mul_i32 s68, s26, 7168",
      "v_lshlrev_b32 v13, 4, v1", "v_lshlrev_b32 v14, 3, v1")
    a(f"s_mul_i32 s76, s58, {RT}", f"s_mul_i32 s77, s58, {ACT_RT}", f"s_add_u32 s77, s77, {OFF_ACT}",
      f"s_add_u32 s78, s76, {OFF_V}",
      "s_lshl_b32 s72, s49, 12", f"s_add_u32 s27, s72, {OFF_K - 7 * 4096}", "s_cmp_ge_u32 s49, 7",
      "s_cselect_b32 s72, s27, s72", "s_add_u32 s72, s72, s76",
      "s_sub_u32 s27, s49, 14", "s_lshl_b32 s27, s27, 10", "s_add_u32 s27, s27, s78",
      "s_cmp_ge_u32 s49, 14", "s_cselect_b32 s72, s27, s72",
      "s_add_u32 s27, s49, 2", "s_lshl_b32 s27, s27, 10", "s_add_u32 s27, s27, s78",
      "s_lshl_b32 s73, s60, 12", "s_add_u32 s73, s73, s77", "s_cmp_lt_u32 s49, 5", "s_cselect_b32 s73, s27, s73",
      "s_lshl_b32 s74, s61, 12", "s_add_u32 s74, s74, s77",
      "v_mul_u32_u24 v15, 448, v3", "v_lshl_add_u32 v15, v2, 4, v15", "s_movk_i32 s79, 1344",
      "s_lshl_b32 s27, s26, 13", "v_add_u32 v57, s27, v12", "v_add_u32 v56, 4096, v57", "v_mov_b32 v59, 0")
    gemm_setup(a)

    def dma(ffn, src, slot):
        vb, pitch, w, wo = (8, 3584, SW1, 67) if ffn else (4, 2688, SWQ, 66)
        o = [f"s_add_u32 m0, s68, {slot}", f"s_add_u32 s27, {src}, s{wo}"]
        o += [f"buffer_load_dwordx4 v{vb + k}, {sr(w, 4)}, s27 offen offset:{k * 1024} lds" for k in range(4)]
        o += ["s_add_u32 m0, m0, 4096", f"s_add_u32 s27, s27, {32 * pitch}"]
        o += [f"buffer_load_dwordx4 v{vb + k}, {sr(w, 4)}, s27 offen offset:{k * 1024} lds" for k in range(3)]
        return o

    def dma2(tag, slot, half):
        a("s_cmp_lt_u32 s49, 5", f"s_cbranch_scc0 {tag}F", f"s_add_u32 s83, s71, {half * 224 * 2688}",
          *dma(False, "s83", slot), f"s_branch {tag}D")
        a.label(tag + "F")
        a(f"s_add_u32 s83, s71, {half * 224 * 3584}", *dma(True, "s83", slot))
        a.label(tag + "D")

    a("s_lshl_b32 s69, s59, 7", f"s_add_u32 s70, s69, {224 * 2688}", "s_lshl_b32 s71, s60, 7", "s_waitcnt lgkmcnt(0)")
    if "st0early" in EXP:
        a(*dma(False, "s69", L_S0))
    stamp(a, 2)
    a("s_barrier")
    stamp(a, 3)
    if "st0early" not in EXP:
        a(*dma(False, "s69", L_S0))
    a(*dma(False, "s70", L_S1))
    dma2("X_D2", L_S2, 0)
    a(f"buffer_load_dword v58, v59, {sr(SC, 4)}, 0 offen sc1", "s_waitcnt vmcnt(15)")
    stamp(a, 4)
    a("s_barrier")
    c0, c1 = GC0, GC1
    a("s_lshl_b32 s27, s26, 8", f"s_add_u32 s27, s27, {L_STAT}", "v_lshl_add_u32 v16, v2, 2, s27",
      "v_lshl_add_u32 v17, v3, 4, s27", "ds_read_b32 v40, v16", "ds_read_b32 v41, v16 offset:128",
      f"v_mov_b32 v18, {L_CNT + 64}")
    stamp(a, 30)
    a("s_waitcnt vmcnt(8)", "s_barrier")
    dma2("X_D3", L_S3, 1)
    a("v_mov_b32 v7, v17")
    XR = 80
    if "noxres" in EXP:
        a("s_mov_b32 s6, 0")
    a(f"buffer_load_dwordx4 {vr(XR, 4)}, v44, {sr(GX, 4)}, s15 offen",
      f"buffer_load_dwordx4 {vr(XR + 4, 4)}, v44, {sr(GX, 4)}, s15 offen offset:32",
      f"buffer_load_dwordx4 {vr(XR + 8, 4)}, v39, {sr(SD, 4)}, s101 offen",
      f"buffer_load_dwordx4 {vr(XR + 12, 4)}, v39, {sr(SD, 4)}, s101 offen offset:32")
    a("s_cmp_lt_u32 s49, 7", f"s_cselect_b32 s27, {f32(28 ** -0.5 * 1.4426950408889634)}, 1.0",
      "s_waitcnt lgkmcnt(0)",
      f"v_mul_f32 v42, {f32(c0)}, v40", "v_mul_f32 v43, v40, v40", "v_mul_f32 v43, v43, v40",
      f"v_mul_f32 v43, {f32(c1)}, v43", "v_mul_f32 v40, s27, v40")
    pos = [0]

    def take(p):
        n = PSCHED[p + 1]
        ks = PORDER[pos[0]:pos[0] + n]
        pos[0] += n
        return [x for k in ks for x in (park_w(k)[:2], park_w(k)[2:])]

    np_ = lambda p: 2 * PSCHED[p + 1]
    for x in take(-1):
        a(*x)
    epoch_wait(a, "X_EP", 59, 58, 11 + np_(-1))
    a("ds_write_b32 v18, v58", "s_lshl_b32 s82, s61, 7", "s_waitcnt lgkmcnt(0)")

    ACX = (AC, 128)

    def reads(u):
        return [f"ds_read2st64_b32 {vr(ACX[u & 1] + 2 * q, 2)}, v{56 + (u & 1)} offset0:{2 * q} offset1:{2 * q + 1}"
                for q in range(8)]

    def head(u):
        o = ["s_barrier"]
        if HOLD == 20 + u:
            o += ["s_memrealtime s[96:97]"]
        if STAMP and "ks" not in EXP:
            o += ["s_memtime s[98:99]", "s_waitcnt lgkmcnt(0)", f"v_writelane_b32 v63, s98, {16 + 4 * u}"]
        return o + reads(u)

    def ffn(u, weave, mid, nxt):
        blocks = []
        for g in range(4):
            t = [T + 4 * (g & 1) + k for k in range(4)]
            s = [ACX[u & 1] + 4 * g + k for k in range(4)]
            blocks += [[f"s_waitcnt lgkmcnt({6 - 2 * g})"] + [f"v_mul_f32 v{t[k]}, v{s[k]}, v{s[k]}" for k in range(4)],
                       [f"v_fma_f32 v{t[k]}, v{t[k]}, v43, v42" for k in range(4)]
                       + [f"v_mul_f32 v{t[k]}, v{s[k]}, v{t[k]}" for k in range(4)],
                       [f"v_exp_f32 v{t[k]}, v{t[k]}" for k in range(4)],
                       [f"v_fma_f32 v{t[k]}, v{t[k]}, v41, v41" for k in range(4)]
                       + [f"v_rcp_f32 v{t[k]}, v{t[k]}" for k in range(2)],
                       [f"v_rcp_f32 v{t[k]}, v{t[k]}" for k in range(2, 4)]
                       + [f"v_mul_f32 v{t[k]}, v{s[k]}, v{t[k]}" for k in range(4)]
                       + [f"v_cvt_pk_bf16_f32 v{P + 2 * g}, v{t[0]}, v{t[1]}",
                          f"v_cvt_pk_bf16_f32 v{P + 2 * g + 1}, v{t[2]}, v{t[3]}"]]
        at = {}
        for i in range(0, len(weave), 2):
            b = 9 + i * 9 // len(weave)
            at.setdefault(b, []).append(weave[i])
            at.setdefault(b + 1, []).insert(0, weave[i + 1])
        n = 0
        for b, blk in enumerate(blocks):
            if b == BAR and nxt:
                a("s_waitcnt lgkmcnt(0)", *nxt(n))
            a(*[x for x in blk if not (nxt and b >= BAR and x.startswith("s_waitcnt"))])
            if b == 9:
                m = mid(n)
                a(*m)
                n += sum(x.startswith("buffer_load") for x in m)
            if b in (9, 19):
                a(f"buffer_store_dwordx4 {vr(P + 4 * (b // 10), 4)}, v13, {sr(SWS, 4)}, s72 offen offset:{(b // 10) * 1024} sc1")
            for w in at.get(b, []):
                a(*w)
                n += 1
        a("s_add_u32 s72, s72, 2048")

    def qkv(u):
        a(f"s_bitcmp1_b32 s54, {2 * u}", f"s_cbranch_scc1 X_B{u}", f"s_call_b64 s[90:91], X_QK{u & 1}", f"s_branch X_C{u}")
        a.label(f"X_B{u}")
        a(f"s_call_b64 s[90:91], X_V{u & 1}")
        a.label(f"X_C{u}")
        jitter(a)

    def extra(tag, slot, setup):
        return ["s_cmp_eq_u32 s50, 7", f"s_cbranch_scc0 {tag}", setup, *dma(True, "s82", slot), tag + ":"]

    a(*head(0))
    qkv(0)
    a(*dma(True, "s82", L_S0))
    for x in take(0):
        a(*x)
    a(f"s_waitcnt vmcnt({4 + np_(-1) + 7 + np_(0)})")
    a(*head(1))
    qkv(1)
    a("s_mov_b32 s72, s73", f"s_add_u32 s82, s82, {224 * 3584}", *dma(True, "s82", L_S1))
    for x in take(1):
        a(*x)
    a(f"s_waitcnt vmcnt({np_(0) + 7 + np_(1)})")
    a(*head(2))
    w2, w3 = take(2), take(3)
    pub01 = ["s_waitcnt vmcnt(0)", *publish(62), *publish(62, 128)]
    a("s_bitcmp1_b32 s54, 4", "s_cbranch_scc0 X_R1F")
    a(*pub01, "s_call_b64 s[90:91], X_V0")
    for x in w2:
        a(*x)
    a(*head(3), "s_waitcnt vmcnt(0)", *publish(63), "s_call_b64 s[90:91], X_V1")
    for x in w3:
        a(*x)
    a(*head(4), "s_waitcnt vmcnt(0)", *publish(63, 128), "s_branch X_R2")
    a.label("X_R1F")
    jitter(a)
    d6 = ["s_cmp_eq_u32 s50, 7", "s_cbranch_scc0 X_N6", f"v_mul_u32_u24 v60, {224 * 3584 - 64}, v3",
          *[f"v_add_u32 v{8 + k}, v60, v{8 + k}" for k in range(4)], "s_lshl_b32 s82, s51, 6",
          f"s_add_u32 s82, s82, {27 * 128}", *dma(True, "s82", L_S2), "X_N6:"]
    ffn(2, w2, lambda n: pub01 + d6, lambda n: head(3))
    ffn(3, w3, lambda n: ["s_waitcnt vmcnt(0)", *publish(63)], lambda n: head(4))
    a.label("X_R2")
    jitter(a)
    a("s_mov_b32 s72, s74")
    kreq = ["s_mov_b64 exec, 0xf",
            f"buffer_load_dword v62, v36, {sr(SWS, 4)}, 0 offen sc1", "s_mov_b64 exec, -1"]
    ffn(4, [], lambda n: [f"s_setprio {XPRIO}", "s_waitcnt vmcnt(0)", *publish(63, 128), *kreq], None)
    a("s_cmp_eq_u32 s50, 7", "s_cbranch_scc0 X_DONE", *head(5))
    ffn(5, [], lambda n: ["s_waitcnt vmcnt(0)", *publish(64)], None)
    a("s_branch X_DONE")
    for par in range(2):
        A_ = ACX[par]
        a.label(f"X_QK{par}")
        for g in range(4):
            a(f"s_waitcnt lgkmcnt({6 - 2 * g})")
            for k in range(4):
                a(f"v_mul_f32 v{T + 4 * g + k}, v40, v{A_ + 4 * g + k}")
            a(f"v_cvt_pk_bf16_f32 v{P + 2 * g}, v{T + 4 * g}, v{T + 4 * g + 1}",
              f"v_cvt_pk_bf16_f32 v{P + 2 * g + 1}, v{T + 4 * g + 2}, v{T + 4 * g + 3}",
              f"buffer_store_dwordx2 {vr(P + 2 * g, 2)}, v14, {sr(SWS, 4)}, s72 offen offset:{g * 512} sc1")
        a("s_add_u32 s72, s72, 2048", "s_setpc_b64 s[90:91]")
        a.label(f"X_V{par}")
        for g in range(4):
            a(f"ds_read_b128 {vr(T + 4 * g, 4)}, v7 offset:{g * 32}")
        a("s_sub_u32 s27, s72, s78", "s_lshr_b32 s27, s27, 4", "v_add_u32 v60, s27, v2",
          "v_mul_u32_u24 v60, 2341, v60", "v_lshrrev_b32 v60, 16, v60", "v_mad_u32_u24 v60, v60, s79, v15")
        for s in range(2):
            a(f"s_waitcnt lgkmcnt({2 - 2 * s})")
            for k in range(8):
                a(f"v_mul_f32 v{T + 8 * s + k}, v{T + 8 * s + k}, v{A_ + 8 * s + k}")
            for k in range(4):
                a(f"v_cvt_pk_bf16_f32 v{P + 4 * s + k}, v{T + 8 * s + 2 * k}, v{T + 8 * s + 2 * k + 1}")
            a(f"buffer_store_dwordx4 {vr(P + 4 * s, 4)}, v60, {sr(SWS, 4)}, s72 offen offset:{s * 896} sc1")
        a("s_add_u32 s72, s72, 512", "s_setpc_b64 s[90:91]")
    a.label("X_DONE")
    stamp(a, 5)


def gemm_setup(a):
    srd(a, SD, P_B2, 896)
    srd(a, SC, P_DBG, 256)
    a(f"s_mov_b32 s{GX + 2}, {X_BYTES}", f"s_mov_b32 s{GX + 3}, 0x20000",
      "s_lshl_b32 s88, s52, 2", "s_and_b32 s27, s53, 3", "s_add_u32 s88, s88, s27", "s_lshr_b32 s89, s53, 2",
      "s_and_b32 s90, s26, 1", "s_lshr_b32 s91, s26, 1", "s_lshl_b32 s27, s88, 1",
      "s_add_u32 s44, s27, s90", "s_xor_b32 s45, s44, 1", "s_lshl_b32 s89, s89, 7",
      "s_lshl_b32 s101, s91, 6", "s_add_u32 s101, s101, s89", f"s_mul_i32 s15, s44, {RT}", "s_add_u32 s15, s15, s101",
      "v_lshlrev_b32 v39, 4, v3", "v_mul_u32_u24 v44, 896, v2", "v_add_u32 v44, v44, v39",
      f"s_mov_b32 s{GWO + 2}, {WO_BYTES}", f"s_mov_b32 s{GWO + 3}, 0x20000",
      f"s_mov_b32 s{GW2 + 2}, {W2_BYTES}", f"s_mov_b32 s{GW2 + 3}, 0x20000",
      f"s_mov_b32 s{GOUT + 2}, {X_BYTES}", f"s_mov_b32 s{GOUT + 3}, 0x20000")
    a("v_bfe_u32 v46, v1, 2, 2", "v_bfe_u32 v47, v1, 4, 1", "v_lshl_add_u32 v46, v47, 3, v46",
      "v_mul_u32_u24 v32, 896, v46", "v_lshl_add_u32 v32, v3, 6, v32", "v_and_b32 v46, 3, v1",
      "v_lshl_add_u32 v32, v46, 4, v32", f"v_add_u32 v33, {4 * 896 - 1024}, v32")
    a(f"s_mul_i32 s88, s88, {2 * FLG_RT}", f"s_add_u32 s88, s88, {OFF_FLG}",
      f"v_mov_b32 v46, {KT & 0xffffffff}", f"v_mov_b32 v47, {KT >> 32}", "v_and_b32 v45, 30, v1",
      "v_lshlrev_b32 v45, 1, v45", "v_lshrrev_b64 v[46:47], v45, v[46:47]", "v_bfe_u32 v47, v46, 1, 3",
      "v_and_b32 v46, 1, v46", "v_lshl_add_u32 v47, v47, 3, v46",
      "v_and_b32 v46, 1, v1", f"v_mul_u32_u24 v46, {FLG_N}, v46",
      "s_lshl_b32 s27, s26, 1", "s_add_u32 s27, s27, 42", "v_add3_u32 v47, v47, v46, s27",
      "v_lshlrev_b32 v47, 7, v47", "v_add_u32 v36, s88, v47",
      "v_bfe_u32 v47, v1, 1, 2", "v_add_u32 v46, v46, v47",
      "s_lshl_b32 s27, s26, 2", "s_add_u32 s27, s27, 98", "v_add_u32 v46, s27, v46", "v_lshlrev_b32 v46, 7, v46",
      "v_add_u32 v37, s88, v46")
    a(f"s_mul_i32 s12, s26, {64 * 896}", "s_add_u32 s12, s12, s89",
      f"s_mul_i32 s13, s26, {112 * 896}", "s_add_u32 s13, s13, s89",
      "s_lshl_b32 s65, s26, 13", f"s_add_u32 s14, s65, {L_RING}",
      f"s_mul_i32 s44, s44, {ACT_RT}", f"s_mul_i32 s45, s45, {ACT_RT}",
      "s_lshl_b32 s27, s26, 13", f"s_add_u32 s27, s27, {OFF_ACT + 112 * 1024}",
      "s_add_u32 s46, s44, s27", "s_add_u32 s100, s45, s27",
      "s_lshl_b32 s27, s26, 12", f"s_add_u32 s27, s27, {OFF_ACT}", "s_add_u32 s44, s44, s27", "s_add_u32 s45, s45, s27")
    a("v_and_b32 v46, 1, v1", "v_bfe_u32 v47, v1, 1, 1", "v_lshl_add_u32 v46, v46, 1, v47",
      "v_bfe_u32 v47, v1, 4, 1", "v_lshl_add_u32 v46, v47, 2, v46",
      "v_bfe_u32 v47, v1, 2, 2", "v_lshlrev_b32 v47, 6, v47", "v_lshl_add_u32 v46, v46, 3, v47",
      "v_lshl_add_u32 v46, v3, 10, v46", "s_lshl_b32 s27, s91, 9", "s_add_u32 s27, s27, s14",
      "v_add_u32 v34, s27, v46", "v_xor_b32 v35, 512, v34")
    a("v_add_u32 v38, s14, v13")
    for t in range(1, 4):
        a(f"s_xor_b32 s27, s26, {t}", "s_lshl_b32 s27, s27, 13", f"s_add_u32 s27, s27, {L_RING}",
          f"v_add_u32 v{44 + t}, s27, v13")


def gemm_res(a):
    XR, RES, TM = 80, 64, 16
    for k in range(8):
        a(f"v_lshlrev_b32 v{RES + 2 * k}, 16, v{XR + k}", f"v_and_b32 v{RES + 2 * k + 1}, 0xffff0000, v{XR + k}",
          f"v_lshlrev_b32 v{TM + 2 * k}, 16, v{XR + 8 + k}", f"v_and_b32 v{TM + 1 + 2 * k}, 0xffff0000, v{XR + 8 + k}")
    for i in range(16):
        a(f"v_add_f32 v{XR + i}, v{RES + i}, v{TM + i}")


def gen_gemm(a):
    R, RW = G_R, G_RW
    AC, OR, XR = 64, 192, 16
    WFR = (4, 48)
    NK = 36
    ACS = (80, 64, 96, 112)
    pub = publish(64)
    a("s_cmp_lt_u32 s53, 28", "s_cbranch_scc1 G_GO", "s_waitcnt vmcnt(0)", *publish(64, 128))
    stamp_out(a)
    a("s_endpgm")
    a.label("G_GO")
    jitter(a)

    def req(v, nl, dst=60):
        return [f"s_mov_b64 exec, {(1 << nl) - 1}", f"buffer_load_dword v{dst}, v{v}, {sr(SWS, 4)}, 0 offen sc1",
                "s_mov_b64 exec, -1"]

    def chk(mask, target, src=60):
        return [f"v_cmp_ne_u32 s[88:89], s47, v{src}", "s_nop 0", f"s_and_b32 s88, s88, {mask}", f"s_cbranch_scc0 {target}"]

    def issue_w(k):
        return park_w(k) if PK0 <= k < PK1 else dma_w(k)

    def dump(k):
        up, off = slot(k)
        va = 38 if up else 43
        return [f"ds_write_b128 v{va}, {vr(preg(k), 4)} offset:{off}",
                f"ds_write_b128 v{va}, {vr(preg(k) + 4, 4)} offset:{off + 1024}"]

    def wread(k):
        w = WFR[k & 1]
        up, off = slot(k)
        va = 34 if up else 40
        return [f"ds_read_b64_tr_b16 {vr(w, 2)}, v{va} offset:{off}",
                f"ds_read_b64_tr_b16 {vr(w + 2, 2)}, v{va} offset:{off + 256}",
                f"ds_read_b64_tr_b16 {vr(w + 4, 2)}, v{va + 1} offset:{off}",
                f"ds_read_b64_tr_b16 {vr(w + 6, 2)}, v{va + 1} offset:{off + 256}"]

    q = []

    def emit_w(k):
        nonlocal q
        a(*issue_w(k))
        q += [("w", k)] * 2

    def upto(tags):
        nonlocal q
        need = [i for i, kk in enumerate(q) if kk in tags]
        q = q[max(need) + 1:] if need else q
        assert len(q) <= 63
        return f"s_waitcnt vmcnt({len(q)})"

    left = PORDER[sum(PSCHED):]
    a("v_add_u32 v43, s65, v13", f"v_mov_b32 v42, {L_CNT + 8}",
      f"v_subrev_u32 v40, {L_RING}, v34", f"v_subrev_u32 v41, {L_RING}, v35")
    assert sum(PSCHED) >= NPA + 2
    gemm_res(a)
    for k in range(min(NPA, 8)):
        a(*dump(k))
        if k == PUBD:
            a("s_waitcnt vmcnt(0)", *pub, "s_setprio 0")
            stamp(a, 7)
            a(*chk(0xf, "G_OK0", 62))
            poll(a, "G_P0", 36, NA1, 61)
            a.label("G_OK0")
            for kk in range(NA1):
                a(*issue_a(kk))
                q += [("a", kk)] * 2
    lds_wait(a, "G_LW", 42, 56)
    for k in range(8, NPA):
        a(*dump(k))
    for k in range(NPA, 8):
        emit_w(k)
    while left and left[0] < PK0 + 2:
        emit_w(left.pop(0))
    stamp(a, 6)
    a(*wread(0))
    if -1 in {v[0] for v in HCHK.values()}:
        a(*req(36, 28))
        q += ["b"]
    pend = [("w", k) for k in left + list(range(max(8, NPA), RW))]
    anext = NA1
    alim = NA1
    onext = 0

    def split(ops):
        out, cur = [], []
        for o in ops:
            if o == "s_mov_b64 exec, -1":
                out[-1].append(o)
                continue
            cur.append(o)
            if o.startswith("buffer_") or o.startswith("ds_"):
                out.append(cur)
                cur = []
        assert not cur
        return out

    def issue_o1(kk):
        o = ["s_add_u32 s46, s46, 4096", "s_add_u32 s100, s100, 4096"] if kk == 4 else []
        return o + [f"buffer_load_dwordx4 {vr(OR + 8 * kk, 4)}, v13, {sr(SWS, 4)}, s46 offen offset:{(kk & 3) * 1024} sc1",
                    f"buffer_load_dwordx4 {vr(OR + 8 * kk + 4, 4)}, v13, {sr(SWS, 4)}, s100 offen offset:{(kk & 3) * 1024} sc1"]

    for k in range(NK):
        if k in HCHK:
            nl = HCHK[k][1]
            a(upto({"b"}), *chk((1 << nl) - 1, f"G_HK{k}"))
            poll(a, f"G_HP{k}", 36, nl)
            a.label(f"G_HK{k}")
            if k == min(HCHK):
                stamp(a, 8)
            alim = nl
            while anext < min(alim, k + BURST):
                a(*issue_a(anext))
                q += [("a", anext)] * 2
                anext += 1
        if k == OCHK[1]:
            assert k > PK1 - RW
            a(upto({"p"}), *chk(0xff, "G_OKO", 61))
            poll(a, "G_PO", 37, 8, 61)
            a.label("G_OKO")
            stamp(a, 10)
        kd = k + RW
        tags = {("a", k), ("w", k + 1)}
        if PK0 <= kd < PK1:
            tags |= {("w", kd)}
        assert not any(t in pend for t in tags)
        n0 = len(q)
        wt = upto(tags)
        if len(q) != n0:
            a(wt)
        if STAMP and "ks" in EXP:
            if k:
                a(f"v_writelane_b32 v63, s96, {27 + k}")
            a("s_memtime s[96:97]")
        elif k in (12, 28):
            stamp(a, {12: 9, 28: 11}[k])
        w = WFR[k & 1]
        r = areg(k) if k < 28 else OR + 8 * (k - 28)
        c = (lambda t: ACS[0] if t == 0 else "0") if k == 0 else (lambda t: ACS[t])
        vm = []
        if k == OCHK[0]:
            vm += req(37, 8, 61)
            q += ["p"]
        if k in {v[0] for v in HCHK.values()}:
            vm += req(36, 28)
            q += ["b"]
        budget = AMAX
        while anext < min(alim, k + R) and budget:
            vm += issue_a(anext)
            q += [("a", anext)] * 2
            anext += 1
            budget -= 1
        if k >= OCHK[1]:
            budget += 1
        while k >= OCHK[1] and onext < 8 and budget:
            vm += issue_o1(onext)
            q += [("a", 28 + onext)] * 2
            onext += 1
            budget -= 1
        kp = kd + 7
        if k >= 1 and kp < PK1:
            pend.append(("w", kp))
        if PK1 <= kd < NK:
            pend.append(("w", kd))
        for _ in range(2 if budget == AMAX else 1):
            if pend:
                t = pend.pop(0)
                vm += issue_w(t[1])
                q += [t] * 2
        pieces = split(vm)
        dm = split(dump(kd)) if PK0 <= kd < PK1 else []
        rd = wread(k + 1) if k < NK - 1 else []
        mm = [mfma(ACS[0], w, r, c(0)), mfma(ACS[1], w, r + 4, c(1)), mfma(ACS[2], w + 4, r, c(2)),
              mfma(ACS[3], w + 4, r + 4, c(3))]
        pieces = dm + pieces
        per = (len(pieces) + 2) // 3
        a("s_waitcnt lgkmcnt(0)", mm[0], *rd)
        for t in range(1, 4):
            a(mm[t])
            for p in pieces[(t - 1) * per:t * per]:
                a(*p)
    assert onext == 8 and not pend
    assert anext == 28
    stamp(a, 12)
    jitter(a)
    RO = (0, 0, 4096, L_S0 - L_RING)
    a("s_nop 7", "s_nop 1")
    for t in range(1, 4):
        for qq in range(4):
            a(f"ds_write_b128 v38, {vr(ACS[t] + 4 * qq, 4)} offset:{RO[t] + qq * 1024}")
    a("s_waitcnt lgkmcnt(0)", "s_barrier")
    stamp(a, 13)
    for t in range(1, 4):
        for qq in range(4):
            a(f"ds_read_b128 {vr(ACS[t] + 4 * qq, 4)}, v{44 + t} offset:{RO[t] + qq * 1024}")
    for t in (1, 2):
        a(f"s_waitcnt lgkmcnt({12 - 4 * t})")
        for i in range(16):
            a(f"v_add_f32 v{ACS[0] + i}, v{ACS[0] + i}, v{ACS[t] + i}")
    for h in range(2):
        a(f"s_waitcnt lgkmcnt({2 - 2 * h})")
        for i in range(8 * h, 8 * h + 8):
            a(f"v_add_f32 v{ACS[0] + i}, v{ACS[0] + i}, v{ACS[3] + i}")
        for k in range(4 * h, 4 * h + 4):
            a(f"v_cvt_pk_bf16_f32 v{XR + k}, v{ACS[0] + 2 * k}, v{ACS[0] + 2 * k + 1}")
        a(f"buffer_store_dwordx4 {vr(XR + 4 * h, 4)}, v44, {sr(GOUT, 4)}, s15 offen offset:{32 * h} {os.environ.get('OUTF', '')}")
    stamp_out(a)


def post(t):
    lines = t.split("\n")
    g = next(i for i, l in enumerate(lines) if l.startswith("G_GO"))
    o = lines[:g]
    for l in lines[g:]:
        if "plainact" in EXP and "buffer_load_dwordx4 v[" in l:
            l = l.replace(" sc1", "")
        if "gnomfma" in EXP and "v_mfma" in l:
            continue
        if "gnoa" in EXP and "buffer_load_dwordx4 v[" in l:
            l = l.replace("v13,", "v59,")
        if "gnow" in EXP and " lds" in l:
            l = l.replace("v32,", "v59,").replace("v33,", "v59,")
        o.append(l)
    return "\n".join(o)


def main(out):
    a = Asm()
    a.raw(f"; @launch grid=(256,1,1) block=(512,1,1) lds={LDS_BYTES}")
    a.raw('.amdgcn_target "amdgcn-amd-amdhsa--gfx950"')
    a.raw(".text")
    name = gen(a)
    a.raw('.section .rodata,"a"')
    a.raw(".p2align 6")
    a.raw(f".amdhsa_kernel {name}")
    a.raw("  .amdhsa_next_free_vgpr 256")
    a.raw("  .amdhsa_next_free_sgpr 102")
    a.raw("  .amdhsa_accum_offset 256")
    a.raw("  .amdhsa_group_segment_fixed_size 0")
    a.raw("  .amdhsa_kernarg_size 88")
    a.raw("  .amdhsa_user_sgpr_count 2")
    a.raw("  .amdhsa_user_sgpr_kernarg_segment_ptr 1")
    a.raw("  .amdhsa_system_sgpr_workgroup_id_x 1")
    a.raw(".end_amdhsa_kernel")
    open(out, "w").write(post(a.text()))


if __name__ == "__main__":
    if "--stamp" in sys.argv:
        sys.argv.remove("--stamp")
        STAMP = True
    if "--dbg" in sys.argv:
        sys.argv.remove("--dbg")
        DBG = True
    main(sys.argv[1] if len(sys.argv) > 1 else f"cdna_kernels/{NAME}.s")
```

```python
import os
import struct
import sys

EXP = set(os.environ.get('EXP', '').split(','))

NAME = "parallel_sum__sliding_block__dense_activation_gelu__prompt"

RT = 28672
OFF_Q = 0
OFF_K = 64 * RT
OFF_V = 2 * 64 * RT
OFF_ACT = 3 * 64 * RT
ACT_RT = 144 * 1024
OFF_FLG = OFF_ACT + 64 * ACT_RT
FLG_N = 114
FLG_RT = FLG_N * 128
OFF_EPOCH = OFF_FLG + 64 * FLG_RT
WS_BYTES = OFF_EPOCH + 128
NATIVE_K = True

X_BYTES = 2048 * 896
WQKV_BYTES = 448 * 2688
W1_BYTES = 448 * 3584
W2_BYTES = 1792 * 896
WO_BYTES = 448 * 896

SLOT = 28672
L_S2 = 32768
L_S3 = L_S2 + SLOT
L_S1 = L_S3 + SLOT
L_S0 = L_S1 + SLOT
L_BIAS = 159744
L_STAT = L_BIAS + 768
L_CNT = L_STAT + 1024
L_ATT = L_S2
L_RING = L_ATT + 49152
LDS_BYTES = 163840
SPIN_MAX = 1 << 16

STAMP = False
OFF_STAMP = 32 << 20


def f32(x):
    return "0x%08x" % struct.unpack("<I", struct.pack("<f", x))[0]


class Asm:
    def __init__(self):
        self.o = []

    def __call__(self, *lines):
        for s in lines:
            self.o.append("    " + s)

    def label(self, s):
        self.o.append(s + ":")

    def raw(self, s):
        self.o.append(s)

    def text(self):
        return "\n".join(self.o) + "\n"


def vr(b, n):
    return f"v[{b}:{b + n - 1}]"


def sr(b, n):
    return f"s[{b}:{b + n - 1}]"


def mfma(d, a, b, c):
    cs = c if isinstance(c, str) else vr(c, 16)
    return f"v_mfma_f32_32x32x16_bf16 {vr(d, 16)}, {vr(a, 4)}, {vr(b, 4)}, {cs}"


def srd(a, d, lo, nbytes):
    a(f"s_mov_b32 s{d}, s{lo}", f"s_mov_b32 s{d + 1}, s{lo + 1}",
      f"s_mov_b32 s{d + 2}, {nbytes}", f"s_mov_b32 s{d + 3}, 0x20000")


DBG = False
LST = (0,)
ROLE = ["main"]
DBG_MAP = {"main": {0: 2, 3: 3, 5: 4, 6: 5, 9: 6, 15: 7}, "aux": {5: 8, 6: 9, 8: 10, 11: 11, 15: 12}}


HOLD = int(os.environ.get("HOLD", "-99"))


def stamp(a, i, rt=False):
    if i == HOLD and ROLE[0] == "aux":
        a("s_memrealtime s[96:97]")
    if DBG:
        w = DBG_MAP[ROLE[0]].get(i)
        if w is not None:
            a("s_memrealtime s[98:99]", "s_waitcnt lgkmcnt(0)", f"v_writelane_b32 v63, s98, {w}")
            inv = {2: 1, 4: 13, 5: 14, 12: 15}.get(w)
            if inv:
                a("s_not_b32 s98, s98", f"v_writelane_b32 v63, s98, {inv}")
        return
    if not STAMP or i > 15:
        return
    a(f"s_mem{'real' if rt else ''}time s[98:99]", "s_waitcnt lgkmcnt(0)",
      f"v_writelane_b32 v63, s98, {i}")


def lstamp(a, ureg, k):
    if not STAMP or k not in LST or "ks" in EXP:
        return
    a("s_memtime s[98:99]", f"s_lshl_b32 s97, {ureg}, 2", f"s_add_u32 m0, s97, {16 + k}", "s_waitcnt lgkmcnt(0)",
      "v_writelane_b32 v63, s98, m0")


def stamp_out(a):
    if DBG:
        stamp(a, 15)
        a("s_load_dwordx2 s[92:93], s[0:1], 72", "s_waitcnt lgkmcnt(0)", "s_mov_b32 s94, 256", "s_mov_b32 s95, 0x20000",
          "s_mov_b64 exec, 0xfffe", "v_lshlrev_b32 v62, 2, v1", "buffer_atomic_umax v63, v62, s[92:95], 0 offen sc1")
        return
    if not STAMP:
        return
    stamp(a, 14)
    stamp(a, 15, rt=True)
    a("s_mov_b32 s92, s24", "s_mov_b32 s93, s25", f"s_mov_b32 s94, {64 << 20}", "s_mov_b32 s95, 0x20000",
      "s_lshl_b32 s96, s2, 3", "s_add_u32 s96, s96, s3", "s_lshl_b32 s96, s96, 8",
      f"s_add_u32 s96, s96, {OFF_STAMP}", "s_mov_b64 exec, -1", "v_lshlrev_b32 v62, 2, v1",
      "buffer_store_dword v63, v62, s[92:95], s96 offen")


P_X, P_WQKV, P_WO, P_W1, P_B1, P_W2, P_B2, P_OUT, P_DBG, P_WS = 4, 6, 8, 12, 14, 16, 18, 20, 22, 24
SWS, SA, SB, SC, SD = 28, 32, 36, 40, 84


def gen(a):
    name = NAME + "_kernel"
    a.raw(f".globl {name}")
    a.raw(".p2align 8")
    a.raw(f".type {name},@function")
    a.label(name)
    if HOLD == -1:
        a("s_memrealtime s[96:97]")
    a("s_cmp_ge_u32 s2, 256", "s_cbranch_scc1 L_END")
    a("s_load_dwordx16 s[4:19], s[0:1], 0", "s_load_dwordx4 s[20:23], s[0:1], 64",
      "s_load_dwordx2 s[24:25], s[0:1], 80")
    a("v_lshrrev_b32 v2, 6, v0", "v_and_b32 v1, 63, v0", "v_readfirstlane_b32 s3, v2")
    MAP = os.environ.get("MAP", "42")
    if MAP == "81":
        a("s_and_b32 s52, s2, 7", "s_lshr_b32 s53, s2, 3", "s_lshl_b32 s48, s52, 1", "s_and_b32 s27, s53, 1",
          "s_add_u32 s48, s48, s27", "s_lshr_b32 s49, s53, 1", "s_and_b32 s56, s49, 3", "s_and_b32 s55, s48, 7",
          "s_and_b32 s51, s49, 1", "s_cmp_ge_u32 s53, 28", "s_cselect_b32 s50, 7, 6", "s_cselect_b32 s51, s51, 0",
          "s_and_b32 s26, s3, 3")
    elif MAP == "42":
        a("s_and_b32 s52, s2, 7", "s_lshr_b32 s53, s2, 3", "s_lshr_b32 s48, s52, 1", "s_lshl_b32 s48, s48, 2",
          "s_and_b32 s27, s53, 3", "s_add_u32 s48, s48, s27", "s_and_b32 s51, s52, 1", "s_lshl_b32 s49, s51, 3",
          "s_lshr_b32 s27, s53, 2", "s_add_u32 s49, s49, s27", "s_and_b32 s56, s27, 3", "s_and_b32 s55, s48, 7",
          "s_cmp_ge_u32 s53, 28", "s_cselect_b32 s50, 7, 6", "s_cselect_b32 s51, s51, 0", "s_and_b32 s26, s3, 3")
    else:
        a("s_and_b32 s52, s2, 7", "s_lshr_b32 s53, s2, 3",
          "s_lshr_b32 s55, s53, 2", "s_and_b32 s56, s53, 3",
          "s_and_b32 s27, s53, 1", "s_add_u32 s27, s27, 6", "s_bfe_u32 s57, s53, 0x20001",
          "s_cmp_ge_u32 s53, 24", "s_cselect_b32 s55, s27, s55", "s_cselect_b32 s56, s57, s56",
          "s_and_b32 s57, s52, 3", "s_lshl_b32 s27, s57, 1", "s_add_u32 s55, s55, s27", "s_add_u32 s55, s55, 2",
          "s_and_b32 s55, s55, 7", "s_lshr_b32 s48, s52, 2", "s_lshl_b32 s48, s48, 3", "s_add_u32 s48, s48, s55",
          "s_lshl_b32 s49, s57, 2", "s_add_u32 s49, s49, s56",
          "s_and_b32 s51, s56, 1", "s_cmp_ge_u32 s53, 28", "s_cselect_b32 s50, 7, 6", "s_cselect_b32 s51, s51, 0",
          "s_and_b32 s26, s3, 3")
    a("s_sub_u32 s27, s49, 7", "s_cmp_lt_u32 s27, 7", "s_cselect_b32 s54, 5, 0",
      "s_cmp_lt_u32 s49, 5", "s_cselect_b32 s27, 0, 10", "s_lshl_b32 s27, s27, 4", "s_or_b32 s54, s54, s27",
      "s_or_b32 s54, s54, 0xaa00")
    assert MAP == "42"
    a("s_cmp_eq_u32 s49, 7", "s_cselect_b32 s57, 14, s49", "s_cmp_eq_u32 s49, 14", "s_cselect_b32 s57, 7, s57")
    a("s_lshl_b32 s58, s48, 2", "s_add_u32 s58, s58, s26")
    a("v_and_b32 v2, 31, v1", "v_lshrrev_b32 v3, 5, v1")
    if DBG:
        a("v_mov_b32 v63, 0")
    jitter(a)
    a("s_cmp_ge_u32 s3, 4", "s_cbranch_scc1 L_AUX")
    gen_main(a)
    gen_attn(a)
    a.label("L_AUX")
    ROLE[0] = "aux"
    gen_aux(a)
    gen_gemm(a)
    if HOLD != -99:
        a("s_waitcnt vmcnt(0)", "L_HOLD:", "s_sleep 1", "s_memrealtime s[98:99]", "s_waitcnt lgkmcnt(0)",
          "s_sub_u32 s98, s98, s96", "s_cmp_lt_u32 s98, 3000", "s_cbranch_scc1 L_HOLD")
    a.label("L_END")
    a("s_endpgm")
    a.label("L_CODE_END")
    return name


QF = 48
VCHK = 2
MK = 248
APRIO = int(os.environ.get("APRIO", "2"))


def ms(i):
    return sr((list(range(4, 24, 2)) + [40, 42, 44, 92, 94, 100])[i], 2)


def kv_gather(head, kt0, vd, va, vb, st):
    return [f"s_mul_i32 s27, s{head}, 28", f"s_lshr_b32 s{st}, s27, 5", "s_add_u32 s27, s27, 27", "s_lshr_b32 s27, s27, 5",
            f"s_sub_u32 s27, s27, s{st}", f"v_and_b32 v{va}, 1, v1", f"v_mul_u32_u24 v{va}, s27, v{va}",
            f"v_add_u32 v{va}, s{st}, v{va}", f"v_bfe_u32 v{vb}, v1, 1, 2", f"v_min_u32 v{vb}, 2, v{vb}",
            f"v_add_u32 v{vb}, s{kt0}, v{vb}",
            f"v_max_i32 v{vb}, 0, v{vb}", f"v_mul_u32_u24 v{vb}, {FLG_N}, v{vb}", f"v_add_u32 v{vd}, v{va}, v{vb}",
            f"v_bfe_u32 v{vb}, v1, 3, 1", f"v_mul_u32_u24 v{vb}, 14, v{vb}", f"v_add_u32 v{vd}, v{vd}, v{vb}",
            f"v_lshlrev_b32 v{vd}, 7, v{vd}", f"v_add_u32 v{vd}, {OFF_FLG + 14 * 128}, v{vd}"]


def pads(base, tiles, va, vt):
    o = [f"v_mov_b32 v{vt + k}, 0x3f803f80" for k in range(4)]
    o += [f"v_min_u32 v{va}, 2, v1", f"v_lshl_add_u32 v{va}, v{va}, 12, s{base}",
          f"ds_write_b128 v{va}, {vr(vt, 4)} offset:3840", f"v_lshl_add_u32 v{va}, v1, 2, s{base}",
          "s_mov_b32 vcc_lo, 0x55555555", "s_mov_b32 vcc_hi, 0x55555555"]
    for i in range(3):
        o += [f"s_cmp_lt_u32 s{tiles + i}, 0x40000000", "s_cselect_b32 s27, 0, 0xf149", f"v_mov_b32 v{vt + 3}, s27",
              f"v_cndmask_b32 v{vt + i}, 0, v{vt + 3}, vcc", f"ds_write_b32 v{va}, v{vt + i} offset:{1792 + 4096 * i}"]
    return o
PFF = "sc1" if "pfsc1" in EXP else ("nt" if "pfnt" in EXP else "")


def stage_kv(off, lds, vaddr, base, tiles):
    o = []
    for i in range(3):
        o += [f"s_add_u32 m0, s{base}, {i * 4096 + lds}", f"s_add_u32 s27, s{tiles + i}, {off}",
              f"buffer_load_dwordx4 v{vaddr}, {sr(SWS, 4)}, s27 offen sc1 lds", "s_mov_b32 exec_hi, 0xffff",
              f"buffer_load_dwordx4 v{vaddr}, {sr(SWS, 4)}, s27 offen offset:1024 sc1 lds", "s_mov_b32 exec_hi, -1"]
    return o


GC0 = -2.0 * 0.7978845608028654 * 1.4426950408889634
GC1 = GC0 * 0.044715
QSCALE = 28 ** -0.5 * 1.4426950408889634


def gen_main(a):
    X, ACA, ACB, WR, T = 128, 64, 80, 96, 16
    AB, BB = 240, 244
    if "xnorot" in EXP:
        a("s_mov_b32 s56, 0")
    a("v_lshrrev_b32 v8, 3, v1", "v_and_b32 v9, 7, v1", "v_lshrrev_b32 v4, 4, v1",
      "v_xor_b32 v9, v9, v4", "v_mul_u32_u24 v8, 896, v8", "v_lshl_add_u32 v8, v9, 4, v8", "v_xor_b32 v9, 64, v8")
    for k in range(4):
        a(f"s_add_u32 s27, s56, {k}", "s_and_b32 s27, s27, 3", "s_mulk_i32 s27, 7168",
          f"s_add_u32 s27, s27, {4096 - 1024 * k}", f"v_add_u32 v{4 + k}, s27, v{8 + (k & 1)}")
    a(f"s_mul_i32 s59, s58, {RT}", f"s_mul_i32 s60, s3, {SLOT}")
    a("s_waitcnt lgkmcnt(0)")
    stamp(a, 0, rt=True)
    stamp(a, 1)
    a(f"s_sub_u32 s{SA}, s{P_X}, 4096", f"s_subb_u32 s{SA + 1}, s{P_X + 1}, 0",
      f"s_mov_b32 s{SA + 2}, {X_BYTES + 4096}", f"s_mov_b32 s{SA + 3}, 0x20000")
    for g in range(7):
        a(f"s_add_u32 m0, s60, {g * 4096}", f"s_add_u32 s61, s59, {g * 128}",
          f"buffer_load_dwordx4 v4, {sr(SA, 4)}, s61 offen lds")
    pre = []
    pre += ["s_lshl_b32 s27, s56, 3", "v_subrev_u32 v9, s27, v2", "v_and_b32 v9, 31, v9",
            "v_bfe_u32 v8, v9, 1, 3", "v_xor_b32 v8, v8, v3",
            "v_lshlrev_b32 v8, 4, v8", "v_lshl_add_u32 v8, v9, 7, v8", "v_add_u32 v8, s60, v8",
            "v_xor_b32 v9, 32, v8", "v_xor_b32 v10, 64, v8", "v_xor_b32 v11, 96, v8"]
    pre += ["v_bfe_u32 v12, v1, 2, 1", "v_bfe_u32 v13, v1, 3, 1",
            "v_bfe_u32 v14, v1, 1, 1", "v_lshl_add_u32 v13, v13, 1, v14",
            "v_bfe_u32 v14, v1, 4, 1", "v_lshl_add_u32 v13, v14, 2, v13",
            "v_xor_b32 v12, v12, v3", "v_lshl_add_u32 v13, v12, 3, v13",
            "v_and_b32 v14, 1, v1", "v_lshlrev_b32 v14, 4, v14", "v_mov_b32 v15, 0x3f80",
            "v_lshlrev_b32 v14, v14, v15"]
    pre += [f"v_cmp_eq_u32 {sr(64 + 2 * k, 2)}, {k}, v13" for k in range(8)]
    pre += [f"v_cndmask_b32 v{WR + k}, 0, v14, {sr(64 + 2 * k, 2)}" for k in range(8)]
    pre += ["v_and_b32 v13, 3, v1", "v_bfe_u32 v14, v1, 4, 1", "v_lshl_add_u32 v13, v14, 2, v13",
            "v_bfe_u32 v14, v1, 2, 2", "v_lshlrev_b32 v14, 6, v14", "v_lshl_add_u32 v13, v13, 3, v14",
            "v_lshl_add_u32 v12, v3, 10, v13", f"v_add_u32 v12, {L_S2}, v12"]
    pre += ["s_lshl_b32 s70, s52, 1", "s_and_b32 s27, s53, 1", "s_add_u32 s70, s70, s27",
            "s_lshr_b32 s27, s53, 1", "s_lshl_b32 s27, s27, 2", "s_add_u32 s71, s27, s3",
            "s_mul_i32 s73, s3, 3", "s_add_u32 s72, s27, s73", "s_sub_u32 s72, s72, 8",
            "s_lshl_b32 s73, s73, 12", "s_sub_u32 s87, s50, 6", f"s_mul_i32 s87, s87, {L_S1 - L_ATT}",
            f"s_add_u32 s87, s87, {L_ATT}", "s_add_u32 s73, s73, s87", "s_mul_i32 s78, s70, 1792",
            f"s_mul_i32 s74, s71, {RT}", "s_add_u32 s74, s74, s78"]
    for i in range(3):
        pre += [f"s_add_u32 s27, s72, {i}", f"s_mul_i32 s{75 + i}, s27, {RT}", f"s_add_u32 s{75 + i}, s{75 + i}, s78",
                "s_cmp_lt_i32 s27, 0", f"s_cselect_b32 s{75 + i}, 0x40000000, s{75 + i}"]
    pre += kv_gather(70, 72, 56, 13, 14, 79)
    pre += [f"s_mul_i32 s27, s71, {FLG_N}", "v_add_u32 v13, s27, v13", "v_lshlrev_b32 v13, 7, v13",
            f"v_add_u32 v57, {OFF_FLG}, v13", "v_lshlrev_b32 v59, 3, v1"]
    pre += ["s_sub_u32 s86, s50, 1",
            f"s_mov_b32 s{SWS}, s{P_WS}", f"s_mov_b32 s{SWS + 1}, s{P_WS + 1}", f"s_mov_b32 s{SWS + 2}, {WS_BYTES}",
            f"s_mov_b32 s{SWS + 3}, 0x20000",
            "v_mov_b32 v14, 0", "v_mov_b32 v15, 0", "s_mov_b32 s62, 0x3f803f80", "s_mov_b32 s82, 0"]
    def xgrp(g):
        return [f"s_add_u32 m0, s60, {g * 4096}", f"s_add_u32 s61, s59, {g * 128}"] + \
               [f"buffer_load_dwordx4 v{4 + i}, {sr(SA, 4)}, s61 offen offset:{i * 1024} lds" for i in range(1, 4)]

    XA = next((int(e[2:]) for e in EXP if e.startswith('xa')), 3)
    for g in range(XA):
        a(*xgrp(g))
    a(*pre)
    a("v_lshlrev_b32 v13, 7, v1", f"s_mov_b32 s{SB + 3}, 0x20000", "s_cmp_eq_u32 s3, 0", "s_cbranch_scc0 M_T1",
      "s_sub_u32 s80, s2, 196", "s_cmp_lt_u32 s2, 196", "s_cselect_b32 s80, s2, s80",
      f"s_cselect_b32 s{SB}, s{P_W2}, s{P_WO}", f"s_cselect_b32 s{SB + 1}, s{P_W2 + 1}, s{P_WO + 1}",
      f"s_mov_b32 s{SB + 2}, {WO_BYTES}", f"s_cselect_b32 s{SB + 2}, {W2_BYTES}, s{SB + 2}",
      "s_lshl_b32 s80, s80, 13", "s_branch M_TD")
    a.label("M_T1")
    a("s_cmp_eq_u32 s3, 3", "s_cbranch_scc0 M_T2", "s_cmp_eq_u32 s50, 7", "s_cbranch_scc1 M_T3",
      f"s_getpc_b64 {sr(SB, 2)}")
    a.label("M_PC")
    a(f"s_sub_u32 s{SB}, s{SB}, M_PC-{NAME}_kernel", f"s_subb_u32 s{SB + 1}, s{SB + 1}, 0",
      f"s_mov_b32 s{SB + 2}, L_CODE_END-{NAME}_kernel", "s_and_b32 s80, s53, 3", "s_lshl_b32 s80, s80, 13",
      "s_branch M_TD")
    a.label("M_T2")
    a("s_mul_i32 s27, s55, 56", "v_min_u32 v13, 55, v1", "v_add_u32 v13, s27, v13",
      "s_add_u32 s80, s57, 11", "s_sub_u32 s27, s49, 5", "s_cmp_eq_u32 s3, 1", "s_cselect_b32 s80, s27, s80",
      "s_movk_i32 s81, 3584", f"s_mov_b32 s{SB + 2}, {W1_BYTES}", "s_add_u32 s27, s49, 2", "s_cmp_lt_i32 s80, 0",
      "s_cselect_b32 s80, s27, s80", "s_cselect_b32 s81, 2688, s81",
      f"s_cselect_b32 s{SB}, s{P_WQKV}, s{P_W1}", f"s_cselect_b32 s{SB + 1}, s{P_WQKV + 1}, s{P_W1 + 1}",
      f"s_cselect_b32 s{SB + 2}, {WQKV_BYTES}, s{SB + 2}", "s_lshl_b32 s80, s80, 7", "v_mul_u32_u24 v13, s81, v13")
    a("s_branch M_TD")
    a.label("M_T3")
    a("s_lshl_b32 s27, s52, 2", "s_and_b32 s80, s53, 3", "s_add_u32 s27, s27, s80", "s_mul_i32 s27, s27, 14",
      "v_min_u32 v13, 13, v1", "v_add_u32 v13, s27, v13", "v_mul_u32_u24 v13, 3584, v13",
      f"s_mov_b32 s{SB}, s{P_W1}", f"s_mov_b32 s{SB + 1}, s{P_W1 + 1}", f"s_mov_b32 s{SB + 2}, {W1_BYTES}",
      f"s_movk_i32 s80, {27 * 128}")
    a.label("M_TD")
    a("s_lshl_b32 s27, s57, 1", "s_add_u32 s27, s27, 23", "s_add_u32 s84, s51, 54", "s_cmp_eq_u32 s50, 7",
      "s_cselect_b32 s27, s84, s27", f"s_mul_i32 s85, s58, {FLG_N}", "s_add_u32 s85, s85, s27",
      "s_lshl_b32 s85, s85, 7", f"s_add_u32 s85, s85, {OFF_FLG + 42 * 128}", f"s_mul_i32 s84, s58, {ACT_RT}",
      "s_lshl_b32 s27, s27, 11", "s_add_u32 s84, s84, s27", f"s_add_u32 s84, s84, {OFF_ACT}")
    a("v_lshlrev_b32 v124, 2, v3", "v_sub_u32 v124, v2, v124", "v_mov_b32 v125, 0xffff", "v_mov_b32 v126, 0xffff0000")
    for i in range(16):
        a(f"v_cmp_le_i32 {ms(i)}, {(i & 3) + 8 * (i >> 2)}, v124")
    for k in range(8):
        a(f"v_cndmask_b32 v{MK + k}, 0, v125, {ms(2 * k)}", f"v_cndmask_b32 v127, 0, v126, {ms(2 * k + 1)}",
          f"v_or_b32 v{MK + k}, v{MK + k}, v127")
    a("s_lshl_b32 s27, s3, 12", "s_add_u32 s27, s27, s87", "v_add_u32 v124, s27, v59",
      "v_mul_u32_u24 v126, 448, v3", "v_lshl_add_u32 v125, v2, 4, v126", "v_add_u32 v126, 896, v125",
      "v_cmp_gt_u32 vcc, 28, v2", "v_mov_b32 v127, 1792", "s_add_u32 s27, s27, 2048",
      "v_cndmask_b32 v125, v127, v125, vcc", "v_cndmask_b32 v126, v127, v126, vcc",
      "v_add_u32 v125, s27, v125", "v_add_u32 v126, s27, v126")
    stamp(a, 2)

    def stats(g):
        for r in range(X + 16 * g, X + 16 * g + 16):
            a(f"v_dot2c_f32_bf16 v14, s62, v{r}", f"v_dot2c_f32_bf16 v15, v{r}, v{r}")

    for g in range(7):
        a(f"s_waitcnt vmcnt({3 * (min(7, g + XA) - g - 1)})")
        if g == 0 and "st1" in EXP:
            stamp(a, 2)
        for q in range(4):
            a(f"ds_read_b128 {vr(X + 16 * g + 4 * q, 4)}, v{8 + q} offset:{g * 4096}")
        if g + XA < 7:
            a(*xgrp(g + XA))
        if g:
            a("s_waitcnt lgkmcnt(4)")
            stats(g - 1)
    a("s_waitcnt lgkmcnt(0)")
    stamp(a, 3)
    a("s_barrier")
    stats(6)
    a("s_nop 2", "v_mov_b32 v4, v14", "v_mov_b32 v5, v15", "s_nop 1",
      "v_permlane32_swap_b32 v4, v14", "v_permlane32_swap_b32 v5, v15",
      "v_add_f32 v14, v4, v14", "v_add_f32 v15, v5, v15",
      f"v_mul_f32 v14, {f32(1 / 448)}, v14", f"v_mul_f32 v15, {f32(1 / 448)}, v15",
      "v_cvt_pk_bf16_f32 v4, v14, v14", "v_fma_f32 v15, -v14, v14, v15",
      "v_lshlrev_b32 v4, 16, v4", "v_max_f32 v15, 0, v15", "v_xor_b32 v4, 0x80000000, v4")
    for i in range(16):
        a(f"v_mov_b32 v{T + i}, v4")
    a("s_nop 1")
    t0 = [168, 169, 0, 1, 168, 169, 0, 0]
    t1 = [112, 113, 56, 57, 112, 113, 1, 0]
    pk = lambda b: b[0] | b[1] << 8 | b[2] << 16 | b[3] << 24
    fin = ["v_cvt_pk_bf16_f32 v15, v15, v15", "v_lshlrev_b32 v15, 16, v15", f"v_add_f32 v15, {f32(1e-5)}, v15",
           "v_cvt_pk_bf16_f32 v15, v15, v15", "v_lshlrev_b32 v15, 16, v15", "v_sqrt_f32 v15, v15",
           "s_lshl_b32 s27, s3, 8",
           "v_cvt_pk_bf16_f32 v5, v15, v15", "v_lshlrev_b32 v15, 16, v5", "v_rcp_f32 v14, v15",
           "v_and_b32 v5, 0xffff, v5", "v_cmp_eq_u32 vcc, 0, v3", f"s_add_u32 s27, s27, {L_STAT}",
           "v_lshl_add_u32 v4, v1, 2, s27", "v_cndmask_b32 v6, v15, v14, vcc", f"v_cndmask_b32 v{BB}, 0, v5, vcc",
           "ds_write_b32 v4, v6",
           f"v_mov_b32 v{AB + 1}, 0", f"v_mov_b32 v{AB + 2}, 0", f"v_mov_b32 v{AB + 3}, 0",
           f"v_mov_b32 v{BB + 1}, 0", f"v_mov_b32 v{BB + 2}, 0", f"v_mov_b32 v{BB + 3}, 0",
           "v_lshlrev_b32 v10, 1, v2", f"v_add_u32 v10, {L_BIAS}, v10",
           "s_lshl_b32 s83, s3, 13", f"v_add_u32 v8, {t0[0] * 512}, v12", "s_mov_b32 s68, 0"]
    assert len(fin) == 28
    late = [f"s_mov_b32 s64, {pk(t0[1:5])}", f"s_mov_b32 s65, {pk(t0[5:8] + [0])}",
            f"s_mov_b32 s66, {pk(t1[0:4])}", f"s_mov_b32 s67, {pk(t1[4:8])}",
            "s_mov_b32 s69, s54", f"v_mul_f32 v7, {f32(GC0)}, v14", "v_mul_f32 v6, v14, v14", "v_mul_f32 v6, v6, v14",
            f"v_mul_f32 v6, {f32(GC1)}, v6"]
    CB = (ACA, ACB, 32)

    def cv(p, h):
        d = CB[p % 3]
        return [f"v_cvt_pk_bf16_f32 v{X + 8 * p + k}, v{d + 2 * k}, v{d + 2 * k + 1}" for k in range(4 * h, 4 * h + 4)]

    for p in range(16):
        d = CB[p % 3]
        if p < 14:
            a(mfma(d, WR, X + 8 * p, T))
        a(*(cv(p - 2, 0) if p >= 2 else fin[14 * p:14 * p + 7]))
        if p < 14:
            a(mfma(d, WR + 4, X + 8 * p + 4, d))
        a(*(cv(p - 2, 1) if p >= 2 else fin[14 * p + 7:14 * p + 14]))
        if 2 <= p < 2 + len(late):
            a(late[p - 2])
        if p == 14:
            a("s_nop 1")

    PD = 4

    def ring(j):
        return WR + 4 * (j % 7)

    def rd(j):
        jj = j % 28
        base = "v8" if jj < 14 else "v9"
        r = ring(j)
        return [f"ds_read_b64_tr_b16 {vr(r, 2)}, {base} offset:{(jj % 14) * 2048}",
                f"ds_read_b64_tr_b16 {vr(r + 2, 2)}, {base} offset:{(jj % 14) * 2048 + 256}"]

    accw = [f"ds_write_addtid_b32 v{ACB + k} offset:{k * 256}" for k in range(16)]
    touch = f"buffer_load_dword v60, v13, {sr(SB, 4)}, s80 offen"
    MT = next((int(e[2:]) for e in EXP if e.startswith('mt')), 1)
    a("s_cmp_eq_u32 s3, 0", f"s_cselect_b32 s81, {MT}, s86", "s_cbranch_scc1 M_NOT", touch)
    a.label("M_NOT")
    stamp(a, 4)
    a("s_waitcnt lgkmcnt(0)", "s_barrier")
    stamp(a, 5)
    stamp(a, 12, rt=True)
    if "prio" in EXP:
        a("s_setprio 2")
    if "zero" in EXP:
        for r in range(X, X + 112):
            a(f"v_mov_b32 v{r}, 0")
    for j in range(PD):
        a(*rd(j))
    if "align" in EXP:
        a.raw(".p2align 6")
    a.label("M_TILE")
    a("s_cmp_eq_u32 s68, s81", "s_cbranch_scc1 M_SIDE")
    a.label("M_SIDER")
    jitter(a)
    a("s_mov_b32 m0, s83", "s_bitcmp1_b32 s69, 0", "s_cbranch_scc1 M_V")
    WPOS = {1: (0, 3), 2: (3, 6), 3: (6, 9), 4: (9, 12), 5: (12, 14), 6: (14, 16)}

    pfs = []

    def body(tag):
        q = [f for f in range(PD) for _ in range(2)]
        for j in range(28):
            if j % 2 == 0:
                q = q[max(i for i, f in enumerate(q) if f == j + 1) + 1:][-15:]
                a(f"s_waitcnt lgkmcnt({len(q)})")
            d = ACB if j == 27 else ACA
            ops = (X + 4 * j, ring(j)) if tag == "V" else (ring(j), X + 4 * j)
            if j == 0 and tag == "N":
                a("s_bitcmp1_b32 s69, 1", "s_cbranch_scc0 M_NOB", mfma(ACA, AB, BB, "0"),
                  mfma(ACA, *ops, ACA), "s_branch M_NOB2")
                a.label("M_NOB")
                a(mfma(ACA, *ops, "0"))
                a.label("M_NOB2")
            else:
                a(mfma(d, *ops, "0" if j == 0 else ACA))
            if j + PD == 14:
                assert "w" not in q
                a("s_barrier")
            if j in WPOS and "noaccw" not in EXP:
                a(*accw[WPOS[j][0]:WPOS[j][1]])
                q += ["w"] * (WPOS[j][1] - WPOS[j][0])
            a(*rd(j + PD))
            q += [j + PD] * 2
            if j == 0:
                a("s_and_b32 s27, s66, 0xff", "s_lshr_b64 s[66:67], s[66:67], 8",
                  "v_lshl_add_u32 v9, s27, 9, v12", "v_add_u32 v10, 64, v10")
            if j == 12:
                a("s_and_b32 s27, s64, 0xff", "s_lshr_b64 s[64:65], s[64:65], 8",
                  "v_lshl_add_u32 v8, s27, 9, v12", "s_xor_b32 s83, s83, 4096")
            if j + PD == 27:
                a(f"ds_read_u16 v{AB}, v10")
                q += ["b"]
        a("s_lshr_b32 s69, s69, 2", "s_add_u32 s68, s68, 1", "s_cmp_lt_u32 s68, s50", "s_cbranch_scc1 M_TILE")

    body("N")
    a("s_branch M_DONE")
    a.label("M_SIDE")
    a("s_cmp_eq_u32 s68, s86", "s_cbranch_scc1 M_SIDE2", touch, "s_mov_b32 s81, s86", "s_branch M_SIDER")
    a.label("M_SIDE2")
    a(f"v_mov_b32 v61, {L_CNT + 64}", "ds_read_b32 v61, v61", "s_mov_b64 exec, 0xffff",
      f"buffer_load_dword v60, v56, {sr(SWS, 4)}, 0 offen sc1", "s_mov_b64 exec, -1", "s_branch M_SIDER")
    a.label("M_V")
    body("V")
    a.label("M_DONE")
    jitter(a)
    stamp(a, 6)
    stamp(a, 13, rt=True)
    lds_arrive(a, 2, 4, 5)
    qld = [f"buffer_load_dwordx2 {vr(QF + 2 * g, 2)}, v59, {sr(SWS, 4)}, s74 offen offset:{g * 512} sc1" for g in range(4)]
    a("v_readfirstlane_b32 s47, v61", "s_setprio 3", "s_waitcnt vmcnt(0)", "v_cmp_ne_u32 s[90:91], s47, v60",
      "s_mov_b64 exec, 3", f"buffer_load_dword v61, v57, {sr(SWS, 4)}, 0 offen sc1", "s_mov_b64 exec, -1")
    a("v_lshlrev_b32 v4, 4, v1", "s_mov_b32 s83, 1", "s_and_b32 s82, s90, 0xffff", "s_cbranch_scc1 M_NOK", *stage_kv(OFF_K, 0, 4, 73, 75), *stage_kv(OFF_V, 2048, 4, 73, 75),
      "s_waitcnt vmcnt(12)", "v_cmp_ne_u32 s[88:89], s47, v61", "s_nop 0", "s_and_b32 s83, s88, 3",
      "s_cbranch_scc1 M_NOK", *qld)
    a.label("M_NOK")
    for h in range(2):
        t = [T + 8 * h + k for k in range(8)]
        c = [ACB + 8 * h + k for k in range(8)]
        a(*[f"v_mul_f32 v{t[k]}, v{c[k]}, v{c[k]}" for k in range(8)])
        a(*[f"v_fma_f32 v{t[k]}, v{t[k]}, v6, v7" for k in range(8)])
        a(*[f"v_mul_f32 v{t[k]}, v{c[k]}, v{t[k]}" for k in range(8)])
        a(*[f"v_exp_f32 v{t[k]}, v{t[k]}" for k in range(8)])
        a(*[f"v_fma_f32 v{t[k]}, v{t[k]}, v15, v15" for k in range(8)])
        a(*[f"v_rcp_f32 v{t[k]}, v{t[k]}" for k in range(8)])
        a(*[f"v_mul_f32 v{t[k]}, v{c[k]}, v{t[k]}" for k in range(8)])
        a(*[f"v_cvt_pk_bf16_f32 v{32 + 4 * h + k}, v{t[2 * k]}, v{t[2 * k + 1]}" for k in range(4)])
        a(f"buffer_store_dwordx4 {vr(32 + 4 * h, 4)}, v4, {sr(SWS, 4)}, s84 offen offset:{1024 * h} sc1")
    a("s_setprio 0")


JIT = [0]


def jitter(a):
    if "jitter" not in EXP:
        return
    JIT[0] += 1
    n = JIT[0]
    a("s_memtime s[98:99]", "s_waitcnt lgkmcnt(0)", "s_lshl_b32 s99, s2, 3", "s_add_u32 s99, s99, s3",
      f"s_mul_i32 s99, s99, {2654435761 if n & 1 else 40503}", "s_xor_b32 s98, s98, s99", "s_lshr_b32 s98, s98, 3",
      "s_and_b32 s99, s98, 7", "s_cmp_eq_u32 s99, 0", f"s_cbranch_scc0 J_{n}X", "s_bfe_u32 s98, s98, 0x50003")
    a.label(f"J_{n}")
    a("s_sleep 8", "s_sub_u32 s98, s98, 1", f"s_cbranch_scc0 J_{n}")
    a.label(f"J_{n}X")


def lds_arrive(a, idx, vaddr, vtmp, val="1"):
    a(f"v_mov_b32 v{vaddr}, {L_CNT + 4 * idx}", f"v_mov_b32 v{vtmp}, {val}", "s_mov_b64 exec, 1",
      f"ds_add_u32 v{vaddr}, v{vtmp}", "s_mov_b64 exec, -1")


def lds_wait(a, tag, vaddr, vtmp, n=4):
    a(f"s_mov_b32 s27, {SPIN_MAX * 64}", f"s_branch {tag}_L")
    a.label(tag)
    a("s_sleep 1")
    a.label(tag + "_L")
    a(f"ds_read_b32 v{vtmp}, v{vaddr}", "s_waitcnt lgkmcnt(0)", f"v_readfirstlane_b32 s88, v{vtmp}",
      "s_sub_u32 s27, s27, 1", f"s_cbranch_scc1 {tag}_X", f"s_cmp_lt_u32 s88, {n}", f"s_cbranch_scc1 {tag}")
    a.label(tag + "_X")


def poll(a, tag, vaddr, nl, vtmp=60):
    a(f"s_mov_b32 s27, {SPIN_MAX}", f"s_mov_b64 exec, {(1 << nl) - 1}", f"s_branch {tag}_L")
    a.label(tag)
    a("s_sleep 3")
    a.label(tag + "_L")
    a(f"buffer_load_dword v{vtmp}, v{vaddr}, {sr(SWS, 4)}, 0 offen sc1", "s_waitcnt vmcnt(0)",
      f"v_cmp_ne_u32 s[88:89], s47, v{vtmp}", "s_sub_u32 s27, s27, 1", f"s_cbranch_scc1 {tag}_X",
      "s_cmp_lg_u64 s[88:89], 0", f"s_cbranch_scc1 {tag}")
    a.label(tag + "_X")
    a("s_mov_b64 exec, -1")


def epoch_issue(a, vz, vtmp):
    srd(a, SC, P_DBG, 256)
    a(f"v_mov_b32 v{vz}, 0", f"buffer_load_dword v{vtmp}, v{vz}, {sr(SC, 4)}, 0 offen sc1")


def epoch_wait(a, tag, vz, vtmp, n0):
    a(f"s_mov_b32 s27, {SPIN_MAX}", f"s_waitcnt vmcnt({n0})", f"s_branch {tag}_L")
    a.label(tag)
    a("s_sleep 3", f"buffer_load_dword v{vtmp}, v{vz}, {sr(SC, 4)}, 0 offen sc1", "s_waitcnt vmcnt(0)")
    a.label(tag + "_L")
    a(f"v_readfirstlane_b32 s47, v{vtmp}", "s_sub_u32 s27, s27, 1", f"s_cbranch_scc1 {tag}_X",
      "s_cmp_eq_u32 s47, 0", f"s_cbranch_scc1 {tag}")
    a.label(tag + "_X")


def gen_attn(a):
    KF, OA, CN, SM, VF = 128, 200, 216, 232, 16
    SB3 = (64, 80, 96)
    PFR = (32, 40, 112)
    qld = [f"buffer_load_dwordx2 {vr(QF + 2 * g, 2)}, v59, {sr(SWS, 4)}, s74 offen offset:{g * 512} sc1" for g in range(4)]
    pubm = ["v_mov_b32 v10, s47", "v_mov_b32 v11, 0", "s_mov_b64 exec, 1",
            f"buffer_store_dword v10, v11, {sr(SWS, 4)}, s85 offen sc1", "s_mov_b64 exec, -1"]
    vstage = stage_kv(OFF_V, 2048, 4, 73, 75)
    a(*pads(73, 75, 12, 8), "s_waitcnt vmcnt(0)", *pubm, "s_cmp_eq_u32 s82, 0", "s_cbranch_scc1 A_KOK")
    poll(a, "A_PK", 56, 16)
    a(*stage_kv(OFF_K, 0, 4, 73, 75), *vstage, "s_waitcnt vmcnt(0)")
    a.label("A_KOK")
    a("s_waitcnt lgkmcnt(0)")
    lds_arrive(a, 0, 8, 9)
    a("s_cmp_eq_u32 s83, 0", "s_cbranch_scc1 A_QOK")
    poll(a, "A_PQ", 57, 2)
    a(*qld, "s_waitcnt vmcnt(0)")
    a.label("A_QOK")
    a("v_cmp_eq_u32 vcc, 0, v3", "v_mov_b32 v5, 0x3f80", f"v_mov_b32 v15, {f32(-3e38)}",
      f"v_cndmask_b32 v{QF + 6}, v5, v{QF + 6}, vcc", f"v_cndmask_b32 v{QF + 7}, 0, v{QF + 7}, vcc")
    stamp(a, 8)
    a(f"s_setprio {APRIO}")
    lds_wait(a, "A_LB0", 8, 9)
    stamp(a, 9)
    TL = [0, 8, 1, 2, 3, 4, 5, 6, 7]

    def kread(n):
        i = TL[n]
        return [f"ds_read_b64 {vr(KF + 8 * i + 2 * g, 2)}, v124 offset:{(8 - i) * 4096 + g * 512}" for g in range(4)]

    def smm(i, s, c):
        return [mfma(s, KF + 8 * i, QF, c), mfma(s, KF + 8 * i + 4, QF + 4, s)]

    def smax(s):
        return [f"v_max3_f32 v15, v{s + 2 * k}, v{s + 2 * k + 1}, v15" for k in range(8)]

    p1buf = [SM, CN] + [SB3[n % 3] for n in range(7)]
    merge = [f"v_cndmask_b32 v{SM + k}, v{CN + k}, v{SM + k}, {ms(k)}" for k in range(16)]
    work = {0: ["s_nop 1"] * 2, 1: ["s_nop 1"] * 2, 2: ["s_nop 1"] * 4, 3: merge[:12], 4: merge[12:] + smax(p1buf[2]),
            5: smax(p1buf[3]) + smax(SM)[:4], 6: smax(p1buf[4]) + smax(SM)[4:]}
    a(*kread(0), *kread(1), *kread(2))
    for n in range(11):
        mx = work[n] if n in work else smax(p1buf[n - 2])
        h = len(mx) // 2
        if n < 9:
            mm = smm(TL[n], p1buf[n], "0")
            a(f"s_waitcnt lgkmcnt({4 * (min(8, n + 2) - n)})", mm[0])
            if n + 3 <= 8:
                a(*kread(n + 3))
            a(*mx[:h], mm[1], *mx[h:])
        else:
            if n == 10:
                a("s_nop 1")
            a(*mx)
    stamp(a, 10)
    a("v_mov_b32 v8, v15", "s_nop 1", "v_permlane32_swap_b32 v8, v15", "v_max_f32 v15, v8, v15",
      "v_xor_b32 v14, 0x80000000, v15")
    for i in range(16):
        a(f"v_mov_b32 v{CN + i}, v14")

    def vread(i, b):
        return [f"ds_read_b128 {vr(b, 4)}, v125 offset:{(8 - i) * 4096}",
                f"ds_read_b128 {vr(b + 4, 4)}, v126 offset:{(8 - i) * 4096}"]

    def pexp(s, p):
        o = []
        for h in range(2):
            o += [f"v_exp_f32 v{s + 8 * h + k}, v{s + 8 * h + k}" for k in range(8)]
            o += [f"v_cvt_pk_bf16_f32 v{p + 4 * h + k}, v{s + 8 * h + 2 * k}, v{s + 8 * h + 2 * k + 1}"
                  for k in range(4)]
        return o

    PD_, PO_ = KF, KF + 64
    pvq = [(0, PD_), (8, PO_)] + [(i, PFR[i % 3]) for i in range(1, 8)]
    vb = lambda n: VF + 8 * (n & 1)

    def pv(n):
        p = pvq[n][1]
        return [mfma(OA, vb(n), p, "0" if n == 0 else OA), mfma(OA, vb(n) + 4, p + 4, OA)]

    plan = {1: [0, 1], 2: [2], 3: [3], 4: [4], 5: [5], 6: [6], 7: [7]}
    for b in range(8):
        if b == 0:
            ex = [f"v_sub_f32 v{SM + k}, v{SM + k}, v15" for k in range(16)] + pexp(SM, PO_)
            ex += [x for k in range(8) for x in (f"v_and_b32 v{PD_ + k}, v{MK + k}, v{PO_ + k}",
                                                 f"v_xor_b32 v{PO_ + k}, v{PD_ + k}, v{PO_ + k}")]
        else:
            ex = pexp(SB3[b % 3], PFR[b % 3])
        seq = []
        if b < 7:
            seq += [[m] for m in smm(b + 1, SB3[(b + 1) % 3], CN)]
        if b == 0:
            a(*vread(pvq[0][0], vb(0)), *vread(pvq[1][0], vb(1)))
        for n in plan.get(b, []):
            pp = pv(n)
            seq += [["s_waitcnt lgkmcnt(2)", pp[0]], [pp[1]] + vread(pvq[n + 2][0], vb(n)) if n + 2 < 9 else [pp[1]]]
        if b == 7:
            seq += [["s_waitcnt lgkmcnt(0)", pv(8)[0]]]
        step = 24 // len(seq)
        ins = {(2 if b == 0 else 0) + i * (8 if b == 0 else step): x for i, x in enumerate(seq)}
        for k, e in enumerate(ex):
            a(*ins.get(k, []))
            a(e)
    a("s_nop 1", pv(8)[1])
    a.label("A_FIN")
    jitter(a)
    stamp(a, 11)
    PF = 32
    a(f"s_mul_i32 s41, s71, {ACT_RT}", "s_lshl_b32 s42, s70, 11", "s_add_u32 s41, s41, s42",
      f"s_add_u32 s41, s41, {OFF_ACT + 112 * 1024}", f"s_mul_i32 s42, s71, {FLG_RT}", "s_lshl_b32 s27, s70, 7",
      "s_add_u32 s42, s42, s27", f"s_add_u32 s42, s42, {OFF_FLG + 98 * 128}",
      "v_mov_b32 v10, s47", "v_mov_b32 v11, 0", "s_nop 1")
    a(f"v_mov_b32 v8, v{OA + 12}", f"v_mov_b32 v9, v{OA + 12}", "s_nop 1", "v_permlane32_swap_b32 v8, v9",
      "v_rcp_f32 v9, v9", "s_nop 0")
    for h in range(2):
        for i in range(8 * h, 8 * h + 8):
            a(f"v_mul_f32 v{OA + i}, v9, v{OA + i}")
        for k in range(4 * h, 4 * h + 4):
            a(f"v_cvt_pk_bf16_f32 v{PF + k}, v{OA + 2 * k}, v{OA + 2 * k + 1}")
        if h:
            a(f"v_cndmask_b32 v{PF + 6}, 0, v{PF + 6}, vcc", f"v_cndmask_b32 v{PF + 7}, 0, v{PF + 7}, vcc")
        a(f"buffer_store_dwordx4 {vr(PF + 4 * h, 4)}, v4, {sr(SWS, 4)}, s41 offen offset:{1024 * h} sc1")
    a("s_waitcnt vmcnt(0)", "s_mov_b64 exec, 1",
      f"buffer_store_dword v10, v11, {sr(SWS, 4)}, s42 offen sc1", "s_mov_b64 exec, -1")
    stamp_out(a)
    a("s_endpgm")


G_R = 10
G_RW = 12
G_RES = 192
G_P1 = 3
HLEAD = 3
G_MW = 9
GX, GWO, GW2, GOUT = 4, 8, 16, 20


def publish(reg, off=0):
    return ["s_mov_b64 exec, 1", f"buffer_store_dword v58, v59, {sr(SWS, 4)}, s{reg} offen offset:{off} sc1",
            "s_mov_b64 exec, -1"]


HCHK = eval(os.environ.get('HCHK', '{4: (2, 24), 16: (10, 28)}'))
OCHK = eval(os.environ.get('OCHK', '(21, 26)'))
AMAX = int(os.environ.get('AMAX', '2'))
BURST = int(os.environ.get('BURST', '10'))
BAR = int(os.environ.get('BAR', '16'))
XPRIO = int(os.environ.get('XPRIO', '2'))
PUBD = int(os.environ.get('PUBD', '3'))
PUBK = int(os.environ.get('PUBK', '2'))


KORD = [0, 2, 1, 3, 4, 5, 6, 8, 10, 7, 9, 11, 12, 13]


KT = sum(n << (4 * i) for i, n in enumerate(KORD))


def kpos(k):
    n = KORD[k >> 1]
    return 16 * (n >> 1) + 2 * (n & 1) + (k & 1)


def slot(k):
    sl = k % G_RW
    if sl < 4:
        return 0, sl * 2048
    return 1, (L_S0 - L_RING + (sl - 4) * 2048) if sl < 8 else (sl - 8) * 2048


def dma_w(k):
    up, off = slot(k)
    src, w = wsrc(k)
    return [f"s_add_u32 m0, s{14 if up else 65}, {off}", src, f"buffer_load_dwordx4 v32, {sr(w, 4)}, s27 offen lds",
            f"buffer_load_dwordx4 v33, {sr(w, 4)}, s27 offen offset:1024 lds"]


def areg(k):
    return (16 + 8 * (k % G_R)) if (k % G_R) < 2 else (128 + 8 * (k % G_R - 2))


def issue_a(k, b0=44, b1=45):
    r = areg(k)
    off = (k & 1) * 1024
    o = []
    if k & 1 == 0:
        o = [f"s_add_u32 s70, s{b0}, {kpos(k) * 1024}", f"s_add_u32 s71, s{b1}, {kpos(k) * 1024}"]
    return o + [f"buffer_load_dwordx4 {vr(r, 4)}, v13, {sr(SWS, 4)}, s70 offen offset:{off} sc1",
                f"buffer_load_dwordx4 {vr(r + 4, 4)}, v13, {sr(SWS, 4)}, s71 offen offset:{off} sc1"]


def wsrc(k):
    if k < 28:
        return f"s_add_u32 s27, s12, {kpos(k) * 16 * 896}", GW2
    kk = k - 28
    return f"s_add_u32 s27, s13, {((kk >> 1) * 28 + (kk & 1) * 16) * 896}", GWO


PK0 = G_RW
PK1 = G_RW + 16
NA1 = int(os.environ.get('NA1', '4'))
NPA = int(os.environ.get('NPA', '4'))


def preg(k):
    if k < NPA:
        return 96 + 8 * k if k < 4 else 144 + 8 * (k - 4)
    return 192 + 8 * ((k - PK0) % 8)


def park_w(k):
    src, w = wsrc(k)
    return [src, f"buffer_load_dwordx4 {vr(preg(k), 4)}, v32, {sr(w, 4)}, s27 offen",
            f"buffer_load_dwordx4 {vr(preg(k) + 4, 4)}, v33, {sr(w, 4)}, s27 offen offset:1024"]


PSCHED = [int(x) for x in os.environ.get("PS", "2,1,1,4,4").split(",")]
PORDER = list(range(NPA)) + list(range(PK0, PK0 + 8))


def gen_aux(a):
    AC, T, P = 64, 16, 48
    SWQ, SW1 = SA, SB
    a("s_setprio 3", "s_add_u32 s59, s49, 7", "s_sub_u32 s27, s49, 14", "s_cmp_ge_u32 s49, 14",
      "s_cselect_b32 s59, s27, s59", "s_lshl_b32 s69, s59, 7", "s_mul_i32 s27, s55, 56",
      "v_min_u32 v16, 55, v1", "v_add_u32 v16, s27, v16", "v_mul_u32_u24 v17, 2688, v16",
      "s_add_u32 s60, s49, 2", "s_sub_u32 s27, s49, 5",
      "s_cmp_lt_u32 s49, 5", "s_cselect_b32 s60, s60, s27", "s_add_u32 s61, s57, 11", "v_lshlrev_b32 v12, 2, v1")
    if "ct0" in EXP:
        a("s_cmp_lt_u32 s53, 4", "s_cbranch_scc0 X_CT", "s_cmp_eq_u32 s26, 1", "s_cbranch_scc0 X_CT",
          f"s_getpc_b64 {sr(SC, 2)}")
        a.label("X_PC")
        a(f"s_sub_u32 s{SC}, s{SC}, X_PC-{NAME}_kernel", f"s_subb_u32 s{SC + 1}, s{SC + 1}, 0",
          f"s_mov_b32 s{SC + 2}, L_CODE_END-{NAME}_kernel", f"s_mov_b32 s{SC + 3}, 0x20000", "s_lshl_b32 s27, s53, 13",
          "v_lshlrev_b32 v19, 7, v1", f"buffer_load_dword v19, v19, {sr(SC, 4)}, s27 offen")
        a.label("X_CT")
    a("s_waitcnt lgkmcnt(0)")
    stamp(a, 0, rt=True)
    stamp(a, 1)
    srd(a, SWQ, P_WQKV, WQKV_BYTES)
    if "notouch0" not in EXP:
        a("s_cmp_eq_u32 s26, 0", "s_cbranch_scc0 X_WD", f"buffer_load_dword v17, v17, {sr(SWQ, 4)}, s69 offen")
    a.label("X_WD")
    srd(a, SW1, P_W1, W1_BYTES)
    srd(a, SWS, P_WS, WS_BYTES)
    a("s_lshl_b32 s27, s2, 3", "s_add_u32 s27, s27, s3", "s_cmp_eq_u32 s27, 7", "s_cbranch_scc0 X_NOEP")
    srd(a, SC, P_DBG, 256)
    a(f"v_mov_b32 v20, {OFF_EPOCH}", "v_mov_b32 v22, 0", "s_mov_b64 exec, 1",
      f"buffer_load_dword v21, v20, {sr(SWS, 4)}, 0 offen sc1", "s_waitcnt vmcnt(0)",
      "v_add_u32 v21, 1, v21", "v_max_u32 v21, 1, v21",
      f"buffer_store_dword v21, v22, {sr(SC, 4)}, 0 offen sc1",
      f"buffer_store_dword v21, v20, {sr(SWS, 4)}, 0 offen sc1", "s_mov_b64 exec, -1")
    a.label("X_NOEP")
    a("s_cmp_eq_u32 s3, 5", "s_cbranch_scc0 X_PRE")
    srd(a, SC, P_B1, 3584)
    a("s_mov_b32 exec_hi, 0", f"s_mov_b32 m0, {L_BIAS + 128}", "s_lshl_b32 s27, s60, 7",
      f"buffer_load_dword v12, {sr(SC, 4)}, s27 offen lds",
      f"s_mov_b32 m0, {L_BIAS + 256}", "s_lshl_b32 s27, s61, 7",
      f"buffer_load_dword v12, {sr(SC, 4)}, s27 offen lds",
      f"s_mov_b32 m0, {L_BIAS + 384}", "s_lshl_b32 s27, s51, 6", f"s_add_u32 s27, s27, {27 * 128}",
      f"buffer_load_dword v12, {sr(SC, 4)}, s27 offen lds", "s_mov_b32 exec_hi, -1",
      f"v_add_u32 v20, {L_CNT}, v12", "v_mov_b32 v21, 0", "ds_write_b32 v20, v21")
    a.label("X_PRE")
    a(f"s_setprio {1 if 'auxprio' in EXP else 0}")
    a("v_bfe_u32 v15, v1, 2, 3", "v_lshlrev_b32 v13, 6, v3", "v_and_b32 v14, 3, v1", "v_lshl_add_u32 v13, v14, 4, v13",
      "v_mul_u32_u24 v4, 2688, v15", "v_add_u32 v4, v4, v13", "v_mul_u32_u24 v8, 3584, v15", "v_add_u32 v8, v8, v13")
    for k in range(1, 4):
        a(f"v_add_u32 v{4 + k}, {k * (8 * 2688 - 1024)}, v4", f"v_add_u32 v{8 + k}, {k * (8 * 3584 - 1024)}, v8")
    a(f"s_mul_i32 s27, s58, {FLG_RT}", f"s_add_u32 s27, s27, {OFF_FLG}", "s_lshl_b32 s62, s59, 8",
      "s_add_u32 s62, s62, s27", "s_lshl_b32 s64, s61, 8", "s_add_u32 s64, s64, s27", f"s_add_u32 s64, s64, {42 * 128}",
      "s_lshl_b32 s63, s60, 8", "s_add_u32 s63, s63, s27", f"s_add_u32 s27, s63, {42 * 128}",
      "s_cmp_lt_u32 s49, 5", "s_cselect_b32 s63, s63, s27")
    a(f"s_mul_i32 s66, s26, {56 * 2688}", f"s_mul_i32 s67, s26, {56 * 3584}", "s_mul_i32 s68, s26, 7168",
      "v_lshlrev_b32 v13, 4, v1", "v_lshlrev_b32 v14, 3, v1")
    a(f"s_mul_i32 s76, s58, {RT}", f"s_mul_i32 s77, s58, {ACT_RT}", f"s_add_u32 s77, s77, {OFF_ACT}",
      f"s_add_u32 s78, s76, {OFF_V}",
      "s_lshl_b32 s72, s59, 12", f"s_add_u32 s27, s72, {OFF_K - 7 * 4096}", "s_cmp_ge_u32 s59, 7",
      "s_cselect_b32 s72, s27, s72", "s_add_u32 s72, s72, s76",
      "s_sub_u32 s27, s59, 14", "s_lshl_b32 s27, s27, 10", "s_add_u32 s27, s27, s78",
      "s_cmp_ge_u32 s59, 14", "s_cselect_b32 s72, s27, s72",
      "s_lshl_b32 s74, s61, 12", "s_add_u32 s74, s74, s77",
      "s_lshl_b32 s73, s60, 12", "s_cmp_lt_u32 s49, 5", "s_cselect_b32 s27, s76, s77", "s_add_u32 s73, s73, s27",
      "v_mul_u32_u24 v15, 448, v3", "v_lshl_add_u32 v15, v2, 4, v15", "s_movk_i32 s79, 1344",
      "s_lshl_b32 s27, s26, 13", "v_add_u32 v57, s27, v12", "v_add_u32 v56, 4096, v57", "v_mov_b32 v59, 0")
    gemm_setup(a)

    def dma(ffn, src, slot):
        vb, pitch, w, wo = (8, 3584, SW1, 67) if ffn else (4, 2688, SWQ, 66)
        o = [f"s_add_u32 m0, s68, {slot}", f"s_add_u32 s27, {src}, s{wo}"]
        o += [f"buffer_load_dwordx4 v{vb + k}, {sr(w, 4)}, s27 offen offset:{k * 1024} lds" for k in range(4)]
        o += ["s_add_u32 m0, m0, 4096", f"s_add_u32 s27, s27, {32 * pitch}"]
        o += [f"buffer_load_dwordx4 v{vb + k}, {sr(w, 4)}, s27 offen offset:{k * 1024} lds" for k in range(3)]
        return o

    def dma2(tag, slot, half):
        a("s_cmp_lt_u32 s49, 5", f"s_cbranch_scc0 {tag}F", f"s_add_u32 s83, s71, {half * 224 * 2688}",
          *dma(False, "s83", slot), f"s_branch {tag}D")
        a.label(tag + "F")
        a(f"s_add_u32 s83, s71, {half * 224 * 3584}", *dma(True, "s83", slot))
        a.label(tag + "D")

    a("s_lshl_b32 s69, s59, 7", f"s_add_u32 s70, s69, {224 * 2688}", "s_lshl_b32 s71, s60, 7", "s_waitcnt lgkmcnt(0)")
    if "st0early" in EXP:
        a(*dma(False, "s69", L_S0))
    stamp(a, 2)
    a("s_barrier")
    stamp(a, 3)
    if "st0early" not in EXP:
        a(*dma(False, "s69", L_S0))
    a(*dma(False, "s70", L_S1))
    dma2("X_D2", L_S2, 0)
    a(f"buffer_load_dword v58, v59, {sr(SC, 4)}, 0 offen sc1", "s_waitcnt vmcnt(15)")
    stamp(a, 4)
    a("s_barrier")
    c0, c1 = GC0, GC1
    a("s_lshl_b32 s27, s26, 8", f"s_add_u32 s27, s27, {L_STAT}", "v_lshl_add_u32 v16, v2, 2, s27",
      "v_lshl_add_u32 v17, v3, 4, s27", "ds_read_b32 v40, v16", "ds_read_b32 v41, v16 offset:128",
      f"v_mov_b32 v18, {L_CNT + 64}")
    stamp(a, 30)
    a("s_waitcnt vmcnt(8)", "s_barrier")
    dma2("X_D3", L_S3, 1)
    a("v_mov_b32 v7, v17")
    XR = 80
    if "noxres" in EXP:
        a("s_mov_b32 s6, 0")
    a(f"buffer_load_dwordx4 {vr(XR, 4)}, v44, {sr(GX, 4)}, s15 offen",
      f"buffer_load_dwordx4 {vr(XR + 4, 4)}, v44, {sr(GX, 4)}, s15 offen offset:32",
      f"buffer_load_dwordx4 {vr(XR + 8, 4)}, v39, {sr(SD, 4)}, s101 offen",
      f"buffer_load_dwordx4 {vr(XR + 12, 4)}, v39, {sr(SD, 4)}, s101 offen offset:32")
    a("s_cmp_ge_u32 s49, 14", f"s_cselect_b32 s27, {f32(QSCALE)}, 1.0",
      "s_waitcnt lgkmcnt(0)",
      f"v_mul_f32 v42, {f32(c0)}, v40", "v_mul_f32 v43, v40, v40", "v_mul_f32 v43, v43, v40",
      f"v_mul_f32 v43, {f32(c1)}, v43", "v_mul_f32 v40, s27, v40")
    pos = [0]

    def take(p):
        n = PSCHED[p + 1]
        ks = PORDER[pos[0]:pos[0] + n]
        pos[0] += n
        return [x for k in ks for x in (park_w(k)[:2], park_w(k)[2:])]

    np_ = lambda p: 2 * PSCHED[p + 1]
    for x in take(-1):
        a(*x)
    epoch_wait(a, "X_EP", 59, 58, 11 + np_(-1))
    a("ds_write_b32 v18, v58", "s_lshl_b32 s82, s61, 7", "s_waitcnt lgkmcnt(0)")

    ACX = (AC, 128)

    def reads(u):
        return [f"ds_read2st64_b32 {vr(ACX[u & 1] + 2 * q, 2)}, v{56 + (u & 1)} offset0:{2 * q} offset1:{2 * q + 1}"
                for q in range(8)]

    def head(u):
        o = ["s_barrier"]
        if HOLD == 20 + u:
            o += ["s_memrealtime s[96:97]"]
        if STAMP and "ks" not in EXP:
            o += ["s_memtime s[98:99]", "s_waitcnt lgkmcnt(0)", f"v_writelane_b32 v63, s98, {16 + 4 * u}"]
        return o + reads(u)

    def ffn(u, weave, mid, nxt):
        blocks = []
        for g in range(4):
            t = [T + 4 * (g & 1) + k for k in range(4)]
            s = [ACX[u & 1] + 4 * g + k for k in range(4)]
            blocks += [[f"s_waitcnt lgkmcnt({6 - 2 * g})"] + [f"v_mul_f32 v{t[k]}, v{s[k]}, v{s[k]}" for k in range(4)],
                       [f"v_fma_f32 v{t[k]}, v{t[k]}, v43, v42" for k in range(4)]
                       + [f"v_mul_f32 v{t[k]}, v{s[k]}, v{t[k]}" for k in range(4)],
                       [f"v_exp_f32 v{t[k]}, v{t[k]}" for k in range(4)],
                       [f"v_fma_f32 v{t[k]}, v{t[k]}, v41, v41" for k in range(4)]
                       + [f"v_rcp_f32 v{t[k]}, v{t[k]}" for k in range(2)],
                       [f"v_rcp_f32 v{t[k]}, v{t[k]}" for k in range(2, 4)]
                       + [f"v_mul_f32 v{t[k]}, v{s[k]}, v{t[k]}" for k in range(4)]
                       + [f"v_cvt_pk_bf16_f32 v{P + 2 * g}, v{t[0]}, v{t[1]}",
                          f"v_cvt_pk_bf16_f32 v{P + 2 * g + 1}, v{t[2]}, v{t[3]}"]]
        at = {}
        for i in range(0, len(weave), 2):
            b = 9 + i * 9 // len(weave)
            at.setdefault(b, []).append(weave[i])
            at.setdefault(b + 1, []).insert(0, weave[i + 1])
        n = 0
        for b, blk in enumerate(blocks):
            if b == BAR and nxt:
                a("s_waitcnt lgkmcnt(0)", *nxt(n))
            a(*[x for x in blk if not (nxt and b >= BAR and x.startswith("s_waitcnt"))])
            if b == 9:
                m = mid(n)
                a(*m)
                n += sum(x.startswith("buffer_load") for x in m)
            if b in (9, 19):
                a(f"buffer_store_dwordx4 {vr(P + 4 * (b // 10), 4)}, v13, {sr(SWS, 4)}, s72 offen offset:{(b // 10) * 1024} sc1")
            for w in at.get(b, []):
                a(*w)
                n += 1
        a("s_add_u32 s72, s72, 2048")

    def qkv(u):
        a(f"s_bitcmp1_b32 s54, {2 * u}", f"s_cbranch_scc1 X_B{u}", f"s_call_b64 s[90:91], X_QK{u & 1}", f"s_branch X_C{u}")
        a.label(f"X_B{u}")
        a(f"s_call_b64 s[90:91], X_V{u & 1}")
        a.label(f"X_C{u}")
        jitter(a)

    def extra(tag, slot, setup):
        return ["s_cmp_eq_u32 s50, 7", f"s_cbranch_scc0 {tag}", setup, *dma(True, "s82", slot), tag + ":"]

    a(*head(0))
    qkv(0)
    a(*dma(True, "s82", L_S0))
    for x in take(0):
        a(*x)
    a(f"s_waitcnt vmcnt({4 + np_(-1) + 2 + 7 + np_(0)})")
    a(*head(1))
    qkv(1)
    a("s_mov_b32 s72, s73", f"s_add_u32 s82, s82, {224 * 3584}", *dma(True, "s82", L_S1))
    for x in take(1):
        a(*x)
    a(f"s_waitcnt vmcnt({np_(0) + 2 + 7 + np_(1)})")
    a(*head(2))
    w2, w3 = take(2), take(3)
    pub01 = ["s_waitcnt vmcnt(0)", *publish(62), *publish(62, 128)]
    a("s_cmp_lt_u32 s49, 5", "s_cbranch_scc0 X_R1F")
    a(*pub01, f"v_mul_f32 v40, {f32(QSCALE)}, v40", "s_call_b64 s[90:91], X_QK0")
    for x in w2:
        a(*x)
    a(*head(3), "s_waitcnt vmcnt(0)", *publish(63), "s_call_b64 s[90:91], X_QK1", "s_waitcnt vmcnt(0)", *publish(63, 128), *head(4))
    for x in w3:
        a(*x)
    a("s_branch X_R2")
    a.label("X_R1F")
    jitter(a)
    d6 = ["s_cmp_eq_u32 s50, 7", "s_cbranch_scc0 X_N6", f"v_mul_u32_u24 v60, {224 * 3584 - 64}, v3",
          *[f"v_add_u32 v{8 + k}, v60, v{8 + k}" for k in range(4)], "s_lshl_b32 s82, s51, 6",
          f"s_add_u32 s82, s82, {27 * 128}", *dma(True, "s82", L_S2), "X_N6:"]
    ffn(2, w2, lambda n: pub01 + d6, lambda n: head(3))
    ffn(3, w3, lambda n: ["s_waitcnt vmcnt(0)", *publish(63)], lambda n: head(4))
    a.label("X_R2")
    jitter(a)
    a("s_mov_b32 s72, s74")
    kreq = ["s_mov_b64 exec, 0xf",
            f"buffer_load_dword v62, v36, {sr(SWS, 4)}, 0 offen sc1", "s_mov_b64 exec, -1"]
    ffn(4, [], lambda n: [f"s_setprio {XPRIO}", "s_waitcnt vmcnt(0)", *publish(63, 128), *kreq], None)
    a("s_cmp_eq_u32 s50, 7", "s_cbranch_scc0 X_DONE", *head(5))
    ffn(5, [], lambda n: ["s_waitcnt vmcnt(0)", *publish(64)], None)
    a("s_branch X_DONE")
    for par in range(2):
        A_ = ACX[par]
        a.label(f"X_QK{par}")
        for g in range(4):
            a(f"s_waitcnt lgkmcnt({6 - 2 * g})")
            for k in range(4):
                a(f"v_mul_f32 v{T + 4 * g + k}, v40, v{A_ + 4 * g + k}")
            a(f"v_cvt_pk_bf16_f32 v{P + 2 * g}, v{T + 4 * g}, v{T + 4 * g + 1}",
              f"v_cvt_pk_bf16_f32 v{P + 2 * g + 1}, v{T + 4 * g + 2}, v{T + 4 * g + 3}",
              f"buffer_store_dwordx2 {vr(P + 2 * g, 2)}, v14, {sr(SWS, 4)}, s72 offen offset:{g * 512} sc1")
        a("s_add_u32 s72, s72, 2048", "s_setpc_b64 s[90:91]")
        a.label(f"X_V{par}")
        for g in range(4):
            a(f"ds_read_b128 {vr(T + 4 * g, 4)}, v7 offset:{g * 32}")
        a("s_sub_u32 s27, s72, s78", "s_lshr_b32 s27, s27, 4", "v_add_u32 v60, s27, v2",
          "v_mul_u32_u24 v60, 2341, v60", "v_lshrrev_b32 v60, 16, v60", "v_mad_u32_u24 v60, v60, s79, v15")
        for s in range(2):
            a(f"s_waitcnt lgkmcnt({2 - 2 * s})")
            for k in range(8):
                a(f"v_mul_f32 v{T + 8 * s + k}, v{T + 8 * s + k}, v{A_ + 8 * s + k}")
            for k in range(4):
                a(f"v_cvt_pk_bf16_f32 v{P + 4 * s + k}, v{T + 8 * s + 2 * k}, v{T + 8 * s + 2 * k + 1}")
            a(f"buffer_store_dwordx4 {vr(P + 4 * s, 4)}, v60, {sr(SWS, 4)}, s72 offen offset:{s * 896} sc1")
        a("s_add_u32 s72, s72, 512", "s_setpc_b64 s[90:91]")
    a.label("X_DONE")
    stamp(a, 5)


def gemm_setup(a):
    srd(a, SD, P_B2, 896)
    srd(a, SC, P_DBG, 256)
    a(f"s_mov_b32 s{GX + 2}, {X_BYTES}", f"s_mov_b32 s{GX + 3}, 0x20000",
      "s_lshl_b32 s88, s52, 2", "s_and_b32 s27, s53, 3", "s_add_u32 s88, s88, s27", "s_lshr_b32 s89, s53, 2",
      "s_and_b32 s90, s26, 1", "s_lshr_b32 s91, s26, 1", "s_lshl_b32 s27, s88, 1",
      "s_add_u32 s44, s27, s90", "s_xor_b32 s45, s44, 1", "s_lshl_b32 s89, s89, 7",
      "s_lshl_b32 s101, s91, 6", "s_add_u32 s101, s101, s89", f"s_mul_i32 s15, s44, {RT}", "s_add_u32 s15, s15, s101",
      "v_lshlrev_b32 v39, 4, v3", "v_mul_u32_u24 v44, 896, v2", "v_add_u32 v44, v44, v39",
      f"s_mov_b32 s{GWO + 2}, {WO_BYTES}", f"s_mov_b32 s{GWO + 3}, 0x20000",
      f"s_mov_b32 s{GW2 + 2}, {W2_BYTES}", f"s_mov_b32 s{GW2 + 3}, 0x20000",
      f"s_mov_b32 s{GOUT + 2}, {X_BYTES}", f"s_mov_b32 s{GOUT + 3}, 0x20000")
    a("v_bfe_u32 v46, v1, 2, 2", "v_bfe_u32 v47, v1, 4, 1", "v_lshl_add_u32 v46, v47, 3, v46",
      "v_mul_u32_u24 v32, 896, v46", "v_lshl_add_u32 v32, v3, 6, v32", "v_and_b32 v46, 3, v1",
      "v_lshl_add_u32 v32, v46, 4, v32", f"v_add_u32 v33, {4 * 896 - 1024}, v32")
    a(f"s_mul_i32 s88, s88, {2 * FLG_RT}", f"s_add_u32 s88, s88, {OFF_FLG}",
      f"v_mov_b32 v46, {KT & 0xffffffff}", f"v_mov_b32 v47, {KT >> 32}", "v_and_b32 v45, 30, v1",
      "v_lshlrev_b32 v45, 1, v45", "v_lshrrev_b64 v[46:47], v45, v[46:47]", "v_bfe_u32 v47, v46, 1, 3",
      "v_and_b32 v46, 1, v46", "v_lshl_add_u32 v47, v47, 3, v46",
      "v_and_b32 v46, 1, v1", f"v_mul_u32_u24 v46, {FLG_N}, v46",
      "s_lshl_b32 s27, s26, 1", "s_add_u32 s27, s27, 42", "v_add3_u32 v47, v47, v46, s27",
      "v_lshlrev_b32 v47, 7, v47", "v_add_u32 v36, s88, v47",
      "v_bfe_u32 v47, v1, 1, 2", "v_add_u32 v46, v46, v47",
      "s_lshl_b32 s27, s26, 2", "s_add_u32 s27, s27, 98", "v_add_u32 v46, s27, v46", "v_lshlrev_b32 v46, 7, v46",
      "v_add_u32 v37, s88, v46")
    a(f"s_mul_i32 s12, s26, {64 * 896}", "s_add_u32 s12, s12, s89",
      f"s_mul_i32 s13, s26, {112 * 896}", "s_add_u32 s13, s13, s89",
      "s_cmp_eq_u32 s50, 7", "s_cselect_b32 s12, 0x40000000, s12", "s_cselect_b32 s15, 0x40000000, s15",
      "s_lshl_b32 s65, s26, 13", f"s_add_u32 s14, s65, {L_RING}",
      f"s_mul_i32 s44, s44, {ACT_RT}", f"s_mul_i32 s45, s45, {ACT_RT}",
      "s_lshl_b32 s27, s26, 13", f"s_add_u32 s27, s27, {OFF_ACT + 112 * 1024}",
      "s_add_u32 s46, s44, s27", "s_add_u32 s100, s45, s27",
      "s_lshl_b32 s27, s26, 12", f"s_add_u32 s27, s27, {OFF_ACT}", "s_add_u32 s44, s44, s27", "s_add_u32 s45, s45, s27")
    a("v_and_b32 v46, 1, v1", "v_bfe_u32 v47, v1, 1, 1", "v_lshl_add_u32 v46, v46, 1, v47",
      "v_bfe_u32 v47, v1, 4, 1", "v_lshl_add_u32 v46, v47, 2, v46",
      "v_bfe_u32 v47, v1, 2, 2", "v_lshlrev_b32 v47, 6, v47", "v_lshl_add_u32 v46, v46, 3, v47",
      "v_lshl_add_u32 v46, v3, 10, v46", "s_lshl_b32 s27, s91, 9", "s_add_u32 s27, s27, s14",
      "v_add_u32 v34, s27, v46", "v_xor_b32 v35, 512, v34")
    a("v_add_u32 v38, s14, v13")
    for t in range(1, 4):
        a(f"s_xor_b32 s27, s26, {t}", "s_lshl_b32 s27, s27, 13", f"s_add_u32 s27, s27, {L_RING}",
          f"v_add_u32 v{44 + t}, s27, v13")


def gemm_res(a):
    XR, RES, TM = 80, 64, 16
    for k in range(8):
        a(f"v_lshlrev_b32 v{RES + 2 * k}, 16, v{XR + k}", f"v_and_b32 v{RES + 2 * k + 1}, 0xffff0000, v{XR + k}",
          f"v_lshlrev_b32 v{TM + 2 * k}, 16, v{XR + 8 + k}", f"v_and_b32 v{TM + 1 + 2 * k}, 0xffff0000, v{XR + 8 + k}")
    for i in range(16):
        a(f"v_add_f32 v{XR + i}, v{RES + i}, v{TM + i}")


def gen_gemm(a):
    R, RW = G_R, G_RW
    AC, OR, XR = 64, 192, 16
    WFR = (4, 48)
    NK = 36
    ACS = (80, 64, 96, 112)
    pub = publish(64)
    a("s_cmp_lt_u32 s53, 28", "s_cbranch_scc1 G_GO", "s_waitcnt vmcnt(0)", *publish(64, 128))
    stamp_out(a)
    a("s_endpgm")
    a.label("G_GO")
    jitter(a)

    def req(v, nl, dst=60):
        return [f"s_mov_b64 exec, {(1 << nl) - 1}", f"buffer_load_dword v{dst}, v{v}, {sr(SWS, 4)}, 0 offen sc1",
                "s_mov_b64 exec, -1"]

    def chk(mask, target, src=60):
        return [f"v_cmp_ne_u32 s[88:89], s47, v{src}", "s_nop 0", f"s_and_b32 s88, s88, {mask}", f"s_cbranch_scc0 {target}"]

    def issue_w(k):
        return park_w(k) if PK0 <= k < PK1 else dma_w(k)

    def dump(k):
        up, off = slot(k)
        va = 38 if up else 43
        return [f"ds_write_b128 v{va}, {vr(preg(k), 4)} offset:{off}",
                f"ds_write_b128 v{va}, {vr(preg(k) + 4, 4)} offset:{off + 1024}"]

    def wread(k):
        w = WFR[k & 1]
        up, off = slot(k)
        va = 34 if up else 40
        return [f"ds_read_b64_tr_b16 {vr(w, 2)}, v{va} offset:{off}",
                f"ds_read_b64_tr_b16 {vr(w + 2, 2)}, v{va} offset:{off + 256}",
                f"ds_read_b64_tr_b16 {vr(w + 4, 2)}, v{va + 1} offset:{off}",
                f"ds_read_b64_tr_b16 {vr(w + 6, 2)}, v{va + 1} offset:{off + 256}"]

    q = []

    def emit_w(k):
        nonlocal q
        a(*issue_w(k))
        q += [("w", k)] * 2

    def upto(tags):
        nonlocal q
        need = [i for i, kk in enumerate(q) if kk in tags]
        q = q[max(need) + 1:] if need else q
        assert len(q) <= 63
        return f"s_waitcnt vmcnt({len(q)})"

    left = PORDER[sum(PSCHED):]
    a("v_add_u32 v43, s65, v13", f"v_mov_b32 v42, {L_CNT + 8}",
      f"v_subrev_u32 v40, {L_RING}, v34", f"v_subrev_u32 v41, {L_RING}, v35")
    assert sum(PSCHED) >= NPA + 2
    gemm_res(a)
    for k in range(min(NPA, 8)):
        a(*dump(k))
        if k == PUBD:
            a("s_waitcnt vmcnt(0)", *pub, "s_setprio 0")
            stamp(a, 7)
            a(*chk(0xf, "G_OK0", 62))
            poll(a, "G_P0", 36, NA1, 61)
            a.label("G_OK0")
            for kk in range(NA1):
                a(*issue_a(kk))
                q += [("a", kk)] * 2
    lds_wait(a, "G_LW", 42, 56)
    for k in range(8, NPA):
        a(*dump(k))
    for k in range(NPA, 8):
        emit_w(k)
    while left and left[0] < PK0 + 2:
        emit_w(left.pop(0))
    stamp(a, 6)
    a(*wread(0))
    if -1 in {v[0] for v in HCHK.values()}:
        a(*req(36, 28))
        q += ["b"]
    pend = [("w", k) for k in left + list(range(max(8, NPA), RW))]
    anext = NA1
    alim = NA1
    onext = 0

    def split(ops):
        out, cur = [], []
        for o in ops:
            if o == "s_mov_b64 exec, -1":
                out[-1].append(o)
                continue
            cur.append(o)
            if o.startswith("buffer_") or o.startswith("ds_"):
                out.append(cur)
                cur = []
        assert not cur
        return out

    def issue_o1(kk):
        o = ["s_add_u32 s46, s46, 4096", "s_add_u32 s100, s100, 4096"] if kk == 4 else []
        return o + [f"buffer_load_dwordx4 {vr(OR + 8 * kk, 4)}, v13, {sr(SWS, 4)}, s46 offen offset:{(kk & 3) * 1024} sc1",
                    f"buffer_load_dwordx4 {vr(OR + 8 * kk + 4, 4)}, v13, {sr(SWS, 4)}, s100 offen offset:{(kk & 3) * 1024} sc1"]

    for k in range(NK):
        if k in HCHK:
            nl = HCHK[k][1]
            a(upto({"b"}), *chk((1 << nl) - 1, f"G_HK{k}"))
            poll(a, f"G_HP{k}", 36, nl)
            a.label(f"G_HK{k}")
            if k == min(HCHK):
                stamp(a, 8)
            alim = nl
            while anext < min(alim, k + BURST):
                a(*issue_a(anext))
                q += [("a", anext)] * 2
                anext += 1
        if k == OCHK[1]:
            assert k > PK1 - RW
            a(upto({"p"}), *chk(0xff, "G_OKO", 61))
            poll(a, "G_PO", 37, 8, 61)
            a.label("G_OKO")
            stamp(a, 10)
        kd = k + RW
        tags = {("a", k), ("w", k + 1)}
        if PK0 <= kd < PK1:
            tags |= {("w", kd)}
        assert not any(t in pend for t in tags)
        n0 = len(q)
        wt = upto(tags)
        if len(q) != n0:
            a(wt)
        if STAMP and "ks" in EXP:
            if k:
                a(f"v_writelane_b32 v63, s96, {27 + k}")
            a("s_memtime s[96:97]")
        elif k in (12, 28):
            stamp(a, {12: 9, 28: 11}[k])
        w = WFR[k & 1]
        r = areg(k) if k < 28 else OR + 8 * (k - 28)
        c = (lambda t: ACS[0] if t == 0 else "0") if k == 0 else (lambda t: ACS[t])
        vm = []
        if k == OCHK[0]:
            vm += req(37, 8, 61)
            q += ["p"]
        if k in {v[0] for v in HCHK.values()}:
            vm += req(36, 28)
            q += ["b"]
        budget = AMAX
        while anext < min(alim, k + R) and budget:
            vm += issue_a(anext)
            q += [("a", anext)] * 2
            anext += 1
            budget -= 1
        if k >= OCHK[1]:
            budget += 1
        while k >= OCHK[1] and onext < 8 and budget:
            vm += issue_o1(onext)
            q += [("a", 28 + onext)] * 2
            onext += 1
            budget -= 1
        kp = kd + 7
        if k >= 1 and kp < PK1:
            pend.append(("w", kp))
        if PK1 <= kd < NK:
            pend.append(("w", kd))
        for _ in range(2 if budget == AMAX else 1):
            if pend:
                t = pend.pop(0)
                vm += issue_w(t[1])
                q += [t] * 2
        pieces = split(vm)
        dm = split(dump(kd)) if PK0 <= kd < PK1 else []
        rd = wread(k + 1) if k < NK - 1 else []
        mm = [mfma(ACS[0], w, r, c(0)), mfma(ACS[1], w, r + 4, c(1)), mfma(ACS[2], w + 4, r, c(2)),
              mfma(ACS[3], w + 4, r + 4, c(3))]
        pieces = dm + pieces
        per = (len(pieces) + 2) // 3
        a("s_waitcnt lgkmcnt(0)", mm[0], *rd)
        for t in range(1, 4):
            a(mm[t])
            for p in pieces[(t - 1) * per:t * per]:
                a(*p)
    assert onext == 8 and not pend
    assert anext == 28
    stamp(a, 12)
    jitter(a)
    RO = (0, 0, 4096, L_S0 - L_RING)
    a("s_nop 7", "s_nop 1")
    for t in range(1, 4):
        for qq in range(4):
            a(f"ds_write_b128 v38, {vr(ACS[t] + 4 * qq, 4)} offset:{RO[t] + qq * 1024}")
    a("s_waitcnt lgkmcnt(0)", "s_barrier")
    stamp(a, 13)
    for t in range(1, 4):
        for qq in range(4):
            a(f"ds_read_b128 {vr(ACS[t] + 4 * qq, 4)}, v{44 + t} offset:{RO[t] + qq * 1024}")
    for t in (1, 2):
        a(f"s_waitcnt lgkmcnt({12 - 4 * t})")
        for i in range(16):
            a(f"v_add_f32 v{ACS[0] + i}, v{ACS[0] + i}, v{ACS[t] + i}")
    for h in range(2):
        a(f"s_waitcnt lgkmcnt({2 - 2 * h})")
        for i in range(8 * h, 8 * h + 8):
            a(f"v_add_f32 v{ACS[0] + i}, v{ACS[0] + i}, v{ACS[3] + i}")
        for k in range(4 * h, 4 * h + 4):
            a(f"v_cvt_pk_bf16_f32 v{XR + k}, v{ACS[0] + 2 * k}, v{ACS[0] + 2 * k + 1}")
        a(f"buffer_store_dwordx4 {vr(XR + 4 * h, 4)}, v44, {sr(GOUT, 4)}, s15 offen offset:{32 * h} {os.environ.get('OUTF', '')}")
    stamp_out(a)


def post(t):
    lines = t.split("\n")
    g = next(i for i, l in enumerate(lines) if l.startswith("G_GO"))
    o = lines[:g]
    for l in lines[g:]:
        if "plainact" in EXP and "buffer_load_dwordx4 v[" in l:
            l = l.replace(" sc1", "")
        if "gnomfma" in EXP and "v_mfma" in l:
            continue
        if "gnoa" in EXP and "buffer_load_dwordx4 v[" in l:
            l = l.replace("v13,", "v59,")
        if "gnow" in EXP and " lds" in l:
            l = l.replace("v32,", "v59,").replace("v33,", "v59,")
        o.append(l)
    return "\n".join(o)


def main(out):
    a = Asm()
    for l in ("Fused LayerNorm + sliding-window attention + GELU FFN block, one persistent launch.",
              "256 workgroups (one per CU) of 8 waves: waves 0-3 run the QKV / FFN1 MFMA tiles and then attention,",
              "waves 4-7 run the tile epilogues and weight staging and then the output GEMM.",
              "Hand-offs go through d_ws with write-through stores and per-tile flags tagged with a launch epoch.",
              "Kernarg: 0 x, 8 wqkv, 16 wo, 24 unused, 32 w1, 40 b1, 48 w2, 56 b2, 64 out, 72 debug, 80 ws."):
        a.raw("; " + l)
    a.raw(f"; @launch grid=(256,1,1) block=(512,1,1) lds={LDS_BYTES}")
    a.raw('.amdgcn_target "amdgcn-amd-amdhsa--gfx950"')
    a.raw(".text")
    name = gen(a)
    a.raw('.section .rodata,"a"')
    a.raw(".p2align 6")
    a.raw(f".amdhsa_kernel {name}")
    a.raw("  .amdhsa_next_free_vgpr 256")
    a.raw("  .amdhsa_next_free_sgpr 102")
    a.raw("  .amdhsa_accum_offset 256")
    a.raw("  .amdhsa_group_segment_fixed_size 0")
    a.raw("  .amdhsa_kernarg_size 88")
    a.raw("  .amdhsa_user_sgpr_count 2")
    a.raw("  .amdhsa_user_sgpr_kernarg_segment_ptr 1")
    a.raw("  .amdhsa_system_sgpr_workgroup_id_x 1")
    a.raw(".end_amdhsa_kernel")
    open(out, "w").write(post(a.text()))


if __name__ == "__main__":
    if "--stamp" in sys.argv:
        sys.argv.remove("--stamp")
        STAMP = True
    if "--dbg" in sys.argv:
        sys.argv.remove("--dbg")
        DBG = True
    main(sys.argv[1] if len(sys.argv) > 1 else f"cdna_kernels/{NAME}.s")
```

```python
import os
import struct
import sys

EXP = set(os.environ.get('EXP', '').split(','))

NAME = "parallel_sum__sliding_block__dense_activation_gelu__prompt"

RT = 28672
OFF_Q = 0
OFF_K = 64 * RT
OFF_V = 2 * 64 * RT
OFF_ACT = 3 * 64 * RT
ACT_RT = 144 * 1024
OFF_FLG = OFF_ACT + 64 * ACT_RT
FLG_N = 114
FLG_RT = FLG_N * 128
OFF_EPOCH = OFF_FLG + 64 * FLG_RT
WS_BYTES = OFF_EPOCH + 128
NATIVE_K = True

X_BYTES = 2048 * 896
WQKV_BYTES = 448 * 2688
W1_BYTES = 448 * 3584
W2_BYTES = 1792 * 896
WO_BYTES = 448 * 896

SLOT = 28672
L_S2 = 32768
L_S3 = L_S2 + SLOT
L_S1 = L_S3 + SLOT
L_S0 = L_S1 + SLOT
L_BIAS = 159744
L_STAT = L_BIAS + 768
L_CNT = L_STAT + 1024
L_ATT = L_S2
L_RING = L_ATT + 49152
LDS_BYTES = 163840
SPIN_MAX = 1 << 16

STAMP = False
OFF_STAMP = 32 << 20


def f32(x):
    return "0x%08x" % struct.unpack("<I", struct.pack("<f", x))[0]


class Asm:
    def __init__(self):
        self.o = []

    def __call__(self, *lines):
        for s in lines:
            self.o.append("    " + s)

    def label(self, s):
        self.o.append(s + ":")

    def raw(self, s):
        self.o.append(s)

    def text(self):
        return "\n".join(self.o) + "\n"


def vr(b, n):
    return f"v[{b}:{b + n - 1}]"


def sr(b, n):
    return f"s[{b}:{b + n - 1}]"


def mfma(d, a, b, c):
    cs = c if isinstance(c, str) else vr(c, 16)
    return f"v_mfma_f32_32x32x16_bf16 {vr(d, 16)}, {vr(a, 4)}, {vr(b, 4)}, {cs}"


def srd(a, d, lo, nbytes):
    a(f"s_mov_b32 s{d}, s{lo}", f"s_mov_b32 s{d + 1}, s{lo + 1}",
      f"s_mov_b32 s{d + 2}, {nbytes}", f"s_mov_b32 s{d + 3}, 0x20000")


DBG = False
LST = (0,)
ROLE = ["main"]
DBG_MAP = {"main": {0: 2, 3: 3, 5: 4, 6: 5, 9: 6, 15: 7}, "aux": {5: 8, 6: 9, 8: 10, 11: 11, 15: 12}}


HOLD = int(os.environ.get("HOLD", "-99"))


def stamp(a, i, rt=False):
    if i == HOLD and ROLE[0] == "aux":
        a("s_memrealtime s[96:97]")
    if DBG:
        w = DBG_MAP[ROLE[0]].get(i)
        if w is not None:
            a("s_memrealtime s[98:99]", "s_waitcnt lgkmcnt(0)", f"v_writelane_b32 v63, s98, {w}")
            inv = {2: 1, 4: 13, 5: 14, 12: 15}.get(w)
            if inv:
                a("s_not_b32 s98, s98", f"v_writelane_b32 v63, s98, {inv}")
        return
    if not STAMP or i > 15:
        return
    a(f"s_mem{'real' if rt else ''}time s[98:99]", "s_waitcnt lgkmcnt(0)",
      f"v_writelane_b32 v63, s98, {i}")


def lstamp(a, ureg, k):
    if not STAMP or k not in LST or "ks" in EXP:
        return
    a("s_memtime s[98:99]", f"s_lshl_b32 s97, {ureg}, 2", f"s_add_u32 m0, s97, {16 + k}", "s_waitcnt lgkmcnt(0)",
      "v_writelane_b32 v63, s98, m0")


def stamp_out(a):
    if DBG:
        stamp(a, 15)
        a("s_load_dwordx2 s[92:93], s[0:1], 72", "s_waitcnt lgkmcnt(0)", "s_mov_b32 s94, 256", "s_mov_b32 s95, 0x20000",
          "s_mov_b64 exec, 0xfffe", "v_lshlrev_b32 v62, 2, v1", "buffer_atomic_umax v63, v62, s[92:95], 0 offen sc1")
        return
    if not STAMP:
        return
    stamp(a, 14)
    stamp(a, 15, rt=True)
    a("s_mov_b32 s92, s24", "s_mov_b32 s93, s25", f"s_mov_b32 s94, {64 << 20}", "s_mov_b32 s95, 0x20000",
      "s_lshl_b32 s96, s2, 3", "s_add_u32 s96, s96, s3", "s_lshl_b32 s96, s96, 8",
      f"s_add_u32 s96, s96, {OFF_STAMP}", "s_mov_b64 exec, -1", "v_lshlrev_b32 v62, 2, v1",
      "buffer_store_dword v63, v62, s[92:95], s96 offen")


P_X, P_WQKV, P_WO, P_W1, P_B1, P_W2, P_B2, P_OUT, P_DBG, P_WS = 4, 6, 8, 12, 14, 16, 18, 20, 22, 24
SWS, SA, SB, SC, SD = 28, 32, 36, 40, 84


def gen(a):
    name = NAME + "_kernel"
    a.raw(f".globl {name}")
    a.raw(".p2align 8")
    a.raw(f".type {name},@function")
    a.label(name)
    if HOLD == -1:
        a("s_memrealtime s[96:97]")
    a("s_cmp_ge_u32 s2, 256", "s_cbranch_scc1 L_END")
    a("s_load_dwordx16 s[4:19], s[0:1], 0", "s_load_dwordx4 s[20:23], s[0:1], 64",
      "s_load_dwordx2 s[24:25], s[0:1], 80")
    a("v_lshrrev_b32 v2, 6, v0", "v_and_b32 v1, 63, v0", "v_readfirstlane_b32 s3, v2")
    MAP = os.environ.get("MAP", "42")
    if MAP == "81":
        a("s_and_b32 s52, s2, 7", "s_lshr_b32 s53, s2, 3", "s_lshl_b32 s48, s52, 1", "s_and_b32 s27, s53, 1",
          "s_add_u32 s48, s48, s27", "s_lshr_b32 s49, s53, 1", "s_and_b32 s56, s49, 3", "s_and_b32 s55, s48, 7",
          "s_and_b32 s51, s49, 1", "s_cmp_ge_u32 s53, 28", "s_cselect_b32 s50, 7, 6", "s_cselect_b32 s51, s51, 0",
          "s_and_b32 s26, s3, 3")
    elif MAP == "42":
        a("s_and_b32 s52, s2, 7", "s_lshr_b32 s53, s2, 3", "s_lshr_b32 s48, s52, 1", "s_lshl_b32 s48, s48, 2",
          "s_and_b32 s27, s53, 3", "s_add_u32 s48, s48, s27", "s_and_b32 s51, s52, 1", "s_lshl_b32 s49, s51, 3",
          "s_lshr_b32 s27, s53, 2", "s_add_u32 s49, s49, s27", "s_and_b32 s56, s27, 3", "s_and_b32 s55, s48, 7",
          "s_cmp_ge_u32 s53, 28", "s_cselect_b32 s50, 7, 6", "s_cselect_b32 s51, s51, 0", "s_and_b32 s26, s3, 3")
    else:
        a("s_and_b32 s52, s2, 7", "s_lshr_b32 s53, s2, 3",
          "s_lshr_b32 s55, s53, 2", "s_and_b32 s56, s53, 3",
          "s_and_b32 s27, s53, 1", "s_add_u32 s27, s27, 6", "s_bfe_u32 s57, s53, 0x20001",
          "s_cmp_ge_u32 s53, 24", "s_cselect_b32 s55, s27, s55", "s_cselect_b32 s56, s57, s56",
          "s_and_b32 s57, s52, 3", "s_lshl_b32 s27, s57, 1", "s_add_u32 s55, s55, s27", "s_add_u32 s55, s55, 2",
          "s_and_b32 s55, s55, 7", "s_lshr_b32 s48, s52, 2", "s_lshl_b32 s48, s48, 3", "s_add_u32 s48, s48, s55",
          "s_lshl_b32 s49, s57, 2", "s_add_u32 s49, s49, s56",
          "s_and_b32 s51, s56, 1", "s_cmp_ge_u32 s53, 28", "s_cselect_b32 s50, 7, 6", "s_cselect_b32 s51, s51, 0",
          "s_and_b32 s26, s3, 3")
    a("s_sub_u32 s27, s49, 7", "s_cmp_lt_u32 s27, 7", "s_cselect_b32 s54, 5, 0",
      "s_cmp_lt_u32 s49, 5", "s_cselect_b32 s27, 0, 10", "s_lshl_b32 s27, s27, 4", "s_or_b32 s54, s54, s27",
      "s_or_b32 s54, s54, 0xaa00")
    assert MAP == "42"
    a("s_cmp_eq_u32 s49, 7", "s_cselect_b32 s57, 14, s49", "s_cmp_eq_u32 s49, 14", "s_cselect_b32 s57, 7, s57")
    a("s_lshl_b32 s58, s48, 2", "s_add_u32 s58, s58, s26")
    a("v_and_b32 v2, 31, v1", "v_lshrrev_b32 v3, 5, v1")
    if DBG:
        a("v_mov_b32 v63, 0")
    jitter(a)
    a("s_cmp_ge_u32 s3, 4", "s_cbranch_scc1 L_AUX")
    gen_main(a)
    gen_attn(a)
    a.label("L_AUX")
    ROLE[0] = "aux"
    gen_aux(a)
    gen_gemm(a)
    if HOLD != -99:
        a("s_waitcnt vmcnt(0)", "L_HOLD:", "s_sleep 1", "s_memrealtime s[98:99]", "s_waitcnt lgkmcnt(0)",
          "s_sub_u32 s98, s98, s96", "s_cmp_lt_u32 s98, 3000", "s_cbranch_scc1 L_HOLD")
    a.label("L_END")
    a("s_endpgm")
    a.label("L_CODE_END")
    return name


QF = 48
VCHK = 2
MK = 248
APRIO = int(os.environ.get("APRIO", "2"))


def ms(i):
    return sr((list(range(4, 24, 2)) + [40, 42, 44, 92, 94, 100])[i], 2)


def kv_gather(head, kt0, vd, va, vb, st):
    return [f"s_mul_i32 s27, s{head}, 28", f"s_lshr_b32 s{st}, s27, 5", "s_add_u32 s27, s27, 27", "s_lshr_b32 s27, s27, 5",
            f"s_sub_u32 s27, s27, s{st}", f"v_and_b32 v{va}, 1, v1", f"v_mul_u32_u24 v{va}, s27, v{va}",
            f"v_add_u32 v{va}, s{st}, v{va}", f"v_bfe_u32 v{vb}, v1, 1, 2", f"v_min_u32 v{vb}, 2, v{vb}",
            f"v_add_u32 v{vb}, s{kt0}, v{vb}",
            f"v_max_i32 v{vb}, 0, v{vb}", f"v_mul_u32_u24 v{vb}, {FLG_N}, v{vb}", f"v_add_u32 v{vd}, v{va}, v{vb}",
            f"v_bfe_u32 v{vb}, v1, 3, 1", f"v_mul_u32_u24 v{vb}, 14, v{vb}", f"v_add_u32 v{vd}, v{vd}, v{vb}",
            f"v_lshlrev_b32 v{vd}, 7, v{vd}", f"v_add_u32 v{vd}, {OFF_FLG + 14 * 128}, v{vd}"]


def pads(base, tiles, va, vt):
    o = [f"v_mov_b32 v{vt + k}, 0x3f803f80" for k in range(4)]
    o += [f"v_min_u32 v{va}, 2, v1", f"v_lshl_add_u32 v{va}, v{va}, 12, s{base}",
          f"ds_write_b128 v{va}, {vr(vt, 4)} offset:3840", f"v_lshl_add_u32 v{va}, v1, 2, s{base}",
          "s_mov_b32 vcc_lo, 0x55555555", "s_mov_b32 vcc_hi, 0x55555555"]
    for i in range(3):
        o += [f"s_cmp_lt_u32 s{tiles + i}, 0x40000000", "s_cselect_b32 s27, 0, 0xf149", f"v_mov_b32 v{vt + 3}, s27",
              f"v_cndmask_b32 v{vt + i}, 0, v{vt + 3}, vcc", f"ds_write_b32 v{va}, v{vt + i} offset:{1792 + 4096 * i}"]
    return o
PFF = "sc1" if "pfsc1" in EXP else ("nt" if "pfnt" in EXP else "")


def stage_kv(off, lds, vaddr, base, tiles):
    o = []
    for i in range(3):
        o += [f"s_add_u32 m0, s{base}, {i * 4096 + lds}", f"s_add_u32 s27, s{tiles + i}, {off}",
              f"buffer_load_dwordx4 v{vaddr}, {sr(SWS, 4)}, s27 offen sc1 lds", "s_mov_b32 exec_hi, 0xffff",
              f"buffer_load_dwordx4 v{vaddr}, {sr(SWS, 4)}, s27 offen offset:1024 sc1 lds", "s_mov_b32 exec_hi, -1"]
    return o


GC0 = -2.0 * 0.7978845608028654 * 1.4426950408889634
GC1 = GC0 * 0.044715
QSCALE = 28 ** -0.5 * 1.4426950408889634


def gen_main(a):
    X, ACA, ACB, WR, T = 128, 64, 80, 96, 16
    AB, BB = 240, 244
    if "xnorot" in EXP:
        a("s_mov_b32 s56, 0")
    a("v_lshrrev_b32 v8, 3, v1", "v_and_b32 v9, 7, v1", "v_lshrrev_b32 v4, 4, v1",
      "v_xor_b32 v9, v9, v4", "v_mul_u32_u24 v8, 896, v8", "v_lshl_add_u32 v8, v9, 4, v8", "v_xor_b32 v9, 64, v8")
    for k in range(4):
        a(f"s_add_u32 s27, s56, {k}", "s_and_b32 s27, s27, 3", "s_mulk_i32 s27, 7168",
          f"s_add_u32 s27, s27, {4096 - 1024 * k}", f"v_add_u32 v{4 + k}, s27, v{8 + (k & 1)}")
    a(f"s_mul_i32 s59, s58, {RT}", f"s_mul_i32 s60, s3, {SLOT}")
    a("s_waitcnt lgkmcnt(0)")
    stamp(a, 0, rt=True)
    stamp(a, 1)
    a(f"s_sub_u32 s{SA}, s{P_X}, 4096", f"s_subb_u32 s{SA + 1}, s{P_X + 1}, 0",
      f"s_mov_b32 s{SA + 2}, {X_BYTES + 4096}", f"s_mov_b32 s{SA + 3}, 0x20000")
    for g in range(7):
        a(f"s_add_u32 m0, s60, {g * 4096}", f"s_add_u32 s61, s59, {g * 128}",
          f"buffer_load_dwordx4 v4, {sr(SA, 4)}, s61 offen lds")
    pre = []
    pre += ["s_lshl_b32 s27, s56, 3", "v_subrev_u32 v9, s27, v2", "v_and_b32 v9, 31, v9",
            "v_bfe_u32 v8, v9, 1, 3", "v_xor_b32 v8, v8, v3",
            "v_lshlrev_b32 v8, 4, v8", "v_lshl_add_u32 v8, v9, 7, v8", "v_add_u32 v8, s60, v8",
            "v_xor_b32 v9, 32, v8", "v_xor_b32 v10, 64, v8", "v_xor_b32 v11, 96, v8"]
    pre += ["v_bfe_u32 v12, v1, 2, 1", "v_bfe_u32 v13, v1, 3, 1",
            "v_bfe_u32 v14, v1, 1, 1", "v_lshl_add_u32 v13, v13, 1, v14",
            "v_bfe_u32 v14, v1, 4, 1", "v_lshl_add_u32 v13, v14, 2, v13",
            "v_xor_b32 v12, v12, v3", "v_lshl_add_u32 v13, v12, 3, v13",
            "v_and_b32 v14, 1, v1", "v_lshlrev_b32 v14, 4, v14", "v_mov_b32 v15, 0x3f80",
            "v_lshlrev_b32 v14, v14, v15"]
    pre += [f"v_cmp_eq_u32 {sr(64 + 2 * k, 2)}, {k}, v13" for k in range(8)]
    pre += [f"v_cndmask_b32 v{WR + k}, 0, v14, {sr(64 + 2 * k, 2)}" for k in range(8)]
    pre += ["v_and_b32 v13, 3, v1", "v_bfe_u32 v14, v1, 4, 1", "v_lshl_add_u32 v13, v14, 2, v13",
            "v_bfe_u32 v14, v1, 2, 2", "v_lshlrev_b32 v14, 6, v14", "v_lshl_add_u32 v13, v13, 3, v14",
            "v_lshl_add_u32 v12, v3, 10, v13", f"v_add_u32 v12, {L_S2}, v12"]
    pre += ["s_lshl_b32 s70, s52, 1", "s_and_b32 s27, s53, 1", "s_add_u32 s70, s70, s27",
            "s_lshr_b32 s27, s53, 1", "s_lshl_b32 s27, s27, 2", "s_add_u32 s71, s27, s3",
            "s_mul_i32 s73, s3, 3", "s_add_u32 s72, s27, s73", "s_sub_u32 s72, s72, 8",
            "s_lshl_b32 s73, s73, 12", "s_sub_u32 s87, s50, 6", f"s_mul_i32 s87, s87, {L_S1 - L_ATT}",
            f"s_add_u32 s87, s87, {L_ATT}", "s_add_u32 s73, s73, s87", "s_mul_i32 s78, s70, 1792",
            f"s_mul_i32 s74, s71, {RT}", "s_add_u32 s74, s74, s78"]
    for i in range(3):
        pre += [f"s_add_u32 s27, s72, {i}", f"s_mul_i32 s{75 + i}, s27, {RT}", f"s_add_u32 s{75 + i}, s{75 + i}, s78",
                "s_cmp_lt_i32 s27, 0", f"s_cselect_b32 s{75 + i}, 0x40000000, s{75 + i}"]
    pre += kv_gather(70, 72, 56, 13, 14, 79)
    pre += [f"s_mul_i32 s27, s71, {FLG_N}", "v_add_u32 v13, s27, v13", "v_lshlrev_b32 v13, 7, v13",
            f"v_add_u32 v57, {OFF_FLG}, v13", "v_lshlrev_b32 v59, 3, v1"]
    pre += ["s_sub_u32 s86, s50, 1",
            f"s_mov_b32 s{SWS}, s{P_WS}", f"s_mov_b32 s{SWS + 1}, s{P_WS + 1}", f"s_mov_b32 s{SWS + 2}, {WS_BYTES}",
            f"s_mov_b32 s{SWS + 3}, 0x20000",
            "v_mov_b32 v14, 0", "v_mov_b32 v15, 0", "s_mov_b32 s62, 0x3f803f80", "s_mov_b32 s82, 0"]
    def xgrp(g):
        return [f"s_add_u32 m0, s60, {g * 4096}", f"s_add_u32 s61, s59, {g * 128}"] + \
               [f"buffer_load_dwordx4 v{4 + i}, {sr(SA, 4)}, s61 offen offset:{i * 1024} lds" for i in range(1, 4)]

    XA = next((int(e[2:]) for e in EXP if e.startswith('xa')), 3)
    for g in range(XA):
        a(*xgrp(g))
    a(*pre)
    a("v_lshlrev_b32 v13, 7, v1", f"s_mov_b32 s{SB + 3}, 0x20000", "s_cmp_eq_u32 s3, 0", "s_cbranch_scc0 M_T1",
      "s_sub_u32 s80, s2, 196", "s_cmp_lt_u32 s2, 196", "s_cselect_b32 s80, s2, s80",
      f"s_cselect_b32 s{SB}, s{P_W2}, s{P_WO}", f"s_cselect_b32 s{SB + 1}, s{P_W2 + 1}, s{P_WO + 1}",
      f"s_mov_b32 s{SB + 2}, {WO_BYTES}", f"s_cselect_b32 s{SB + 2}, {W2_BYTES}, s{SB + 2}",
      "s_lshl_b32 s80, s80, 13", "s_branch M_TD")
    a.label("M_T1")
    a("s_cmp_eq_u32 s3, 3", "s_cbranch_scc0 M_T2", "s_cmp_eq_u32 s50, 7", "s_cbranch_scc1 M_T3",
      f"s_getpc_b64 {sr(SB, 2)}")
    a.label("M_PC")
    a(f"s_sub_u32 s{SB}, s{SB}, M_PC-{NAME}_kernel", f"s_subb_u32 s{SB + 1}, s{SB + 1}, 0",
      f"s_mov_b32 s{SB + 2}, L_CODE_END-{NAME}_kernel", "s_and_b32 s80, s53, 3", "s_lshl_b32 s80, s80, 13",
      "s_branch M_TD")
    a.label("M_T2")
    a("s_mul_i32 s27, s55, 56", "v_min_u32 v13, 55, v1", "v_add_u32 v13, s27, v13",
      "s_add_u32 s80, s57, 11", "s_sub_u32 s27, s49, 5", "s_cmp_eq_u32 s3, 1", "s_cselect_b32 s80, s27, s80",
      "s_movk_i32 s81, 3584", f"s_mov_b32 s{SB + 2}, {W1_BYTES}", "s_add_u32 s27, s49, 2", "s_cmp_lt_i32 s80, 0",
      "s_cselect_b32 s80, s27, s80", "s_cselect_b32 s81, 2688, s81",
      f"s_cselect_b32 s{SB}, s{P_WQKV}, s{P_W1}", f"s_cselect_b32 s{SB + 1}, s{P_WQKV + 1}, s{P_W1 + 1}",
      f"s_cselect_b32 s{SB + 2}, {WQKV_BYTES}, s{SB + 2}", "s_lshl_b32 s80, s80, 7", "v_mul_u32_u24 v13, s81, v13")
    a("s_branch M_TD")
    a.label("M_T3")
    a("s_lshl_b32 s27, s52, 2", "s_and_b32 s80, s53, 3", "s_add_u32 s27, s27, s80", "s_mul_i32 s27, s27, 14",
      "v_min_u32 v13, 13, v1", "v_add_u32 v13, s27, v13", "v_mul_u32_u24 v13, 3584, v13",
      f"s_mov_b32 s{SB}, s{P_W1}", f"s_mov_b32 s{SB + 1}, s{P_W1 + 1}", f"s_mov_b32 s{SB + 2}, {W1_BYTES}",
      f"s_movk_i32 s80, {27 * 128}")
    a.label("M_TD")
    a("s_lshl_b32 s27, s57, 1", "s_add_u32 s27, s27, 23", "s_add_u32 s84, s51, 54", "s_cmp_eq_u32 s50, 7",
      "s_cselect_b32 s27, s84, s27", f"s_mul_i32 s85, s58, {FLG_N}", "s_add_u32 s85, s85, s27",
      "s_lshl_b32 s85, s85, 7", f"s_add_u32 s85, s85, {OFF_FLG + 42 * 128}", f"s_mul_i32 s84, s58, {ACT_RT}",
      "s_lshl_b32 s27, s27, 11", "s_add_u32 s84, s84, s27", f"s_add_u32 s84, s84, {OFF_ACT}")
    a("v_lshlrev_b32 v124, 2, v3", "v_sub_u32 v124, v2, v124", "v_mov_b32 v125, 0xffff", "v_mov_b32 v126, 0xffff0000")
    for i in range(16):
        a(f"v_cmp_le_i32 {ms(i)}, {(i & 3) + 8 * (i >> 2)}, v124")
    for k in range(8):
        a(f"v_cndmask_b32 v{MK + k}, 0, v125, {ms(2 * k)}", f"v_cndmask_b32 v127, 0, v126, {ms(2 * k + 1)}",
          f"v_or_b32 v{MK + k}, v{MK + k}, v127")
    a("s_lshl_b32 s27, s3, 12", "s_add_u32 s27, s27, s87", "v_add_u32 v124, s27, v59",
      "v_mul_u32_u24 v126, 448, v3", "v_lshl_add_u32 v125, v2, 4, v126", "v_add_u32 v126, 896, v125",
      "v_cmp_gt_u32 vcc, 28, v2", "v_mov_b32 v127, 1792", "s_add_u32 s27, s27, 2048",
      "v_cndmask_b32 v125, v127, v125, vcc", "v_cndmask_b32 v126, v127, v126, vcc",
      "v_add_u32 v125, s27, v125", "v_add_u32 v126, s27, v126")
    stamp(a, 2)

    def stats(g):
        for r in range(X + 16 * g, X + 16 * g + 16):
            a(f"v_dot2c_f32_bf16 v14, s62, v{r}", f"v_dot2c_f32_bf16 v15, v{r}, v{r}")

    for g in range(7):
        a(f"s_waitcnt vmcnt({3 * (min(7, g + XA) - g - 1)})")
        if g == 0 and "st1" in EXP:
            stamp(a, 2)
        for q in range(4):
            a(f"ds_read_b128 {vr(X + 16 * g + 4 * q, 4)}, v{8 + q} offset:{g * 4096}")
        if g + XA < 7:
            a(*xgrp(g + XA))
        if g:
            a("s_waitcnt lgkmcnt(4)")
            stats(g - 1)
    a("s_waitcnt lgkmcnt(0)")
    stamp(a, 3)
    a("s_barrier")
    stats(6)
    a("s_nop 2", "v_mov_b32 v4, v14", "v_mov_b32 v5, v15", "s_nop 1",
      "v_permlane32_swap_b32 v4, v14", "v_permlane32_swap_b32 v5, v15",
      "v_add_f32 v14, v4, v14", "v_add_f32 v15, v5, v15",
      f"v_mul_f32 v14, {f32(1 / 448)}, v14", f"v_mul_f32 v15, {f32(1 / 448)}, v15",
      "v_cvt_pk_bf16_f32 v4, v14, v14", "v_fma_f32 v15, -v14, v14, v15",
      "v_lshlrev_b32 v4, 16, v4", "v_max_f32 v15, 0, v15", "v_xor_b32 v4, 0x80000000, v4")
    for i in range(16):
        a(f"v_mov_b32 v{T + i}, v4")
    a("s_nop 1")
    t0 = [168, 169, 0, 1, 168, 169, 0, 0]
    t1 = [112, 113, 56, 57, 112, 113, 1, 0]
    pk = lambda b: b[0] | b[1] << 8 | b[2] << 16 | b[3] << 24
    fin = ["v_cvt_pk_bf16_f32 v15, v15, v15", "v_lshlrev_b32 v15, 16, v15", f"v_add_f32 v15, {f32(1e-5)}, v15",
           "v_cvt_pk_bf16_f32 v15, v15, v15", "v_lshlrev_b32 v15, 16, v15", "v_sqrt_f32 v15, v15",
           "s_lshl_b32 s27, s3, 8",
           "v_cvt_pk_bf16_f32 v5, v15, v15", "v_lshlrev_b32 v15, 16, v5", "v_rcp_f32 v14, v15",
           "v_and_b32 v5, 0xffff, v5", "v_cmp_eq_u32 vcc, 0, v3", f"s_add_u32 s27, s27, {L_STAT}",
           "v_lshl_add_u32 v4, v1, 2, s27", "v_cndmask_b32 v6, v15, v14, vcc", f"v_cndmask_b32 v{BB}, 0, v5, vcc",
           "ds_write_b32 v4, v6",
           f"v_mov_b32 v{AB + 1}, 0", f"v_mov_b32 v{AB + 2}, 0", f"v_mov_b32 v{AB + 3}, 0",
           f"v_mov_b32 v{BB + 1}, 0", f"v_mov_b32 v{BB + 2}, 0", f"v_mov_b32 v{BB + 3}, 0",
           "v_lshlrev_b32 v10, 1, v2", f"v_add_u32 v10, {L_BIAS}, v10",
           "s_lshl_b32 s83, s3, 13", f"v_add_u32 v8, {t0[0] * 512}, v12", "s_mov_b32 s68, 0"]
    assert len(fin) == 28
    late = [f"s_mov_b32 s64, {pk(t0[1:5])}", f"s_mov_b32 s65, {pk(t0[5:8] + [0])}",
            f"s_mov_b32 s66, {pk(t1[0:4])}", f"s_mov_b32 s67, {pk(t1[4:8])}",
            "s_mov_b32 s69, s54", f"v_mul_f32 v7, {f32(GC0)}, v14", "v_mul_f32 v6, v14, v14", "v_mul_f32 v6, v6, v14",
            f"v_mul_f32 v6, {f32(GC1)}, v6"]
    CB = (ACA, ACB, 32)

    def cv(p, h):
        d = CB[p % 3]
        return [f"v_cvt_pk_bf16_f32 v{X + 8 * p + k}, v{d + 2 * k}, v{d + 2 * k + 1}" for k in range(4 * h, 4 * h + 4)]

    for p in range(16):
        d = CB[p % 3]
        if p < 14:
            a(mfma(d, WR, X + 8 * p, T))
        a(*(cv(p - 2, 0) if p >= 2 else fin[14 * p:14 * p + 7]))
        if p < 14:
            a(mfma(d, WR + 4, X + 8 * p + 4, d))
        a(*(cv(p - 2, 1) if p >= 2 else fin[14 * p + 7:14 * p + 14]))
        if 2 <= p < 2 + len(late):
            a(late[p - 2])
        if p == 14:
            a("s_nop 1")

    PD = 4

    def ring(j):
        return WR + 4 * (j % 7)

    def rd(j):
        jj = j % 28
        base = "v8" if jj < 14 else "v9"
        r = ring(j)
        return [f"ds_read_b64_tr_b16 {vr(r, 2)}, {base} offset:{(jj % 14) * 2048}",
                f"ds_read_b64_tr_b16 {vr(r + 2, 2)}, {base} offset:{(jj % 14) * 2048 + 256}"]

    accw = [f"ds_write_addtid_b32 v{ACB + k} offset:{k * 256}" for k in range(16)]
    touch = f"buffer_load_dword v60, v13, {sr(SB, 4)}, s80 offen"
    MT = next((int(e[2:]) for e in EXP if e.startswith('mt')), 1)
    a("s_cmp_eq_u32 s3, 0", f"s_cselect_b32 s81, {MT}, s86", "s_cbranch_scc1 M_NOT", touch)
    a.label("M_NOT")
    stamp(a, 4)
    a("s_waitcnt lgkmcnt(0)", "s_barrier")
    stamp(a, 5)
    stamp(a, 12, rt=True)
    if "prio" in EXP:
        a("s_setprio 2")
    if "zero" in EXP:
        for r in range(X, X + 112):
            a(f"v_mov_b32 v{r}, 0")
    for j in range(PD):
        a(*rd(j))
    if "align" in EXP:
        a.raw(".p2align 6")
    a.label("M_TILE")
    a("s_cmp_eq_u32 s68, s81", "s_cbranch_scc1 M_SIDE")
    a.label("M_SIDER")
    jitter(a)
    a("s_mov_b32 m0, s83", "s_bitcmp1_b32 s69, 0", "s_cbranch_scc1 M_V")
    WPOS = {1: (0, 3), 2: (3, 6), 3: (6, 9), 4: (9, 12), 5: (12, 14), 6: (14, 16)}

    pfs = []

    def body(tag):
        q = [f for f in range(PD) for _ in range(2)]
        for j in range(28):
            if j % 2 == 0:
                q = q[max(i for i, f in enumerate(q) if f == j + 1) + 1:][-15:]
                a(f"s_waitcnt lgkmcnt({len(q)})")
            d = ACB if j == 27 else ACA
            ops = (X + 4 * j, ring(j)) if tag == "V" else (ring(j), X + 4 * j)
            if j == 0 and tag == "N":
                a("s_bitcmp1_b32 s69, 1", "s_cbranch_scc0 M_NOB", mfma(ACA, AB, BB, "0"),
                  mfma(ACA, *ops, ACA), "s_branch M_NOB2")
                a.label("M_NOB")
                a(mfma(ACA, *ops, "0"))
                a.label("M_NOB2")
            else:
                a(mfma(d, *ops, "0" if j == 0 else ACA))
            if j + PD == 14:
                assert "w" not in q
                a("s_barrier")
            if j in WPOS and "noaccw" not in EXP:
                a(*accw[WPOS[j][0]:WPOS[j][1]])
                q += ["w"] * (WPOS[j][1] - WPOS[j][0])
            a(*rd(j + PD))
            q += [j + PD] * 2
            if j == 0:
                a("s_and_b32 s27, s66, 0xff", "s_lshr_b64 s[66:67], s[66:67], 8",
                  "v_lshl_add_u32 v9, s27, 9, v12", "v_add_u32 v10, 64, v10")
            if j == 12:
                a("s_and_b32 s27, s64, 0xff", "s_lshr_b64 s[64:65], s[64:65], 8",
                  "v_lshl_add_u32 v8, s27, 9, v12", "s_xor_b32 s83, s83, 4096")
            if j + PD == 27:
                a(f"ds_read_u16 v{AB}, v10")
                q += ["b"]
        a("s_lshr_b32 s69, s69, 2", "s_add_u32 s68, s68, 1", "s_cmp_lt_u32 s68, s50", "s_cbranch_scc1 M_TILE")

    body("N")
    a("s_branch M_DONE")
    a.label("M_SIDE")
    a("s_cmp_eq_u32 s68, s86", "s_cbranch_scc1 M_SIDE2", touch, "s_mov_b32 s81, s86", "s_branch M_SIDER")
    a.label("M_SIDE2")
    a(f"v_mov_b32 v61, {L_CNT + 64}", "ds_read_b32 v61, v61", "s_mov_b64 exec, 0xffff",
      f"buffer_load_dword v60, v56, {sr(SWS, 4)}, 0 offen sc1", "s_mov_b64 exec, -1", "s_branch M_SIDER")
    a.label("M_V")
    body("V")
    a.label("M_DONE")
    jitter(a)
    stamp(a, 6)
    stamp(a, 13, rt=True)
    lds_arrive(a, 2, 4, 5)
    qld = [f"buffer_load_dwordx2 {vr(QF + 2 * g, 2)}, v59, {sr(SWS, 4)}, s74 offen offset:{g * 512} sc1" for g in range(4)]
    a("v_readfirstlane_b32 s47, v61", "s_setprio 3", "s_waitcnt vmcnt(0)", "v_cmp_ne_u32 s[90:91], s47, v60",
      "s_mov_b64 exec, 3", f"buffer_load_dword v61, v57, {sr(SWS, 4)}, 0 offen sc1", "s_mov_b64 exec, -1")
    a("v_lshlrev_b32 v4, 4, v1", "s_mov_b32 s83, 1", "s_and_b32 s82, s90, 0xffff", "s_cbranch_scc1 M_NOK", *stage_kv(OFF_K, 0, 4, 73, 75), *stage_kv(OFF_V, 2048, 4, 73, 75),
      "s_waitcnt vmcnt(12)", "v_cmp_ne_u32 s[88:89], s47, v61", "s_nop 0", "s_and_b32 s83, s88, 3",
      "s_cbranch_scc1 M_NOK", *qld)
    a.label("M_NOK")
    for h in range(2):
        t = [T + 8 * h + k for k in range(8)]
        c = [ACB + 8 * h + k for k in range(8)]
        a(*[f"v_mul_f32 v{t[k]}, v{c[k]}, v{c[k]}" for k in range(8)])
        a(*[f"v_fma_f32 v{t[k]}, v{t[k]}, v6, v7" for k in range(8)])
        a(*[f"v_mul_f32 v{t[k]}, v{c[k]}, v{t[k]}" for k in range(8)])
        a(*[f"v_exp_f32 v{t[k]}, v{t[k]}" for k in range(8)])
        a(*[f"v_fma_f32 v{t[k]}, v{t[k]}, v15, v15" for k in range(8)])
        a(*[f"v_rcp_f32 v{t[k]}, v{t[k]}" for k in range(8)])
        a(*[f"v_mul_f32 v{t[k]}, v{c[k]}, v{t[k]}" for k in range(8)])
        a(*[f"v_cvt_pk_bf16_f32 v{32 + 4 * h + k}, v{t[2 * k]}, v{t[2 * k + 1]}" for k in range(4)])
        a(f"buffer_store_dwordx4 {vr(32 + 4 * h, 4)}, v4, {sr(SWS, 4)}, s84 offen offset:{1024 * h} sc1")
    a("s_setprio 0")


JIT = [0]


def jitter(a):
    if "jitter" not in EXP:
        return
    JIT[0] += 1
    n = JIT[0]
    a("s_memtime s[98:99]", "s_waitcnt lgkmcnt(0)", "s_lshl_b32 s99, s2, 3", "s_add_u32 s99, s99, s3",
      f"s_mul_i32 s99, s99, {2654435761 if n & 1 else 40503}", "s_xor_b32 s98, s98, s99", "s_lshr_b32 s98, s98, 3",
      "s_and_b32 s99, s98, 7", "s_cmp_eq_u32 s99, 0", f"s_cbranch_scc0 J_{n}X", "s_bfe_u32 s98, s98, 0x50003")
    a.label(f"J_{n}")
    a("s_sleep 8", "s_sub_u32 s98, s98, 1", f"s_cbranch_scc0 J_{n}")
    a.label(f"J_{n}X")


def lds_arrive(a, idx, vaddr, vtmp, val="1"):
    a(f"v_mov_b32 v{vaddr}, {L_CNT + 4 * idx}", f"v_mov_b32 v{vtmp}, {val}", "s_mov_b64 exec, 1",
      f"ds_add_u32 v{vaddr}, v{vtmp}", "s_mov_b64 exec, -1")


def lds_wait(a, tag, vaddr, vtmp, n=4):
    a(f"s_mov_b32 s27, {SPIN_MAX * 64}", f"s_branch {tag}_L")
    a.label(tag)
    a("s_sleep 1")
    a.label(tag + "_L")
    a(f"ds_read_b32 v{vtmp}, v{vaddr}", "s_waitcnt lgkmcnt(0)", f"v_readfirstlane_b32 s88, v{vtmp}",
      "s_sub_u32 s27, s27, 1", f"s_cbranch_scc1 {tag}_X", f"s_cmp_lt_u32 s88, {n}", f"s_cbranch_scc1 {tag}")
    a.label(tag + "_X")


def poll(a, tag, vaddr, nl, vtmp=60, pending=None):
    if pending:
        a(f"s_mov_b32 s27, {SPIN_MAX}", f"s_mov_b32 exec_lo, {pending}", "s_mov_b32 exec_hi, 0", f"s_branch {tag}_L")
    else:
        a(f"s_mov_b32 s27, {SPIN_MAX}", f"s_mov_b64 exec, {(1 << nl) - 1}", f"s_branch {tag}_L")
    a.label(tag)
    a("s_mov_b64 exec, s[88:89]", "s_sleep 3")
    a.label(tag + "_L")
    a(f"buffer_load_dword v{vtmp}, v{vaddr}, {sr(SWS, 4)}, 0 offen sc1", "s_waitcnt vmcnt(0)",
      f"v_cmp_ne_u32 s[88:89], s47, v{vtmp}", "s_sub_u32 s27, s27, 1", f"s_cbranch_scc1 {tag}_X",
      "s_cmp_lg_u64 s[88:89], 0", f"s_cbranch_scc1 {tag}")
    a.label(tag + "_X")
    a("s_mov_b64 exec, -1")


def epoch_issue(a, vz, vtmp):
    srd(a, SC, P_DBG, 256)
    a(f"v_mov_b32 v{vz}, 0", f"buffer_load_dword v{vtmp}, v{vz}, {sr(SC, 4)}, 0 offen sc1")


def epoch_wait(a, tag, vz, vtmp, n0):
    a(f"s_mov_b32 s27, {SPIN_MAX}", f"s_waitcnt vmcnt({n0})", f"s_branch {tag}_L")
    a.label(tag)
    a("s_sleep 3", f"buffer_load_dword v{vtmp}, v{vz}, {sr(SC, 4)}, 0 offen sc1", "s_waitcnt vmcnt(0)")
    a.label(tag + "_L")
    a(f"v_readfirstlane_b32 s47, v{vtmp}", "s_sub_u32 s27, s27, 1", f"s_cbranch_scc1 {tag}_X",
      "s_cmp_eq_u32 s47, 0", f"s_cbranch_scc1 {tag}")
    a.label(tag + "_X")


def gen_attn(a):
    KF, OA, CN, SM, VF = 128, 200, 216, 232, 16
    SB3 = (64, 80, 96)
    PFR = (32, 40, 112)
    qld = [f"buffer_load_dwordx2 {vr(QF + 2 * g, 2)}, v59, {sr(SWS, 4)}, s74 offen offset:{g * 512} sc1" for g in range(4)]
    pubm = ["v_mov_b32 v10, s47", "v_mov_b32 v11, 0", "s_mov_b64 exec, 1",
            f"buffer_store_dword v10, v11, {sr(SWS, 4)}, s85 offen sc1", "s_mov_b64 exec, -1"]
    vstage = stage_kv(OFF_V, 2048, 4, 73, 75)
    a(*pads(73, 75, 12, 8), "s_waitcnt vmcnt(0)", *pubm, "s_cmp_eq_u32 s82, 0", "s_cbranch_scc1 A_KOK")
    poll(a, "A_PK", 56, 16)
    a(*stage_kv(OFF_K, 0, 4, 73, 75), *vstage, "s_waitcnt vmcnt(0)")
    a.label("A_KOK")
    a("s_waitcnt lgkmcnt(0)")
    lds_arrive(a, 0, 8, 9)
    a("s_cmp_eq_u32 s83, 0", "s_cbranch_scc1 A_QOK")
    poll(a, "A_PQ", 57, 2)
    a(*qld, "s_waitcnt vmcnt(0)")
    a.label("A_QOK")
    a("v_cmp_eq_u32 vcc, 0, v3", "v_mov_b32 v5, 0x3f80", f"v_mov_b32 v15, {f32(-3e38)}",
      f"v_cndmask_b32 v{QF + 6}, v5, v{QF + 6}, vcc", f"v_cndmask_b32 v{QF + 7}, 0, v{QF + 7}, vcc")
    stamp(a, 8)
    a(f"s_setprio {APRIO}")
    lds_wait(a, "A_LB0", 8, 9)
    stamp(a, 9)
    TL = [0, 8, 1, 2, 3, 4, 5, 6, 7]

    def kread(n):
        i = TL[n]
        return [f"ds_read_b64 {vr(KF + 8 * i + 2 * g, 2)}, v124 offset:{(8 - i) * 4096 + g * 512}" for g in range(4)]

    def smm(i, s, c):
        return [mfma(s, KF + 8 * i, QF, c), mfma(s, KF + 8 * i + 4, QF + 4, s)]

    def smax(s):
        return [f"v_max3_f32 v15, v{s + 2 * k}, v{s + 2 * k + 1}, v15" for k in range(8)]

    p1buf = [SM, CN] + [SB3[n % 3] for n in range(7)]
    merge = [f"v_cndmask_b32 v{SM + k}, v{CN + k}, v{SM + k}, {ms(k)}" for k in range(16)]
    work = {0: ["s_nop 1"] * 2, 1: ["s_nop 1"] * 2, 2: ["s_nop 1"] * 4, 3: merge[:12], 4: merge[12:] + smax(p1buf[2]),
            5: smax(p1buf[3]) + smax(SM)[:4], 6: smax(p1buf[4]) + smax(SM)[4:]}
    a(*kread(0), *kread(1), *kread(2))
    for n in range(11):
        mx = work[n] if n in work else smax(p1buf[n - 2])
        h = len(mx) // 2
        if n < 9:
            mm = smm(TL[n], p1buf[n], "0")
            a(f"s_waitcnt lgkmcnt({4 * (min(8, n + 2) - n)})", mm[0])
            if n + 3 <= 8:
                a(*kread(n + 3))
            a(*mx[:h], mm[1], *mx[h:])
        else:
            if n == 10:
                a("s_nop 1")
            a(*mx)
    stamp(a, 10)
    a("v_mov_b32 v8, v15", "s_nop 1", "v_permlane32_swap_b32 v8, v15", "v_max_f32 v15, v8, v15",
      "v_xor_b32 v14, 0x80000000, v15")
    for i in range(16):
        a(f"v_mov_b32 v{CN + i}, v14")

    def vread(i, b):
        return [f"ds_read_b128 {vr(b, 4)}, v125 offset:{(8 - i) * 4096}",
                f"ds_read_b128 {vr(b + 4, 4)}, v126 offset:{(8 - i) * 4096}"]

    def pexp(s, p):
        o = []
        for h in range(2):
            o += [f"v_exp_f32 v{s + 8 * h + k}, v{s + 8 * h + k}" for k in range(8)]
            o += [f"v_cvt_pk_bf16_f32 v{p + 4 * h + k}, v{s + 8 * h + 2 * k}, v{s + 8 * h + 2 * k + 1}"
                  for k in range(4)]
        return o

    PD_, PO_ = KF, KF + 64
    pvq = [(0, PD_), (8, PO_)] + [(i, PFR[i % 3]) for i in range(1, 8)]
    vb = lambda n: VF + 8 * (n & 1)

    def pv(n):
        p = pvq[n][1]
        return [mfma(OA, vb(n), p, "0" if n == 0 else OA), mfma(OA, vb(n) + 4, p + 4, OA)]

    plan = {1: [0, 1], 2: [2], 3: [3], 4: [4], 5: [5], 6: [6], 7: [7]}
    for b in range(8):
        if b == 0:
            ex = [f"v_sub_f32 v{SM + k}, v{SM + k}, v15" for k in range(16)] + pexp(SM, PO_)
            ex += [x for k in range(8) for x in (f"v_and_b32 v{PD_ + k}, v{MK + k}, v{PO_ + k}",
                                                 f"v_xor_b32 v{PO_ + k}, v{PD_ + k}, v{PO_ + k}")]
        else:
            ex = pexp(SB3[b % 3], PFR[b % 3])
        seq = []
        if b < 7:
            seq += [[m] for m in smm(b + 1, SB3[(b + 1) % 3], CN)]
        if b == 0:
            a(*vread(pvq[0][0], vb(0)), *vread(pvq[1][0], vb(1)))
        for n in plan.get(b, []):
            pp = pv(n)
            seq += [["s_waitcnt lgkmcnt(2)", pp[0]], [pp[1]] + vread(pvq[n + 2][0], vb(n)) if n + 2 < 9 else [pp[1]]]
        if b == 7:
            seq += [["s_waitcnt lgkmcnt(0)", pv(8)[0]]]
        step = 24 // len(seq)
        ins = {(2 if b == 0 else 0) + i * (8 if b == 0 else step): x for i, x in enumerate(seq)}
        for k, e in enumerate(ex):
            a(*ins.get(k, []))
            a(e)
    a("s_nop 1", pv(8)[1])
    a.label("A_FIN")
    jitter(a)
    stamp(a, 11)
    PF = 32
    a(f"s_mul_i32 s41, s71, {ACT_RT}", "s_lshl_b32 s42, s70, 11", "s_add_u32 s41, s41, s42",
      f"s_add_u32 s41, s41, {OFF_ACT + 112 * 1024}", f"s_mul_i32 s42, s71, {FLG_RT}", "s_lshl_b32 s27, s70, 7",
      "s_add_u32 s42, s42, s27", f"s_add_u32 s42, s42, {OFF_FLG + 98 * 128}",
      "v_mov_b32 v10, s47", "v_mov_b32 v11, 0", "s_nop 1")
    a(f"v_mov_b32 v8, v{OA + 12}", f"v_mov_b32 v9, v{OA + 12}", "s_nop 1", "v_permlane32_swap_b32 v8, v9",
      "v_rcp_f32 v9, v9", "s_nop 0")
    for h in range(2):
        for i in range(8 * h, 8 * h + 8):
            a(f"v_mul_f32 v{OA + i}, v9, v{OA + i}")
        for k in range(4 * h, 4 * h + 4):
            a(f"v_cvt_pk_bf16_f32 v{PF + k}, v{OA + 2 * k}, v{OA + 2 * k + 1}")
        if h:
            a(f"v_cndmask_b32 v{PF + 6}, 0, v{PF + 6}, vcc", f"v_cndmask_b32 v{PF + 7}, 0, v{PF + 7}, vcc")
        a(f"buffer_store_dwordx4 {vr(PF + 4 * h, 4)}, v4, {sr(SWS, 4)}, s41 offen offset:{1024 * h} sc1")
    a("s_waitcnt vmcnt(0)", "s_mov_b64 exec, 1",
      f"buffer_store_dword v10, v11, {sr(SWS, 4)}, s42 offen sc1", "s_mov_b64 exec, -1")
    stamp_out(a)
    a("s_endpgm")


G_R = 10
G_RW = 12
G_RES = 192
G_P1 = 3
HLEAD = 3
G_MW = 9
GX, GWO, GW2, GOUT = 4, 8, 16, 20


def publish(reg, off=0):
    return ["s_mov_b64 exec, 1", f"buffer_store_dword v58, v59, {sr(SWS, 4)}, s{reg} offen offset:{off} sc1",
            "s_mov_b64 exec, -1"]


HCHK = eval(os.environ.get('HCHK', '{4: (2, 24), 16: (10, 28)}'))
OCHK = eval(os.environ.get('OCHK', '(21, 26)'))
AMAX = int(os.environ.get('AMAX', '2'))
BURST = int(os.environ.get('BURST', '10'))
BAR = int(os.environ.get('BAR', '16'))
XPRIO = int(os.environ.get('XPRIO', '2'))
PUBD = int(os.environ.get('PUBD', '3'))
PUBK = int(os.environ.get('PUBK', '2'))


KORD = [0, 2, 1, 3, 4, 5, 6, 8, 10, 7, 9, 11, 12, 13]


KT = sum(n << (4 * i) for i, n in enumerate(KORD))


def kpos(k):
    n = KORD[k >> 1]
    return 16 * (n >> 1) + 2 * (n & 1) + (k & 1)


def slot(k):
    sl = k % G_RW
    if sl < 4:
        return 0, sl * 2048
    return 1, (L_S0 - L_RING + (sl - 4) * 2048) if sl < 8 else (sl - 8) * 2048


def dma_w(k):
    up, off = slot(k)
    src, w = wsrc(k)
    return [f"s_add_u32 m0, s{14 if up else 65}, {off}", src, f"buffer_load_dwordx4 v32, {sr(w, 4)}, s27 offen lds",
            f"buffer_load_dwordx4 v33, {sr(w, 4)}, s27 offen offset:1024 lds"]


def areg(k):
    return (16 + 8 * (k % G_R)) if (k % G_R) < 2 else (128 + 8 * (k % G_R - 2))


def issue_a(k, b0=44, b1=45):
    r = areg(k)
    off = (k & 1) * 1024
    o = []
    if k & 1 == 0:
        o = [f"s_add_u32 s70, s{b0}, {kpos(k) * 1024}", f"s_add_u32 s71, s{b1}, {kpos(k) * 1024}"]
    return o + [f"buffer_load_dwordx4 {vr(r, 4)}, v13, {sr(SWS, 4)}, s70 offen offset:{off} sc1",
                f"buffer_load_dwordx4 {vr(r + 4, 4)}, v13, {sr(SWS, 4)}, s71 offen offset:{off} sc1"]


def wsrc(k):
    if k < 28:
        return f"s_add_u32 s27, s12, {kpos(k) * 16 * 896}", GW2
    kk = k - 28
    return f"s_add_u32 s27, s13, {((kk >> 1) * 28 + (kk & 1) * 16) * 896}", GWO


PK0 = G_RW
PK1 = G_RW + 16
NA1 = int(os.environ.get('NA1', '4'))
NPA = int(os.environ.get('NPA', '4'))


def preg(k):
    if k < NPA:
        return 96 + 8 * k if k < 4 else 144 + 8 * (k - 4)
    return 192 + 8 * ((k - PK0) % 8)


def park_w(k):
    src, w = wsrc(k)
    return [src, f"buffer_load_dwordx4 {vr(preg(k), 4)}, v32, {sr(w, 4)}, s27 offen",
            f"buffer_load_dwordx4 {vr(preg(k) + 4, 4)}, v33, {sr(w, 4)}, s27 offen offset:1024"]


PSCHED = [int(x) for x in os.environ.get("PS", "2,1,1,4,4").split(",")]
PORDER = list(range(NPA)) + list(range(PK0, PK0 + 8))


def gen_aux(a):
    AC, T, P = 64, 16, 48
    SWQ, SW1 = SA, SB
    a("s_setprio 3", "s_add_u32 s59, s49, 7", "s_sub_u32 s27, s49, 14", "s_cmp_ge_u32 s49, 14",
      "s_cselect_b32 s59, s27, s59", "s_lshl_b32 s69, s59, 7", "s_mul_i32 s27, s55, 56",
      "v_min_u32 v16, 55, v1", "v_add_u32 v16, s27, v16", "v_mul_u32_u24 v17, 2688, v16",
      "s_add_u32 s60, s49, 2", "s_sub_u32 s27, s49, 5",
      "s_cmp_lt_u32 s49, 5", "s_cselect_b32 s60, s60, s27", "s_add_u32 s61, s57, 11", "v_lshlrev_b32 v12, 2, v1")
    if "ct0" in EXP:
        a("s_cmp_lt_u32 s53, 4", "s_cbranch_scc0 X_CT", "s_cmp_eq_u32 s26, 1", "s_cbranch_scc0 X_CT",
          f"s_getpc_b64 {sr(SC, 2)}")
        a.label("X_PC")
        a(f"s_sub_u32 s{SC}, s{SC}, X_PC-{NAME}_kernel", f"s_subb_u32 s{SC + 1}, s{SC + 1}, 0",
          f"s_mov_b32 s{SC + 2}, L_CODE_END-{NAME}_kernel", f"s_mov_b32 s{SC + 3}, 0x20000", "s_lshl_b32 s27, s53, 13",
          "v_lshlrev_b32 v19, 7, v1", f"buffer_load_dword v19, v19, {sr(SC, 4)}, s27 offen")
        a.label("X_CT")
    a("s_waitcnt lgkmcnt(0)")
    stamp(a, 0, rt=True)
    stamp(a, 1)
    srd(a, SWQ, P_WQKV, WQKV_BYTES)
    if "notouch0" not in EXP:
        a("s_cmp_eq_u32 s26, 0", "s_cbranch_scc0 X_WD", f"buffer_load_dword v17, v17, {sr(SWQ, 4)}, s69 offen")
    a.label("X_WD")
    srd(a, SW1, P_W1, W1_BYTES)
    srd(a, SWS, P_WS, WS_BYTES)
    a("s_lshl_b32 s27, s2, 3", "s_add_u32 s27, s27, s3", "s_cmp_eq_u32 s27, 7", "s_cbranch_scc0 X_NOEP")
    srd(a, SC, P_DBG, 256)
    a(f"v_mov_b32 v20, {OFF_EPOCH}", "v_mov_b32 v22, 0", "s_mov_b64 exec, 1",
      f"buffer_load_dword v21, v20, {sr(SWS, 4)}, 0 offen sc1", "s_waitcnt vmcnt(0)",
      "v_add_u32 v21, 1, v21", "v_max_u32 v21, 1, v21",
      f"buffer_store_dword v21, v22, {sr(SC, 4)}, 0 offen sc1",
      f"buffer_store_dword v21, v20, {sr(SWS, 4)}, 0 offen sc1", "s_mov_b64 exec, -1")
    a.label("X_NOEP")
    a("s_cmp_eq_u32 s3, 5", "s_cbranch_scc0 X_PRE")
    srd(a, SC, P_B1, 3584)
    a("s_mov_b32 exec_hi, 0", f"s_mov_b32 m0, {L_BIAS + 128}", "s_lshl_b32 s27, s60, 7",
      f"buffer_load_dword v12, {sr(SC, 4)}, s27 offen lds",
      f"s_mov_b32 m0, {L_BIAS + 256}", "s_lshl_b32 s27, s61, 7",
      f"buffer_load_dword v12, {sr(SC, 4)}, s27 offen lds",
      f"s_mov_b32 m0, {L_BIAS + 384}", "s_lshl_b32 s27, s51, 6", f"s_add_u32 s27, s27, {27 * 128}",
      f"buffer_load_dword v12, {sr(SC, 4)}, s27 offen lds", "s_mov_b32 exec_hi, -1",
      f"v_add_u32 v20, {L_CNT}, v12", "v_mov_b32 v21, 0", "ds_write_b32 v20, v21")
    a.label("X_PRE")
    a(f"s_setprio {1 if 'auxprio' in EXP else 0}")
    a("v_bfe_u32 v15, v1, 2, 3", "v_lshlrev_b32 v13, 6, v3", "v_and_b32 v14, 3, v1", "v_lshl_add_u32 v13, v14, 4, v13",
      "v_mul_u32_u24 v4, 2688, v15", "v_add_u32 v4, v4, v13", "v_mul_u32_u24 v8, 3584, v15", "v_add_u32 v8, v8, v13")
    for k in range(1, 4):
        a(f"v_add_u32 v{4 + k}, {k * (8 * 2688 - 1024)}, v4", f"v_add_u32 v{8 + k}, {k * (8 * 3584 - 1024)}, v8")
    a(f"s_mul_i32 s27, s58, {FLG_RT}", f"s_add_u32 s27, s27, {OFF_FLG}", "s_lshl_b32 s62, s59, 8",
      "s_add_u32 s62, s62, s27", "s_lshl_b32 s64, s61, 8", "s_add_u32 s64, s64, s27", f"s_add_u32 s64, s64, {42 * 128}",
      "s_lshl_b32 s63, s60, 8", "s_add_u32 s63, s63, s27", f"s_add_u32 s27, s63, {42 * 128}",
      "s_cmp_lt_u32 s49, 5", "s_cselect_b32 s63, s63, s27")
    a(f"s_mul_i32 s66, s26, {56 * 2688}", f"s_mul_i32 s67, s26, {56 * 3584}", "s_mul_i32 s68, s26, 7168",
      "v_lshlrev_b32 v13, 4, v1", "v_lshlrev_b32 v14, 3, v1")
    a(f"s_mul_i32 s76, s58, {RT}", f"s_mul_i32 s77, s58, {ACT_RT}", f"s_add_u32 s77, s77, {OFF_ACT}",
      f"s_add_u32 s78, s76, {OFF_V}",
      "s_lshl_b32 s72, s59, 12", f"s_add_u32 s27, s72, {OFF_K - 7 * 4096}", "s_cmp_ge_u32 s59, 7",
      "s_cselect_b32 s72, s27, s72", "s_add_u32 s72, s72, s76",
      "s_sub_u32 s27, s59, 14", "s_lshl_b32 s27, s27, 10", "s_add_u32 s27, s27, s78",
      "s_cmp_ge_u32 s59, 14", "s_cselect_b32 s72, s27, s72",
      "s_lshl_b32 s74, s61, 12", "s_add_u32 s74, s74, s77",
      "s_lshl_b32 s73, s60, 12", "s_cmp_lt_u32 s49, 5", "s_cselect_b32 s27, s76, s77", "s_add_u32 s73, s73, s27",
      "v_mul_u32_u24 v15, 448, v3", "v_lshl_add_u32 v15, v2, 4, v15", "s_movk_i32 s79, 1344",
      "s_lshl_b32 s27, s26, 13", "v_add_u32 v57, s27, v12", "v_add_u32 v56, 4096, v57", "v_mov_b32 v59, 0")
    gemm_setup(a)

    def dma(ffn, src, slot):
        vb, pitch, w, wo = (8, 3584, SW1, 67) if ffn else (4, 2688, SWQ, 66)
        o = [f"s_add_u32 m0, s68, {slot}", f"s_add_u32 s27, {src}, s{wo}"]
        o += [f"buffer_load_dwordx4 v{vb + k}, {sr(w, 4)}, s27 offen offset:{k * 1024} lds" for k in range(4)]
        o += ["s_add_u32 m0, m0, 4096", f"s_add_u32 s27, s27, {32 * pitch}"]
        o += [f"buffer_load_dwordx4 v{vb + k}, {sr(w, 4)}, s27 offen offset:{k * 1024} lds" for k in range(3)]
        return o

    def dma2(tag, slot, half):
        a("s_cmp_lt_u32 s49, 5", f"s_cbranch_scc0 {tag}F", f"s_add_u32 s83, s71, {half * 224 * 2688}",
          *dma(False, "s83", slot), f"s_branch {tag}D")
        a.label(tag + "F")
        a(f"s_add_u32 s83, s71, {half * 224 * 3584}", *dma(True, "s83", slot))
        a.label(tag + "D")

    a("s_lshl_b32 s69, s59, 7", f"s_add_u32 s70, s69, {224 * 2688}", "s_lshl_b32 s71, s60, 7", "s_waitcnt lgkmcnt(0)")
    if "st0early" in EXP:
        a(*dma(False, "s69", L_S0))
    stamp(a, 2)
    a("s_barrier")
    stamp(a, 3)
    if "st0early" not in EXP:
        a(*dma(False, "s69", L_S0))
    a(*dma(False, "s70", L_S1))
    dma2("X_D2", L_S2, 0)
    a(f"buffer_load_dword v58, v59, {sr(SC, 4)}, 0 offen sc1", "s_waitcnt vmcnt(15)")
    stamp(a, 4)
    a("s_barrier")
    c0, c1 = GC0, GC1
    a("s_lshl_b32 s27, s26, 8", f"s_add_u32 s27, s27, {L_STAT}", "v_lshl_add_u32 v16, v2, 2, s27",
      "v_lshl_add_u32 v17, v3, 4, s27", "ds_read_b32 v40, v16", "ds_read_b32 v41, v16 offset:128",
      f"v_mov_b32 v18, {L_CNT + 64}")
    stamp(a, 30)
    a("s_waitcnt vmcnt(8)", "s_barrier")
    dma2("X_D3", L_S3, 1)
    a("v_mov_b32 v7, v17")
    XR = 80
    if "noxres" in EXP:
        a("s_mov_b32 s6, 0")
    a(f"buffer_load_dwordx4 {vr(XR, 4)}, v44, {sr(GX, 4)}, s15 offen",
      f"buffer_load_dwordx4 {vr(XR + 4, 4)}, v44, {sr(GX, 4)}, s15 offen offset:32",
      f"buffer_load_dwordx4 {vr(XR + 8, 4)}, v39, {sr(SD, 4)}, s101 offen",
      f"buffer_load_dwordx4 {vr(XR + 12, 4)}, v39, {sr(SD, 4)}, s101 offen offset:32")
    a("s_cmp_ge_u32 s49, 14", f"s_cselect_b32 s27, {f32(QSCALE)}, 1.0",
      "s_waitcnt lgkmcnt(0)",
      f"v_mul_f32 v42, {f32(c0)}, v40", "v_mul_f32 v43, v40, v40", "v_mul_f32 v43, v43, v40",
      f"v_mul_f32 v43, {f32(c1)}, v43", "v_mul_f32 v40, s27, v40")
    pos = [0]

    def take(p):
        n = PSCHED[p + 1]
        ks = PORDER[pos[0]:pos[0] + n]
        pos[0] += n
        return [x for k in ks for x in (park_w(k)[:2], park_w(k)[2:])]

    np_ = lambda p: 2 * PSCHED[p + 1]
    for x in take(-1):
        a(*x)
    epoch_wait(a, "X_EP", 59, 58, 11 + np_(-1))
    a("ds_write_b32 v18, v58", "s_lshl_b32 s82, s61, 7", "s_waitcnt lgkmcnt(0)")

    ACX = (AC, 128)

    def reads(u):
        return [f"ds_read2st64_b32 {vr(ACX[u & 1] + 2 * q, 2)}, v{56 + (u & 1)} offset0:{2 * q} offset1:{2 * q + 1}"
                for q in range(8)]

    def head(u):
        o = ["s_barrier"]
        if HOLD == 20 + u:
            o += ["s_memrealtime s[96:97]"]
        if STAMP and "ks" not in EXP:
            o += ["s_memtime s[98:99]", "s_waitcnt lgkmcnt(0)", f"v_writelane_b32 v63, s98, {16 + 4 * u}"]
        return o + reads(u)

    def ffn(u, weave, mid, nxt):
        blocks = []
        for g in range(4):
            t = [T + 4 * (g & 1) + k for k in range(4)]
            s = [ACX[u & 1] + 4 * g + k for k in range(4)]
            blocks += [[f"s_waitcnt lgkmcnt({6 - 2 * g})"] + [f"v_mul_f32 v{t[k]}, v{s[k]}, v{s[k]}" for k in range(4)],
                       [f"v_fma_f32 v{t[k]}, v{t[k]}, v43, v42" for k in range(4)]
                       + [f"v_mul_f32 v{t[k]}, v{s[k]}, v{t[k]}" for k in range(4)],
                       [f"v_exp_f32 v{t[k]}, v{t[k]}" for k in range(4)],
                       [f"v_fma_f32 v{t[k]}, v{t[k]}, v41, v41" for k in range(4)]
                       + [f"v_rcp_f32 v{t[k]}, v{t[k]}" for k in range(2)],
                       [f"v_rcp_f32 v{t[k]}, v{t[k]}" for k in range(2, 4)]
                       + [f"v_mul_f32 v{t[k]}, v{s[k]}, v{t[k]}" for k in range(4)]
                       + [f"v_cvt_pk_bf16_f32 v{P + 2 * g}, v{t[0]}, v{t[1]}",
                          f"v_cvt_pk_bf16_f32 v{P + 2 * g + 1}, v{t[2]}, v{t[3]}"]]
        at = {}
        for i in range(0, len(weave), 2):
            b = 9 + i * 9 // len(weave)
            at.setdefault(b, []).append(weave[i])
            at.setdefault(b + 1, []).insert(0, weave[i + 1])
        n = 0
        for b, blk in enumerate(blocks):
            if b == BAR and nxt:
                a("s_waitcnt lgkmcnt(0)", *nxt(n))
            a(*[x for x in blk if not (nxt and b >= BAR and x.startswith("s_waitcnt"))])
            if b == 9:
                m = mid(n)
                a(*m)
                n += sum(x.startswith("buffer_load") for x in m)
            if b in (9, 19):
                a(f"buffer_store_dwordx4 {vr(P + 4 * (b // 10), 4)}, v13, {sr(SWS, 4)}, s72 offen offset:{(b // 10) * 1024} sc1")
            for w in at.get(b, []):
                a(*w)
                n += 1
        a("s_add_u32 s72, s72, 2048")

    def qkv(u):
        a(f"s_bitcmp1_b32 s54, {2 * u}", f"s_cbranch_scc1 X_B{u}", f"s_call_b64 s[90:91], X_QK{u & 1}", f"s_branch X_C{u}")
        a.label(f"X_B{u}")
        a(f"s_call_b64 s[90:91], X_V{u & 1}")
        a.label(f"X_C{u}")
        jitter(a)

    def extra(tag, slot, setup):
        return ["s_cmp_eq_u32 s50, 7", f"s_cbranch_scc0 {tag}", setup, *dma(True, "s82", slot), tag + ":"]

    a(*head(0))
    qkv(0)
    a(*dma(True, "s82", L_S0))
    for x in take(0):
        a(*x)
    a(f"s_waitcnt vmcnt({4 + np_(-1) + 2 + 7 + np_(0)})")
    a(*head(1))
    qkv(1)
    a("s_mov_b32 s72, s73", f"s_add_u32 s82, s82, {224 * 3584}", *dma(True, "s82", L_S1))
    for x in take(1):
        a(*x)
    a(f"s_waitcnt vmcnt({np_(0) + 2 + 7 + np_(1)})")
    a(*head(2))
    w2, w3 = take(2), take(3)
    pub01 = ["s_waitcnt vmcnt(0)", *publish(62), *publish(62, 128)]
    a("s_cmp_lt_u32 s49, 5", "s_cbranch_scc0 X_R1F")
    a(*pub01, f"v_mul_f32 v40, {f32(QSCALE)}, v40", "s_call_b64 s[90:91], X_QK0")
    for x in w2:
        a(*x)
    a(*head(3), "s_waitcnt vmcnt(0)", *publish(63), "s_call_b64 s[90:91], X_QK1", "s_waitcnt vmcnt(0)", *publish(63, 128), *head(4))
    for x in w3:
        a(*x)
    a("s_branch X_R2")
    a.label("X_R1F")
    jitter(a)
    d6 = ["s_cmp_eq_u32 s50, 7", "s_cbranch_scc0 X_N6", f"v_mul_u32_u24 v60, {224 * 3584 - 64}, v3",
          *[f"v_add_u32 v{8 + k}, v60, v{8 + k}" for k in range(4)], "s_lshl_b32 s82, s51, 6",
          f"s_add_u32 s82, s82, {27 * 128}", *dma(True, "s82", L_S2), "X_N6:"]
    ffn(2, w2, lambda n: pub01 + d6, lambda n: head(3))
    ffn(3, w3, lambda n: ["s_waitcnt vmcnt(0)", *publish(63)], lambda n: head(4))
    a.label("X_R2")
    jitter(a)
    a("s_mov_b32 s72, s74")
    kreq = ["s_mov_b64 exec, 0xf",
            f"buffer_load_dword v62, v36, {sr(SWS, 4)}, 0 offen sc1", "s_mov_b64 exec, -1"]
    ffn(4, [], lambda n: [f"s_setprio {XPRIO}", "s_waitcnt vmcnt(0)", *publish(63, 128), *kreq], None)
    a("s_cmp_eq_u32 s50, 7", "s_cbranch_scc0 X_DONE", *head(5))
    ffn(5, [], lambda n: ["s_waitcnt vmcnt(0)", *publish(64)], None)
    a("s_branch X_DONE")
    for par in range(2):
        A_ = ACX[par]
        a.label(f"X_QK{par}")
        for g in range(4):
            a(f"s_waitcnt lgkmcnt({6 - 2 * g})")
            for k in range(4):
                a(f"v_mul_f32 v{T + 4 * g + k}, v40, v{A_ + 4 * g + k}")
            a(f"v_cvt_pk_bf16_f32 v{P + 2 * g}, v{T + 4 * g}, v{T + 4 * g + 1}",
              f"v_cvt_pk_bf16_f32 v{P + 2 * g + 1}, v{T + 4 * g + 2}, v{T + 4 * g + 3}",
              f"buffer_store_dwordx2 {vr(P + 2 * g, 2)}, v14, {sr(SWS, 4)}, s72 offen offset:{g * 512} sc1")
        a("s_add_u32 s72, s72, 2048", "s_setpc_b64 s[90:91]")
        a.label(f"X_V{par}")
        for g in range(4):
            a(f"ds_read_b128 {vr(T + 4 * g, 4)}, v7 offset:{g * 32}")
        a("s_sub_u32 s27, s72, s78", "s_lshr_b32 s27, s27, 4", "v_add_u32 v60, s27, v2",
          "v_mul_u32_u24 v60, 2341, v60", "v_lshrrev_b32 v60, 16, v60", "v_mad_u32_u24 v60, v60, s79, v15")
        for s in range(2):
            a(f"s_waitcnt lgkmcnt({2 - 2 * s})")
            for k in range(8):
                a(f"v_mul_f32 v{T + 8 * s + k}, v{T + 8 * s + k}, v{A_ + 8 * s + k}")
            for k in range(4):
                a(f"v_cvt_pk_bf16_f32 v{P + 4 * s + k}, v{T + 8 * s + 2 * k}, v{T + 8 * s + 2 * k + 1}")
            a(f"buffer_store_dwordx4 {vr(P + 4 * s, 4)}, v60, {sr(SWS, 4)}, s72 offen offset:{s * 896} sc1")
        a("s_add_u32 s72, s72, 512", "s_setpc_b64 s[90:91]")
    a.label("X_DONE")
    stamp(a, 5)


def gemm_setup(a):
    srd(a, SD, P_B2, 896)
    srd(a, SC, P_DBG, 256)
    a(f"s_mov_b32 s{GX + 2}, {X_BYTES}", f"s_mov_b32 s{GX + 3}, 0x20000",
      "s_lshl_b32 s88, s52, 2", "s_and_b32 s27, s53, 3", "s_add_u32 s88, s88, s27", "s_lshr_b32 s89, s53, 2",
      "s_and_b32 s90, s26, 1", "s_lshr_b32 s91, s26, 1", "s_lshl_b32 s27, s88, 1",
      "s_add_u32 s44, s27, s90", "s_xor_b32 s45, s44, 1", "s_lshl_b32 s89, s89, 7",
      "s_lshl_b32 s101, s91, 6", "s_add_u32 s101, s101, s89", f"s_mul_i32 s15, s44, {RT}", "s_add_u32 s15, s15, s101",
      "v_lshlrev_b32 v39, 4, v3", "v_mul_u32_u24 v44, 896, v2", "v_add_u32 v44, v44, v39",
      f"s_mov_b32 s{GWO + 2}, {WO_BYTES}", f"s_mov_b32 s{GWO + 3}, 0x20000",
      f"s_mov_b32 s{GW2 + 2}, {W2_BYTES}", f"s_mov_b32 s{GW2 + 3}, 0x20000",
      f"s_mov_b32 s{GOUT + 2}, {X_BYTES}", f"s_mov_b32 s{GOUT + 3}, 0x20000")
    a("v_bfe_u32 v46, v1, 2, 2", "v_bfe_u32 v47, v1, 4, 1", "v_lshl_add_u32 v46, v47, 3, v46",
      "v_mul_u32_u24 v32, 896, v46", "v_lshl_add_u32 v32, v3, 6, v32", "v_and_b32 v46, 3, v1",
      "v_lshl_add_u32 v32, v46, 4, v32", f"v_add_u32 v33, {4 * 896 - 1024}, v32")
    a(f"s_mul_i32 s88, s88, {2 * FLG_RT}", f"s_add_u32 s88, s88, {OFF_FLG}",
      f"v_mov_b32 v46, {KT & 0xffffffff}", f"v_mov_b32 v47, {KT >> 32}", "v_and_b32 v45, 30, v1",
      "v_lshlrev_b32 v45, 1, v45", "v_lshrrev_b64 v[46:47], v45, v[46:47]", "v_bfe_u32 v47, v46, 1, 3",
      "v_and_b32 v46, 1, v46", "v_lshl_add_u32 v47, v47, 3, v46",
      "v_and_b32 v46, 1, v1", f"v_mul_u32_u24 v46, {FLG_N}, v46",
      "s_lshl_b32 s27, s26, 1", "s_add_u32 s27, s27, 42", "v_add3_u32 v47, v47, v46, s27",
      "v_lshlrev_b32 v47, 7, v47", "v_add_u32 v36, s88, v47",
      "v_bfe_u32 v47, v1, 1, 2", "v_add_u32 v46, v46, v47",
      "s_lshl_b32 s27, s26, 2", "s_add_u32 s27, s27, 98", "v_add_u32 v46, s27, v46", "v_lshlrev_b32 v46, 7, v46",
      "v_add_u32 v37, s88, v46")
    a(f"s_mul_i32 s12, s26, {64 * 896}", "s_add_u32 s12, s12, s89",
      f"s_mul_i32 s13, s26, {112 * 896}", "s_add_u32 s13, s13, s89",
      "s_cmp_eq_u32 s50, 7", "s_cselect_b32 s12, 0x40000000, s12", "s_cselect_b32 s15, 0x40000000, s15",
      "s_lshl_b32 s65, s26, 13", f"s_add_u32 s14, s65, {L_RING}",
      f"s_mul_i32 s44, s44, {ACT_RT}", f"s_mul_i32 s45, s45, {ACT_RT}",
      "s_lshl_b32 s27, s26, 13", f"s_add_u32 s27, s27, {OFF_ACT + 112 * 1024}",
      "s_add_u32 s46, s44, s27", "s_add_u32 s100, s45, s27",
      "s_lshl_b32 s27, s26, 12", f"s_add_u32 s27, s27, {OFF_ACT}", "s_add_u32 s44, s44, s27", "s_add_u32 s45, s45, s27")
    a("v_and_b32 v46, 1, v1", "v_bfe_u32 v47, v1, 1, 1", "v_lshl_add_u32 v46, v46, 1, v47",
      "v_bfe_u32 v47, v1, 4, 1", "v_lshl_add_u32 v46, v47, 2, v46",
      "v_bfe_u32 v47, v1, 2, 2", "v_lshlrev_b32 v47, 6, v47", "v_lshl_add_u32 v46, v46, 3, v47",
      "v_lshl_add_u32 v46, v3, 10, v46", "s_lshl_b32 s27, s91, 9", "s_add_u32 s27, s27, s14",
      "v_add_u32 v34, s27, v46", "v_xor_b32 v35, 512, v34")
    a("v_add_u32 v38, s14, v13")
    for t in range(1, 4):
        a(f"s_xor_b32 s27, s26, {t}", "s_lshl_b32 s27, s27, 13", f"s_add_u32 s27, s27, {L_RING}",
          f"v_add_u32 v{44 + t}, s27, v13")


def gemm_res(a):
    XR, RES, TM = 80, 64, 16
    for k in range(8):
        a(f"v_lshlrev_b32 v{RES + 2 * k}, 16, v{XR + k}", f"v_and_b32 v{RES + 2 * k + 1}, 0xffff0000, v{XR + k}",
          f"v_lshlrev_b32 v{TM + 2 * k}, 16, v{XR + 8 + k}", f"v_and_b32 v{TM + 1 + 2 * k}, 0xffff0000, v{XR + 8 + k}")
    for i in range(16):
        a(f"v_add_f32 v{XR + i}, v{RES + i}, v{TM + i}")


def gen_gemm(a):
    R, RW = G_R, G_RW
    AC, OR, XR = 64, 192, 16
    WFR = (4, 48)
    NK = 36
    ACS = (80, 64, 96, 112)
    pub = publish(64)
    a("s_cmp_lt_u32 s53, 28", "s_cbranch_scc1 G_GO", "s_waitcnt vmcnt(0)", *publish(64, 128))
    stamp_out(a)
    a("s_endpgm")
    a.label("G_GO")
    jitter(a)

    def req(v, nl, dst=60):
        return [f"s_mov_b64 exec, {(1 << nl) - 1}", f"buffer_load_dword v{dst}, v{v}, {sr(SWS, 4)}, 0 offen sc1",
                "s_mov_b64 exec, -1"]

    def chk(mask, target, src=60):
        return [f"v_cmp_ne_u32 s[88:89], s47, v{src}", "s_nop 0", f"s_and_b32 s88, s88, {mask}", f"s_cbranch_scc0 {target}"]

    def issue_w(k):
        return park_w(k) if PK0 <= k < PK1 else dma_w(k)

    def dump(k):
        up, off = slot(k)
        va = 38 if up else 43
        return [f"ds_write_b128 v{va}, {vr(preg(k), 4)} offset:{off}",
                f"ds_write_b128 v{va}, {vr(preg(k) + 4, 4)} offset:{off + 1024}"]

    def wread(k):
        w = WFR[k & 1]
        up, off = slot(k)
        va = 34 if up else 40
        return [f"ds_read_b64_tr_b16 {vr(w, 2)}, v{va} offset:{off}",
                f"ds_read_b64_tr_b16 {vr(w + 2, 2)}, v{va} offset:{off + 256}",
                f"ds_read_b64_tr_b16 {vr(w + 4, 2)}, v{va + 1} offset:{off}",
                f"ds_read_b64_tr_b16 {vr(w + 6, 2)}, v{va + 1} offset:{off + 256}"]

    q = []

    def emit_w(k):
        nonlocal q
        a(*issue_w(k))
        q += [("w", k)] * 2

    def upto(tags):
        nonlocal q
        need = [i for i, kk in enumerate(q) if kk in tags]
        q = q[max(need) + 1:] if need else q
        assert len(q) <= 63
        return f"s_waitcnt vmcnt({len(q)})"

    left = PORDER[sum(PSCHED):]
    a("v_add_u32 v43, s65, v13", f"v_mov_b32 v42, {L_CNT + 8}",
      f"v_subrev_u32 v40, {L_RING}, v34", f"v_subrev_u32 v41, {L_RING}, v35")
    assert sum(PSCHED) >= NPA + 2
    gemm_res(a)
    for k in range(min(NPA, 8)):
        a(*dump(k))
        if k == PUBD:
            a("s_waitcnt vmcnt(0)", *pub, "s_setprio 0")
            stamp(a, 7)
            a(*chk(0xf, "G_OK0", 62))
            poll(a, "G_P0", 36, NA1, 61, pending="s88")
            a.label("G_OK0")
            for kk in range(NA1):
                a(*issue_a(kk))
                q += [("a", kk)] * 2
    lds_wait(a, "G_LW", 42, 56)
    for k in range(8, NPA):
        a(*dump(k))
    for k in range(NPA, 8):
        emit_w(k)
    while left and left[0] < PK0 + 2:
        emit_w(left.pop(0))
    stamp(a, 6)
    a(*wread(0))
    if -1 in {v[0] for v in HCHK.values()}:
        a(*req(36, 28))
        q += ["b"]
    pend = [("w", k) for k in left + list(range(max(8, NPA), RW))]
    anext = NA1
    alim = NA1
    onext = 0

    def split(ops):
        out, cur = [], []
        for o in ops:
            if o == "s_mov_b64 exec, -1":
                out[-1].append(o)
                continue
            cur.append(o)
            if o.startswith("buffer_") or o.startswith("ds_"):
                out.append(cur)
                cur = []
        assert not cur
        return out

    def issue_o1(kk):
        o = ["s_add_u32 s46, s46, 4096", "s_add_u32 s100, s100, 4096"] if kk == 4 else []
        return o + [f"buffer_load_dwordx4 {vr(OR + 8 * kk, 4)}, v13, {sr(SWS, 4)}, s46 offen offset:{(kk & 3) * 1024} sc1",
                    f"buffer_load_dwordx4 {vr(OR + 8 * kk + 4, 4)}, v13, {sr(SWS, 4)}, s100 offen offset:{(kk & 3) * 1024} sc1"]

    for k in range(NK):
        if k in HCHK:
            nl = HCHK[k][1]
            a(upto({"b"}), *chk(((1 << nl) - 1) & ~((1 << alim) - 1), f"G_HK{k}"))
            poll(a, f"G_HP{k}", 36, nl, pending="s88")
            a.label(f"G_HK{k}")
            if k == min(HCHK):
                stamp(a, 8)
            alim = nl
            while anext < min(alim, k + BURST):
                a(*issue_a(anext))
                q += [("a", anext)] * 2
                anext += 1
        if k == OCHK[1]:
            assert k > PK1 - RW
            a(upto({"p"}), *chk(0xff, "G_OKO", 61))
            poll(a, "G_PO", 37, 8, 61, pending="s88")
            a.label("G_OKO")
            stamp(a, 10)
        kd = k + RW
        tags = {("a", k), ("w", k + 1)}
        if PK0 <= kd < PK1:
            tags |= {("w", kd)}
        assert not any(t in pend for t in tags)
        n0 = len(q)
        wt = upto(tags)
        if len(q) != n0:
            a(wt)
        if STAMP and "ks" in EXP:
            if k:
                a(f"v_writelane_b32 v63, s96, {27 + k}")
            a("s_memtime s[96:97]")
        elif k in (12, 28):
            stamp(a, {12: 9, 28: 11}[k])
        w = WFR[k & 1]
        r = areg(k) if k < 28 else OR + 8 * (k - 28)
        c = (lambda t: ACS[0] if t == 0 else "0") if k == 0 else (lambda t: ACS[t])
        vm = []
        if k == OCHK[0]:
            vm += req(37, 8, 61)
            q += ["p"]
        if k in {v[0] for v in HCHK.values()}:
            nl_ = next(v[1] for v in HCHK.values() if v[0] == k)
            vm += [f"s_mov_b64 exec, {((1 << nl_) - 1) & ~((1 << alim) - 1)}"] + req(36, 28)[1:]
            q += ["b"]
        budget = AMAX
        while anext < min(alim, k + R) and budget:
            vm += issue_a(anext)
            q += [("a", anext)] * 2
            anext += 1
            budget -= 1
        if k >= OCHK[1]:
            budget += 1
        while k >= OCHK[1] and onext < 8 and budget:
            vm += issue_o1(onext)
            q += [("a", 28 + onext)] * 2
            onext += 1
            budget -= 1
        kp = kd + 7
        if k >= 1 and kp < PK1:
            pend.append(("w", kp))
        if PK1 <= kd < NK:
            pend.append(("w", kd))
        for _ in range(2 if budget == AMAX else 1):
            if pend:
                t = pend.pop(0)
                vm += issue_w(t[1])
                q += [t] * 2
        pieces = split(vm)
        dm = split(dump(kd)) if PK0 <= kd < PK1 else []
        rd = wread(k + 1) if k < NK - 1 else []
        mm = [mfma(ACS[0], w, r, c(0)), mfma(ACS[1], w, r + 4, c(1)), mfma(ACS[2], w + 4, r, c(2)),
              mfma(ACS[3], w + 4, r + 4, c(3))]
        pieces = dm + pieces
        per = (len(pieces) + 2) // 3
        a("s_waitcnt lgkmcnt(0)", mm[0], *rd)
        for t in range(1, 4):
            a(mm[t])
            for p in pieces[(t - 1) * per:t * per]:
                a(*p)
    assert onext == 8 and not pend
    assert anext == 28
    stamp(a, 12)
    jitter(a)
    RO = (0, 0, 4096, L_S0 - L_RING)
    a("s_nop 7", "s_nop 1")
    for t in range(1, 4):
        for qq in range(4):
            a(f"ds_write_b128 v38, {vr(ACS[t] + 4 * qq, 4)} offset:{RO[t] + qq * 1024}")
    a("s_waitcnt lgkmcnt(0)", "s_barrier")
    stamp(a, 13)
    for t in range(1, 4):
        for qq in range(4):
            a(f"ds_read_b128 {vr(ACS[t] + 4 * qq, 4)}, v{44 + t} offset:{RO[t] + qq * 1024}")
    for t in (1, 2):
        a(f"s_waitcnt lgkmcnt({12 - 4 * t})")
        for i in range(16):
            a(f"v_add_f32 v{ACS[0] + i}, v{ACS[0] + i}, v{ACS[t] + i}")
    for h in range(2):
        a(f"s_waitcnt lgkmcnt({2 - 2 * h})")
        for i in range(8 * h, 8 * h + 8):
            a(f"v_add_f32 v{ACS[0] + i}, v{ACS[0] + i}, v{ACS[3] + i}")
        for k in range(4 * h, 4 * h + 4):
            a(f"v_cvt_pk_bf16_f32 v{XR + k}, v{ACS[0] + 2 * k}, v{ACS[0] + 2 * k + 1}")
        a(f"buffer_store_dwordx4 {vr(XR + 4 * h, 4)}, v44, {sr(GOUT, 4)}, s15 offen offset:{32 * h} {os.environ.get('OUTF', '')}")
    stamp_out(a)


def post(t):
    fl, fs = os.environ.get("FL"), os.environ.get("FS")
    if fl is not None:
        t = "\n".join(l.replace(" sc1", " " + fl) if "buffer_load_dword " in l else l for l in t.split("\n"))
    if fs is not None:
        t = "\n".join(l.replace(" sc1", " " + fs) if "buffer_store_dword " in l else l for l in t.split("\n"))
    if os.environ.get("SLP"):
        t = t.replace("s_sleep 3", "s_sleep " + os.environ["SLP"])
    lines = t.split("\n")
    g = next(i for i, l in enumerate(lines) if l.startswith("G_GO"))
    o = lines[:g]
    for l in lines[g:]:
        if "plainact" in EXP and "buffer_load_dwordx4 v[" in l:
            l = l.replace(" sc1", "")
        if "gnomfma" in EXP and "v_mfma" in l:
            continue
        if "gnoa" in EXP and "buffer_load_dwordx4 v[" in l:
            l = l.replace("v13,", "v59,")
        if "gnow" in EXP and " lds" in l:
            l = l.replace("v32,", "v59,").replace("v33,", "v59,")
        o.append(l)
    return "\n".join(o)


def main(out):
    a = Asm()
    for l in ("Fused LayerNorm + sliding-window attention + GELU FFN block, one persistent launch.",
              "256 workgroups (one per CU) of 8 waves: waves 0-3 run the QKV / FFN1 MFMA tiles and then attention,",
              "waves 4-7 run the tile epilogues and weight staging and then the output GEMM.",
              "Hand-offs go through d_ws with write-through stores and per-tile flags tagged with a launch epoch.",
              "Kernarg: 0 x, 8 wqkv, 16 wo, 24 unused, 32 w1, 40 b1, 48 w2, 56 b2, 64 out, 72 debug, 80 ws."):
        a.raw("; " + l)
    a.raw(f"; @launch grid=(256,1,1) block=(512,1,1) lds={LDS_BYTES}")
    a.raw('.amdgcn_target "amdgcn-amd-amdhsa--gfx950"')
    a.raw(".text")
    name = gen(a)
    a.raw('.section .rodata,"a"')
    a.raw(".p2align 6")
    a.raw(f".amdhsa_kernel {name}")
    a.raw("  .amdhsa_next_free_vgpr 256")
    a.raw("  .amdhsa_next_free_sgpr 102")
    a.raw("  .amdhsa_accum_offset 256")
    a.raw("  .amdhsa_group_segment_fixed_size 0")
    a.raw("  .amdhsa_kernarg_size 88")
    a.raw("  .amdhsa_user_sgpr_count 2")
    a.raw("  .amdhsa_user_sgpr_kernarg_segment_ptr 1")
    a.raw("  .amdhsa_system_sgpr_workgroup_id_x 1")
    a.raw(".end_amdhsa_kernel")
    open(out, "w").write(post(a.text()))


if __name__ == "__main__":
    if "--stamp" in sys.argv:
        sys.argv.remove("--stamp")
        STAMP = True
    if "--dbg" in sys.argv:
        sys.argv.remove("--dbg")
        DBG = True
    main(sys.argv[1] if len(sys.argv) > 1 else f"cdna_kernels/{NAME}.s")
```

```python
import os
import struct
import sys

EXP = set(os.environ.get('EXP', '').split(','))

NAME = "parallel_sum__sliding_block__dense_activation_gelu__prompt"

RT = 28672
OFF_Q = 0
OFF_K = 64 * RT
OFF_V = 2 * 64 * RT
OFF_ACT = 3 * 64 * RT
ACT_RT = 144 * 1024
OFF_FLG = OFF_ACT + 64 * ACT_RT
FLG_N = 114
FLG_RT = FLG_N * 128
OFF_EPOCH = OFF_FLG + 64 * FLG_RT
WS_BYTES = OFF_EPOCH + 128
NATIVE_K = True

X_BYTES = 2048 * 896
WQKV_BYTES = 448 * 2688
W1_BYTES = 448 * 3584
W2_BYTES = 1792 * 896
WO_BYTES = 448 * 896

SLOT = 28672
L_S2 = 32768
L_S3 = L_S2 + SLOT
L_S1 = L_S3 + SLOT
L_S0 = L_S1 + SLOT
L_BIAS = 159744
L_STAT = L_BIAS + 768
L_CNT = L_STAT + 1024
L_ATT = L_S2
L_RING = L_ATT + 49152
LDS_BYTES = 163840
SPIN_MAX = 1 << 16

STAMP = False
OFF_STAMP = 32 << 20


def f32(x):
    return "0x%08x" % struct.unpack("<I", struct.pack("<f", x))[0]


class Asm:
    def __init__(self):
        self.o = []

    def __call__(self, *lines):
        for s in lines:
            self.o.append("    " + s)

    def label(self, s):
        self.o.append(s + ":")

    def raw(self, s):
        self.o.append(s)

    def text(self):
        return "\n".join(self.o) + "\n"


def vr(b, n):
    return f"v[{b}:{b + n - 1}]"


def sr(b, n):
    return f"s[{b}:{b + n - 1}]"


def mfma(d, a, b, c):
    cs = c if isinstance(c, str) else vr(c, 16)
    return f"v_mfma_f32_32x32x16_bf16 {vr(d, 16)}, {vr(a, 4)}, {vr(b, 4)}, {cs}"


def srd(a, d, lo, nbytes):
    a(f"s_mov_b32 s{d}, s{lo}", f"s_mov_b32 s{d + 1}, s{lo + 1}",
      f"s_mov_b32 s{d + 2}, {nbytes}", f"s_mov_b32 s{d + 3}, 0x20000")


DBG = False
LST = (0,)
ROLE = ["main"]
DBG_MAP = {"main": {0: 2, 3: 3, 5: 4, 6: 5, 9: 6, 15: 7}, "aux": {5: 8, 6: 9, 8: 10, 11: 11, 15: 12}}


HOLD = int(os.environ.get("HOLD", "-99"))


def stamp(a, i, rt=False):
    if i == HOLD and ROLE[0] == "aux":
        a("s_memrealtime s[96:97]")
    if DBG:
        w = DBG_MAP[ROLE[0]].get(i)
        if w is not None:
            a("s_memrealtime s[98:99]", "s_waitcnt lgkmcnt(0)", f"v_writelane_b32 v63, s98, {w}")
            inv = {2: 1, 4: 13, 5: 14, 12: 15}.get(w)
            if inv:
                a("s_not_b32 s98, s98", f"v_writelane_b32 v63, s98, {inv}")
        return
    if not STAMP or i > 15:
        return
    a(f"s_mem{'real' if rt else ''}time s[98:99]", "s_waitcnt lgkmcnt(0)",
      f"v_writelane_b32 v63, s98, {i}")


def lstamp(a, ureg, k):
    if not STAMP or k not in LST or "ks" in EXP:
        return
    a("s_memtime s[98:99]", f"s_lshl_b32 s97, {ureg}, 2", f"s_add_u32 m0, s97, {16 + k}", "s_waitcnt lgkmcnt(0)",
      "v_writelane_b32 v63, s98, m0")


def stamp_out(a):
    if DBG:
        stamp(a, 15)
        a("s_load_dwordx2 s[92:93], s[0:1], 72", "s_waitcnt lgkmcnt(0)", "s_mov_b32 s94, 256", "s_mov_b32 s95, 0x20000",
          "s_mov_b64 exec, 0xfffe", "v_lshlrev_b32 v62, 2, v1", "buffer_atomic_umax v63, v62, s[92:95], 0 offen sc1")
        return
    if not STAMP:
        return
    stamp(a, 14)
    stamp(a, 15, rt=True)
    a("s_mov_b32 s92, s24", "s_mov_b32 s93, s25", f"s_mov_b32 s94, {64 << 20}", "s_mov_b32 s95, 0x20000",
      "s_lshl_b32 s96, s2, 3", "s_add_u32 s96, s96, s3", "s_lshl_b32 s96, s96, 8",
      f"s_add_u32 s96, s96, {OFF_STAMP}", "s_mov_b64 exec, -1", "v_lshlrev_b32 v62, 2, v1",
      "buffer_store_dword v63, v62, s[92:95], s96 offen")


P_X, P_WQKV, P_WO, P_W1, P_B1, P_W2, P_B2, P_OUT, P_DBG, P_WS = 4, 6, 8, 12, 14, 16, 18, 20, 22, 24
SWS, SA, SB, SC, SD = 28, 32, 36, 40, 84


def gen(a):
    name = NAME + "_kernel"
    a.raw(f".globl {name}")
    a.raw(".p2align 8")
    a.raw(f".type {name},@function")
    a.label(name)
    if HOLD == -1:
        a("s_memrealtime s[96:97]")
    a("s_cmp_ge_u32 s2, 256", "s_cbranch_scc1 L_END")
    a("s_load_dwordx16 s[4:19], s[0:1], 0", "s_load_dwordx4 s[20:23], s[0:1], 64",
      "s_load_dwordx2 s[24:25], s[0:1], 80")
    a("v_lshrrev_b32 v2, 6, v0", "v_and_b32 v1, 63, v0", "v_readfirstlane_b32 s3, v2")
    MAP = os.environ.get("MAP", "42")
    if MAP == "81":
        a("s_and_b32 s52, s2, 7", "s_lshr_b32 s53, s2, 3", "s_lshl_b32 s48, s52, 1", "s_and_b32 s27, s53, 1",
          "s_add_u32 s48, s48, s27", "s_lshr_b32 s49, s53, 1", "s_and_b32 s56, s49, 3", "s_and_b32 s55, s48, 7",
          "s_and_b32 s51, s49, 1", "s_cmp_ge_u32 s53, 28", "s_cselect_b32 s50, 7, 6", "s_cselect_b32 s51, s51, 0",
          "s_and_b32 s26, s3, 3")
    elif MAP == "42":
        a("s_and_b32 s52, s2, 7", "s_lshr_b32 s53, s2, 3", "s_lshr_b32 s48, s52, 1", "s_lshl_b32 s48, s48, 2",
          "s_and_b32 s27, s53, 3", "s_add_u32 s48, s48, s27", "s_and_b32 s51, s52, 1", "s_lshl_b32 s49, s51, 3",
          "s_lshr_b32 s27, s53, 2", "s_add_u32 s49, s49, s27", "s_and_b32 s56, s27, 3", "s_and_b32 s55, s48, 7",
          "s_cmp_ge_u32 s53, 28", "s_cselect_b32 s50, 7, 6", "s_cselect_b32 s51, s51, 0", "s_and_b32 s26, s3, 3")
    else:
        a("s_and_b32 s52, s2, 7", "s_lshr_b32 s53, s2, 3",
          "s_lshr_b32 s55, s53, 2", "s_and_b32 s56, s53, 3",
          "s_and_b32 s27, s53, 1", "s_add_u32 s27, s27, 6", "s_bfe_u32 s57, s53, 0x20001",
          "s_cmp_ge_u32 s53, 24", "s_cselect_b32 s55, s27, s55", "s_cselect_b32 s56, s57, s56",
          "s_and_b32 s57, s52, 3", "s_lshl_b32 s27, s57, 1", "s_add_u32 s55, s55, s27", "s_add_u32 s55, s55, 2",
          "s_and_b32 s55, s55, 7", "s_lshr_b32 s48, s52, 2", "s_lshl_b32 s48, s48, 3", "s_add_u32 s48, s48, s55",
          "s_lshl_b32 s49, s57, 2", "s_add_u32 s49, s49, s56",
          "s_and_b32 s51, s56, 1", "s_cmp_ge_u32 s53, 28", "s_cselect_b32 s50, 7, 6", "s_cselect_b32 s51, s51, 0",
          "s_and_b32 s26, s3, 3")
    a("s_sub_u32 s27, s49, 7", "s_cmp_lt_u32 s27, 7", "s_cselect_b32 s54, 5, 0",
      "s_cmp_lt_u32 s49, 5", "s_cselect_b32 s27, 0, 10", "s_lshl_b32 s27, s27, 4", "s_or_b32 s54, s54, s27",
      "s_or_b32 s54, s54, 0xaa00")
    assert MAP == "42"
    a("s_cmp_eq_u32 s49, 7", "s_cselect_b32 s57, 14, s49", "s_cmp_eq_u32 s49, 14", "s_cselect_b32 s57, 7, s57")
    a("s_lshl_b32 s58, s48, 2", "s_add_u32 s58, s58, s26")
    a("v_and_b32 v2, 31, v1", "v_lshrrev_b32 v3, 5, v1")
    if DBG:
        a("v_mov_b32 v63, 0")
    jitter(a)
    a("s_cmp_ge_u32 s3, 4", "s_cbranch_scc1 L_AUX")
    gen_main(a)
    gen_attn(a)
    a.label("L_AUX")
    ROLE[0] = "aux"
    gen_aux(a)
    gen_gemm(a)
    if HOLD != -99:
        a("s_waitcnt vmcnt(0)", "L_HOLD:", "s_sleep 1", "s_memrealtime s[98:99]", "s_waitcnt lgkmcnt(0)",
          "s_sub_u32 s98, s98, s96", "s_cmp_lt_u32 s98, 3000", "s_cbranch_scc1 L_HOLD")
    a.label("L_END")
    a("s_endpgm")
    a.label("L_CODE_END")
    return name


QF = 48
VCHK = 2
MK = 248
APRIO = int(os.environ.get("APRIO", "2"))


def ms(i):
    return sr((list(range(4, 24, 2)) + [40, 42, 44, 92, 94, 100])[i], 2)


def kv_gather(head, kt0, vd, va, vb, st):
    return [f"s_mul_i32 s27, s{head}, 28", f"s_lshr_b32 s{st}, s27, 5", "s_add_u32 s27, s27, 27", "s_lshr_b32 s27, s27, 5",
            f"s_sub_u32 s27, s27, s{st}", f"v_and_b32 v{va}, 1, v1", f"v_mul_u32_u24 v{va}, s27, v{va}",
            f"v_add_u32 v{va}, s{st}, v{va}", f"v_bfe_u32 v{vb}, v1, 1, 2", f"v_min_u32 v{vb}, 2, v{vb}",
            f"v_add_u32 v{vb}, s{kt0}, v{vb}",
            f"v_max_i32 v{vb}, 0, v{vb}", f"v_mul_u32_u24 v{vb}, {FLG_N}, v{vb}", f"v_add_u32 v{vd}, v{va}, v{vb}",
            f"v_bfe_u32 v{vb}, v1, 3, 1", f"v_mul_u32_u24 v{vb}, 14, v{vb}", f"v_add_u32 v{vd}, v{vd}, v{vb}",
            f"v_lshlrev_b32 v{vd}, 7, v{vd}", f"v_add_u32 v{vd}, {OFF_FLG + 14 * 128}, v{vd}"]


def pads(base, tiles, va, vt):
    o = [f"v_mov_b32 v{vt + k}, 0x3f803f80" for k in range(4)]
    o += [f"v_min_u32 v{va}, 2, v1", f"v_lshl_add_u32 v{va}, v{va}, 12, s{base}",
          f"ds_write_b128 v{va}, {vr(vt, 4)} offset:3840", f"v_lshl_add_u32 v{va}, v1, 2, s{base}",
          "s_mov_b32 vcc_lo, 0x55555555", "s_mov_b32 vcc_hi, 0x55555555"]
    for i in range(3):
        o += [f"s_cmp_lt_u32 s{tiles + i}, 0x40000000", "s_cselect_b32 s27, 0, 0xf149", f"v_mov_b32 v{vt + 3}, s27",
              f"v_cndmask_b32 v{vt + i}, 0, v{vt + 3}, vcc", f"ds_write_b32 v{va}, v{vt + i} offset:{1792 + 4096 * i}"]
    return o
PFF = "sc1" if "pfsc1" in EXP else ("nt" if "pfnt" in EXP else "")


def stage_kv(off, lds, vaddr, base, tiles):
    o = []
    for i in range(3):
        o += [f"s_add_u32 m0, s{base}, {i * 4096 + lds}", f"s_add_u32 s27, s{tiles + i}, {off}",
              f"buffer_load_dwordx4 v{vaddr}, {sr(SWS, 4)}, s27 offen sc1 lds", "s_mov_b32 exec_hi, 0xffff",
              f"buffer_load_dwordx4 v{vaddr}, {sr(SWS, 4)}, s27 offen offset:1024 sc1 lds", "s_mov_b32 exec_hi, -1"]
    return o


GC0 = -2.0 * 0.7978845608028654 * 1.4426950408889634
GC1 = GC0 * 0.044715
QSCALE = 28 ** -0.5 * 1.4426950408889634


def gen_main(a):
    X, ACA, ACB, WR, T = 128, 64, 80, 96, 16
    AB, BB = 240, 244
    if "xnorot" in EXP:
        a("s_mov_b32 s56, 0")
    a("v_lshrrev_b32 v8, 3, v1", "v_and_b32 v9, 7, v1", "v_lshrrev_b32 v4, 4, v1",
      "v_xor_b32 v9, v9, v4", "v_mul_u32_u24 v8, 896, v8", "v_lshl_add_u32 v8, v9, 4, v8", "v_xor_b32 v9, 64, v8")
    for k in range(4):
        a(f"s_add_u32 s27, s56, {k}", "s_and_b32 s27, s27, 3", "s_mulk_i32 s27, 7168",
          f"s_add_u32 s27, s27, {4096 - 1024 * k}", f"v_add_u32 v{4 + k}, s27, v{8 + (k & 1)}")
    a(f"s_mul_i32 s59, s58, {RT}", f"s_mul_i32 s60, s3, {SLOT}")
    a("s_waitcnt lgkmcnt(0)")
    stamp(a, 0, rt=True)
    stamp(a, 1)
    a(f"s_sub_u32 s{SA}, s{P_X}, 4096", f"s_subb_u32 s{SA + 1}, s{P_X + 1}, 0",
      f"s_mov_b32 s{SA + 2}, {X_BYTES + 4096}", f"s_mov_b32 s{SA + 3}, 0x20000")
    for g in range(7):
        a(f"s_add_u32 m0, s60, {g * 4096}", f"s_add_u32 s61, s59, {g * 128}",
          f"buffer_load_dwordx4 v4, {sr(SA, 4)}, s61 offen lds")
    pre = []
    pre += ["s_lshl_b32 s27, s56, 3", "v_subrev_u32 v9, s27, v2", "v_and_b32 v9, 31, v9",
            "v_bfe_u32 v8, v9, 1, 3", "v_xor_b32 v8, v8, v3",
            "v_lshlrev_b32 v8, 4, v8", "v_lshl_add_u32 v8, v9, 7, v8", "v_add_u32 v8, s60, v8",
            "v_xor_b32 v9, 32, v8", "v_xor_b32 v10, 64, v8", "v_xor_b32 v11, 96, v8"]
    pre += ["v_bfe_u32 v12, v1, 2, 1", "v_bfe_u32 v13, v1, 3, 1",
            "v_bfe_u32 v14, v1, 1, 1", "v_lshl_add_u32 v13, v13, 1, v14",
            "v_bfe_u32 v14, v1, 4, 1", "v_lshl_add_u32 v13, v14, 2, v13",
            "v_xor_b32 v12, v12, v3", "v_lshl_add_u32 v13, v12, 3, v13",
            "v_and_b32 v14, 1, v1", "v_lshlrev_b32 v14, 4, v14", "v_mov_b32 v15, 0x3f80",
            "v_lshlrev_b32 v14, v14, v15"]
    pre += [f"v_cmp_eq_u32 {sr(64 + 2 * k, 2)}, {k}, v13" for k in range(8)]
    pre += [f"v_cndmask_b32 v{WR + k}, 0, v14, {sr(64 + 2 * k, 2)}" for k in range(8)]
    pre += ["v_and_b32 v13, 3, v1", "v_bfe_u32 v14, v1, 4, 1", "v_lshl_add_u32 v13, v14, 2, v13",
            "v_bfe_u32 v14, v1, 2, 2", "v_lshlrev_b32 v14, 6, v14", "v_lshl_add_u32 v13, v13, 3, v14",
            "v_lshl_add_u32 v12, v3, 10, v13", f"v_add_u32 v12, {L_S2}, v12"]
    pre += ["s_lshl_b32 s70, s52, 1", "s_and_b32 s27, s53, 1", "s_add_u32 s70, s70, s27",
            "s_lshr_b32 s27, s53, 1", "s_lshl_b32 s27, s27, 2", "s_add_u32 s71, s27, s3",
            "s_mul_i32 s73, s3, 3", "s_add_u32 s72, s27, s73", "s_sub_u32 s72, s72, 8",
            "s_lshl_b32 s73, s73, 12", "s_sub_u32 s87, s50, 6", f"s_mul_i32 s87, s87, {L_S1 - L_ATT}",
            f"s_add_u32 s87, s87, {L_ATT}", "s_add_u32 s73, s73, s87", "s_mul_i32 s78, s70, 1792",
            f"s_mul_i32 s74, s71, {RT}", "s_add_u32 s74, s74, s78"]
    for i in range(3):
        pre += [f"s_add_u32 s27, s72, {i}", f"s_mul_i32 s{75 + i}, s27, {RT}", f"s_add_u32 s{75 + i}, s{75 + i}, s78",
                "s_cmp_lt_i32 s27, 0", f"s_cselect_b32 s{75 + i}, 0x40000000, s{75 + i}"]
    pre += kv_gather(70, 72, 56, 13, 14, 79)
    pre += [f"s_mul_i32 s27, s71, {FLG_N}", "v_add_u32 v13, s27, v13", "v_lshlrev_b32 v13, 7, v13",
            f"v_add_u32 v57, {OFF_FLG}, v13", "v_lshlrev_b32 v59, 3, v1"]
    pre += ["s_sub_u32 s86, s50, 1",
            f"s_mov_b32 s{SWS}, s{P_WS}", f"s_mov_b32 s{SWS + 1}, s{P_WS + 1}", f"s_mov_b32 s{SWS + 2}, {WS_BYTES}",
            f"s_mov_b32 s{SWS + 3}, 0x20000",
            "v_mov_b32 v14, 0", "v_mov_b32 v15, 0", "s_mov_b32 s62, 0x3f803f80", "s_mov_b32 s82, 0"]
    def xgrp(g):
        return [f"s_add_u32 m0, s60, {g * 4096}", f"s_add_u32 s61, s59, {g * 128}"] + \
               [f"buffer_load_dwordx4 v{4 + i}, {sr(SA, 4)}, s61 offen offset:{i * 1024} lds" for i in range(1, 4)]

    XA = next((int(e[2:]) for e in EXP if e.startswith('xa')), 3)
    for g in range(XA):
        a(*xgrp(g))
    a(*pre)
    a("v_lshlrev_b32 v13, 7, v1", f"s_mov_b32 s{SB + 3}, 0x20000", "s_cmp_eq_u32 s3, 0", "s_cbranch_scc0 M_T1",
      "s_sub_u32 s80, s2, 196", "s_cmp_lt_u32 s2, 196", "s_cselect_b32 s80, s2, s80",
      f"s_cselect_b32 s{SB}, s{P_W2}, s{P_WO}", f"s_cselect_b32 s{SB + 1}, s{P_W2 + 1}, s{P_WO + 1}",
      f"s_mov_b32 s{SB + 2}, {WO_BYTES}", f"s_cselect_b32 s{SB + 2}, {W2_BYTES}, s{SB + 2}",
      "s_lshl_b32 s80, s80, 13", "s_branch M_TD")
    a.label("M_T1")
    a("s_cmp_eq_u32 s3, 3", "s_cbranch_scc0 M_T2", "s_cmp_eq_u32 s50, 7", "s_cbranch_scc1 M_T3",
      f"s_getpc_b64 {sr(SB, 2)}")
    a.label("M_PC")
    a(f"s_sub_u32 s{SB}, s{SB}, M_PC-{NAME}_kernel", f"s_subb_u32 s{SB + 1}, s{SB + 1}, 0",
      f"s_mov_b32 s{SB + 2}, L_CODE_END-{NAME}_kernel", "s_and_b32 s80, s53, 3", "s_lshl_b32 s80, s80, 13",
      "s_branch M_TD")
    a.label("M_T2")
    a("s_mul_i32 s27, s55, 56", "v_min_u32 v13, 55, v1", "v_add_u32 v13, s27, v13",
      "s_add_u32 s80, s57, 11", "s_sub_u32 s27, s49, 5", "s_cmp_eq_u32 s3, 1", "s_cselect_b32 s80, s27, s80",
      "s_movk_i32 s81, 3584", f"s_mov_b32 s{SB + 2}, {W1_BYTES}", "s_add_u32 s27, s49, 2", "s_cmp_lt_i32 s80, 0",
      "s_cselect_b32 s80, s27, s80", "s_cselect_b32 s81, 2688, s81",
      f"s_cselect_b32 s{SB}, s{P_WQKV}, s{P_W1}", f"s_cselect_b32 s{SB + 1}, s{P_WQKV + 1}, s{P_W1 + 1}",
      f"s_cselect_b32 s{SB + 2}, {WQKV_BYTES}, s{SB + 2}", "s_lshl_b32 s80, s80, 7", "v_mul_u32_u24 v13, s81, v13")
    a("s_branch M_TD")
    a.label("M_T3")
    a("s_lshl_b32 s27, s52, 2", "s_and_b32 s80, s53, 3", "s_add_u32 s27, s27, s80", "s_mul_i32 s27, s27, 14",
      "v_min_u32 v13, 13, v1", "v_add_u32 v13, s27, v13", "v_mul_u32_u24 v13, 3584, v13",
      f"s_mov_b32 s{SB}, s{P_W1}", f"s_mov_b32 s{SB + 1}, s{P_W1 + 1}", f"s_mov_b32 s{SB + 2}, {W1_BYTES}",
      f"s_movk_i32 s80, {27 * 128}")
    a.label("M_TD")
    a("s_lshl_b32 s27, s57, 1", "s_add_u32 s27, s27, 23", "s_add_u32 s84, s51, 54", "s_cmp_eq_u32 s50, 7",
      "s_cselect_b32 s27, s84, s27", f"s_mul_i32 s85, s58, {FLG_N}", "s_add_u32 s85, s85, s27",
      "s_lshl_b32 s85, s85, 7", f"s_add_u32 s85, s85, {OFF_FLG + 42 * 128}", f"s_mul_i32 s84, s58, {ACT_RT}",
      "s_lshl_b32 s27, s27, 11", "s_add_u32 s84, s84, s27", f"s_add_u32 s84, s84, {OFF_ACT}")
    a("v_lshlrev_b32 v124, 2, v3", "v_sub_u32 v124, v2, v124", "v_mov_b32 v125, 0xffff", "v_mov_b32 v126, 0xffff0000")
    for i in range(16):
        a(f"v_cmp_le_i32 {ms(i)}, {(i & 3) + 8 * (i >> 2)}, v124")
    for k in range(8):
        a(f"v_cndmask_b32 v{MK + k}, 0, v125, {ms(2 * k)}", f"v_cndmask_b32 v127, 0, v126, {ms(2 * k + 1)}",
          f"v_or_b32 v{MK + k}, v{MK + k}, v127")
    a("s_lshl_b32 s27, s3, 12", "s_add_u32 s27, s27, s87", "v_add_u32 v124, s27, v59",
      "v_mul_u32_u24 v126, 448, v3", "v_lshl_add_u32 v125, v2, 4, v126", "v_add_u32 v126, 896, v125",
      "v_cmp_gt_u32 vcc, 28, v2", "v_mov_b32 v127, 1792", "s_add_u32 s27, s27, 2048",
      "v_cndmask_b32 v125, v127, v125, vcc", "v_cndmask_b32 v126, v127, v126, vcc",
      "v_add_u32 v125, s27, v125", "v_add_u32 v126, s27, v126")
    stamp(a, 2)

    def stats(g):
        for r in range(X + 16 * g, X + 16 * g + 16):
            a(f"v_dot2c_f32_bf16 v14, s62, v{r}", f"v_dot2c_f32_bf16 v15, v{r}, v{r}")

    for g in range(7):
        a(f"s_waitcnt vmcnt({3 * (min(7, g + XA) - g - 1)})")
        if g == 0 and "st1" in EXP:
            stamp(a, 2)
        for q in range(4):
            a(f"ds_read_b128 {vr(X + 16 * g + 4 * q, 4)}, v{8 + q} offset:{g * 4096}")
        if g + XA < 7:
            a(*xgrp(g + XA))
        if g:
            a("s_waitcnt lgkmcnt(4)")
            stats(g - 1)
    a("s_waitcnt lgkmcnt(0)")
    stamp(a, 3)
    a("s_barrier")
    stats(6)
    a("s_nop 2", "v_mov_b32 v4, v14", "v_mov_b32 v5, v15", "s_nop 1",
      "v_permlane32_swap_b32 v4, v14", "v_permlane32_swap_b32 v5, v15",
      "v_add_f32 v14, v4, v14", "v_add_f32 v15, v5, v15",
      f"v_mul_f32 v14, {f32(1 / 448)}, v14", f"v_mul_f32 v15, {f32(1 / 448)}, v15",
      "v_cvt_pk_bf16_f32 v4, v14, v14", "v_fma_f32 v15, -v14, v14, v15",
      "v_lshlrev_b32 v4, 16, v4", "v_max_f32 v15, 0, v15", "v_xor_b32 v4, 0x80000000, v4")
    for i in range(16):
        a(f"v_mov_b32 v{T + i}, v4")
    a("s_nop 1")
    t0 = [168, 169, 0, 1, 168, 169, 0, 0]
    t1 = [112, 113, 56, 57, 112, 113, 1, 0]
    pk = lambda b: b[0] | b[1] << 8 | b[2] << 16 | b[3] << 24
    fin = ["v_cvt_pk_bf16_f32 v15, v15, v15", "v_lshlrev_b32 v15, 16, v15", f"v_add_f32 v15, {f32(1e-5)}, v15",
           "v_cvt_pk_bf16_f32 v15, v15, v15", "v_lshlrev_b32 v15, 16, v15", "v_sqrt_f32 v15, v15",
           "s_lshl_b32 s27, s3, 8",
           "v_cvt_pk_bf16_f32 v5, v15, v15", "v_lshlrev_b32 v15, 16, v5", "v_rcp_f32 v14, v15",
           "v_and_b32 v5, 0xffff, v5", "v_cmp_eq_u32 vcc, 0, v3", f"s_add_u32 s27, s27, {L_STAT}",
           "v_lshl_add_u32 v4, v1, 2, s27", "v_cndmask_b32 v6, v15, v14, vcc", f"v_cndmask_b32 v{BB}, 0, v5, vcc",
           "ds_write_b32 v4, v6",
           f"v_mov_b32 v{AB + 1}, 0", f"v_mov_b32 v{AB + 2}, 0", f"v_mov_b32 v{AB + 3}, 0",
           f"v_mov_b32 v{BB + 1}, 0", f"v_mov_b32 v{BB + 2}, 0", f"v_mov_b32 v{BB + 3}, 0",
           "v_lshlrev_b32 v10, 1, v2", f"v_add_u32 v10, {L_BIAS}, v10",
           "s_lshl_b32 s83, s3, 13", f"v_add_u32 v8, {t0[0] * 512}, v12", "s_mov_b32 s68, 0"]
    assert len(fin) == 28
    late = [f"s_mov_b32 s64, {pk(t0[1:5])}", f"s_mov_b32 s65, {pk(t0[5:8] + [0])}",
            f"s_mov_b32 s66, {pk(t1[0:4])}", f"s_mov_b32 s67, {pk(t1[4:8])}",
            "s_mov_b32 s69, s54", f"v_mul_f32 v7, {f32(GC0)}, v14", "v_mul_f32 v6, v14, v14", "v_mul_f32 v6, v6, v14",
            f"v_mul_f32 v6, {f32(GC1)}, v6"]
    CB = (ACA, ACB, 32)

    def cv(p, h):
        d = CB[p % 3]
        return [f"v_cvt_pk_bf16_f32 v{X + 8 * p + k}, v{d + 2 * k}, v{d + 2 * k + 1}" for k in range(4 * h, 4 * h + 4)]

    for p in range(16):
        d = CB[p % 3]
        if p < 14:
            a(mfma(d, WR, X + 8 * p, T))
        a(*(cv(p - 2, 0) if p >= 2 else fin[14 * p:14 * p + 7]))
        if p < 14:
            a(mfma(d, WR + 4, X + 8 * p + 4, d))
        a(*(cv(p - 2, 1) if p >= 2 else fin[14 * p + 7:14 * p + 14]))
        if 2 <= p < 2 + len(late):
            a(late[p - 2])
        if p == 14:
            a("s_nop 1")

    PD = 4

    def ring(j):
        return WR + 4 * (j % 7)

    def rd(j):
        jj = j % 28
        base = "v8" if jj < 14 else "v9"
        r = ring(j)
        return [f"ds_read_b64_tr_b16 {vr(r, 2)}, {base} offset:{(jj % 14) * 2048}",
                f"ds_read_b64_tr_b16 {vr(r + 2, 2)}, {base} offset:{(jj % 14) * 2048 + 256}"]

    accw = [f"ds_write_addtid_b32 v{ACB + k} offset:{k * 256}" for k in range(16)]
    touch = f"buffer_load_dword v60, v13, {sr(SB, 4)}, s80 offen"
    MT = next((int(e[2:]) for e in EXP if e.startswith('mt')), 1)
    a("s_cmp_eq_u32 s3, 0", f"s_cselect_b32 s81, {MT}, s86", "s_cbranch_scc1 M_NOT", touch)
    a.label("M_NOT")
    stamp(a, 4)
    a("s_waitcnt lgkmcnt(0)", "s_barrier")
    stamp(a, 5)
    stamp(a, 12, rt=True)
    if "prio" in EXP:
        a("s_setprio 2")
    if "zero" in EXP:
        for r in range(X, X + 112):
            a(f"v_mov_b32 v{r}, 0")
    for j in range(PD):
        a(*rd(j))
    if "align" in EXP:
        a.raw(".p2align 6")
    a.label("M_TILE")
    a("s_cmp_eq_u32 s68, s81", "s_cbranch_scc1 M_SIDE")
    a.label("M_SIDER")
    jitter(a)
    a("s_mov_b32 m0, s83", "s_bitcmp1_b32 s69, 0", "s_cbranch_scc1 M_V")
    WPOS = {1: (0, 3), 2: (3, 6), 3: (6, 9), 4: (9, 12), 5: (12, 14), 6: (14, 16)}

    pfs = []

    def body(tag):
        q = [f for f in range(PD) for _ in range(2)]
        for j in range(28):
            if j % 2 == 0:
                q = q[max(i for i, f in enumerate(q) if f == j + 1) + 1:][-15:]
                a(f"s_waitcnt lgkmcnt({len(q)})")
            d = ACB if j == 27 else ACA
            ops = (X + 4 * j, ring(j)) if tag == "V" else (ring(j), X + 4 * j)
            if j == 0 and tag == "N":
                a("s_bitcmp1_b32 s69, 1", "s_cbranch_scc0 M_NOB", mfma(ACA, AB, BB, "0"),
                  mfma(ACA, *ops, ACA), "s_branch M_NOB2")
                a.label("M_NOB")
                a(mfma(ACA, *ops, "0"))
                a.label("M_NOB2")
            else:
                a(mfma(d, *ops, "0" if j == 0 else ACA))
            if j + PD == 14:
                assert "w" not in q
                a("s_barrier")
            if j in WPOS and "noaccw" not in EXP:
                a(*accw[WPOS[j][0]:WPOS[j][1]])
                q += ["w"] * (WPOS[j][1] - WPOS[j][0])
            a(*rd(j + PD))
            q += [j + PD] * 2
            if j == 0:
                a("s_and_b32 s27, s66, 0xff", "s_lshr_b64 s[66:67], s[66:67], 8",
                  "v_lshl_add_u32 v9, s27, 9, v12", "v_add_u32 v10, 64, v10")
            if j == 12:
                a("s_and_b32 s27, s64, 0xff", "s_lshr_b64 s[64:65], s[64:65], 8",
                  "v_lshl_add_u32 v8, s27, 9, v12", "s_xor_b32 s83, s83, 4096")
            if j + PD == 27:
                a(f"ds_read_u16 v{AB}, v10")
                q += ["b"]
        a("s_lshr_b32 s69, s69, 2", "s_add_u32 s68, s68, 1", "s_cmp_lt_u32 s68, s50", "s_cbranch_scc1 M_TILE")

    body("N")
    a("s_branch M_DONE")
    a.label("M_SIDE")
    a("s_cmp_eq_u32 s68, s86", "s_cbranch_scc1 M_SIDE2", touch, "s_mov_b32 s81, s86", "s_branch M_SIDER")
    a.label("M_SIDE2")
    a(f"v_mov_b32 v61, {L_CNT + 64}", "ds_read_b32 v61, v61", "s_mov_b64 exec, 0xffff",
      f"buffer_load_dword v60, v56, {sr(SWS, 4)}, 0 offen sc1", "s_mov_b64 exec, -1", "s_branch M_SIDER")
    a.label("M_V")
    body("V")
    a.label("M_DONE")
    jitter(a)
    stamp(a, 6)
    stamp(a, 13, rt=True)
    lds_arrive(a, 2, 4, 5)
    qld = [f"buffer_load_dwordx2 {vr(QF + 2 * g, 2)}, v59, {sr(SWS, 4)}, s74 offen offset:{g * 512} sc1" for g in range(4)]
    a("v_readfirstlane_b32 s47, v61", "s_setprio 3", "s_waitcnt vmcnt(0)", "v_cmp_ne_u32 s[90:91], s47, v60",
      "s_mov_b64 exec, 3", f"buffer_load_dword v61, v57, {sr(SWS, 4)}, 0 offen sc1", "s_mov_b64 exec, -1")
    a("v_lshlrev_b32 v4, 4, v1", "s_mov_b32 s83, 1", "s_and_b32 s82, s90, 0xffff", "s_cbranch_scc1 M_NOK", *stage_kv(OFF_K, 0, 4, 73, 75), *stage_kv(OFF_V, 2048, 4, 73, 75),
      "s_waitcnt vmcnt(12)", "v_cmp_ne_u32 s[88:89], s47, v61", "s_nop 0", "s_and_b32 s83, s88, 3",
      "s_cbranch_scc1 M_NOK", *qld)
    a.label("M_NOK")
    for h in range(2):
        t = [T + 8 * h + k for k in range(8)]
        c = [ACB + 8 * h + k for k in range(8)]
        a(*[f"v_mul_f32 v{t[k]}, v{c[k]}, v{c[k]}" for k in range(8)])
        a(*[f"v_fma_f32 v{t[k]}, v{t[k]}, v6, v7" for k in range(8)])
        a(*[f"v_mul_f32 v{t[k]}, v{c[k]}, v{t[k]}" for k in range(8)])
        a(*[f"v_exp_f32 v{t[k]}, v{t[k]}" for k in range(8)])
        a(*[f"v_fma_f32 v{t[k]}, v{t[k]}, v15, v15" for k in range(8)])
        a(*[f"v_rcp_f32 v{t[k]}, v{t[k]}" for k in range(8)])
        a(*[f"v_mul_f32 v{t[k]}, v{c[k]}, v{t[k]}" for k in range(8)])
        a(*[f"v_cvt_pk_bf16_f32 v{32 + 4 * h + k}, v{t[2 * k]}, v{t[2 * k + 1]}" for k in range(4)])
        a(f"buffer_store_dwordx4 {vr(32 + 4 * h, 4)}, v4, {sr(SWS, 4)}, s84 offen offset:{1024 * h} sc1")
    a("s_setprio 0")


JIT = [0]


def jitter(a):
    if "jitter" not in EXP:
        return
    JIT[0] += 1
    n = JIT[0]
    a("s_memtime s[98:99]", "s_waitcnt lgkmcnt(0)", "s_lshl_b32 s99, s2, 3", "s_add_u32 s99, s99, s3",
      f"s_mul_i32 s99, s99, {2654435761 if n & 1 else 40503}", "s_xor_b32 s98, s98, s99", "s_lshr_b32 s98, s98, 3",
      "s_and_b32 s99, s98, 7", "s_cmp_eq_u32 s99, 0", f"s_cbranch_scc0 J_{n}X", "s_bfe_u32 s98, s98, 0x50003")
    a.label(f"J_{n}")
    a("s_sleep 8", "s_sub_u32 s98, s98, 1", f"s_cbranch_scc0 J_{n}")
    a.label(f"J_{n}X")


def lds_arrive(a, idx, vaddr, vtmp, val="1"):
    a(f"v_mov_b32 v{vaddr}, {L_CNT + 4 * idx}", f"v_mov_b32 v{vtmp}, {val}", "s_mov_b64 exec, 1",
      f"ds_add_u32 v{vaddr}, v{vtmp}", "s_mov_b64 exec, -1")


def lds_wait(a, tag, vaddr, vtmp, n=4):
    a(f"s_mov_b32 s27, {SPIN_MAX * 64}", f"s_branch {tag}_L")
    a.label(tag)
    a("s_sleep 1")
    a.label(tag + "_L")
    a(f"ds_read_b32 v{vtmp}, v{vaddr}", "s_waitcnt lgkmcnt(0)", f"v_readfirstlane_b32 s88, v{vtmp}",
      "s_sub_u32 s27, s27, 1", f"s_cbranch_scc1 {tag}_X", f"s_cmp_lt_u32 s88, {n}", f"s_cbranch_scc1 {tag}")
    a.label(tag + "_X")


def poll(a, tag, vaddr, nl, vtmp=60, pending=None):
    if pending:
        a(f"s_mov_b32 s27, {SPIN_MAX}", f"s_mov_b32 exec_lo, {pending}", "s_mov_b32 exec_hi, 0", f"s_branch {tag}_L")
    else:
        a(f"s_mov_b32 s27, {SPIN_MAX}", f"s_mov_b64 exec, {(1 << nl) - 1}", f"s_branch {tag}_L")
    a.label(tag)
    a("s_mov_b64 exec, s[88:89]", "s_sleep 3")
    a.label(tag + "_L")
    a(f"buffer_load_dword v{vtmp}, v{vaddr}, {sr(SWS, 4)}, 0 offen sc1", "s_waitcnt vmcnt(0)",
      f"v_cmp_ne_u32 s[88:89], s47, v{vtmp}", "s_sub_u32 s27, s27, 1", f"s_cbranch_scc1 {tag}_X",
      "s_cmp_lg_u64 s[88:89], 0", f"s_cbranch_scc1 {tag}")
    a.label(tag + "_X")
    a("s_mov_b64 exec, -1")


def epoch_issue(a, vz, vtmp):
    srd(a, SC, P_DBG, 256)
    a(f"v_mov_b32 v{vz}, 0", f"buffer_load_dword v{vtmp}, v{vz}, {sr(SC, 4)}, 0 offen sc1")


def epoch_wait(a, tag, vz, vtmp, n0):
    a(f"s_mov_b32 s27, {SPIN_MAX}", f"s_waitcnt vmcnt({n0})", f"s_branch {tag}_L")
    a.label(tag)
    a("s_sleep 3", f"buffer_load_dword v{vtmp}, v{vz}, {sr(SC, 4)}, 0 offen sc1", "s_waitcnt vmcnt(0)")
    a.label(tag + "_L")
    a(f"v_readfirstlane_b32 s47, v{vtmp}", "s_sub_u32 s27, s27, 1", f"s_cbranch_scc1 {tag}_X",
      "s_cmp_eq_u32 s47, 0", f"s_cbranch_scc1 {tag}")
    a.label(tag + "_X")


def gen_attn(a):
    KF, OA, CN, SM, VF = 128, 200, 216, 232, 16
    SB3 = (64, 80, 96)
    PFR = (32, 40, 112)
    qld = [f"buffer_load_dwordx2 {vr(QF + 2 * g, 2)}, v59, {sr(SWS, 4)}, s74 offen offset:{g * 512} sc1" for g in range(4)]
    pubm = ["v_mov_b32 v10, s47", "v_mov_b32 v11, 0", "s_mov_b64 exec, 1",
            f"buffer_store_dword v10, v11, {sr(SWS, 4)}, s85 offen sc1", "s_mov_b64 exec, -1"]
    vstage = stage_kv(OFF_V, 2048, 4, 73, 75)
    a(*pads(73, 75, 12, 8), "s_waitcnt vmcnt(0)", *pubm, "s_cmp_eq_u32 s82, 0", "s_cbranch_scc1 A_KOK")
    poll(a, "A_PK", 56, 16)
    a(*stage_kv(OFF_K, 0, 4, 73, 75), *vstage, "s_waitcnt vmcnt(0)")
    a.label("A_KOK")
    a("s_waitcnt lgkmcnt(0)")
    lds_arrive(a, 0, 8, 9)
    a("s_cmp_eq_u32 s83, 0", "s_cbranch_scc1 A_QOK")
    poll(a, "A_PQ", 57, 2)
    a(*qld, "s_waitcnt vmcnt(0)")
    a.label("A_QOK")
    a("v_cmp_eq_u32 vcc, 0, v3", "v_mov_b32 v5, 0x3f80", f"v_mov_b32 v15, {f32(-3e38)}",
      f"v_cndmask_b32 v{QF + 6}, v5, v{QF + 6}, vcc", f"v_cndmask_b32 v{QF + 7}, 0, v{QF + 7}, vcc")
    stamp(a, 8)
    a(f"s_setprio {APRIO}")
    lds_wait(a, "A_LB0", 8, 9)
    stamp(a, 9)
    TL = [0, 8, 1, 2, 3, 4, 5, 6, 7]

    def kread(n):
        i = TL[n]
        return [f"ds_read_b64 {vr(KF + 8 * i + 2 * g, 2)}, v124 offset:{(8 - i) * 4096 + g * 512}" for g in range(4)]

    def smm(i, s, c):
        return [mfma(s, KF + 8 * i, QF, c), mfma(s, KF + 8 * i + 4, QF + 4, s)]

    def smax(s):
        return [f"v_max3_f32 v15, v{s + 2 * k}, v{s + 2 * k + 1}, v15" for k in range(8)]

    p1buf = [SM, CN] + [SB3[n % 3] for n in range(7)]
    merge = [f"v_cndmask_b32 v{SM + k}, v{CN + k}, v{SM + k}, {ms(k)}" for k in range(16)]
    work = {0: ["s_nop 1"] * 2, 1: ["s_nop 1"] * 2, 2: ["s_nop 1"] * 4, 3: merge[:12], 4: merge[12:] + smax(p1buf[2]),
            5: smax(p1buf[3]) + smax(SM)[:4], 6: smax(p1buf[4]) + smax(SM)[4:]}
    a(*kread(0), *kread(1), *kread(2))
    for n in range(11):
        mx = work[n] if n in work else smax(p1buf[n - 2])
        h = len(mx) // 2
        if n < 9:
            mm = smm(TL[n], p1buf[n], "0")
            a(f"s_waitcnt lgkmcnt({4 * (min(8, n + 2) - n)})", mm[0])
            if n + 3 <= 8:
                a(*kread(n + 3))
            a(*mx[:h], mm[1], *mx[h:])
        else:
            if n == 10:
                a("s_nop 1")
            a(*mx)
    stamp(a, 10)
    a("v_mov_b32 v8, v15", "s_nop 1", "v_permlane32_swap_b32 v8, v15", "v_max_f32 v15, v8, v15",
      "v_xor_b32 v14, 0x80000000, v15")
    for i in range(16):
        a(f"v_mov_b32 v{CN + i}, v14")

    def vread(i, b):
        return [f"ds_read_b128 {vr(b, 4)}, v125 offset:{(8 - i) * 4096}",
                f"ds_read_b128 {vr(b + 4, 4)}, v126 offset:{(8 - i) * 4096}"]

    def pexp(s, p):
        o = []
        for h in range(2):
            o += [f"v_exp_f32 v{s + 8 * h + k}, v{s + 8 * h + k}" for k in range(8)]
            o += [f"v_cvt_pk_bf16_f32 v{p + 4 * h + k}, v{s + 8 * h + 2 * k}, v{s + 8 * h + 2 * k + 1}"
                  for k in range(4)]
        return o

    PD_, PO_ = KF, KF + 64
    pvq = [(0, PD_), (8, PO_)] + [(i, PFR[i % 3]) for i in range(1, 8)]
    vb = lambda n: VF + 8 * (n & 1)

    def pv(n):
        p = pvq[n][1]
        return [mfma(OA, vb(n), p, "0" if n == 0 else OA), mfma(OA, vb(n) + 4, p + 4, OA)]

    plan = {1: [0, 1], 2: [2], 3: [3], 4: [4], 5: [5], 6: [6], 7: [7]}
    for b in range(8):
        if b == 0:
            ex = [f"v_sub_f32 v{SM + k}, v{SM + k}, v15" for k in range(16)] + pexp(SM, PO_)
            ex += [x for k in range(8) for x in (f"v_and_b32 v{PD_ + k}, v{MK + k}, v{PO_ + k}",
                                                 f"v_xor_b32 v{PO_ + k}, v{PD_ + k}, v{PO_ + k}")]
        else:
            ex = pexp(SB3[b % 3], PFR[b % 3])
        seq = []
        if b < 7:
            seq += [[m] for m in smm(b + 1, SB3[(b + 1) % 3], CN)]
        if b == 0:
            a(*vread(pvq[0][0], vb(0)), *vread(pvq[1][0], vb(1)))
        for n in plan.get(b, []):
            pp = pv(n)
            seq += [["s_waitcnt lgkmcnt(2)", pp[0]], [pp[1]] + vread(pvq[n + 2][0], vb(n)) if n + 2 < 9 else [pp[1]]]
        if b == 7:
            seq += [["s_waitcnt lgkmcnt(0)", pv(8)[0]]]
        step = 24 // len(seq)
        ins = {(2 if b == 0 else 0) + i * (8 if b == 0 else step): x for i, x in enumerate(seq)}
        for k, e in enumerate(ex):
            a(*ins.get(k, []))
            a(e)
    a("s_nop 1", pv(8)[1])
    a.label("A_FIN")
    jitter(a)
    stamp(a, 11)
    PF = 32
    a(f"s_mul_i32 s41, s71, {ACT_RT}", "s_lshl_b32 s42, s70, 11", "s_add_u32 s41, s41, s42",
      f"s_add_u32 s41, s41, {OFF_ACT + 112 * 1024}", f"s_mul_i32 s42, s71, {FLG_RT}", "s_lshl_b32 s27, s70, 7",
      "s_add_u32 s42, s42, s27", f"s_add_u32 s42, s42, {OFF_FLG + 98 * 128}",
      "v_mov_b32 v10, s47", "v_mov_b32 v11, 0", "s_nop 1")
    a(f"v_mov_b32 v8, v{OA + 12}", f"v_mov_b32 v9, v{OA + 12}", "s_nop 1", "v_permlane32_swap_b32 v8, v9",
      "v_rcp_f32 v9, v9", "s_nop 0")
    for h in range(2):
        for i in range(8 * h, 8 * h + 8):
            a(f"v_mul_f32 v{OA + i}, v9, v{OA + i}")
        for k in range(4 * h, 4 * h + 4):
            a(f"v_cvt_pk_bf16_f32 v{PF + k}, v{OA + 2 * k}, v{OA + 2 * k + 1}")
        if h:
            a(f"v_cndmask_b32 v{PF + 6}, 0, v{PF + 6}, vcc", f"v_cndmask_b32 v{PF + 7}, 0, v{PF + 7}, vcc")
        a(f"buffer_store_dwordx4 {vr(PF + 4 * h, 4)}, v4, {sr(SWS, 4)}, s41 offen offset:{1024 * h} sc1")
    a("s_waitcnt vmcnt(0)", "s_mov_b64 exec, 1",
      f"buffer_store_dword v10, v11, {sr(SWS, 4)}, s42 offen sc1", "s_mov_b64 exec, -1")
    stamp_out(a)
    a("s_endpgm")


G_R = 10
G_RW = 12
G_RES = 192
G_P1 = 3
HLEAD = 3
G_MW = 9
GX, GWO, GW2, GOUT = 4, 8, 16, 20


def publish(reg, off=0):
    return ["s_mov_b64 exec, 1", f"buffer_store_dword v58, v59, {sr(SWS, 4)}, s{reg} offen offset:{off} sc1",
            "s_mov_b64 exec, -1"]


HCHK = eval(os.environ.get('HCHK', '{4: (2, 24), 16: (10, 28)}'))
OCHK = eval(os.environ.get('OCHK', '(21, 26)'))
AMAX = int(os.environ.get('AMAX', '2'))
BURST = int(os.environ.get('BURST', '10'))
BAR = int(os.environ.get('BAR', '16'))
XPRIO = int(os.environ.get('XPRIO', '2'))
PUBD = int(os.environ.get('PUBD', '3'))
PUBK = int(os.environ.get('PUBK', '2'))


KORD = [0, 2, 1, 3, 4, 5, 6, 8, 10, 7, 9, 11, 12, 13]


KT = sum(n << (4 * i) for i, n in enumerate(KORD))


def kpos(k):
    n = KORD[k >> 1]
    return 16 * (n >> 1) + 2 * (n & 1) + (k & 1)


def slot(k):
    sl = k % G_RW
    if sl < 4:
        return 0, sl * 2048
    return 1, (L_S0 - L_RING + (sl - 4) * 2048) if sl < 8 else (sl - 8) * 2048


def dma_w(k):
    up, off = slot(k)
    src, w = wsrc(k)
    return [f"s_add_u32 m0, s{14 if up else 65}, {off}", *src, f"buffer_load_dwordx4 v32, {sr(w, 4)}, s27 offen lds",
            f"buffer_load_dwordx4 v33, {sr(w, 4)}, s27 offen offset:1024 lds"]


R0, R1 = 4, 12
RT64 = sum((8 * (n >> 1) + (n & 1)) << (8 * i) for i, n in enumerate(KORD[R0:R1]))


def rslot(k, unit):
    g = (k >> 1) - R0
    return [f"s_bfe_u32 s27, s{86 + (g >> 2)}, {0x80000 | 8 * (g & 3):#x}", f"s_mul_i32 s27, s27, {unit}"]


def areg(k):
    return (16 + 8 * (k % G_R)) if (k % G_R) < 2 else (128 + 8 * (k % G_R - 2))


def issue_a(k, b0=44, b1=45):
    r = areg(k)
    off = (k & 1) * 1024
    o = []
    if k & 1 == 0 and R0 <= k >> 1 < R1:
        o = rslot(k, 2048) + [f"s_add_u32 s70, s{b0}, s27", f"s_add_u32 s71, s{b1}, s27"]
    elif k & 1 == 0:
        o = [f"s_add_u32 s70, s{b0}, {kpos(k) * 1024}", f"s_add_u32 s71, s{b1}, {kpos(k) * 1024}"]
    return o + [f"buffer_load_dwordx4 {vr(r, 4)}, v13, {sr(SWS, 4)}, s70 offen offset:{off} sc1",
                f"buffer_load_dwordx4 {vr(r + 4, 4)}, v13, {sr(SWS, 4)}, s71 offen offset:{off} sc1"]


def wsrc(k):
    if R0 <= k >> 1 < R1:
        return rslot(k, 32 * 896) + [f"s_add_u32 s27, s27, s{85 if k & 1 else 12}"], GW2
    if k < 28:
        return [f"s_add_u32 s27, s12, {kpos(k) * 16 * 896}"], GW2
    kk = k - 28
    return [f"s_add_u32 s27, s13, {((kk >> 1) * 28 + (kk & 1) * 16) * 896}"], GWO


PK0 = G_RW
PK1 = G_RW + 16
NA1 = int(os.environ.get('NA1', '4'))
NPA = int(os.environ.get('NPA', '4'))


def preg(k):
    if k < NPA:
        return 96 + 8 * k if k < 4 else 144 + 8 * (k - 4)
    return 192 + 8 * ((k - PK0) % 8)


def park_w(k):
    src, w = wsrc(k)
    return [*src, f"buffer_load_dwordx4 {vr(preg(k), 4)}, v32, {sr(w, 4)}, s27 offen",
            f"buffer_load_dwordx4 {vr(preg(k) + 4, 4)}, v33, {sr(w, 4)}, s27 offen offset:1024"]


PSCHED = [int(x) for x in os.environ.get("PS", "2,1,1,4,4").split(",")]
PORDER = list(range(NPA)) + list(range(PK0, PK0 + 8))


def gen_aux(a):
    AC, T, P = 64, 16, 48
    SWQ, SW1 = SA, SB
    a("s_setprio 3", "s_add_u32 s59, s49, 7", "s_sub_u32 s27, s49, 14", "s_cmp_ge_u32 s49, 14",
      "s_cselect_b32 s59, s27, s59", "s_lshl_b32 s69, s59, 7", "s_mul_i32 s27, s55, 56",
      "v_min_u32 v16, 55, v1", "v_add_u32 v16, s27, v16", "v_mul_u32_u24 v17, 2688, v16",
      "s_add_u32 s60, s49, 2", "s_sub_u32 s27, s49, 5",
      "s_cmp_lt_u32 s49, 5", "s_cselect_b32 s60, s60, s27", "s_add_u32 s61, s57, 11", "v_lshlrev_b32 v12, 2, v1")
    if "ct0" in EXP:
        a("s_cmp_lt_u32 s53, 4", "s_cbranch_scc0 X_CT", "s_cmp_eq_u32 s26, 1", "s_cbranch_scc0 X_CT",
          f"s_getpc_b64 {sr(SC, 2)}")
        a.label("X_PC")
        a(f"s_sub_u32 s{SC}, s{SC}, X_PC-{NAME}_kernel", f"s_subb_u32 s{SC + 1}, s{SC + 1}, 0",
          f"s_mov_b32 s{SC + 2}, L_CODE_END-{NAME}_kernel", f"s_mov_b32 s{SC + 3}, 0x20000", "s_lshl_b32 s27, s53, 13",
          "v_lshlrev_b32 v19, 7, v1", f"buffer_load_dword v19, v19, {sr(SC, 4)}, s27 offen")
        a.label("X_CT")
    a("s_waitcnt lgkmcnt(0)")
    stamp(a, 0, rt=True)
    stamp(a, 1)
    srd(a, SWQ, P_WQKV, WQKV_BYTES)
    if "notouch0" not in EXP:
        a("s_cmp_eq_u32 s26, 0", "s_cbranch_scc0 X_WD", f"buffer_load_dword v17, v17, {sr(SWQ, 4)}, s69 offen")
    a.label("X_WD")
    srd(a, SW1, P_W1, W1_BYTES)
    srd(a, SWS, P_WS, WS_BYTES)
    a("s_lshl_b32 s27, s2, 3", "s_add_u32 s27, s27, s3", "s_cmp_eq_u32 s27, 7", "s_cbranch_scc0 X_NOEP")
    srd(a, SC, P_DBG, 256)
    a(f"v_mov_b32 v20, {OFF_EPOCH}", "v_mov_b32 v22, 0", "s_mov_b64 exec, 1",
      f"buffer_load_dword v21, v20, {sr(SWS, 4)}, 0 offen sc1", "s_waitcnt vmcnt(0)",
      "v_add_u32 v21, 1, v21", "v_max_u32 v21, 1, v21",
      f"buffer_store_dword v21, v22, {sr(SC, 4)}, 0 offen sc1",
      f"buffer_store_dword v21, v20, {sr(SWS, 4)}, 0 offen sc1", "s_mov_b64 exec, -1")
    a.label("X_NOEP")
    a("s_cmp_eq_u32 s3, 5", "s_cbranch_scc0 X_PRE")
    srd(a, SC, P_B1, 3584)
    a("s_mov_b32 exec_hi, 0", f"s_mov_b32 m0, {L_BIAS + 128}", "s_lshl_b32 s27, s60, 7",
      f"buffer_load_dword v12, {sr(SC, 4)}, s27 offen lds",
      f"s_mov_b32 m0, {L_BIAS + 256}", "s_lshl_b32 s27, s61, 7",
      f"buffer_load_dword v12, {sr(SC, 4)}, s27 offen lds",
      f"s_mov_b32 m0, {L_BIAS + 384}", "s_lshl_b32 s27, s51, 6", f"s_add_u32 s27, s27, {27 * 128}",
      f"buffer_load_dword v12, {sr(SC, 4)}, s27 offen lds", "s_mov_b32 exec_hi, -1",
      f"v_add_u32 v20, {L_CNT}, v12", "v_mov_b32 v21, 0", "ds_write_b32 v20, v21")
    a.label("X_PRE")
    a(f"s_setprio {1 if 'auxprio' in EXP else 0}")
    a("v_bfe_u32 v15, v1, 2, 3", "v_lshlrev_b32 v13, 6, v3", "v_and_b32 v14, 3, v1", "v_lshl_add_u32 v13, v14, 4, v13",
      "v_mul_u32_u24 v4, 2688, v15", "v_add_u32 v4, v4, v13", "v_mul_u32_u24 v8, 3584, v15", "v_add_u32 v8, v8, v13")
    for k in range(1, 4):
        a(f"v_add_u32 v{4 + k}, {k * (8 * 2688 - 1024)}, v4", f"v_add_u32 v{8 + k}, {k * (8 * 3584 - 1024)}, v8")
    a(f"s_mul_i32 s27, s58, {FLG_RT}", f"s_add_u32 s27, s27, {OFF_FLG}", "s_lshl_b32 s62, s59, 8",
      "s_add_u32 s62, s62, s27", "s_lshl_b32 s64, s61, 8", "s_add_u32 s64, s64, s27", f"s_add_u32 s64, s64, {42 * 128}",
      "s_lshl_b32 s63, s60, 8", "s_add_u32 s63, s63, s27", f"s_add_u32 s27, s63, {42 * 128}",
      "s_cmp_lt_u32 s49, 5", "s_cselect_b32 s63, s63, s27")
    a(f"s_mul_i32 s66, s26, {56 * 2688}", f"s_mul_i32 s67, s26, {56 * 3584}", "s_mul_i32 s68, s26, 7168",
      "v_lshlrev_b32 v13, 4, v1", "v_lshlrev_b32 v14, 3, v1")
    a(f"s_mul_i32 s76, s58, {RT}", f"s_mul_i32 s77, s58, {ACT_RT}", f"s_add_u32 s77, s77, {OFF_ACT}",
      f"s_add_u32 s78, s76, {OFF_V}",
      "s_lshl_b32 s72, s59, 12", f"s_add_u32 s27, s72, {OFF_K - 7 * 4096}", "s_cmp_ge_u32 s59, 7",
      "s_cselect_b32 s72, s27, s72", "s_add_u32 s72, s72, s76",
      "s_sub_u32 s27, s59, 14", "s_lshl_b32 s27, s27, 10", "s_add_u32 s27, s27, s78",
      "s_cmp_ge_u32 s59, 14", "s_cselect_b32 s72, s27, s72",
      "s_lshl_b32 s74, s61, 12", "s_add_u32 s74, s74, s77",
      "s_lshl_b32 s73, s60, 12", "s_cmp_lt_u32 s49, 5", "s_cselect_b32 s27, s76, s77", "s_add_u32 s73, s73, s27",
      "v_mul_u32_u24 v15, 448, v3", "v_lshl_add_u32 v15, v2, 4, v15", "s_movk_i32 s79, 1344",
      "s_lshl_b32 s27, s26, 13", "v_add_u32 v57, s27, v12", "v_add_u32 v56, 4096, v57", "v_mov_b32 v59, 0")
    gemm_setup(a)

    def dma(ffn, src, slot):
        vb, pitch, w, wo = (8, 3584, SW1, 67) if ffn else (4, 2688, SWQ, 66)
        o = [f"s_add_u32 m0, s68, {slot}", f"s_add_u32 s27, {src}, s{wo}"]
        o += [f"buffer_load_dwordx4 v{vb + k}, {sr(w, 4)}, s27 offen offset:{k * 1024} lds" for k in range(4)]
        o += ["s_add_u32 m0, m0, 4096", f"s_add_u32 s27, s27, {32 * pitch}"]
        o += [f"buffer_load_dwordx4 v{vb + k}, {sr(w, 4)}, s27 offen offset:{k * 1024} lds" for k in range(3)]
        return o

    def dma2(tag, slot, half):
        a("s_cmp_lt_u32 s49, 5", f"s_cbranch_scc0 {tag}F", f"s_add_u32 s83, s71, {half * 224 * 2688}",
          *dma(False, "s83", slot), f"s_branch {tag}D")
        a.label(tag + "F")
        a(f"s_add_u32 s83, s71, {half * 224 * 3584}", *dma(True, "s83", slot))
        a.label(tag + "D")

    a("s_lshl_b32 s69, s59, 7", f"s_add_u32 s70, s69, {224 * 2688}", "s_lshl_b32 s71, s60, 7", "s_waitcnt lgkmcnt(0)")
    if "st0early" in EXP:
        a(*dma(False, "s69", L_S0))
    stamp(a, 2)
    a("s_barrier")
    stamp(a, 3)
    if "st0early" not in EXP:
        a(*dma(False, "s69", L_S0))
    a(*dma(False, "s70", L_S1))
    dma2("X_D2", L_S2, 0)
    a(f"buffer_load_dword v58, v59, {sr(SC, 4)}, 0 offen sc1", "s_waitcnt vmcnt(15)")
    stamp(a, 4)
    a("s_barrier")
    c0, c1 = GC0, GC1
    a("s_lshl_b32 s27, s26, 8", f"s_add_u32 s27, s27, {L_STAT}", "v_lshl_add_u32 v16, v2, 2, s27",
      "v_lshl_add_u32 v17, v3, 4, s27", "ds_read_b32 v40, v16", "ds_read_b32 v41, v16 offset:128",
      f"v_mov_b32 v18, {L_CNT + 64}")
    stamp(a, 30)
    a("s_waitcnt vmcnt(8)", "s_barrier")
    dma2("X_D3", L_S3, 1)
    a("v_mov_b32 v7, v17")
    XR = 80
    if "noxres" in EXP:
        a("s_mov_b32 s6, 0")
    a(f"buffer_load_dwordx4 {vr(XR, 4)}, v44, {sr(GX, 4)}, s15 offen",
      f"buffer_load_dwordx4 {vr(XR + 4, 4)}, v44, {sr(GX, 4)}, s15 offen offset:32",
      f"buffer_load_dwordx4 {vr(XR + 8, 4)}, v39, {sr(SD, 4)}, s101 offen",
      f"buffer_load_dwordx4 {vr(XR + 12, 4)}, v39, {sr(SD, 4)}, s101 offen offset:32")
    a("s_cmp_ge_u32 s49, 14", f"s_cselect_b32 s27, {f32(QSCALE)}, 1.0",
      "s_waitcnt lgkmcnt(0)",
      f"v_mul_f32 v42, {f32(c0)}, v40", "v_mul_f32 v43, v40, v40", "v_mul_f32 v43, v43, v40",
      f"v_mul_f32 v43, {f32(c1)}, v43", "v_mul_f32 v40, s27, v40")
    RM = int(os.environ.get("RM", "2"))
    a("s_lshr_b32 s27, s53, 2", "s_and_b32 s84, s53, 3", f"s_mul_i32 s84, s84, {RM}", "s_add_u32 s27, s27, s84",
      f"s_and_b32 s27, s27, {0 if 'norot' in EXP else 7}", "s_lshl_b32 s27, s27, 3",
      f"s_mov_b32 s88, {RT64 & 0xffffffff}", f"s_mov_b32 s89, {RT64 >> 32}", "s_lshr_b64 s[86:87], s[88:89], s27",
      "s_sub_u32 s27, 63, s27", "s_lshl_b64 s[88:89], s[88:89], s27", "s_lshl_b64 s[88:89], s[88:89], 1",
      "s_or_b64 s[86:87], s[86:87], s[88:89]", f"s_add_u32 s85, s12, {16 * 896}")
    pos = [0]

    def take(p):
        n = PSCHED[p + 1]
        ks = PORDER[pos[0]:pos[0] + n]
        pos[0] += n
        return [x for k in ks for x in (park_w(k)[:-1], park_w(k)[-1:])]

    np_ = lambda p: 2 * PSCHED[p + 1]
    for x in take(-1):
        a(*x)
    epoch_wait(a, "X_EP", 59, 58, 11 + np_(-1))
    a("ds_write_b32 v18, v58", "s_lshl_b32 s82, s61, 7", "s_waitcnt lgkmcnt(0)")

    ACX = (AC, 128)

    def reads(u):
        return [f"ds_read2st64_b32 {vr(ACX[u & 1] + 2 * q, 2)}, v{56 + (u & 1)} offset0:{2 * q} offset1:{2 * q + 1}"
                for q in range(8)]

    def head(u):
        o = ["s_barrier"]
        if HOLD == 20 + u:
            o += ["s_memrealtime s[96:97]"]
        if STAMP and "ks" not in EXP:
            o += ["s_memtime s[98:99]", "s_waitcnt lgkmcnt(0)", f"v_writelane_b32 v63, s98, {16 + 4 * u}"]
        return o + reads(u)

    def ffn(u, weave, mid, nxt):
        blocks = []
        for g in range(4):
            t = [T + 4 * (g & 1) + k for k in range(4)]
            s = [ACX[u & 1] + 4 * g + k for k in range(4)]
            blocks += [[f"s_waitcnt lgkmcnt({6 - 2 * g})"] + [f"v_mul_f32 v{t[k]}, v{s[k]}, v{s[k]}" for k in range(4)],
                       [f"v_fma_f32 v{t[k]}, v{t[k]}, v43, v42" for k in range(4)]
                       + [f"v_mul_f32 v{t[k]}, v{s[k]}, v{t[k]}" for k in range(4)],
                       [f"v_exp_f32 v{t[k]}, v{t[k]}" for k in range(4)],
                       [f"v_fma_f32 v{t[k]}, v{t[k]}, v41, v41" for k in range(4)]
                       + [f"v_rcp_f32 v{t[k]}, v{t[k]}" for k in range(2)],
                       [f"v_rcp_f32 v{t[k]}, v{t[k]}" for k in range(2, 4)]
                       + [f"v_mul_f32 v{t[k]}, v{s[k]}, v{t[k]}" for k in range(4)]
                       + [f"v_cvt_pk_bf16_f32 v{P + 2 * g}, v{t[0]}, v{t[1]}",
                          f"v_cvt_pk_bf16_f32 v{P + 2 * g + 1}, v{t[2]}, v{t[3]}"]]
        at = {}
        for i in range(0, len(weave), 2):
            b = 9 + i * 9 // len(weave)
            at.setdefault(b, []).append(weave[i])
            at.setdefault(b + 1, []).insert(0, weave[i + 1])
        n = 0
        for b, blk in enumerate(blocks):
            if b == BAR and nxt:
                a("s_waitcnt lgkmcnt(0)", *nxt(n))
            a(*[x for x in blk if not (nxt and b >= BAR and x.startswith("s_waitcnt"))])
            if b == 9:
                m = mid(n)
                a(*m)
                n += sum(x.startswith("buffer_load") for x in m)
            if b in (9, 19):
                a(f"buffer_store_dwordx4 {vr(P + 4 * (b // 10), 4)}, v13, {sr(SWS, 4)}, s72 offen offset:{(b // 10) * 1024} sc1")
            for w in at.get(b, []):
                a(*w)
                n += 1
        a("s_add_u32 s72, s72, 2048")

    def qkv(u):
        a(f"s_bitcmp1_b32 s54, {2 * u}", f"s_cbranch_scc1 X_B{u}", f"s_call_b64 s[90:91], X_QK{u & 1}", f"s_branch X_C{u}")
        a.label(f"X_B{u}")
        a(f"s_call_b64 s[90:91], X_V{u & 1}")
        a.label(f"X_C{u}")
        jitter(a)

    def extra(tag, slot, setup):
        return ["s_cmp_eq_u32 s50, 7", f"s_cbranch_scc0 {tag}", setup, *dma(True, "s82", slot), tag + ":"]

    a(*head(0))
    qkv(0)
    a(*dma(True, "s82", L_S0))
    for x in take(0):
        a(*x)
    a(f"s_waitcnt vmcnt({4 + np_(-1) + 2 + 7 + np_(0)})")
    a(*head(1))
    qkv(1)
    a("s_mov_b32 s72, s73", f"s_add_u32 s82, s82, {224 * 3584}", *dma(True, "s82", L_S1))
    for x in take(1):
        a(*x)
    a(f"s_waitcnt vmcnt({np_(0) + 2 + 7 + np_(1)})")
    a(*head(2))
    w2, w3 = take(2), take(3)
    pub01 = ["s_waitcnt vmcnt(0)", *publish(62), *publish(62, 128)]
    a("s_cmp_lt_u32 s49, 5", "s_cbranch_scc0 X_R1F")
    a(*pub01, f"v_mul_f32 v40, {f32(QSCALE)}, v40", "s_call_b64 s[90:91], X_QK0")
    for x in w2:
        a(*x)
    a(*head(3), "s_waitcnt vmcnt(0)", *publish(63), "s_call_b64 s[90:91], X_QK1", "s_waitcnt vmcnt(0)", *publish(63, 128), *head(4))
    for x in w3:
        a(*x)
    a("s_branch X_R2")
    a.label("X_R1F")
    jitter(a)
    d6 = ["s_cmp_eq_u32 s50, 7", "s_cbranch_scc0 X_N6", f"v_mul_u32_u24 v60, {224 * 3584 - 64}, v3",
          *[f"v_add_u32 v{8 + k}, v60, v{8 + k}" for k in range(4)], "s_lshl_b32 s82, s51, 6",
          f"s_add_u32 s82, s82, {27 * 128}", *dma(True, "s82", L_S2), "X_N6:"]
    ffn(2, w2, lambda n: pub01 + d6, lambda n: head(3))
    ffn(3, w3, lambda n: ["s_waitcnt vmcnt(0)", *publish(63)], lambda n: head(4))
    a.label("X_R2")
    jitter(a)
    a("s_mov_b32 s72, s74")
    kreq = ["s_mov_b64 exec, 0xf",
            f"buffer_load_dword v62, v36, {sr(SWS, 4)}, 0 offen sc1", "s_mov_b64 exec, -1"]
    ffn(4, [], lambda n: [f"s_setprio {XPRIO}", "s_waitcnt vmcnt(0)", *publish(63, 128), *kreq], None)
    a("s_cmp_eq_u32 s50, 7", "s_cbranch_scc0 X_DONE", *head(5))
    ffn(5, [], lambda n: ["s_waitcnt vmcnt(0)", *publish(64)], None)
    a("s_branch X_DONE")
    for par in range(2):
        A_ = ACX[par]
        a.label(f"X_QK{par}")
        for g in range(4):
            a(f"s_waitcnt lgkmcnt({6 - 2 * g})")
            for k in range(4):
                a(f"v_mul_f32 v{T + 4 * g + k}, v40, v{A_ + 4 * g + k}")
            a(f"v_cvt_pk_bf16_f32 v{P + 2 * g}, v{T + 4 * g}, v{T + 4 * g + 1}",
              f"v_cvt_pk_bf16_f32 v{P + 2 * g + 1}, v{T + 4 * g + 2}, v{T + 4 * g + 3}",
              f"buffer_store_dwordx2 {vr(P + 2 * g, 2)}, v14, {sr(SWS, 4)}, s72 offen offset:{g * 512} sc1")
        a("s_add_u32 s72, s72, 2048", "s_setpc_b64 s[90:91]")
        a.label(f"X_V{par}")
        for g in range(4):
            a(f"ds_read_b128 {vr(T + 4 * g, 4)}, v7 offset:{g * 32}")
        a("s_sub_u32 s27, s72, s78", "s_lshr_b32 s27, s27, 4", "v_add_u32 v60, s27, v2",
          "v_mul_u32_u24 v60, 2341, v60", "v_lshrrev_b32 v60, 16, v60", "v_mad_u32_u24 v60, v60, s79, v15")
        for s in range(2):
            a(f"s_waitcnt lgkmcnt({2 - 2 * s})")
            for k in range(8):
                a(f"v_mul_f32 v{T + 8 * s + k}, v{T + 8 * s + k}, v{A_ + 8 * s + k}")
            for k in range(4):
                a(f"v_cvt_pk_bf16_f32 v{P + 4 * s + k}, v{T + 8 * s + 2 * k}, v{T + 8 * s + 2 * k + 1}")
            a(f"buffer_store_dwordx4 {vr(P + 4 * s, 4)}, v60, {sr(SWS, 4)}, s72 offen offset:{s * 896} sc1")
        a("s_add_u32 s72, s72, 512", "s_setpc_b64 s[90:91]")
    a.label("X_DONE")
    stamp(a, 5)


def gemm_setup(a):
    srd(a, SD, P_B2, 896)
    srd(a, SC, P_DBG, 256)
    a(f"s_mov_b32 s{GX + 2}, {X_BYTES}", f"s_mov_b32 s{GX + 3}, 0x20000",
      "s_lshl_b32 s88, s52, 2", "s_and_b32 s27, s53, 3", "s_add_u32 s88, s88, s27", "s_lshr_b32 s89, s53, 2",
      "s_and_b32 s90, s26, 1", "s_lshr_b32 s91, s26, 1", "s_lshl_b32 s27, s88, 1",
      "s_add_u32 s44, s27, s90", "s_xor_b32 s45, s44, 1", "s_lshl_b32 s89, s89, 7",
      "s_lshl_b32 s101, s91, 6", "s_add_u32 s101, s101, s89", f"s_mul_i32 s15, s44, {RT}", "s_add_u32 s15, s15, s101",
      "v_lshlrev_b32 v39, 4, v3", "v_mul_u32_u24 v44, 896, v2", "v_add_u32 v44, v44, v39",
      f"s_mov_b32 s{GWO + 2}, {WO_BYTES}", f"s_mov_b32 s{GWO + 3}, 0x20000",
      f"s_mov_b32 s{GW2 + 2}, {W2_BYTES}", f"s_mov_b32 s{GW2 + 3}, 0x20000",
      f"s_mov_b32 s{GOUT + 2}, {X_BYTES}", f"s_mov_b32 s{GOUT + 3}, 0x20000")
    a("v_bfe_u32 v46, v1, 2, 2", "v_bfe_u32 v47, v1, 4, 1", "v_lshl_add_u32 v46, v47, 3, v46",
      "v_mul_u32_u24 v32, 896, v46", "v_lshl_add_u32 v32, v3, 6, v32", "v_and_b32 v46, 3, v1",
      "v_lshl_add_u32 v32, v46, 4, v32", f"v_add_u32 v33, {4 * 896 - 1024}, v32")
    a(f"s_mul_i32 s88, s88, {2 * FLG_RT}", f"s_add_u32 s88, s88, {OFF_FLG}",
      f"v_mov_b32 v46, {KT & 0xffffffff}", f"v_mov_b32 v47, {KT >> 32}", "v_and_b32 v45, 30, v1",
      "v_lshlrev_b32 v45, 1, v45", "v_lshrrev_b64 v[46:47], v45, v[46:47]", "v_bfe_u32 v47, v46, 1, 3",
      "v_and_b32 v46, 1, v46", "v_lshl_add_u32 v47, v47, 3, v46",
      "v_and_b32 v46, 1, v1", f"v_mul_u32_u24 v46, {FLG_N}, v46",
      "s_lshl_b32 s27, s26, 1", "s_add_u32 s27, s27, 42", "v_add3_u32 v47, v47, v46, s27",
      "v_lshlrev_b32 v47, 7, v47", "v_add_u32 v36, s88, v47",
      "v_bfe_u32 v47, v1, 1, 2", "v_add_u32 v46, v46, v47",
      "s_lshl_b32 s27, s26, 2", "s_add_u32 s27, s27, 98", "v_add_u32 v46, s27, v46", "v_lshlrev_b32 v46, 7, v46",
      "v_add_u32 v37, s88, v46")
    a(f"s_mul_i32 s12, s26, {64 * 896}", "s_add_u32 s12, s12, s89",
      f"s_mul_i32 s13, s26, {112 * 896}", "s_add_u32 s13, s13, s89",
      "s_cmp_eq_u32 s50, 7", "s_cselect_b32 s12, 0x40000000, s12", "s_cselect_b32 s15, 0x40000000, s15",
      "s_lshl_b32 s65, s26, 13", f"s_add_u32 s14, s65, {L_RING}",
      f"s_mul_i32 s44, s44, {ACT_RT}", f"s_mul_i32 s45, s45, {ACT_RT}",
      "s_lshl_b32 s27, s26, 13", f"s_add_u32 s27, s27, {OFF_ACT + 112 * 1024}",
      "s_add_u32 s46, s44, s27", "s_add_u32 s100, s45, s27",
      "s_lshl_b32 s27, s26, 12", f"s_add_u32 s27, s27, {OFF_ACT}", "s_add_u32 s44, s44, s27", "s_add_u32 s45, s45, s27")
    a("v_and_b32 v46, 1, v1", "v_bfe_u32 v47, v1, 1, 1", "v_lshl_add_u32 v46, v46, 1, v47",
      "v_bfe_u32 v47, v1, 4, 1", "v_lshl_add_u32 v46, v47, 2, v46",
      "v_bfe_u32 v47, v1, 2, 2", "v_lshlrev_b32 v47, 6, v47", "v_lshl_add_u32 v46, v46, 3, v47",
      "v_lshl_add_u32 v46, v3, 10, v46", "s_lshl_b32 s27, s91, 9", "s_add_u32 s27, s27, s14",
      "v_add_u32 v34, s27, v46", "v_xor_b32 v35, 512, v34")
    a("v_add_u32 v38, s14, v13")
    for t in range(1, 4):
        a(f"s_xor_b32 s27, s26, {t}", "s_lshl_b32 s27, s27, 13", f"s_add_u32 s27, s27, {L_RING}",
          f"v_add_u32 v{44 + t}, s27, v13")


def gemm_res(a):
    XR, RES, TM = 80, 64, 16
    for k in range(8):
        a(f"v_lshlrev_b32 v{RES + 2 * k}, 16, v{XR + k}", f"v_and_b32 v{RES + 2 * k + 1}, 0xffff0000, v{XR + k}",
          f"v_lshlrev_b32 v{TM + 2 * k}, 16, v{XR + 8 + k}", f"v_and_b32 v{TM + 1 + 2 * k}, 0xffff0000, v{XR + 8 + k}")
    for i in range(16):
        a(f"v_add_f32 v{XR + i}, v{RES + i}, v{TM + i}")


def gen_gemm(a):
    R, RW = G_R, G_RW
    AC, OR, XR = 64, 192, 16
    WFR = (4, 48)
    NK = 36
    ACS = (80, 64, 96, 112)
    pub = publish(64)
    a("s_cmp_lt_u32 s53, 28", "s_cbranch_scc1 G_GO", "s_waitcnt vmcnt(0)", *publish(64, 128))
    stamp_out(a)
    a("s_endpgm")
    a.label("G_GO")
    jitter(a)

    def req(v, nl, dst=60):
        return [f"s_mov_b64 exec, {(1 << nl) - 1}", f"buffer_load_dword v{dst}, v{v}, {sr(SWS, 4)}, 0 offen sc1",
                "s_mov_b64 exec, -1"]

    def chk(mask, target, src=60):
        return [f"v_cmp_ne_u32 s[88:89], s47, v{src}", "s_nop 0", f"s_and_b32 s88, s88, {mask}", f"s_cbranch_scc0 {target}"]

    def issue_w(k):
        return park_w(k) if PK0 <= k < PK1 else dma_w(k)

    def dump(k):
        up, off = slot(k)
        va = 38 if up else 43
        return [f"ds_write_b128 v{va}, {vr(preg(k), 4)} offset:{off}",
                f"ds_write_b128 v{va}, {vr(preg(k) + 4, 4)} offset:{off + 1024}"]

    def wread(k):
        w = WFR[k & 1]
        up, off = slot(k)
        va = 34 if up else 40
        return [f"ds_read_b64_tr_b16 {vr(w, 2)}, v{va} offset:{off}",
                f"ds_read_b64_tr_b16 {vr(w + 2, 2)}, v{va} offset:{off + 256}",
                f"ds_read_b64_tr_b16 {vr(w + 4, 2)}, v{va + 1} offset:{off}",
                f"ds_read_b64_tr_b16 {vr(w + 6, 2)}, v{va + 1} offset:{off + 256}"]

    q = []

    def emit_w(k):
        nonlocal q
        a(*issue_w(k))
        q += [("w", k)] * 2

    def upto(tags):
        nonlocal q
        need = [i for i, kk in enumerate(q) if kk in tags]
        q = q[max(need) + 1:] if need else q
        assert len(q) <= 63
        return f"s_waitcnt vmcnt({len(q)})"

    left = PORDER[sum(PSCHED):]
    a("v_add_u32 v43, s65, v13", f"v_mov_b32 v42, {L_CNT + 8}",
      f"v_subrev_u32 v40, {L_RING}, v34", f"v_subrev_u32 v41, {L_RING}, v35")
    assert sum(PSCHED) >= NPA + 2
    gemm_res(a)
    for k in range(min(NPA, 8)):
        a(*dump(k))
        if k == PUBD:
            a("s_waitcnt vmcnt(0)", *pub, "s_setprio 0")
            stamp(a, 7)
            a(*chk(0xf, "G_OK0", 62))
            poll(a, "G_P0", 36, NA1, 61, pending="s88")
            a.label("G_OK0")
            for kk in range(NA1):
                a(*issue_a(kk))
                q += [("a", kk)] * 2
    lds_wait(a, "G_LW", 42, 56)
    for k in range(8, NPA):
        a(*dump(k))
    for k in range(NPA, 8):
        emit_w(k)
    while left and left[0] < PK0 + 2:
        emit_w(left.pop(0))
    stamp(a, 6)
    a(*wread(0))
    if -1 in {v[0] for v in HCHK.values()}:
        a(*req(36, 28))
        q += ["b"]
    pend = [("w", k) for k in left + list(range(max(8, NPA), RW))]
    anext = NA1
    alim = NA1
    onext = 0

    def split(ops):
        out, cur = [], []
        for o in ops:
            if o == "s_mov_b64 exec, -1":
                out[-1].append(o)
                continue
            cur.append(o)
            if o.startswith("buffer_") or o.startswith("ds_"):
                out.append(cur)
                cur = []
        assert not cur
        return out

    def issue_o1(kk):
        o = ["s_add_u32 s46, s46, 4096", "s_add_u32 s100, s100, 4096"] if kk == 4 else []
        return o + [f"buffer_load_dwordx4 {vr(OR + 8 * kk, 4)}, v13, {sr(SWS, 4)}, s46 offen offset:{(kk & 3) * 1024} sc1",
                    f"buffer_load_dwordx4 {vr(OR + 8 * kk + 4, 4)}, v13, {sr(SWS, 4)}, s100 offen offset:{(kk & 3) * 1024} sc1"]

    for k in range(NK):
        if k in HCHK:
            nl = HCHK[k][1]
            a(upto({"b"}), *chk(((1 << nl) - 1) & ~((1 << alim) - 1), f"G_HK{k}"))
            poll(a, f"G_HP{k}", 36, nl, pending="s88")
            a.label(f"G_HK{k}")
            if k == min(HCHK):
                stamp(a, 8)
            alim = nl
            while anext < min(alim, k + BURST):
                a(*issue_a(anext))
                q += [("a", anext)] * 2
                anext += 1
        if k == OCHK[1]:
            assert k > PK1 - RW
            a(upto({"p"}), *chk(0xff, "G_OKO", 61))
            poll(a, "G_PO", 37, 8, 61, pending="s88")
            a.label("G_OKO")
            stamp(a, 10)
        kd = k + RW
        tags = {("a", k), ("w", k + 1)}
        if PK0 <= kd < PK1:
            tags |= {("w", kd)}
        assert not any(t in pend for t in tags)
        n0 = len(q)
        wt = upto(tags)
        if len(q) != n0:
            a(wt)
        if STAMP and "ks" in EXP:
            if k:
                a(f"v_writelane_b32 v63, s96, {27 + k}")
            a("s_memtime s[96:97]")
        elif k in (12, 28):
            stamp(a, {12: 9, 28: 11}[k])
        w = WFR[k & 1]
        r = areg(k) if k < 28 else OR + 8 * (k - 28)
        c = (lambda t: ACS[0] if t == 0 else "0") if k == 0 else (lambda t: ACS[t])
        vm = []
        if k == OCHK[0]:
            vm += req(37, 8, 61)
            q += ["p"]
        if k in {v[0] for v in HCHK.values()}:
            nl_ = next(v[1] for v in HCHK.values() if v[0] == k)
            vm += [f"s_mov_b64 exec, {((1 << nl_) - 1) & ~((1 << alim) - 1)}"] + req(36, 28)[1:]
            q += ["b"]
        budget = AMAX
        while anext < min(alim, k + R) and budget:
            vm += issue_a(anext)
            q += [("a", anext)] * 2
            anext += 1
            budget -= 1
        if k >= OCHK[1]:
            budget += 1
        while k >= OCHK[1] and onext < 8 and budget:
            vm += issue_o1(onext)
            q += [("a", 28 + onext)] * 2
            onext += 1
            budget -= 1
        kp = kd + 7
        if k >= 1 and kp < PK1:
            pend.append(("w", kp))
        if PK1 <= kd < NK:
            pend.append(("w", kd))
        for _ in range(2 if budget == AMAX else 1):
            if pend:
                t = pend.pop(0)
                vm += issue_w(t[1])
                q += [t] * 2
        pieces = split(vm)
        dm = split(dump(kd)) if PK0 <= kd < PK1 else []
        rd = wread(k + 1) if k < NK - 1 else []
        mm = [mfma(ACS[0], w, r, c(0)), mfma(ACS[1], w, r + 4, c(1)), mfma(ACS[2], w + 4, r, c(2)),
              mfma(ACS[3], w + 4, r + 4, c(3))]
        pieces = dm + pieces
        per = (len(pieces) + 2) // 3
        a("s_waitcnt lgkmcnt(0)", mm[0], *rd)
        for t in range(1, 4):
            a(mm[t])
            for p in pieces[(t - 1) * per:t * per]:
                a(*p)
    assert onext == 8 and not pend
    assert anext == 28
    stamp(a, 12)
    jitter(a)
    RO = (0, 0, 4096, L_S0 - L_RING)
    a("s_nop 7", "s_nop 1")
    for t in range(1, 4):
        for qq in range(4):
            a(f"ds_write_b128 v38, {vr(ACS[t] + 4 * qq, 4)} offset:{RO[t] + qq * 1024}")
    a("s_waitcnt lgkmcnt(0)", "s_barrier")
    stamp(a, 13)
    for t in range(1, 4):
        for qq in range(4):
            a(f"ds_read_b128 {vr(ACS[t] + 4 * qq, 4)}, v{44 + t} offset:{RO[t] + qq * 1024}")
    for t in (1, 2):
        a(f"s_waitcnt lgkmcnt({12 - 4 * t})")
        for i in range(16):
            a(f"v_add_f32 v{ACS[0] + i}, v{ACS[0] + i}, v{ACS[t] + i}")
    for h in range(2):
        a(f"s_waitcnt lgkmcnt({2 - 2 * h})")
        for i in range(8 * h, 8 * h + 8):
            a(f"v_add_f32 v{ACS[0] + i}, v{ACS[0] + i}, v{ACS[3] + i}")
        for k in range(4 * h, 4 * h + 4):
            a(f"v_cvt_pk_bf16_f32 v{XR + k}, v{ACS[0] + 2 * k}, v{ACS[0] + 2 * k + 1}")
        a(f"buffer_store_dwordx4 {vr(XR + 4 * h, 4)}, v44, {sr(GOUT, 4)}, s15 offen offset:{32 * h} {os.environ.get('OUTF', '')}")
    stamp_out(a)


def post(t):
    fl, fs = os.environ.get("FL"), os.environ.get("FS")
    if fl is not None:
        t = "\n".join(l.replace(" sc1", " " + fl) if "buffer_load_dword " in l else l for l in t.split("\n"))
    if fs is not None:
        t = "\n".join(l.replace(" sc1", " " + fs) if "buffer_store_dword " in l else l for l in t.split("\n"))
    if os.environ.get("SLP"):
        t = t.replace("s_sleep 3", "s_sleep " + os.environ["SLP"])
    lines = t.split("\n")
    g = next(i for i, l in enumerate(lines) if l.startswith("G_GO"))
    o = lines[:g]
    for l in lines[g:]:
        if "plainact" in EXP and "buffer_load_dwordx4 v[" in l:
            l = l.replace(" sc1", "")
        if "gnomfma" in EXP and "v_mfma" in l:
            continue
        if "gnoa" in EXP and "buffer_load_dwordx4 v[" in l:
            l = l.replace("v13,", "v59,")
        if "gnow" in EXP and " lds" in l:
            l = l.replace("v32,", "v59,").replace("v33,", "v59,")
        o.append(l)
    return "\n".join(o)


def main(out):
    a = Asm()
    for l in ("Fused LayerNorm + sliding-window attention + GELU FFN block, one persistent launch.",
              "256 workgroups (one per CU) of 8 waves: waves 0-3 run the QKV / FFN1 MFMA tiles and then attention,",
              "waves 4-7 run the tile epilogues and weight staging and then the output GEMM.",
              "Hand-offs go through d_ws with write-through stores and per-tile flags tagged with a launch epoch.",
              "Kernarg: 0 x, 8 wqkv, 16 wo, 24 unused, 32 w1, 40 b1, 48 w2, 56 b2, 64 out, 72 debug, 80 ws."):
        a.raw("; " + l)
    a.raw(f"; @launch grid=(256,1,1) block=(512,1,1) lds={LDS_BYTES}")
    a.raw('.amdgcn_target "amdgcn-amd-amdhsa--gfx950"')
    a.raw(".text")
    name = gen(a)
    a.raw('.section .rodata,"a"')
    a.raw(".p2align 6")
    a.raw(f".amdhsa_kernel {name}")
    a.raw("  .amdhsa_next_free_vgpr 256")
    a.raw("  .amdhsa_next_free_sgpr 102")
    a.raw("  .amdhsa_accum_offset 256")
    a.raw("  .amdhsa_group_segment_fixed_size 0")
    a.raw("  .amdhsa_kernarg_size 88")
    a.raw("  .amdhsa_user_sgpr_count 2")
    a.raw("  .amdhsa_user_sgpr_kernarg_segment_ptr 1")
    a.raw("  .amdhsa_system_sgpr_workgroup_id_x 1")
    a.raw(".end_amdhsa_kernel")
    open(out, "w").write(post(a.text()))


if __name__ == "__main__":
    if "--stamp" in sys.argv:
        sys.argv.remove("--stamp")
        STAMP = True
    if "--dbg" in sys.argv:
        sys.argv.remove("--dbg")
        DBG = True
    main(sys.argv[1] if len(sys.argv) > 1 else f"cdna_kernels/{NAME}.s")
```
